```python
import torch

def _softmax(x, axis=-1):
    return torch.softmax(x, dim=axis)
def _gelu(x):
    return torch.nn.functional.gelu(x, approximate="tanh")
def _silu(x):
    return torch.nn.functional.silu(x)
def _sigmoid(x):
    return torch.sigmoid(x)
def _layernorm(x, axis=-1, eps=1e-5):
    m = x.mean(dim=axis, keepdim=True)
    v = x.var(dim=axis, keepdim=True, unbiased=False)
    return (x - m) / torch.sqrt(v + eps)
def _scatter_add(tgt, idx, src, axis=0):
    return tgt.clone().index_add_(axis, idx, src)
def _segment_sum(src, seg, n):
    out = torch.zeros((n,) + src.shape[1:], dtype=src.dtype)
    return out.index_add_(0, seg, src)
def _pad(x, pw):
    flat = tuple(v for pair in reversed(pw) for v in pair)
    return torch.nn.functional.pad(x, flat)

kernel_name = 'recurrent_scan__sliding_local_dilated__moe_arch_mod__prompt'

def setup_inputs():

    _w = (lambda a: (lambda t: t.to(torch.bfloat16) if t.is_floating_point() else t)(torch.as_tensor(a)))
    def _A_setup():
        B, S, D = 1, 2048, 640
        return {
            "x": _w((lambda *s: torch.randn(*s, dtype=torch.bfloat16) * 0.05)(B, S, D)),
            "wqkv": _w((lambda *s: torch.randn(*s, dtype=torch.bfloat16) * 0.05)(D, 3 * D)),
            "wo": _w((lambda *s: torch.randn(*s, dtype=torch.bfloat16) * 0.05)(D, D)),
        }
    _A_in = _A_setup()

    def _B_setup():
        B, S, D, F, C = 1, 2048, 640, 1728, 2
        return {
            "x": _w((lambda *s: torch.randn(*s, dtype=torch.bfloat16) * 0.05)(B, S, D)),
            "w_r": _w((lambda *s: torch.randn(*s, dtype=torch.bfloat16) * 0.05)(D)),
            "w_gate": _w((lambda *s: torch.randn(*s, dtype=torch.bfloat16) * 0.05)(D, F)),
            "w_up": _w((lambda *s: torch.randn(*s, dtype=torch.bfloat16) * 0.05)(D, F)),
            "w_down": _w((lambda *s: torch.randn(*s, dtype=torch.bfloat16) * 0.05)(F, D)),
        }
    _B_in = _B_setup()

    return {
        "A_x": _A_in["x"],
        "A_wqkv": _A_in["wqkv"],
        "A_wo": _A_in["wo"],
        "B_x": _B_in["x"],
        "B_w_r": _B_in["w_r"],
        "B_w_gate": _B_in["w_gate"],
        "B_w_up": _B_in["w_up"],
        "B_w_down": _B_in["w_down"],
    }

def reference(A_x, A_wqkv, A_wo, B_x, B_w_r, B_w_gate, B_w_up, B_w_down):
    def _A_ref(x, wqkv, wo):
        B, S, D = x.shape
        H = 32; Dh = D // H
        W, dil = 8, 2
        qkv = (lambda x, *d: x.permute(*d))((x @ wqkv).reshape(B, S, 3, H, Dh), 2, 0, 3, 1, 4)
        q, k, v = qkv[0], qkv[1], qkv[2]
        scale = Dh ** -0.5
        pos = torch.arange(S)
        off = torch.arange(W) * dil
        idx = pos[:, None] - off[None, :]
        mask = idx >= 0
        idx_c = torch.where(mask, idx, 0).reshape(-1)
        kg = k[:, :, idx_c, :].reshape(B, H, S, W, Dh)
        vg = v[:, :, idx_c, :].reshape(B, H, S, W, Dh)
        logits = torch.einsum("bhsd,bhswd->bhsw", q, kg) * scale
        logits = torch.where(mask[None, None, :, :], logits, -1e9)
        attn = _softmax(logits, axis=-1)
        o = torch.einsum("bhsw,bhswd->bhsd", attn, vg)
        return (lambda x, *d: x.permute(*d))(o, 0, 2, 1, 3).reshape(B, S, D) @ wo

    def _B_ref(x, w_r, w_gate, w_up, w_down):
        B, S, D = x.shape
        C = 2
        r = x @ w_r
        idx = torch.argsort(-r, axis=-1)[:, :C]
        idx_e = (lambda x, n, axis: torch.repeat_interleave(x, n, dim=axis))(idx.reshape(B, C, 1), D, axis=2)
        x_sel = (lambda x, i, axis: torch.take_along_dim(x, i, dim=axis))(x, idx_e, axis=1)
        g = _silu(x_sel @ w_gate)
        u = x_sel @ w_up
        y = (g * u) @ w_down
        r_sel = _sigmoid((lambda x, i, axis: torch.take_along_dim(x, i, dim=axis))(r, idx, axis=1))
        y = y * r_sel.reshape(B, C, 1)
        b_off = (torch.arange(B) * S).reshape(B, 1)
        flat_idx = (idx + b_off).reshape(B * C)
        zero = (x * 0.0).reshape(B * S, D)
        upd = _scatter_add(zero, flat_idx, y.reshape(B * C, D), axis=0)
        return x + upd.reshape(B, S, D)

    x = A_x
    xn = _layernorm(x, axis=-1)
    s = _A_ref(xn, A_wqkv, A_wo)
    g = _silu(_B_ref(xn, B_w_r, B_w_gate, B_w_up, B_w_down))
    return x + s * g
```

```python
import re

REG_RE = re.compile(r'^(-|abs\()?([vas])(\d+)\)?$')
RNG_RE = re.compile(r'^(-)?([vas])\[(\d+):(\d+)\]$')
TRANS = ('v_exp_f32', 'v_log_f32', 'v_rcp_f32', 'v_rsq_f32', 'v_sqrt_f32', 'v_sin_f32', 'v_cos_f32', 'v_rcp_iflag_f32')

def regs_of(tok):
    tok = tok.strip()
    if tok == 'vcc': return {('s', 106), ('s', 107)}
    if tok == 'vcc_lo': return {('s', 106)}
    if tok == 'vcc_hi': return {('s', 107)}
    if tok == 'exec': return {('s', 126), ('s', 127)}
    if tok == 'm0': return {('s', 124)}
    m = REG_RE.match(tok)
    if m: return {(m.group(2), int(m.group(3)))}
    m = RNG_RE.match(tok)
    if m: return {(m.group(2), i) for i in range(int(m.group(3)), int(m.group(4)) + 1)}
    return set()

def split_ops(rest):
    ops = []; depth = 0; cur = ''
    for ch in rest:
        if ch in '[(': depth += 1
        if ch in '])': depth -= 1
        if ch == ',' and depth == 0: ops.append(cur.strip()); cur = ''
        else: cur += ch
    if cur.strip(): ops.append(cur.strip())
    mods = ''
    if ops:
        parts = ops[-1].split(None, 1)
        ops[-1] = parts[0]
        if len(parts) > 1: mods = parts[1]
    return ops, mods

class Ins:
    def __init__(self, text):
        self.text = text
        t = text.split(';')[0].strip()
        p = t.split(None, 1)
        self.op = p[0]
        self.ops, self.mods = split_ops(p[1]) if len(p) > 1 else ([], '')
        op = self.op; ops = self.ops
        self.w = set(); self.r = set(); self.kind = 'other'
        self.states = 1
        R = [regs_of(o) for o in ops]
        def U(l):
            s = set()
            for x in l: s |= x
            return s
        if op == 's_nop':
            self.kind = 'nop'; self.states = int(ops[0], 0) + 1
        elif op.startswith('v_mfma'):
            self.kind = 'mfma'; self.w = R[0]; self.ab = R[1] | R[2]; self.c = R[3]; self.r = self.ab | self.c
            self.passes = 8 if '32x32' in op else 4
        elif op.startswith('v_'):
            self.kind = 'valu'
            base = re.sub(r'_(e32|e64|dpp|sdwa)$', '', op)
            self.base = base
            self.trans = base in TRANS
            self.dpp = op.endswith('_dpp') or 'row_' in self.mods or 'quad_perm' in self.mods
            self.dot = base.startswith('v_dot')
            if base.startswith('v_cmpx'): raise Exception('avoid v_cmpx')
            if base.startswith('v_permlane') and 'swap' in base:
                self.w = R[0] | R[1]; self.r = R[0] | R[1]
            elif base in ('v_add_co_u32', 'v_sub_co_u32', 'v_subrev_co_u32', 'v_addc_co_u32', 'v_subb_co_u32', 'v_div_scale_f32', 'v_mad_u64_u32'):
                self.w = R[0] | R[1]; self.r = U(R[2:])
            else:
                self.w = R[0]; self.r = U(R[1:])
                if base in ('v_fmac_f32', 'v_dot2c_f32_bf16', 'v_writelane_b32', 'v_pk_fmac_f16') or self.dpp or 'dst_sel' in self.mods: self.r |= R[0]
            self.opsel_dst = ('dst_sel' in self.mods and 'DWORD' not in self.mods.split('dst_sel:')[1].split()[0])
        elif op.startswith('ds_'):
            self.kind = 'ds'
            if op.startswith('ds_read') or op.startswith('ds_bpermute') or op.startswith('ds_permute') or op.startswith('ds_swizzle') or '_rtn' in op:
                self.w = R[0]; self.r = U(R[1:])
            else: self.r = U(R)
        elif op.startswith('buffer_') or op.startswith('global_'):
            self.kind = 'vmem'
            self.lds = ' lds' in (' ' + self.mods) or '_lds_' in op
            self.wide_store = False
            if op.startswith('buffer_inv') or op.startswith('buffer_wbl2'): pass
            elif self.lds: self.r = U(R) | {('s', 124)}
            elif '_load' in op: self.w = R[0]; self.r = U(R[1:])
            elif '_atomic' in op:
                self.r = U(R)
                if 'sc0' in self.mods: self.w = R[0]
            else:
                self.r = U(R)
                if 'x3' in op or 'x4' in op:
                    self.wide_store = True
                    self.data = R[0] if op.startswith('buffer_') else R[1]
        elif op.startswith('s_'):
            self.kind = 'salu'
            if op.startswith('s_cbranch') or op in ('s_branch', 's_endpgm', 's_setpc_b64'): self.kind = 'branch'
            elif op in ('s_waitcnt', 's_barrier', 's_sleep', 's_setprio') or op.startswith('s_cmp') or op.startswith('s_bitcmp'): self.r = U(R)
            else:
                self.w = R[0] if R else set(); self.r = U(R[1:])
                if 'saveexec' in op: self.w |= regs_of('exec')

def need(p, c):
    n = 0
    vw = {x for x in p.w if x[0] != 's'}; sw = {x for x in p.w if x[0] == 's'}
    if p.kind == 'valu':
        if c.kind == 'mfma' and vw & c.r: n = max(n, 3 if p.dot else 2)
        if c.kind == 'mfma' and p.base.startswith('v_pk_'): n = max(n, 1)
        if c.kind == 'valu':
            if p.trans and not c.trans and vw & c.r: n = max(n, 1)
            if p.trans and c.trans and vw & c.r: n = max(n, 1)
            if sw & c.r: n = max(n, 4 if c.base in ('v_readlane_b32', 'v_writelane_b32') else 2)
            if c.base in ('v_readlane_b32', 'v_readfirstlane_b32') and vw & c.r: n = max(n, 1)
            if c.base.startswith('v_permlane') and vw & c.r: n = max(n, 2)
            if c.dpp and vw & c.r: n = max(n, 2)
            if p.opsel_dst and vw & (c.r | c.w): n = max(n, 1)
            if p.dot and vw & (c.r | c.w):
                same_c = (c.base == p.base and vw == c.w and not (vw & (regs_of(c.ops[1]) | regs_of(c.ops[2]))))
                if not same_c: n = max(n, 3)
        if c.kind in ('vmem', 'ds') and p.dot and vw & c.r: n = max(n, 3)
        if c.kind in ('vmem', 'ds') and p.trans and vw & c.r: n = max(n, 1)
        if c.kind == 'vmem' and sw & c.r: n = max(n, 5)
        if c.kind == 'salu' and sw & c.r: n = max(n, 1)
    if p.kind == 'mfma':
        big = 12 if p.passes == 8 else 8
        if c.kind == 'mfma':
            if p.w & c.ab: n = max(n, big)
            if p.w & c.c and not (p.w == c.c and p.passes == c.passes): n = max(n, big - 2)
            if p.w & c.w and p.w != c.c: n = max(n, big)
            if p.c & c.w and p.c != p.w: n = max(n, 0)
        elif c.kind in ('valu', 'vmem', 'ds'):
            if p.w & (c.r | c.w): n = max(n, big)
            if c.kind == 'valu' and p.c & c.w: n = max(n, 7 if p.passes == 8 else 3)
    if p.kind == 'vmem' and getattr(p, 'wide_store', False):
        if p.data & c.w: n = max(n, 2 if c.kind == 'valu' else 1)
    if p.kind == 'salu' and ('s', 124) in p.w:
        if c.kind == 'vmem' and c.lds: n = max(n, 1)
    if p.kind in ('ds', 'vmem', 'salu') and c.kind == 'valu' and c.dpp and False: pass
    return n

class Asm:
    def __init__(self):
        self.lines = []
        self.nlabel = 0
    def __call__(self, text):
        for t in text.split('\n'):
            t = t.strip()
            if t: self.lines.append(('i', t))
    def label(self, name): self.lines.append(('l', name))
    def raw(self, text): self.lines.append(('r', text))
    def comment(self, text): self.lines.append(('r', '    ; ' + text))
    def newlabel(self, base='L'):
        self.nlabel += 1
        return f'{base}_{self.nlabel}'
    def render(self):
        out = []; win = []
        self.nops_added = 0
        MAXD = 13
        def flush():
            worst = 0
            for p, d in win:
                if p.kind == 'mfma': m = 12 if p.passes == 8 else 8
                elif p.kind == 'valu': m = 5 if any(x[0] == 's' for x in p.w) else (3 if p.dot else 2)
                elif p.kind == 'vmem' and getattr(p, 'wide_store', False): m = 2
                elif p.kind == 'salu' and ('s', 124) in p.w: m = 1
                else: m = 0
                worst = max(worst, m - d)
            if worst > 0:
                out.append(f'    s_nop {worst - 1}'); self.nops_added += 1
            win.clear()
        for kind, t in self.lines:
            if kind == 'r': out.append(t); continue
            if kind == 'l':
                flush(); out.append(t + ':'); continue
            ins = Ins(t)
            if ins.kind == 'branch':
                for e in win: e[1] += 1
                flush(); out.append('    ' + t); continue
            pad = 0
            for p, d in win:
                pad = max(pad, need(p, ins) - d)
            if pad > 0:
                out.append(f'    s_nop {pad - 1}'); self.nops_added += 1
                for e in win: e[1] += pad
            out.append('    ' + t)
            for e in win: e[1] += ins.states
            win[:] = [e for e in win if e[1] < MAXD]
            if ins.kind != 'nop': win.append([ins, 0])
        return '\n'.join(out) + '\n'

class RegAlloc:
    def __init__(self, kind, lo, hi):
        self.kind = kind; self.lo = lo; self.hi = hi; self.used = {}; self.taken = set(); self.maxused = lo
    def alloc(self, name, n=1, align=None):
        if align is None: align = 1 if n == 1 else (4 if (self.kind == 's' and n >= 4) else 2)
        i = self.lo
        while True:
            i = (i + align - 1) // align * align
            if i + n > self.hi: raise Exception(f'out of {self.kind} regs for {name} x{n}')
            if all((j not in self.taken) for j in range(i, i + n)): break
            i += 1
        for j in range(i, i + n): self.taken.add(j)
        assert name not in self.used, name
        self.used[name] = (i, n); self.maxused = max(self.maxused, i + n)
        return Reg(self.kind, i, n)
    def free(self, *names):
        for name in names:
            i, n = self.used.pop(name)
            for j in range(i, i + n): self.taken.discard(j)

class Reg:
    def __init__(self, kind, base, n): self.kind = kind; self.base = base; self.n = n
    def __getitem__(self, idx):
        if isinstance(idx, slice):
            a = idx.start or 0; b = idx.stop if idx.stop is not None else self.n
            assert 0 <= a < b <= self.n, (a, b, self.n)
            return Reg(self.kind, self.base + a, b - a)
        assert 0 <= idx < self.n, (idx, self.n)
        return Reg(self.kind, self.base + idx, 1)
    def __str__(self):
        return f'{self.kind}{self.base}' if self.n == 1 else f'{self.kind}[{self.base}:{self.base + self.n - 1}]'
    __repr__ = __str__
    def __format__(self, spec): return str(self)
```

```python
import sys, math, struct
from asmlib import Asm, RegAlloc, Reg
NAME = "recurrent_scan__sliding_local_dilated__moe_arch_mod__prompt"
OPTS = set(sys.argv[2:])
STAMPS = 'stamps' in OPTS
DUMP = [o[5:] for o in OPTS if o.startswith('dump=')]
DUMP = DUMP[0] if DUMP else None

def f32(x): return '0x%08x' % struct.unpack('<I', struct.pack('<f', x))[0]

def tables():
    U = []; SL = []
    for cc in range(5):
        h0 = (16 * cc) // 5
        slot = [((16 * cc + q) // 5) - h0 for q in range(16)]
        s1 = [q for q in range(16) if slot[q] == 1]; s2 = [q for q in range(16) if slot[q] == 2]
        assert len(s1) == 5 and len(s2) == 5 and max(slot) == 3
        t0 = s1[:4]; e1 = s1[4]; t3 = s2[1:]; e2 = s2[0]
        rest = [q for q in range(16) if q not in t0 and q not in t3]
        t1 = []; t2 = []
        for res in range(4):
            pair = [q for q in rest if q % 4 == res]; assert len(pair) == 2
            if e1 in pair: a = e1; b = pair[0] if pair[1] == e1 else pair[1]
            elif e2 in pair: b = e2; a = pair[0] if pair[1] == e2 else pair[1]
            else: a, b = pair
            assert a != e2 and b != e1
            t1.append(a); t2.append(b)
        tl = [sorted(t0, key=lambda q: q % 4), t1, t2, sorted(t3, key=lambda q: q % 4)]
        u = 0; sl = 0
        for t in range(4):
            for g in range(4):
                q = tl[t][g]; assert q % 4 == g
                u |= (q // 4) << (2 * (4 * t + g)); sl |= slot[q] << (2 * (4 * t + g))
        U.append(u); SL.append(sl)
    return U, SL
UT, SLT = tables()

SLOT = 30848; ONES_OFF = 30720; XOFF = 16384; SPARE = 24576
WIN = [0, 0, 2 * SLOT, 2 * SLOT, 4 * SLOT]
SCR = 5 * SLOT
L_M = SCR; L_R = SCR + 512; L_CS = SCR + 1024
L_CSV = SCR + 3072
L_UPD = SCR + 4096
L_INFO = SCR + 4096 + 768
LDS_BYTES = 163840
WS_SX = 0x100000; WS_O = 0x400000; WS_FL = 0x700000; WS_Y = 0x710000; WS_ST = 0x800000; WS_DUMP = 0x1000000
DBG_NONCE = 60; DBG_VAL = 64; DBG_IDX = 192
NEG_INF = '0xff800000'
SCALE_L2E = (20 ** -0.5) * math.log2(math.e)

A = Asm()
V = RegAlloc('v', 1, 256); AG = RegAlloc('a', 0, 256); S = RegAlloc('s', 3, 102)

class VM:
    def __init__(self): self.q = []
    def issue(self, tag): self.q.append(tag)
    def wait(self, tag, extra=''):
        if tag not in self.q:
            if extra: A('s_waitcnt' + extra)
            return
        idx = max(i for i, t in enumerate(self.q) if t == tag)
        n = len(self.q) - 1 - idx
        assert n <= 63
        A(f's_waitcnt vmcnt({n}){extra}')
        self.q = self.q[idx + 1:]
    def drain(self): A('s_waitcnt vmcnt(0)'); self.q = []

sST = []
def stamp():
    if not STAMPS: return
    r = S.alloc(f'stamp{len(sST)}', 2); sST.append(r)
    A(f's_memtime {r}' if 'clk' in OPTS else f's_memrealtime {r}')

def bf16r(dst, src):
    A(f'v_cvt_pk_bf16_f32 {dst}, {src}, {src}')
    A(f'v_lshlrev_b32 {dst}, 16, {dst}')

def interleave(main, fill, per=1):
    fi = 0
    for m in main:
        A(m)
        for _ in range(per):
            if fi < len(fill): A(fill[fi]); fi += 1
    while fi < len(fill): A(fill[fi]); fi += 1

def mk_srd(dst, ptr, nbytes, add=0):
    if add:
        A(f's_add_u32 {dst[0]}, {ptr[0]}, {add}'); A(f's_addc_u32 {dst[1]}, {ptr[1]}, 0')
    else:
        A(f's_mov_b32 {dst[0]}, {ptr[0]}'); A(f's_mov_b32 {dst[1]}, {ptr[1]}')
    A(f's_mov_b32 {dst[2]}, {nbytes}'); A(f's_mov_b32 {dst[3]}, 0x20000')

def stats(sumreg, sq4, negm_rs, tmp, vdiag_addr, mk1, mk2):
    A(f'v_cndmask_b32 {tmp[0]}, {sq4[0]}, {sq4[1]}, {mk1}')
    A(f'v_cndmask_b32 {tmp[1]}, {sq4[2]}, {sq4[3]}, {mk1}')
    A(f'v_cndmask_b32 {tmp[0]}, {tmp[0]}, {tmp[1]}, {mk2}')
    A(f'ds_bpermute_b32 {tmp[0]}, {vdiag_addr}, {tmp[0]}')
    A(f'v_mul_f32 {tmp[1]}, {f32(1 / 640)}, {sumreg}')
    bf16r(negm_rs[0], tmp[1])
    A(f'v_xor_b32 {negm_rs[0]}, 0x80000000, {negm_rs[0]}')
    A(f'v_mul_f32 {tmp[1]}, {tmp[1]}, {tmp[1]}')
    A('s_waitcnt lgkmcnt(0)')
    A(f'v_mul_f32 {tmp[0]}, {f32(1 / 640)}, {tmp[0]}')
    A(f'v_sub_f32 {tmp[0]}, {tmp[0]}, {tmp[1]}')
    A(f'v_max_f32 {tmp[0]}, 0, {tmp[0]}')
    bf16r(tmp[0], tmp[0])
    A(f'v_add_f32 {tmp[0]}, {f32(1e-5)}, {tmp[0]}')
    bf16r(tmp[0], tmp[0])
    A(f'v_sqrt_f32 {tmp[0]}, {tmp[0]}')
    bf16r(tmp[0], tmp[0])
    A(f'v_rcp_f32 {negm_rs[1]}, {tmp[0]}')

def spin_guard():
    A(f's_sub_u32 {sSpin}, {sSpin}, 1'); A('s_cbranch_scc1 Lend')

def row16_max_u32(r):
    for sh in (8, 4, 2, 1):
        A(f'v_max_u32_dpp {r}, {r}, {r} row_ror:{sh} row_mask:0xf bank_mask:0xf')

def wave_max_u32(r, sdst, st):
    row16_max_u32(r)
    A(f'v_readlane_b32 {sdst}, {r}, 0'); A(f'v_readlane_b32 {st[0]}, {r}, 16')
    A(f'v_readlane_b32 {st[1]}, {r}, 32'); A(f'v_readlane_b32 {st[2]}, {r}, 48')
    A(f's_max_u32 {sdst}, {sdst}, {st[0]}'); A(f's_max_u32 {st[1]}, {st[1]}, {st[2]}'); A(f's_max_u32 {sdst}, {sdst}, {st[1]}')

def poll_top2(vlane4, t, sK0, sK1, st, nonce_dst):
    L = A.newlabel('Lpt')
    A.label(L)
    spin_guard()
    A(f'v_add_u32 {t[1]}, {DBG_VAL}, {vlane4}'); A(f'v_and_b32 {t[1]}, 0xff, {t[1]}')
    A(f'buffer_load_dword {t[0]}, {t[1]}, {sDBG}, 0 offen sc1')
    A(f'v_lshrrev_b32 {t[1]}, 1, {vlane4}'); A(f'v_and_b32 {t[1]}, 0x3c, {t[1]}'); A(f'v_add_u32 {t[1]}, 128, {t[1]}')
    A('s_waitcnt vmcnt(0)')
    A(f'ds_bpermute_b32 {t[1]}, {t[1]}, {t[0]}')
    A(f'v_readlane_b32 {nonce_dst}, {t[0]}, 63')
    A(f'v_and_b32 {t[2]}, 4, {vlane4}'); A(f'v_lshlrev_b32 {t[2]}, 2, {t[2]}')
    A('s_waitcnt lgkmcnt(0)')
    A(f'v_bfe_u32 {t[1]}, {t[1]}, {t[2]}, 16')
    A(f'v_cmp_ne_u32 vcc, 0, {t[0]}'); A(f'v_cmp_ne_u32 {st[0:2]}, 0, {t[1]}')
    A(f's_and_b32 {st[0]}, {st[0]}, vcc_lo')
    A(f's_cmp_lg_u32 {nonce_dst}, 0'); A(f's_cselect_b32 {st[0]}, {st[0]}, 0')
    A(f's_cmp_eq_u32 {st[0]}, -1')
    Ld = A.newlabel('Lptd')
    A(f's_cbranch_scc1 {Ld}')
    A('s_sleep 4'); A(f's_branch {L}')
    A.label(Ld)
    A(f'v_lshlrev_b32 {t[2]}, 4, {vlane4}')
    A(f'v_and_b32 {t[3]}, 63, {t[1]}'); A(f'v_add_u32 {t[3]}, {t[3]}, {t[2]}'); A(f'v_sub_u32 {t[3]}, 2047, {t[3]}')
    A(f'v_bfe_u32 {t[1]}, {t[1]}, 6, 6'); A(f'v_add_u32 {t[1]}, {t[1]}, {t[2]}'); A(f'v_sub_u32 {t[1]}, 2047, {t[1]}')
    A(f'v_and_b32 {t[2]}, 0xffff0000, {t[0]}'); A(f'v_or_b32 {t[3]}, {t[3]}, {t[2]}')
    A(f'v_lshl_or_b32 {t[1]}, {t[0]}, 16, {t[1]}')
    A(f'v_cmp_gt_u32 vcc, 128, {vlane4}')
    A(f'v_cndmask_b32 {t[3]}, 0, {t[3]}, vcc'); A(f'v_cndmask_b32 {t[1]}, 0, {t[1]}, vcc')
    A(f'v_mov_b32 {t[0]}, {t[3]}')
    wave_max_u32(t[0], sK0, st)
    A(f'v_cmp_eq_u32 vcc, {sK0}, {t[3]}')
    A(f'v_cndmask_b32 {t[0]}, {t[3]}, {t[1]}, vcc')
    wave_max_u32(t[0], sK1, st)

sKA = S.alloc('ka', 16); sKB = S.alloc('kb', 6, 4)
sX = S.alloc('srdx', 4); sWQ = S.alloc('srdq', 4); sWK = S.alloc('srdk', 4); sWV = S.alloc('srdv', 4)
sWS = S.alloc('srdws', 4); sDBG = S.alloc('srddbg', 4)
sW = S.alloc('w'); sRB = S.alloc('rb'); sC = S.alloc('c'); sCC = S.alloc('cc')
sT = S.alloc('t', 4); sTag = S.alloc('tag'); sSpin = S.alloc('spin')

A.raw(f'''; @launch grid=(256,1,1) block=(256,1,1) lds={LDS_BYTES}
.amdgcn_target "amdgcn-amd-amdhsa--gfx950"
.text
.globl {NAME}_kernel
.p2align 8
.type {NAME}_kernel,@function
{NAME}_kernel:''')
A(f's_load_dwordx16 {sKA}, s[0:1], 0'); A(f's_load_dwordx4 {sKB[0:4]}, s[0:1], 64'); A(f's_load_dwordx2 {sKB[4:6]}, s[0:1], 80')
stamp()
A(f's_mov_b32 {sSpin}, 200000')
A('s_cmp_ge_u32 s2, 256'); A('s_cbranch_scc1 Lend')
vLane = V.alloc('lane'); vG = V.alloc('g'); vTt = V.alloc('t16'); vt = V.alloc('vt', 8); vL4 = V.alloc('lane4'); vL16 = V.alloc('lane16')
A(f'v_lshrrev_b32 {vt[0]}, 6, v0'); A(f'v_and_b32 {vLane}, 63, v0')
A(f'v_readfirstlane_b32 {sW}, {vt[0]}')
A(f'v_lshrrev_b32 {vG}, 4, {vLane}'); A(f'v_and_b32 {vTt}, 15, {vLane}')
A(f'v_lshlrev_b32 {vL4}, 2, {vLane}'); A(f'v_lshlrev_b32 {vL16}, 4, {vLane}')
A(f's_and_b32 {sT[0]}, s2, 7'); A(f's_lshr_b32 {sT[1]}, s2, 3')
A(f's_and_b32 {sT[2]}, {sT[0]}, 1'); A(f's_lshr_b32 {sT[0]}, {sT[0]}, 1')
A(f's_add_u32 {sT[3]}, {sT[2]}, 4')
pX, pW, pWO, pWR, pWG, pWU, pWD = sKA[0:2], sKA[2:4], sKA[4:6], sKA[8:10], sKA[10:12], sKA[12:14], sKA[14:16]
pOUT, pDBG, pWS = sKB[0:2], sKB[2:4], sKB[4:6]
A('s_waitcnt lgkmcnt(0)')
mk_srd(sX, pX, 2048 * 1280); mk_srd(sWS, pWS, 0x10000000); mk_srd(sDBG, pDBG, 256)
A(f's_cmp_lt_u32 {sT[1]}, {sT[3]}'); A('s_cbranch_scc1 Laux')
A(f's_mul_i32 {sT[0]}, {sT[0]}, 55'); A(f's_mul_i32 {sT[2]}, {sT[2]}, 28'); A(f's_add_u32 {sT[0]}, {sT[0]}, {sT[2]}')
A(f's_add_u32 {sT[0]}, {sT[0]}, {sT[1]}'); A(f's_sub_u32 {sT[0]}, {sT[0]}, {sT[3]}')
A(f's_mul_i32 {sRB}, {sT[0]}, 6554'); A(f's_lshr_b32 {sRB}, {sRB}, 16')
A(f's_mul_i32 {sT[1]}, {sRB}, 10'); A(f's_sub_u32 {sC}, {sT[0]}, {sT[1]}')
WSZ = 640 * 3840
mk_srd(sWQ, pW, WSZ); mk_srd(sWK, pW, WSZ - 1280, 1280); mk_srd(sWV, pW, WSZ - 2560, 2560)
state_after_common = (dict(V.used), set(V.taken), dict(S.used), set(S.taken))

sWk = S.alloc('wk', 10, 1); sXk = S.alloc('xk', 10, 1)
A(f's_and_b32 {sT[0]}, {sRB}, 3'); A(f's_lshl_b32 {sT[0]}, {sT[0]}, 2')
A(f's_lshr_b32 {sT[0]}, 0x9731, {sT[0]}'); A(f's_and_b32 {sT[0]}, {sT[0]}, 15')
A(f's_mov_b32 {sT[1]}, {sC}')
vW0 = V.alloc('vw0'); vW1 = V.alloc('vw1'); vXA = V.alloc('vxa', 2); vXB = V.alloc('vxb', 2)
sMW = S.alloc('mw'); sMXA = S.alloc('mxa'); sMXB = S.alloc('mxb'); sExA = S.alloc('exa', 2)
l3 = vt[1]; l7 = vt[2]
A(f'v_lshrrev_b32 {l3}, 3, {vLane}'); A(f'v_and_b32 {l7}, 7, {vLane}')
A(f's_lshl_b32 {sT[2]}, {sW}, 4')
A(f'v_add_u32 {vt[3]}, {sT[2]}, {l3}'); A(f'v_mul_u32_u24 {vt[3]}, 3840, {vt[3]}')
A(f'v_and_b32 {vt[4]}, 1, {vG}'); A(f'v_lshlrev_b32 {vt[4]}, 1, {vt[4]}'); A(f'v_xor_b32 {vt[4]}, {vt[4]}, {l7}')
A(f'v_lshlrev_b32 {vt[4]}, 4, {vt[4]}')
A(f's_lshl_b32 {sT[3]}, {sC}, 7')
A(f'v_add3_u32 {vW0}, {vt[3]}, {vt[4]}, {sT[3]}')
A(f'v_xor_b32 {vW1}, 64, {vW0}'); A(f'v_add_u32 {vW1}, {8 * 3840}, {vW1}')
A(f's_mul_i32 {sT[2]}, {sRB}, 96'); A(f's_lshl_b32 {sT[3]}, {sW}, 5'); A(f's_add_u32 {sT[2]}, {sT[2]}, {sT[3]}'); A(f's_sub_u32 {sT[2]}, {sT[2]}, 16')
A(f's_cmp_eq_u32 {sW}, 0'); A(f's_cselect_b32 {sT[3]}, 0, 16'); A(f's_cselect_b64 {sExA}, 1, -1')
A(f's_cselect_b32 {sMXA}, 0, 2048')
A(f's_sub_u32 {sT[3]}, {sT[2]}, {sT[3]}')
A(f'v_xor_b32 {vt[5]}, {l7}, {vG}'); A(f'v_lshlrev_b32 {vt[5]}, 4, {vt[5]}'); A(f'v_xor_b32 {vt[6]}, 64, {vt[5]}')
vc2047 = vt[7]; A(f'v_mov_b32 {vc2047}, 2047')
for (dst, base) in ((vXA, sT[3]), (vXB, sT[2])):
    for i in range(2):
        A(f'v_add_u32 {dst[i]}, {base}, {l3}')
        if i: A(f'v_add_u32 {dst[i]}, 8, {dst[i]}')
        A(f'v_med3_i32 {dst[i]}, {dst[i]}, 0, {vc2047}')
        A(f'v_mul_u32_u24 {dst[i]}, 1280, {dst[i]}'); A(f'v_add_u32 {dst[i]}, {dst[i]}, {vt[5 + i]}')
A(f's_lshl_b32 {sMW}, {sW}, 11')
A(f's_lshl_b32 {sMXB}, {sW}, 12'); A(f's_add_u32 {sMXB}, {sMXB}, {XOFF}'); A(f's_sub_u32 {sMXA}, {sMXB}, {sMXA}')

vm = VM()
def korder(s):
    A(f's_mul_i32 {sWk[s]}, {sT[1]}, {64 * 3840}'); A(f's_lshl_b32 {sXk[s]}, {sT[1]}, 7')
    A(f's_add_u32 {sT[1]}, {sT[1]}, {sT[0]}'); A(f's_sub_u32 {sT[2]}, {sT[1]}, 10'); A(f's_cmp_ge_u32 {sT[1]}, 10'); A(f's_cselect_b32 {sT[1]}, {sT[2]}, {sT[1]}')
def dma(mbase, moff, voff, srd, soff, tag):
    return [f's_add_u32 m0, {mbase}, {moff}', f'buffer_load_dwordx4 {voff}, {srd}, {soff} offen lds'], tag
def unit_loads(s):
    sb = (s % 5) * SLOT; L = []
    for i in range(2): L.append(dma(sMXB, sb + i * 1024, vXB[i], sX, sXk[s], ('u', s)))
    for i, vw in enumerate((vW0, vW1)): L.append(dma(sMW, sb + i * 1024, vw, sWQ, sWk[s], ('u', s)))
    for i, vw in enumerate((vW0, vW1)): L.append(dma(sMW, sb + 8192 + i * 1024, vw, sWK, sWk[s], ('u', s)))
    a0, t0 = dma(sMXA, sb, vXA[0], sX, sXk[s], ('u', s)); a1, t1 = dma(sMXA, sb + 1024, vXA[1], sX, sXk[s], ('u', s))
    L.append(([f's_mov_b64 exec, {sExA}'] + a0, t0)); L.append((a1 + ['s_mov_b64 exec, -1'], t1))
    return L
VLOC = [(0, 0), (0, 1), (0, 2), (1, 0), (1, 1), (1, 2), (2, 0), (2, 1), (2, 2), (3, 0)]
OLOC = [(3, 1), (3, 2), (4, 0), (4, 1), (4, 2), (0, 0), (0, 1), (0, 2), (1, 0), (1, 1)]
def v_loads(j):
    sl, sub = VLOC[j]
    return [dma(sMW, sl * SLOT + sub * 8192 + i * 1024, vw, sWV, sWk[j], ('v', j)) for i, vw in enumerate((vW0, vW1))]
def emit_loads(L):
    for code, tag in L:
        for c in code: A(c)
        vm.issue(tag)
for s in range(5):
    korder(s); emit_loads(unit_loads(s))
for s in range(5, 10): korder(s)
stamp()

sWO = S.alloc('srdwo', 4); sOUT = S.alloc('srdout', 4)
mk_srd(sWO, pWO, 640 * 1280); mk_srd(sOUT, pOUT, 2048 * 1280)
S.free('ka', 'kb')
A(f's_sub_u32 {sT[0]}, {sC}, 5'); A(f's_cmp_ge_u32 {sC}, 5'); A(f's_cselect_b32 {sCC}, {sT[0]}, {sC}')
sU = S.alloc('U'); sSL = S.alloc('SL')
A(f's_mov_b32 {sU}, {UT[0]:#x}'); A(f's_mov_b32 {sSL}, {SLT[0]:#x}')
for cc in range(1, 5):
    A(f's_cmp_eq_u32 {sCC}, {cc}'); A(f's_cselect_b32 {sU}, {UT[cc]:#x}, {sU}'); A(f's_cselect_b32 {sSL}, {SLT[cc]:#x}, {sSL}')
vOnes = V.alloc('ones', 4)
for i in range(4): A(f'v_mov_b32 {vOnes[i]}, 0x3f803f80')
A(f'v_lshlrev_b32 {vt[0]}, 4, {l7}')
for s in range(5):
    if s in (2, 4): A(f'v_add_u32 {vt[0]}, {2 * SLOT}, {vt[0]}')
    A(f'ds_write_b128 {vt[0]}, {vOnes} offset:{s * SLOT - WIN[s] + ONES_OFF}')
vr = vt[3]; vc = vt[4]; vphi = vt[5]; vrow = V.alloc('trrow')
A(f'v_bfe_u32 {vr}, {vLane}, 2, 2'); A(f'v_and_b32 {vc}, 3, {vLane}')
A(f'v_and_b32 {vphi}, 1, {vG}'); A(f'v_lshlrev_b32 {vphi}, 1, {vphi}'); A(f'v_lshrrev_b32 {vt[6]}, 1, {vr}'); A(f'v_or_b32 {vphi}, {vphi}, {vt[6]}')
A(f'v_lshl_add_u32 {vrow}, {vG}, 3, {vr}'); A(f'v_lshlrev_b32 {vrow}, 7, {vrow}')
vPhi32 = V.alloc('phi32'); A(f'v_lshlrev_b32 {vPhi32}, 5, {vphi}')
vWr = V.alloc('wr', 12)
A(f'v_lshlrev_b32 {vt[6]}, 1, {vc}')
for t in range(4):
    A(f'v_add_u32 {vt[7]}, {8 * t}, {vt[6]}'); A(f'v_bfe_u32 {vt[7]}, {sU}, {vt[7]}, 2')
    A(f'v_lshl_add_u32 {vt[7]}, {vt[7]}, 2, {vc}'); A(f'v_lshlrev_b32 {vt[7]}, 3, {vt[7]}')
    A(f'v_xor_b32 {vt[7]}, {vt[7]}, {vPhi32}'); A(f'v_add_u32 {vWr[t]}, {vt[7]}, {vrow}')
    A(f'v_add_u32 {vWr[4 + t]}, {2 * SLOT}, {vWr[t]}'); A(f'v_add_u32 {vWr[8 + t]}, {4 * SLOT}, {vWr[t]}')
vXr = V.alloc('xr', 12)
A(f'v_lshrrev_b32 {vt[6]}, 1, {vTt}'); A(f'v_xor_b32 {vt[6]}, {vt[6]}, {vG}'); A(f'v_lshlrev_b32 {vt[6]}, 4, {vt[6]}')
A(f'v_lshl_add_u32 {vt[6]}, {vTt}, 7, {vt[6]}')
A(f'v_add_u32 {vXr[2]}, {sMXB}, {vt[6]}'); A(f'v_xor_b32 {vXr[3]}, 64, {vXr[2]}')
A(f'v_add_u32 {vXr[0]}, {sMXA}, {vt[6]}')
A(f's_cmp_eq_u32 {sW}, 0'); A(f's_cselect_b64 vcc, -1, 0')
A(f'v_mov_b32 {vt[7]}, {ONES_OFF}'); A(f'v_cndmask_b32 {vXr[0]}, {vXr[0]}, {vt[7]}, vcc'); A(f'v_xor_b32 {vXr[1]}, 64, {vXr[0]}')
for j in range(4):
    A(f'v_add_u32 {vXr[4 + j]}, {2 * SLOT}, {vXr[j]}'); A(f'v_add_u32 {vXr[8 + j]}, {4 * SLOT}, {vXr[j]}')
WI = [0, 0, 1, 1, 2]
vOsh = V.alloc('osh', 2); vOrest = V.alloc('orest', 2); vOtmp = V.alloc('otmp', 2); s20480 = S.alloc('c20480'); sUt = S.alloc('ut')
A(f's_mov_b32 {s20480}, 20480')
A(f's_lshr_b32 {sT[0]}, {sW}, 1'); A(f's_lshl_b32 {sT[0]}, {sT[0]}, 4')
A(f's_and_b32 {sT[1]}, {sW}, 1'); A(f's_lshl_b32 {sT[1]}, {sT[1]}, 1')
A(f's_lshl_b32 {sT[2]}, {sT[1]}, 1'); A(f's_add_u32 {sT[0]}, {sT[0]}, {sT[2]}')
A(f'v_lshrrev_b32 {vt[6]}, 5, {vLane}'); A(f'v_lshl_add_u32 {vOsh[0]}, {vt[6]}, 3, {sT[0]}'); A(f'v_add_u32 {vOsh[1]}, 2, {vOsh[0]}')
A(f'v_and_b32 {vt[6]}, 3, {l3}'); A(f's_lshl_b32 {sT[1]}, {sT[1]}, 2'); A(f'v_add_u32 {vt[6]}, {sT[1]}, {vt[6]}'); A(f'v_mul_u32_u24 {vt[6]}, 1280, {vt[6]}')
A(f'v_and_b32 {vt[7]}, 0x70, {vW0}')
A(f's_lshl_b32 {sT[3]}, {sC}, 7')
A(f'v_add3_u32 {vOrest[0]}, {vt[6]}, {vt[7]}, {sT[3]}')
A(f'v_xor_b32 {vOrest[1]}, 64, {vOrest[0]}'); A(f'v_add_u32 {vOrest[1]}, {4 * 1280}, {vOrest[1]}')
sOk = S.alloc('ok')
def o_loads(j):
    sl, sub = OLOC[j]; L = []
    for i in range(2):
        code, tag = dma(sMW, sl * SLOT + sub * 8192 + i * 1024, vOtmp[i], sWO, sOk, ('o', j))
        pre = [f'v_bfe_u32 {vOtmp[i]}, {sUt}, {vOsh[i]}, 2', f'v_mad_u32_u24 {vOtmp[i]}, {vOtmp[i]}, {s20480}, {vOrest[i]}']
        if i == 0: pre = [f's_mov_b32 {sUt}, {UT[j % 5]:#x}', f's_mov_b32 {sOk}, {j * 64 * 1280}'] + pre
        L.append((pre + code, tag))
    return L
sM = {}
for t in (1, 2):
    A(f'v_lshlrev_b32 {vt[6]}, 1, {vG}'); A(f'v_add_u32 {vt[6]}, {8 * t}, {vt[6]}'); A(f'v_bfe_u32 {vt[6]}, {sSL}, {vt[6]}, 2')
    for sl in (0, 3, t):
        sM[(sl, t)] = S.alloc(f'm{sl}{t}', 2); A(f'v_cmp_eq_u32 {sM[(sl, t)]}, {sl}, {vt[6]}')
S.free('U', 'SL')
sK1 = S.alloc('k1', 2); sK2 = S.alloc('k2', 2)
A(f's_mov_b32 {sK1[0]}, 0xaaaaaaaa'); A(f's_mov_b32 {sK1[1]}, 0xaaaaaaaa'); A(f's_mov_b32 {sK2[0]}, 0xcccccccc'); A(f's_mov_b32 {sK2[1]}, 0xcccccccc')
vDiag = V.alloc('diag')
A(f'v_lshrrev_b32 {vDiag}, 2, {vTt}'); A(f'v_lshl_add_u32 {vDiag}, {vDiag}, 4, {vTt}'); A(f'v_lshlrev_b32 {vDiag}, 2, {vDiag}')

aX = AG.alloc('X', 160)
def XF(s, ab, kk): b = s * 16 + ab * 8 + kk * 4; return aX[b:b + 4]
F = [AG.alloc('F0', 32), AG.alloc('F1', 32)]
accQK = V.alloc('accqk', 64)
def AQ(ab, sec, t): b = ab * 32 + sec * 16 + t * 4; return accQK[b:b + 4]
accS = V.alloc('accs', 16)
def wreads(fb, slot, base, nsec, kk, regs=None):
    L = []
    for sec in range(nsec):
        for t in range(4):
            for h in range(2):
                off = slot * SLOT - WIN[slot] + base + sec * 8192 + kk * 4096 + h * 512
                d = fb[(sec * 4 + t) * 4 + 2 * h:(sec * 4 + t) * 4 + 2 * h + 2]
                L.append(f'ds_read_b64_tr_b16 {d}, {(regs or vWr)[WI[slot] * 4 + t]} offset:{off}')
    return L
def p1_mfmas(s, kk):
    L = []; first = (s == 0 and kk == 0); fb = F[kk]
    for ab in range(2):
        x = XF(s, ab, kk); a = accS[ab * 8:ab * 8 + 4]; b = accS[ab * 8 + 4:ab * 8 + 8]
        L.append(f'v_mfma_f32_16x16x32_bf16 {a}, {vOnes}, {x}, {0 if first else a}')
        L.append(f'v_mfma_f32_16x16x32_bf16 {b}, {x}, {x}, {0 if first else b}')
    for sec in range(2):
        for t in range(4):
            for ab in range(2):
                a = AQ(ab, sec, t)
                L.append(f'v_mfma_f32_16x16x32_bf16 {a}, {fb[(sec * 4 + t) * 4:(sec * 4 + t) * 4 + 4]}, {XF(s, ab, kk)}, {0 if first else a}')
    return L
vNon = V.alloc('nonce')
def flat(L):
    out = []
    for code, tag in L: out.append(('\n'.join(code), tag))
    return out
for s in range(10):
    A.comment(f'pass1 unit {s}')
    vm.wait(('u', s), ' lgkmcnt(0)')
    A('s_barrier')
    if s == 0: stamp()
    nl = []
    if 1 <= s <= 5: nl = unit_loads(s + 4)
    elif s == 6: nl = [([f'v_mov_b32 {vNon}, {DBG_NONCE}', f'buffer_load_dword {vNon}, {vNon}, {sDBG}, 0 offen sc1'], 'nonce')] + v_loads(0) + v_loads(1) + v_loads(2)
    elif s == 7: nl = v_loads(3) + v_loads(4) + v_loads(5)
    elif s == 8: nl = v_loads(6) + v_loads(7) + v_loads(8)
    elif s == 9: nl = v_loads(9) + o_loads(0) + o_loads(1)
    sl = s % 5
    rd = [f'ds_read_b128 {XF(s, ab, kk)}, {vXr[WI[sl] * 4 + ab * 2 + kk]} offset:{sl * SLOT - WIN[sl]}' for kk in range(2) for ab in range(2)]
    rd += wreads(F[0], sl, 0, 2, 0)
    if s == 0:
        for r in rd: A(r)
    else:
        m = p1_mfmas(s - 1, 1)
        interleave(m[:10], rd, 2)
        fl = flat(nl)
        if 1 <= s <= 5: fl = fl[:-2] + [(fl[-2][0] + '\n' + fl[-1][0], None)]
        interleave(m[10:], [c for c, _ in fl], 1)
        for _, tag in nl: vm.issue(tag)
    A('s_waitcnt lgkmcnt(0)')
    m = p1_mfmas(s, 0)
    interleave(m, wreads(F[1], sl, 0, 2, 1), 2)
A('s_waitcnt lgkmcnt(0)')
for m in p1_mfmas(9, 1): A(m)
stamp()

vSt = V.alloc('st', 6)
for ab in range(2):
    stats(accS[ab * 8], accS[ab * 8 + 4:ab * 8 + 8], vSt[2 + 2 * ab:4 + 2 * ab], vt, vDiag, sK1, sK2)
V.free('accs', 'xr', 'vxa', 'vxb', 'diag'); S.free('xk', 'mxa', 'mxb', 'exa', 'k1', 'k2')
vSa = V.alloc('sa'); vKx = V.alloc('kxa'); vCa = V.alloc('ca')
A(f's_lshl_b32 {sT[0]}, {sW}, 7'); A(f's_add_u32 {sT[0]}, {sT[0]}, {L_M}')
A(f'v_lshl_add_u32 {vSa}, {vTt}, 2, {sT[0]}')
for ab in range(2):
    A(f'ds_write_b32 {vSa}, {vSt[2 + 2 * ab]} offset:{ab * 64}'); A(f'ds_write_b32 {vSa}, {vSt[3 + 2 * ab]} offset:{512 + ab * 64}')
A(f's_mul_i32 {sT[0]}, {sW}, {SLOT}'); A(f's_add_u32 {sT[0]}, {sT[0]}, {SPARE}')
A(f'v_lshl_add_u32 {vKx}, {vLane}, 4, {sT[0]}')
for t in range(4): A(f'ds_write_b128 {vKx}, {AQ(1, 1, t)} offset:{t * 1024}')
A(f's_lshl_b32 {sT[0]}, {sW}, 9'); A(f's_add_u32 {sT[0]}, {sT[0]}, {L_CS}')
A(f'v_lshl_add_u32 {vCa}, {vG}, 4, {sT[0]}')
A(f's_mov_b32 exec_lo, 0x00010001'); A(f's_mov_b32 exec_hi, 0x00010001')
for sec in range(2):
    for t in range(4): A(f'ds_write_b128 {vCa}, {AQ(0, sec, t)} offset:{(sec * 4 + t) * 64}')
A('s_mov_b64 exec, -1')
A('s_waitcnt lgkmcnt(0)'); A('s_barrier')
emit_loads(o_loads(2) + o_loads(3) + o_loads(4))
vCS = V.alloc('cs', 32); vKp = V.alloc('kp', 16)
A(f'v_lshlrev_b32 {vCa}, 4, {vG}'); A(f'v_add_u32 {vCa}, {L_CS}, {vCa}')
for j in range(8): A(f'ds_read_b128 {vCS[4 * j:4 * j + 4]}, {vCa} offset:{j * 64}')
A(f's_cmp_eq_u32 {sW}, 0'); A(f's_cselect_b32 {sT[0]}, 0, {SLOT}'); A(f's_cselect_b32 {sT[1]}, 0, 64')
vKxp = V.alloc('kxp'); A(f'v_subrev_u32 {vKxp}, {sT[0]}, {vKx}')
for t in range(4): A(f'ds_read_b128 {vKp[4 * t:4 * t + 4]}, {vKxp} offset:{t * 1024}')
A(f'v_subrev_u32 {vt[0]}, {sT[1]}, {vSa}')
A(f'ds_read_b32 {vSt[0]}, {vt[0]}'); A(f'ds_read_b32 {vSt[1]}, {vt[0]} offset:512')
vCp = V.alloc('cp', 4); vCc = V.alloc('ccur', 4); vCpA = V.alloc('cpA', 4); vPM = V.alloc('pm', 4)
A(f'v_lshlrev_b32 {vt[1]}, 2, {vG}'); A(f'v_sub_u32 {vt[1]}, {vTt}, {vt[1]}')
A(f'v_mov_b32 {vt[2]}, {NEG_INF}')
A(f's_cmp_eq_u32 {sRB}, 0'); A(f's_cselect_b32 {sT[0]}, {sW}, 0'); A(f's_cmp_eq_u32 {sT[0]}, 1'); A(f's_cselect_b64 {sT[2:4]}, 0, -1')
for i in range(4): A(f'v_mov_b32 {vPM[i]}, 0')
for r in range(4):
    A(f'v_subrev_u32 {vt[3]}, {r}, {vt[1]}')
    A(f'v_and_b32 {vt[4]}, 0x80000001, {vt[3]}')
    A(f'v_mov_b32 {vt[5]}, {"0xffff0000" if r & 1 else "0x0000ffff"}')
    A(f'v_cmp_eq_u32 vcc, 0, {vt[4]}')
    A(f'v_cndmask_b32 {vCc[r]}, {vt[2]}, 0, vcc'); A(f'v_cndmask_b32 {vPM[2 + r // 2]}, {vPM[2 + r // 2]}, {vt[5]}, vcc')
    A(f'v_cmp_eq_u32 vcc, 0x80000000, {vt[4]}')
    A(f'v_cndmask_b32 {vCp[r]}, {vt[2]}, 0, vcc'); A(f'v_cndmask_b32 {vPM[r // 2]}, {vPM[r // 2]}, {vt[5]}, vcc')
    A(f'v_cndmask_b32 {vCpA[r]}, {vt[2]}, {vCp[r]}, {sT[2:4]}')
A('s_waitcnt lgkmcnt(0)')
def fix_qk(acc, cs, st):
    for h in range(2):
        a = acc[2 * h:2 * h + 2]
        A(f'v_pk_fma_f32 {a}, {cs[2 * h:2 * h + 2]}, {st}, {a} op_sel_hi:[1,0,1]')
    for h in range(2):
        a = acc[2 * h:2 * h + 2]
        A(f'v_pk_mul_f32 {a}, {a}, {st} op_sel:[0,1] op_sel_hi:[1,1]')
def cvt2(dst, acc):
    A(f'v_cvt_pk_bf16_f32 {dst[0]}, {acc[0]}, {acc[1]}'); A(f'v_cvt_pk_bf16_f32 {dst[1]}, {acc[2]}, {acc[3]}')
vK = V.alloc('K', 24)
for t in range(4):
    cs = vCS[16 + 4 * t:20 + 4 * t]
    for i, (acc, st) in enumerate(((vKp[4 * t:4 * t + 4], vSt[0:2]), (AQ(0, 1, t), vSt[2:4]), (AQ(1, 1, t), vSt[4:6]))):
        fix_qk(acc, cs, st); cvt2(vK[8 * i + 2 * t:8 * i + 2 * t + 2], acc)
V.free('kp')
vQ = V.alloc('Q', 32)
def QO(ab, sl): return vQ[ab * 16 + sl * 4:ab * 16 + sl * 4 + 4]
for ab in range(2):
    for t in range(4): fix_qk(AQ(ab, 0, t), vCS[4 * t:4 * t + 4], vSt[2 + 2 * ab:4 + 2 * ab])
    cvt2(QO(ab, 1)[0:2], AQ(ab, 0, 0)); cvt2(QO(ab, 2)[2:4], AQ(ab, 0, 3))
    cvt2(vt[0:2], AQ(ab, 0, 1)); cvt2(vt[2:4], AQ(ab, 0, 2))
    for i in range(2):
        A(f'v_cndmask_b32 {QO(ab, 1)[2 + i]}, 0, {vt[i]}, {sM[(1, 1)]}'); A(f'v_cndmask_b32 {QO(ab, 2)[i]}, 0, {vt[2 + i]}, {sM[(2, 2)]}')
        for sl in (0, 3):
            A(f'v_cndmask_b32 {QO(ab, sl)[i]}, 0, {vt[i]}, {sM[(sl, 1)]}'); A(f'v_cndmask_b32 {QO(ab, sl)[2 + i]}, 0, {vt[2 + i]}, {sM[(sl, 2)]}')
V.free('cs')
def dump_regs(regs):
    n = len(regs)
    A(f's_mul_i32 {sT[0]}, {sRB}, 10'); A(f's_add_u32 {sT[0]}, {sT[0]}, {sC}'); A(f's_lshl_b32 {sT[0]}, {sT[0]}, 2'); A(f's_add_u32 {sT[0]}, {sT[0]}, {sW}')
    A(f's_mul_i32 {sT[0]}, {sT[0]}, {n * 256}'); A(f's_add_u32 {sT[0]}, {sT[0]}, {WS_DUMP}')
    for i, r in enumerate(regs):
        A(f'buffer_store_dword {r}, {vL4}, {sWS}, {sT[0]} offen'); A(f's_add_u32 {sT[0]}, {sT[0]}, 256')
    A('s_waitcnt vmcnt(0)'); A('s_branch Lend')
if DUMP == 'qk': dump_regs([accQK[i] for i in range(64)] + [vSt[i] for i in range(6)])
KO = {1: 0, 0: 2, 3: 2, 2: 4}
def SA(ab, sl, pc): b = ab * 32 + sl * 8 + pc * 4; return accQK[b:b + 4]
for sl in (0, 3, 1, 2):
    for ab in range(2):
        for pc in range(2):
            k = vK[8 * (ab + pc) + KO[sl]:8 * (ab + pc) + KO[sl] + 4]
            c = vCc if pc else (vCpA if ab == 0 else vCp)
            A(f'v_mfma_f32_16x16x32_bf16 {SA(ab, sl, pc)}, {k}, {QO(ab, sl)}, {c}')
V.free('K', 'Q', 'cp', 'ccur', 'cpA')
vm.wait('nonce')
A(f'v_readfirstlane_b32 {sTag}, {vNon}')
A(f's_cmp_lg_u32 {sTag}, 0'); A('s_cbranch_scc1 Lnon_ok')
A.label('Lnon_retry')
spin_guard()
A(f'v_mov_b32 {vNon}, {DBG_NONCE}'); A(f'buffer_load_dword {vNon}, {vNon}, {sDBG}, 0 offen sc1'); A('s_waitcnt vmcnt(0)')
A(f'v_readfirstlane_b32 {sTag}, {vNon}'); A(f's_cmp_eq_u32 {sTag}, 0'); A('s_cbranch_scc1 Lnon_retry')
A.label('Lnon_ok')
vVal = V.alloc('val', 32)
def VL(ab, sl): return vVal[(ab * 4 + sl) * 4:(ab * 4 + sl) * 4 + 4]
def merge(ab, sl):
    p = SA(ab, sl, 0); c = SA(ab, sl, 1); d = VL(ab, sl)
    A(f'v_max3_f32 {d[0]}, {p[0]}, {p[1]}, {c[0]}'); A(f'v_max3_f32 {d[2]}, {p[2]}, {p[3]}, {c[2]}')
    A(f'v_max_f32 {d[0]}, {d[0]}, {c[1]}'); A(f'v_max_f32 {d[2]}, {d[2]}, {c[3]}')
vSx = V.alloc('sx'); sSx = S.alloc('ssx'); sM10 = S.alloc('m10')
A(f's_mul_i32 {sM10}, {sRB}, 10'); A(f's_add_u32 {sM10}, {sM10}, {sC}')
A(f's_mul_i32 {sSx}, {sM10}, 12288'); A(f's_add_u32 {sSx}, {sSx}, {WS_SX}')
A(f's_lshl_b32 {sT[0]}, {sW}, 11'); A(f's_sub_u32 {sT[0]}, {sT[0]}, 2048'); A(f's_cmp_eq_u32 {sW}, 0'); A(f's_cselect_b32 {sT[0]}, 0x40000000, {sT[0]}')
A(f'v_lshl_add_u32 {vSx}, {vLane}, 4, {sT[0]}')
A(f's_add_u32 {sT[1]}, {sSx}, 6144')
for sl, so in ((0, sSx), (3, sT[1])):
    for ab in range(2):
        merge(ab, sl)
        A(f'v_mov_b32 {VL(ab, sl)[1]}, {sTag}'); A(f'v_mov_b32 {VL(ab, sl)[3]}, {sTag}')
        A(f'buffer_store_dwordx4 {VL(ab, sl)}, {vSx}, {sWS}, {so} offen offset:{ab * 1024} sc1'); vm.issue('sxst')
sCs = S.alloc('cscale'); A(f's_mov_b32 {sCs}, {f32(SCALE_L2E)}')
def softmax(items):
    n = len(items); mx = [vt[i] for i in range(n)]; tp = [vt[4 + i] for i in range(n)]
    for i, it in enumerate(items): A(f'v_max_f32 {mx[i]}, {VL(*it)[0]}, {VL(*it)[2]}')
    for sw in ('v_permlane32_swap_b32', 'v_permlane16_swap_b32'):
        for i in range(n): A(f'v_mov_b32 {tp[i]}, {mx[i]}')
        for i in range(n): A(f'{sw} {mx[i]}, {tp[i]}')
        for i in range(n): A(f'v_max_f32 {mx[i]}, {mx[i]}, {tp[i]}')
    for i in range(n): A(f'v_mul_f32 {mx[i]}, {sCs}, {mx[i]}')
    for i, it in enumerate(items):
        d = VL(*it)
        A(f'v_fma_f32 {d[0]}, {d[0]}, {sCs}, -{mx[i]}'); A(f'v_fma_f32 {d[2]}, {d[2]}, {sCs}, -{mx[i]}')
    for it in items:
        d = VL(*it); A(f'v_exp_f32 {d[0]}, {d[0]}'); A(f'v_exp_f32 {d[2]}, {d[2]}')
    for it in items:
        d = VL(*it); A(f'v_cvt_pk_bf16_f32 {d[0]}, {d[0]}, {d[0]}'); A(f'v_cvt_pk_bf16_f32 {d[1]}, {d[2]}, {d[2]}')
    for it in items:
        d = VL(*it)
        A(f'v_and_b32 {d[2]}, {d[0]}, {vPM[2]}'); A(f'v_and_b32 {d[3]}, {d[1]}, {vPM[3]}')
        A(f'v_and_b32 {d[0]}, {d[0]}, {vPM[0]}'); A(f'v_and_b32 {d[1]}, {d[1]}, {vPM[1]}')
for sl in (1, 2):
    for ab in range(2): merge(ab, sl)
softmax([(0, 1), (1, 1), (0, 2), (1, 2)])
V.free('accqk')
stamp()

accV = V.alloc('accv', 32)
def AV(ab, t): return accV[ab * 16 + t * 4:ab * 16 + t * 4 + 4]
def p2_mfmas(s, kk):
    first = (s == 0 and kk == 0); fb = F[kk]
    return [f'v_mfma_f32_16x16x32_bf16 {AV(ab, t)}, {XF(s, ab, kk)}, {fb[4 * t:4 * t + 4]}, {0 if first else AV(ab, t)}' for t in range(4) for ab in range(2)]
for s in range(10):
    sl, sub = VLOC[s]; nl = []
    if sub == 0:
        A.comment(f'pass2 group {sl}')
        vm.wait(('v', min(s + 2, 9)), ' lgkmcnt(0)'); A('s_barrier')
        if sl == 1: nl = o_loads(5) + o_loads(6) + o_loads(7)
        if sl == 2: nl = o_loads(8) + o_loads(9)
    else: A('s_waitcnt lgkmcnt(0)')
    rd = wreads(F[0], sl, sub * 8192, 1, 0)
    if s == 0:
        for r in rd: A(r)
    else: interleave(p2_mfmas(s - 1, 1), rd, 2)
    A('s_waitcnt lgkmcnt(0)')
    interleave(p2_mfmas(s, 0), wreads(F[1], sl, sub * 8192, 1, 1), 2)
    emit_loads(nl)
vRx = V.alloc('rx', 16)
A(f's_sub_u32 {sT[0]}, {sSx}, 6144'); A(f's_add_u32 {sT[1]}, {sSx}, 12288')
sRx = S.alloc('srx', 2); A(f's_mov_b32 {sRx[0]}, {sT[0]}'); A(f's_mov_b32 {sRx[1]}, {sT[1]}')
def rx_loads():
    for d in range(2):
        for ab in range(2):
            A(f'buffer_load_dwordx4 {vRx[(d * 2 + ab) * 4:(d * 2 + ab) * 4 + 4]}, {vSx}, {sWS}, {sRx[d]} offen offset:{ab * 1024} sc1')
rx_loads()
A('s_waitcnt lgkmcnt(0)')
for m in p2_mfmas(9, 1): A(m)
stamp()
for t in range(4): A(f'ds_write_b128 {vKx}, {AV(1, t)} offset:{t * 1024}')
A(f's_lshl_b32 {sT[0]}, {sW}, 8'); A(f's_add_u32 {sT[0]}, {sT[0]}, {L_CSV}')
A(f'v_lshl_add_u32 {vCa}, {vTt}, 4, {sT[0]}')
for t in range(4): A(f'ds_write_b32 {vCa}, {AV(0, t)[0]} offset:{t * 4}')
A('s_waitcnt vmcnt(0) lgkmcnt(0)'); vm.q = []
A('s_barrier')
A(f's_cmp_eq_u32 {sW}, 0'); A('s_cbranch_scc1 Lwave0')
vVp = V.alloc('vp', 16); vCv = V.alloc('cv', 4); vNm = V.alloc('nm', 12); vRs = V.alloc('rsv', 12)
for t in range(4): A(f'ds_read_b128 {vVp[4 * t:4 * t + 4]}, {vKxp} offset:{t * 1024}')
A(f'v_lshlrev_b32 {vCa}, 4, {vTt}'); A(f'v_add_u32 {vCa}, {L_CSV}, {vCa}'); A(f'ds_read_b128 {vCv}, {vCa}')
A(f's_lshl_b32 {sT[0]}, {sW}, 7'); A(f's_add_u32 {sT[0]}, {sT[0]}, {L_M - 64}')
A(f'v_lshl_add_u32 {vt[0]}, {vG}, 4, {sT[0]}')
for i in range(3):
    A(f'ds_read_b128 {vNm[4 * i:4 * i + 4]}, {vt[0]} offset:{i * 64}'); A(f'ds_read_b128 {vRs[4 * i:4 * i + 4]}, {vt[0]} offset:{512 + i * 64}')
A.label('Lrx_chk')
A(f's_mov_b64 {sT[0:2]}, -1'); A(f's_mov_b64 {sT[2:4]}, -1')
for d in range(2):
    acc = sT[2 * d:2 * d + 2]
    for ab in range(2):
        for j in (1, 3):
            A(f'v_cmp_eq_u32 vcc, {sTag}, {vRx[(d * 2 + ab) * 4 + j]}'); A(f's_and_b64 {acc}, {acc}, vcc')
A(f's_cmp_eq_u32 {sCC}, 0'); A(f's_cselect_b64 {sT[0:2]}, -1, {sT[0:2]}')
A(f's_cmp_eq_u32 {sCC}, 4'); A(f's_cselect_b64 {sT[2:4]}, -1, {sT[2:4]}')
A(f's_and_b64 {sT[0:2]}, {sT[0:2]}, {sT[2:4]}'); A(f's_cmp_eq_u64 {sT[0:2]}, -1'); A('s_cbranch_scc1 Lrx_ok')
spin_guard(); rx_loads(); A('s_waitcnt vmcnt(0)'); A('s_branch Lrx_chk')
A.label('Lrx_ok')
for d, sl, ccx in ((0, 0, 0), (1, 3, 4)):
    A(f's_cmp_eq_u32 {sCC}, {ccx}'); A(f's_cselect_b64 vcc, -1, 0')
    for ab in range(2):
        for j in (0, 2):
            r = vRx[(d * 2 + ab) * 4 + j]
            A(f'v_cndmask_b32 {r}, {r}, 0, vcc'); A(f'v_add_f32 {VL(ab, sl)[j]}, {VL(ab, sl)[j]}, {r}')
V.free('rx')
softmax([(0, 0), (1, 0), (0, 3), (1, 3)])
A('s_waitcnt lgkmcnt(0)')
vV = V.alloc('Vop', 24)
for t in range(4):
    sel = 'op_sel_hi:[1,0,1]' if t % 2 == 0 else 'op_sel:[0,1,0] op_sel_hi:[1,1,1]'
    cs = vCv[(t // 2) * 2:(t // 2) * 2 + 2]
    for i, acc in enumerate((vVp[4 * t:4 * t + 4], AV(0, t), AV(1, t))):
        for h in range(2):
            a = acc[2 * h:2 * h + 2]
            A(f'v_pk_fma_f32 {a}, {vNm[4 * i + 2 * h:4 * i + 2 * h + 2]}, {cs}, {a} {sel}')
        for h in range(2):
            a = acc[2 * h:2 * h + 2]
            A(f'v_pk_mul_f32 {a}, {a}, {vRs[4 * i + 2 * h:4 * i + 2 * h + 2]}')
        cvt2(vV[6 * t + 2 * i:6 * t + 2 * i + 2], acc)
if DUMP == 'v': dump_regs([accV[i] for i in range(32)] + [vVal[i] for i in range(32)])
V.free('vp', 'cv', 'nm', 'rsv', 'accv')
V.free('kxa', 'kxp', 'ca', 'sa', 'sx', 'nonce', 'vw0', 'vw1', 'osh', 'orest', 'otmp'); S.free('wk', 'srx', 'ssx')
vO = V.alloc('O', 64); vSum = V.alloc('sum', 32)
PVL = [(0, 1), (1, 1), (1, 0), (1, 3), (2, 2), (2, 0), (2, 3), (3, 2)]
def OO(ab, t, sl): b = ab * 32 + PVL.index((t, sl)) * 4; return vO[b:b + 4]
def SM(ab, sl): b = (ab * 4 + sl) * 4; return vSum[b:b + 4]
for ab in range(2):
    for sl in range(4): A(f'v_mfma_f32_16x16x32_bf16 {SM(ab, sl)}, {vOnes}, {VL(ab, sl)}, 0')
for ab in range(2):
    for (t, sl) in PVL:
        A(f'v_mfma_f32_16x16x32_bf16 {OO(ab, t, sl)}, {vV[6 * t + 2 * ab:6 * t + 2 * ab + 4]}, {VL(ab, sl)}, 0')
sOb = S.alloc('ob')
A(f's_mul_i32 {sOb}, {sRB}, 6'); A(f's_lshl_b32 {sT[0]}, {sW}, 1'); A(f's_add_u32 {sOb}, {sOb}, {sT[0]}'); A(f's_sub_u32 {sOb}, {sOb}, 2')
A(f's_mul_i32 {sOb}, {sOb}, 20480'); A(f's_add_u32 {sOb}, {sOb}, {WS_O}')
A(f's_lshl_b32 {sT[0]}, {sC}, 11'); A(f's_add_u32 {sT[0]}, {sT[0]}, {sOb}'); A(f's_add_u32 {sT[1]}, {sT[0]}, 20480')
vOst = V.alloc('ost', 16)
for ab in range(2):
    for sl in range(4): A(f'v_rcp_f32 {SM(ab, sl)[0]}, {SM(ab, sl)[0]}')
    for t in (1, 2):
        d = OO(ab, t, t); rc = SM(ab, t)[2]
        A(f'v_cndmask_b32 {rc}, {SM(ab, t)[0]}, {SM(ab, 0)[0]}, {sM[(0, t)]}'); A(f'v_cndmask_b32 {rc}, {rc}, {SM(ab, 3)[0]}, {sM[(3, t)]}')
        for sl in (0, 3):
            for r in range(4): A(f'v_cndmask_b32 {d[r]}, {d[r]}, {OO(ab, t, sl)[r]}, {sM[(sl, t)]}')
    for t, o, rc in ((0, OO(ab, 0, 1), SM(ab, 1)[0:2]), (1, OO(ab, 1, 1), SM(ab, 1)[2:4]), (2, OO(ab, 2, 2), SM(ab, 2)[2:4]), (3, OO(ab, 3, 2), SM(ab, 2)[0:2])):
        for h in range(2): A(f'v_pk_mul_f32 {o[2 * h:2 * h + 2]}, {o[2 * h:2 * h + 2]}, {rc} op_sel_hi:[1,0]')
        cvt2(vOst[ab * 8 + 2 * t:ab * 8 + 2 * t + 2], o)
    for hh in range(2):
        A(f'buffer_store_dwordx4 {vOst[ab * 8 + 4 * hh:ab * 8 + 4 * hh + 4]}, {vL16}, {sWS}, {sT[ab]} offen offset:{hh * 1024} sc1')
V.free('O', 'sum', 'Vop', 'val', 'pm')
stamp()
sFl = S.alloc('fl'); A(f's_lshl_b32 {sFl}, {sRB}, 2'); A(f's_add_u32 {sFl}, {sFl}, {sW}'); A(f's_lshl_b32 {sFl}, {sFl}, 7'); A(f's_add_u32 {sFl}, {sFl}, {WS_FL}')
A(f's_lshl_b32 {sT[0]}, {sC}, 2'); A(f'v_mov_b32 {vt[0]}, {sT[0]}'); A(f'v_mov_b32 {vt[1]}, {sTag}')
vXf = V.alloc('xf', 32); vXn = V.alloc('xn', 32); vGt = V.alloc('gate', 32)
def silu_into(g, z, n):
    for i in range(n): A(f'v_mul_f32 {g[i]}, {f32(-math.log2(math.e))}, {z[i]}')
    for i in range(n): A(f'v_exp_f32 {g[i]}, {g[i]}')
    for i in range(n): A(f'v_add_f32 {g[i]}, 1.0, {g[i]}')
    for i in range(n): A(f'v_rcp_f32 {g[i]}, {g[i]}')
    for i in range(0, n, 2): A(f'v_pk_mul_f32 {g[i:i + 2]}, {g[i:i + 2]}, {z[i:i + 2]}')
    round_pairs(g, n)
def round_pairs(x, n):
    for i in range(0, n, 2): A(f'v_cvt_pk_bf16_f32 {x[i + 1]}, {x[i]}, {x[i + 1]}')
    for i in range(0, n, 2):
        A(f'v_lshlrev_b32 {x[i]}, 16, {x[i + 1]}'); A(f'v_and_b32 {x[i + 1]}, 0xffff0000, {x[i + 1]}')
for i in range(16): A(f'v_accvgpr_read_b32 {vXf[2 * i + 1]}, {aX[i]}')
A('s_waitcnt vmcnt(0)')
A('s_mov_b64 exec, 1'); A(f'buffer_store_dword {vt[1]}, {vt[0]}, {sWS}, {sFl} offen sc1'); A('s_mov_b64 exec, -1')
stamp()
for i in range(16):
    A(f'v_lshlrev_b32 {vXf[2 * i]}, 16, {vXf[2 * i + 1]}'); A(f'v_and_b32 {vXf[2 * i + 1]}, 0xffff0000, {vXf[2 * i + 1]}')
for i in range(0, 32, 2):
    A(f'v_pk_add_f32 {vXn[i:i + 2]}, {vXf[i:i + 2]}, {vSt[2 + 2 * (i // 16):4 + 2 * (i // 16)]} op_sel_hi:[1,0]')
round_pairs(vXn, 32)
for i in range(0, 32, 2):
    A(f'v_pk_mul_f32 {vXn[i:i + 2]}, {vXn[i:i + 2]}, {vSt[2 + 2 * (i // 16):4 + 2 * (i // 16)]} op_sel:[0,1] op_sel_hi:[1,1]')
round_pairs(vXn, 32)
silu_into(vGt, vXn, 32)
A(f'v_and_b32 {vt[2]}, 3, {vLane}'); A(f'v_lshlrev_b32 {vt[2]}, 4, {vt[2]}'); A(f'v_xor_b32 {vt[2]}, {vt[2]}, {vPhi32}'); A(f'v_add_u32 {vWr[0]}, {vt[2]}, {vrow}')
A(f'v_add_u32 {vWr[1]}, 8, {vWr[0]}'); A(f'v_xor_b32 {vWr[2]}, 64, {vWr[0]}'); A(f'v_add_u32 {vWr[3]}, 8, {vWr[2]}')
for t in range(4):
    A(f'v_add_u32 {vWr[4 + t]}, {2 * SLOT}, {vWr[t]}'); A(f'v_add_u32 {vWr[8 + t]}, {4 * SLOT}, {vWr[t]}')
FR = [F[0][0:16], F[0][16:32], F[1][0:16], F[1][16:32]]
def wo_reads(k): sl, sub = OLOC[k // 2]; return wreads(FR[k % 4], sl, sub * 8192, 1, k % 2)
for k in range(3):
    for r in wo_reads(k): A(r)
A.label('Lfl_poll')
spin_guard()
A(f'buffer_load_dword {vt[0]}, {vL4}, {sWS}, {sFl} offen sc1'); A('s_waitcnt vmcnt(0)')
A(f'v_cmp_eq_u32 vcc, {sTag}, {vt[0]}'); A(f's_and_b32 {sT[0]}, vcc_lo, 0x3ff'); A(f's_cmp_lg_u32 {sT[0]}, 0x3ff'); A('s_cbranch_scc1 Lfl_poll')
stamp()
def OF(k, ab): b = k * 8 + ab * 4; return aX[b:b + 4]
sOb2 = S.alloc('ob2'); A(f's_add_u32 {sOb2}, {sOb}, 20480')
for k in range(20):
    if k and k % 4 == 0: A(f's_add_u32 {sOb}, {sOb}, 4096'); A(f's_add_u32 {sOb2}, {sOb2}, 4096')
    for ab in range(2):
        A(f'buffer_load_dwordx4 {OF(k, ab)}, {vL16}, {sWS}, {sOb2 if ab else sOb} offen offset:{(k % 4) * 1024} sc1')
accO = V.alloc('acco', 32)
for k in range(20):
    A(f's_waitcnt vmcnt({2 * (19 - k)}) lgkmcnt({0 if k >= 18 else (8 if True else 0)})')
    m = [f'v_mfma_f32_16x16x32_bf16 {accO[ab * 16 + 4 * n:ab * 16 + 4 * n + 4]}, {FR[k % 4][4 * n:4 * n + 4]}, {OF(k, ab)}, {0 if k == 0 else accO[ab * 16 + 4 * n:ab * 16 + 4 * n + 4]}' for n in range(4) for ab in range(2)]
    interleave(m, wo_reads(k + 3) if k + 3 < 20 else [], 1)
stamp()
A('s_barrier')
A(f'v_mov_b32 {vt[0]}, {L_INFO}'); A(f'ds_read_b64 {vt[0:2]}, {vt[0]}')
A(f's_mul_i32 {sT[0]}, {sRB}, 96'); A(f's_lshl_b32 {sT[1]}, {sW}, 5'); A(f's_sub_u32 {sT[1]}, {sT[1]}, 32'); A(f's_add_u32 {sT[0]}, {sT[0]}, {sT[1]}')
A(f'v_add_u32 {vt[2]}, {sT[0]}, {vTt}'); A(f'v_mul_u32_u24 {vt[3]}, 1280, {vt[2]}'); A(f'v_lshl_add_u32 {vt[3]}, {vG}, 4, {vt[3]}')
A(f'v_add_u32 {vt[4]}, {16 * 1280}, {vt[3]}'); A(f's_lshl_b32 {sT[2]}, {sC}, 7')
A('s_waitcnt lgkmcnt(0)')
A(f'v_and_b32 {vt[5]}, {vt[0]}, {vt[1]}'); A(f'v_readfirstlane_b32 {sT[3]}, {vt[5]}'); A(f's_cmp_eq_u32 {sT[3]}, -1'); A('s_cbranch_scc1 Lnofix')
for ab in range(2):
    if ab: A(f'v_add_u32 {vt[2]}, 16, {vt[2]}')
    A(f'v_mov_b32 {vt[5]}, {L_UPD + 512}'); A(f'v_mov_b32 {vt[6]}, {L_UPD}'); A(f'v_mov_b32 {vt[7]}, {L_UPD + 256}')
    A(f'v_cmp_eq_u32 vcc, {vt[0]}, {vt[2]}'); A(f'v_cndmask_b32 {vt[5]}, {vt[5]}, {vt[6]}, vcc')
    A(f'v_cmp_eq_u32 vcc, {vt[1]}, {vt[2]}'); A(f'v_cndmask_b32 {vt[5]}, {vt[5]}, {vt[7]}, vcc')
    A(f'v_lshl_add_u32 {vt[5]}, {vG}, 5, {vt[5]}')
    for p in range(2):
        for e in range(2):
            b = ab * 16 + p * 8 + e * 4
            A(f'ds_read_b128 {vGt[b:b + 4]}, {vt[5]} offset:{p * 128 + e * 16}')
A('s_waitcnt lgkmcnt(0)')
for i in range(0, 32, 2): A(f'v_pk_add_f32 {vXn[i:i + 2]}, {vXn[i:i + 2]}, {vGt[i:i + 2]}')
round_pairs(vXn, 32)
silu_into(vGt, vXn, 32)
A.label('Lnofix')
for ab in range(2):
    for p in range(2):
        b = ab * 16 + p * 8
        for i in range(0, 8, 2): A(f'v_pk_fma_f32 {accO[b + i:b + i + 2]}, {accO[b + i:b + i + 2]}, {vGt[b + i:b + i + 2]}, {vXf[b + i:b + i + 2]}')
        d = vOst[(ab * 2 + p) * 4:(ab * 2 + p) * 4 + 4]
        for i in range(4): A(f'v_cvt_pk_bf16_f32 {d[i]}, {accO[b + 2 * i]}, {accO[b + 2 * i + 1]}')
        A(f'buffer_store_dwordx4 {d}, {vt[3 + ab]}, {sOUT}, {sT[2]} offen offset:{p * 64}')
def write_stamps(idx_sreg, who_cmp):
    if not STAMPS: return
    A('s_waitcnt vmcnt(0)'); stamp(); A('s_waitcnt lgkmcnt(0)')
    A(f's_cmp_lg_u32 {sW}, {who_cmp}'); A('s_cbranch_scc1 Lend')
    A(f's_mul_i32 {sT[0]}, s2, 96'); A(f's_add_u32 {sT[0]}, {sT[0]}, {WS_ST}')
    A('s_mov_b64 exec, 1'); A(f'v_mov_b32 {vt[2]}, 0')
    if 'dbgst' in OPTS:
        if who_cmp == 1:
            A(f's_not_b32 {sT[1]}, {sST[0][0]}'); A(f'v_mov_b32 {vt[0]}, {sT[1]}'); A(f'buffer_atomic_umax {vt[0]}, {vt[2]}, {sDBG}, 0 offen'); A('s_nop 1')
            for i in range(len(sST)):
                A(f'v_mov_b32 {vt[0]}, {sST[i][0]}'); A(f'buffer_atomic_umax {vt[0]}, {vt[2]}, {sDBG}, 0 offen offset:{4 + 4 * i}'); A('s_nop 1')
        else:
            for q, i in enumerate((2, len(sST) - 1)):
                A(f'v_mov_b32 {vt[0]}, {sST[i][0]}'); A(f'buffer_atomic_umax {vt[0]}, {vt[2]}, {sDBG}, 0 offen offset:{52 + 4 * q}'); A('s_nop 1')
    for i in range(12):
        j = min(i, len(sST) - 1)
        A(f'v_mov_b32 {vt[0]}, {sST[j][0]}'); A(f'v_mov_b32 {vt[1]}, {sST[j][1]}')
        A(f'buffer_store_dwordx2 {vt[0:2]}, {vt[2]}, {sWS}, {sT[0]} offen offset:{8 * i}'); A('s_nop 1')
write_stamps(None, 1)
A('s_endpgm')

A.label('Lwave0')
sKy0 = S.alloc('key0'); sKy1 = S.alloc('key1')
poll_top2(vL4, vt, sKy0, sKy1, sT, sTag)
sI0 = S.alloc('i0'); sI1 = S.alloc('i1')
A(f's_mul_i32 {sT[0]}, {sRB}, 96')
for k, i in ((sKy0, sI0), (sKy1, sI1)):
    A(f's_and_b32 {i}, {k}, 0x7ff'); A(f's_sub_u32 {i}, 2047, {i}'); A(f's_sub_u32 {sT[1]}, {i}, {sT[0]}')
    A(f's_cmp_lt_u32 {sT[1]}, 96'); A(f's_cselect_b32 {i}, {i}, -1')
A(f'v_mov_b32 {vt[0]}, {sI0}'); A(f'v_mov_b32 {vt[1]}, {sI1}'); A(f'v_mov_b32 {vt[2]}, {L_INFO}'); A(f'ds_write_b64 {vt[2]}, {vt[0:2]}')
A(f's_and_b32 {sT[1]}, {sI0}, {sI1}'); A(f's_cmp_eq_u32 {sT[1]}, -1'); A('s_cbranch_scc1 Lw0_done')
vY = Reg('v', 100, 108)
A(f'v_lshlrev_b32 {vt[4]}, 4, {vLane}')
A.label('Ly_poll')
spin_guard()
A(f's_lshl_b32 {sT[0]}, {sC}, 10'); A(f's_add_u32 {sT[0]}, {sT[0]}, {WS_Y}')
for j in range(27):
    A(f'buffer_load_dwordx4 {vY[4 * j:4 * j + 4]}, {vt[4]}, {sWS}, {sT[0]} offen sc1'); A(f's_add_u32 {sT[0]}, {sT[0]}, 10240')
A(f's_mov_b64 {sT[0:2]}, -1'); A('s_waitcnt vmcnt(0)')
for j in range(27):
    for q in (1, 3): A(f'v_cmp_eq_u32 vcc, {sTag}, {vY[4 * j + q]}'); A(f's_and_b64 {sT[0:2]}, {sT[0:2]}, vcc')
A(f's_cmp_eq_u64 {sT[0:2]}, -1'); A('s_cbranch_scc0 Ly_poll')
for j in range(1, 27):
    A(f'v_add_f32 {vY[0]}, {vY[0]}, {vY[4 * j]}'); A(f'v_add_f32 {vY[2]}, {vY[2]}, {vY[4 * j + 2]}')
for k, y, off in ((sKy0, vY[0], 0), (sKy1, vY[2], 256)):
    A(f's_lshr_b32 {sT[0]}, {k}, 16'); A(f's_cmp_ge_u32 {sT[0]}, 0x8000'); A(f's_cselect_b32 {sT[1]}, 0x8000, -1')
    A(f's_xor_b32 {sT[0]}, {sT[0]}, {sT[1]}'); A(f's_lshl_b32 {sT[0]}, {sT[0]}, 16')
    A(f'v_mov_b32 {vt[0]}, {sT[0]}'); A(f'v_mul_f32 {vt[0]}, {f32(-math.log2(math.e))}, {vt[0]}'); A(f'v_exp_f32 {vt[0]}, {vt[0]}')
    A(f'v_add_f32 {vt[0]}, 1.0, {vt[0]}'); A(f'v_rcp_f32 {vt[0]}, {vt[0]}'); bf16r(vt[0], vt[0])
    bf16r(y, y); A(f'v_mul_f32 {y}, {y}, {vt[0]}'); bf16r(y, y)
    A(f'v_add_u32 {vt[1]}, {L_UPD}, {vL4}'); A(f'ds_write_b32 {vt[1]}, {y} offset:{off}')
A(f'v_mov_b32 {vt[0]}, 0'); A(f'ds_write_b32 {vt[1]}, {vt[0]} offset:512')
A.label('Lw0_done')
A('s_waitcnt lgkmcnt(0)'); A('s_barrier'); A('s_endpgm')

V.used, V.taken, S.used, S.taken = [x.copy() for x in state_after_common]
AG.used = {}; AG.taken = set()
del sST[1:]
A.label('Laux')
sA = sRB
A(f's_mul_i32 {sA}, {sT[0]}, 9'); A(f's_lshl_b32 {sT[2]}, {sT[2]}, 2'); A(f's_add_u32 {sA}, {sA}, {sT[2]}'); A(f's_add_u32 {sA}, {sA}, {sT[1]}')
A(f's_cmp_eq_u32 {sA}, 0'); A('s_cbranch_scc0 Laux2')
A(f's_cmp_lg_u32 {sW}, 0'); A('s_cbranch_scc1 Lend')
A('s_mov_b64 exec, 1'); A(f'v_mov_b32 {vt[0]}, 0'); A(f'v_mov_b32 {vt[2]}, {DBG_NONCE}')
A(f'buffer_load_dword {vt[1]}, {vt[0]}, {sWS}, 0 offen sc1'); A('s_waitcnt vmcnt(0)')
A(f'v_add_u32 {vt[1]}, 0x9e3779b8, {vt[1]}'); A(f'v_or_b32 {vt[1]}, 1, {vt[1]}')
A(f'buffer_store_dword {vt[1]}, {vt[2]}, {sDBG}, 0 offen sc1'); A(f'buffer_store_dword {vt[1]}, {vt[0]}, {sWS}, 0 offen sc1')
A('s_endpgm')
A.label('Laux2')
A(f's_sub_u32 {sA}, {sA}, 1'); A(f's_cmp_ge_u32 {sA}, 32'); A('s_cbranch_scc1 Lend')
sWG_, sWU_, sWD_ = sWQ, sWK, sWV; sWR_ = S.alloc('srdwr', 4)
mk_srd(sWG_, pWG, 640 * 3456); mk_srd(sWU_, pWU, 640 * 3456); mk_srd(sWD_, pWD, 1728 * 1280); mk_srd(sWR_, pWR, 1280)
AX_SCR = 19 * 8192
L_WR = AX_SCR; L_ONE = AX_SCR + 1280; L_KEY = AX_SCR + 2048; L_XS = AX_SCR + 2560; L_H = AX_SCR + 6144
vm = VM()
l3 = vt[1]; l7 = vt[2]
A(f'v_lshrrev_b32 {l3}, 3, {vLane}'); A(f'v_and_b32 {l7}, 7, {vLane}')
aXo = V.alloc('axo', 2); aGo = V.alloc('ago', 2); aDo = V.alloc('ado', 2)
sMW = S.alloc('mw'); A(f's_lshl_b32 {sMW}, {sW}, 11')
A(f's_lshl_b32 {sT[0]}, {sA}, 6'); A(f's_lshl_b32 {sT[1]}, {sW}, 4'); A(f's_add_u32 {sT[0]}, {sT[0]}, {sT[1]}')
A(f'v_add_u32 {vt[3]}, {sT[0]}, {l3}'); A(f'v_mul_u32_u24 {vt[3]}, 1280, {vt[3]}')
A(f'v_xor_b32 {vt[4]}, {l7}, {vG}'); A(f'v_lshl_add_u32 {aXo[0]}, {vt[4]}, 4, {vt[3]}')
A(f'v_xor_b32 {aXo[1]}, 64, {aXo[0]}'); A(f'v_add_u32 {aXo[1]}, {8 * 1280}, {aXo[1]}')
sSo = S.alloc('so')
def adma(sub, i, voff, srd, soff, tag):
    A(f's_add_u32 m0, {sMW}, {sub * 8192 + i * 1024}'); A(f's_mov_b32 {sSo}, {soff}')
    A(f'buffer_load_dwordx4 {voff}, {srd}, {sSo} offen lds'); vm.issue(tag)
A(f's_mov_b32 m0, {L_WR}'); A('s_nop 0'); A(f'buffer_load_dwordx4 {vL16}, {sWR_}, 0 offen lds'); vm.issue('wr')
A('s_mov_b64 exec, 0xffff'); A(f'buffer_load_dwordx4 {vL16}, {sWR_}, 0 offen offset:1024 lds'); vm.issue('wr'); A('s_mov_b64 exec, -1')
for u in range(10):
    for i in range(2): adma(u, i, aXo[i], sX, u * 128, 'x')
A(f'v_and_b32 {vt[4]}, 1, {vG}'); A(f'v_lshlrev_b32 {vt[4]}, 1, {vt[4]}'); A(f'v_xor_b32 {vt[4]}, {vt[4]}, {l7}'); A(f'v_lshlrev_b32 {vt[4]}, 4, {vt[4]}')
A(f'v_add_u32 {aDo[0]}, {vt[3]}, {vt[4]}')
A(f'v_xor_b32 {aDo[1]}, 64, {aDo[0]}'); A(f'v_add_u32 {aDo[1]}, {8 * 1280}, {aDo[1]}')
A(f'v_add_u32 {vt[5]}, {sT[1]}, {l3}'); A(f'v_mul_u32_u24 {vt[5]}, 3456, {vt[5]}'); A(f's_lshl_b32 {sT[2]}, {sA}, 7')
A(f'v_add3_u32 {aGo[0]}, {vt[5]}, {vt[4]}, {sT[2]}')
A(f'v_xor_b32 {aGo[1]}, 64, {aGo[0]}'); A(f'v_add_u32 {aGo[1]}, {8 * 3456}, {aGo[1]}')
A(f's_cmp_ge_u32 {sA}, 27'); A('s_cbranch_scc1 Lnogate')
for u in range(9):
    for i in range(2): adma(10 + u, i, aGo[i], sWG_, u * 64 * 3456, 'g')
A(f's_waitcnt vmcnt(18)'); A('s_branch Lgate_done')
A.label('Lnogate'); A('s_waitcnt vmcnt(0)')
A.label('Lgate_done')
vm.q = ['g'] * 18
stamp()
vOnes = V.alloc('ones', 4)
for i in range(4): A(f'v_mov_b32 {vOnes[i]}, 0x3f803f80')
vRa = V.alloc('ra'); vXr = V.alloc('xr', 4)
A(f'v_lshlrev_b32 {vRa}, 4, {vG}'); A(f'v_add_u32 {vRa}, {L_WR}, {vRa}')
A(f'v_lshrrev_b32 {vt[6]}, 1, {vTt}'); A(f'v_xor_b32 {vt[6]}, {vt[6]}, {vG}'); A(f'v_lshlrev_b32 {vt[6]}, 4, {vt[6]}'); A(f'v_lshl_add_u32 {vt[6]}, {vTt}, 7, {vt[6]}')
A(f'v_add_u32 {vXr[0]}, {sMW}, {vt[6]}'); A(f'v_xor_b32 {vXr[1]}, 64, {vXr[0]}')
A(f'v_add_u32 {vXr[2]}, {5 * 8192}, {vXr[0]}'); A(f'v_add_u32 {vXr[3]}, {5 * 8192}, {vXr[1]}')
xf = AG.alloc('xf', 80); rf = AG.alloc('rf', 80)
for k in range(20):
    u = k // 2
    A(f'ds_read_b128 {xf[4 * k:4 * k + 4]}, {vXr[(u // 5) * 2 + k % 2]} offset:{(u % 5) * 8192}')
    A(f'ds_read_b128 {rf[4 * k:4 * k + 4]}, {vRa} offset:{k * 64}')
aSum = V.alloc('asum', 4); aSq = V.alloc('asq', 4); aDot = V.alloc('adot', 4); aSw = V.alloc('asw', 4)
A('s_waitcnt lgkmcnt(0)')
for k in range(20):
    x = xf[4 * k:4 * k + 4]; r = rf[4 * k:4 * k + 4]
    for acc, a, b in ((aSum, vOnes, x), (aSq, x, x), (aDot, r, x), (aSw, r, vOnes)):
        A(f'v_mfma_f32_16x16x32_bf16 {acc}, {a}, {b}, {0 if k == 0 else acc}')
sK1 = S.alloc('k1', 2); sK2 = S.alloc('k2', 2)
A(f's_mov_b32 {sK1[0]}, 0xaaaaaaaa'); A(f's_mov_b32 {sK1[1]}, 0xaaaaaaaa'); A(f's_mov_b32 {sK2[0]}, 0xcccccccc'); A(f's_mov_b32 {sK2[1]}, 0xcccccccc')
vDiag = V.alloc('diag'); vSt = V.alloc('st', 2)
A(f'v_lshrrev_b32 {vDiag}, 2, {vTt}'); A(f'v_lshl_add_u32 {vDiag}, {vDiag}, 4, {vTt}'); A(f'v_lshlrev_b32 {vDiag}, 2, {vDiag}')
stats(aSum[0], aSq, vSt, vt, vDiag, sK1, sK2)
A(f'v_fma_f32 {vt[0]}, {vSt[0]}, {aSw[0]}, {aDot[0]}'); A(f'v_mul_f32 {vt[0]}, {vt[0]}, {vSt[1]}')
A(f'v_cvt_pk_bf16_f32 {vt[0]}, {vt[0]}, {vt[0]}')
A(f'v_ashrrev_i32 {vt[1]}, 31, {vt[0]}'); A(f'v_or_b32 {vt[1]}, 0x80000000, {vt[1]}'); A(f'v_xor_b32 {vt[0]}, {vt[0]}, {vt[1]}')
A(f'v_and_b32 {vt[0]}, 0xffff0000, {vt[0]}'); A(f'v_max_u32 {vt[0]}, 0x10000, {vt[0]}')
A(f's_lshl_b32 {sT[0]}, {sW}, 4'); A(f'v_add_u32 {vt[1]}, {sT[0]}, {vTt}')
A(f'v_sub_u32 {vt[2]}, 63, {vt[1]}'); A(f'v_or_b32 {vt[0]}, {vt[0]}, {vt[2]}')
A(f'v_lshlrev_b32 {vt[1]}, 2, {vt[1]}'); A(f'v_add_u32 {vt[1]}, {L_KEY}, {vt[1]}'); A(f'ds_write_b32 {vt[1]}, {vt[0]}')
A('s_waitcnt lgkmcnt(0)'); A('s_barrier')
sKy0 = S.alloc('key0'); sKy1 = S.alloc('key1')
A(f's_cmp_lg_u32 {sW}, 0'); A('s_cbranch_scc1 Lpub_done')
A(f'v_add_u32 {vt[1]}, {L_KEY}, {vL4}'); A(f'ds_read_b32 {vt[2]}, {vt[1]}'); A('s_waitcnt lgkmcnt(0)')
A(f'v_mov_b32 {vt[0]}, {vt[2]}'); wave_max_u32(vt[0], sKy0, sT)
A(f'v_cmp_eq_u32 vcc, {sKy0}, {vt[2]}'); A(f'v_cndmask_b32 {vt[0]}, {vt[2]}, 0, vcc'); wave_max_u32(vt[0], sKy1, sT)
A(f's_and_b32 {sT[0]}, {sKy0}, 0xffff0000'); A(f's_lshr_b32 {sT[1]}, {sKy1}, 16'); A(f's_or_b32 {sT[0]}, {sT[0]}, {sT[1]}')
A(f's_and_b32 {sT[1]}, {sKy0}, 63'); A(f's_and_b32 {sT[2]}, {sKy1}, 63'); A(f's_lshl_b32 {sT[2]}, {sT[2]}, 6'); A(f's_or_b32 {sT[1]}, {sT[1]}, {sT[2]}')
A(f's_xor_b32 {sT[1]}, {sT[1]}, 0x8fff')
A(f's_lshl_b32 {sT[2]}, {sA}, 2'); A(f's_lshl_b32 {sT[3]}, {sA}, 1')
A(f'v_mov_b32 {vt[0]}, {sT[0]}'); A(f'v_mov_b32 {vt[1]}, {sT[1]}'); A(f'v_mov_b32 {vt[2]}, {sT[2]}'); A(f'v_mov_b32 {vt[3]}, {sT[3]}')
A('s_mov_b64 exec, 1')
A(f'buffer_store_dword {vt[0]}, {vt[2]}, {sDBG}, 0 offen offset:{DBG_VAL} sc1'); A(f'buffer_store_short {vt[1]}, {vt[3]}, {sDBG}, 0 offen offset:{DBG_IDX} sc1')
A('s_mov_b64 exec, -1')
A.label('Lpub_done')
stamp()
A(f's_cmp_ge_u32 {sA}, 27'); A('s_cbranch_scc1 Lend')
for i in range(2): adma(9, i, aGo[i], sWG_, 9 * 64 * 3456, 'g')
for u in range(9):
    for i in range(2): adma(u, i, aGo[i], sWU_, u * 64 * 3456, 'u')
vr = vt[3]; vc = vt[4]; vphi = vt[5]
A(f'v_bfe_u32 {vr}, {vLane}, 2, 2'); A(f'v_and_b32 {vc}, 3, {vLane}')
A(f'v_and_b32 {vphi}, 1, {vG}'); A(f'v_lshlrev_b32 {vphi}, 1, {vphi}'); A(f'v_lshrrev_b32 {vt[6]}, 1, {vr}'); A(f'v_or_b32 {vphi}, {vphi}, {vt[6]}')
vB0 = V.alloc('b0'); vTw = V.alloc('tw', 3)
A(f'v_lshl_add_u32 {vB0}, {vG}, 3, {vr}'); A(f'v_lshlrev_b32 {vB0}, 7, {vB0}'); A(f'v_lshl_add_u32 {vB0}, {vphi}, 5, {vB0}'); A(f'v_lshl_add_u32 {vB0}, {vc}, 3, {vB0}')
A(f's_lshl_b32 {sT[0]}, {sW}, 5'); A(f'v_xor_b32 {vTw[0]}, {sT[0]}, {vB0}')
A(f'v_add_u32 {vTw[1]}, {7 * 8192}, {vTw[0]}'); A(f'v_add_u32 {vTw[2]}, {14 * 8192}, {vTw[0]}')
def areads(dst, subs):
    for k in range(20):
        sub = subs[k // 2]
        for h in range(2):
            A(f'ds_read_b64_tr_b16 {dst[4 * k + 2 * h:4 * k + 2 * h + 2]}, {vTw[sub // 7]} offset:{(sub % 7) * 8192 + (k % 2) * 4096 + h * 512}')
gf = rf; uf = AG.alloc('uf', 80)
vm.wait('g'); A('s_barrier')
areads(gf, [10 + u for u in range(9)] + [9])
A('s_waitcnt lgkmcnt(0)'); A('s_barrier')
for i in range(2): adma(9, i, aGo[i], sWU_, 9 * 64 * 3456, 'u')
stamp()
A(f's_cmp_lg_u32 {sW}, 0'); A('s_cbranch_scc1 Lsel_done')
poll_top2(vL4, vt, sKy0, sKy1, sT, sTag)
A(f's_and_b32 {sT[0]}, {sKy0}, 0x7ff'); A(f's_sub_u32 {sT[0]}, 2047, {sT[0]}'); A(f's_mul_i32 {sT[0]}, {sT[0]}, 1280')
A(f's_and_b32 {sT[1]}, {sKy1}, 0x7ff'); A(f's_sub_u32 {sT[1]}, 2047, {sT[1]}'); A(f's_mul_i32 {sT[1]}, {sT[1]}, 1280')
A(f'v_mov_b32 {vt[0]}, {sT[0]}'); A(f'v_mov_b32 {vt[1]}, {sT[1]}'); A(f'v_cmp_gt_u32 vcc, 32, {vLane}'); A(f'v_cndmask_b32 {vt[0]}, {vt[1]}, {vt[0]}, vcc')
A(f'v_and_b32 {vt[1]}, 31, {vLane}'); A(f'v_lshl_add_u32 {vt[0]}, {vt[1]}, 3, {vt[0]}')
xr = V.alloc('xraw', 10); xv = V.alloc('xv', 20)
for i in range(5): A(f'buffer_load_dwordx2 {xr[2 * i:2 * i + 2]}, {vt[0]}, {sX}, 0 offen offset:{256 * i}')
A('s_waitcnt vmcnt(0)')
for i in range(10):
    A(f'v_lshlrev_b32 {xv[2 * i]}, 16, {xr[i]}'); A(f'v_and_b32 {xv[2 * i + 1]}, 0xffff0000, {xr[i]}')
def half_sum(r, tmp):
    for sh in (8, 4, 2, 1): A(f'v_add_f32_dpp {r}, {r}, {r} row_ror:{sh} row_mask:0xf bank_mask:0xf')
    A(f'v_mov_b32 {tmp}, {r}'); A(f'v_permlane16_swap_b32 {r}, {tmp}'); A(f'v_add_f32 {r}, {r}, {tmp}')
A(f'v_add_f32 {vt[2]}, {xv[0]}, {xv[1]}')
for i in range(2, 20): A(f'v_add_f32 {vt[2]}, {vt[2]}, {xv[i]}')
half_sum(vt[2], vt[3])
A(f'v_mul_f32 {vt[2]}, {f32(1 / 640)}, {vt[2]}')
A(f'v_mov_b32 {vt[4]}, 0')
for i in range(20):
    A(f'v_sub_f32 {vt[5]}, {xv[i]}, {vt[2]}'); A(f'v_fmac_f32 {vt[4]}, {vt[5]}, {vt[5]}')
half_sum(vt[4], vt[3])
A(f'v_mul_f32 {vt[4]}, {f32(1 / 640)}, {vt[4]}'); bf16r(vt[4], vt[4]); A(f'v_add_f32 {vt[4]}, {f32(1e-5)}, {vt[4]}'); bf16r(vt[4], vt[4])
A(f'v_sqrt_f32 {vt[4]}, {vt[4]}'); bf16r(vt[4], vt[4]); A(f'v_rcp_f32 {vt[4]}, {vt[4]}'); bf16r(vt[2], vt[2])
for i in range(20): A(f'v_sub_f32 {xv[i]}, {xv[i]}, {vt[2]}')
round_pairs(xv, 20)
for i in range(20): A(f'v_mul_f32 {xv[i]}, {xv[i]}, {vt[4]}')
for i in range(10): A(f'v_cvt_pk_bf16_f32 {xr[i]}, {xv[2 * i]}, {xv[2 * i + 1]}')
XS_STRIDE = 1344
A(f'v_lshrrev_b32 {vt[0]}, 5, {vLane}'); A(f'v_mul_u32_u24 {vt[0]}, {XS_STRIDE}, {vt[0]}'); A(f'v_lshl_add_u32 {vt[0]}, {vt[1]}, 3, {vt[0]}'); A(f'v_add_u32 {vt[0]}, {L_XS}, {vt[0]}')
for i in range(5): A(f'ds_write_b64 {vt[0]}, {xr[2 * i:2 * i + 2]} offset:{256 * i}')
A(f'v_mov_b32 {vt[0]}, {L_KEY}'); A(f'v_mov_b32 {vt[1]}, {sTag}'); A(f'ds_write_b32 {vt[0]}, {vt[1]}')
A.label('Lsel_done')
for u in range(9):
    for i in range(2): adma(10 + u, i, aDo[i], sWD_, u * 128, 'd')
vm.wait('u', ' lgkmcnt(0)'); A('s_barrier')
stamp()
areads(uf, list(range(10)))
A(f'v_and_b32 {vt[0]}, 1, {vLane}'); A(f'v_mul_u32_u24 {vt[1]}, {XS_STRIDE}, {vt[0]}'); A(f'v_lshl_add_u32 {vt[1]}, {vG}, 4, {vt[1]}'); A(f'v_add_u32 {vt[1]}, {L_XS}, {vt[1]}')
for k in range(20): A(f'ds_read_b128 {xf[4 * k:4 * k + 4]}, {vt[1]} offset:{64 * k}')
A(f'v_mov_b32 {vt[2]}, {L_KEY}'); A(f'ds_read_b32 {vt[2]}, {vt[2]}')
A('s_waitcnt lgkmcnt(0)'); A('s_barrier')
A(f'v_readfirstlane_b32 {sTag}, {vt[2]}')
for i in range(2): adma(0, i, aDo[i], sWD_, 9 * 128, 'd')
aG = aSum; aU = aSq
for k in range(20):
    for acc, w in ((aG, gf), (aU, uf)):
        A(f'v_mfma_f32_16x16x32_bf16 {acc}, {w[4 * k:4 * k + 4]}, {xf[4 * k:4 * k + 4]}, {0 if k == 0 else acc}')
round_pairs(aG, 4); round_pairs(aU, 4)
silu_into(aDot, aG, 4)
for i in range(0, 4, 2): A(f'v_pk_mul_f32 {aDot[i:i + 2]}, {aDot[i:i + 2]}, {aU[i:i + 2]}')
cvt2(vt[2:4], aDot)
A(f's_lshl_b32 {sT[0]}, {sW}, 5'); A(f's_add_u32 {sT[0]}, {sT[0]}, {L_H}')
A(f'v_lshlrev_b32 {vt[4]}, 7, {vt[0]}'); A(f'v_lshl_add_u32 {vt[5]}, {vG}, 3, {vt[4]}'); A(f'v_add_u32 {vt[5]}, {sT[0]}, {vt[5]}')
A(f'ds_write_b64 {vt[5]}, {vt[2:4]}')
A('s_waitcnt vmcnt(0) lgkmcnt(0)'); A('s_barrier')
stamp()
hA = V.alloc('hA', 8)
A(f'v_lshl_add_u32 {vt[5]}, {vG}, 4, {vt[4]}'); A(f'v_add_u32 {vt[5]}, {L_H}, {vt[5]}')
for kk in range(2): A(f'ds_read_b128 {hA[4 * kk:4 * kk + 4]}, {vt[5]} offset:{64 * kk}')
sG = [S.alloc(f'gm{i}', 2) for i in range(3)]
for i in range(3): A(f'v_cmp_eq_u32 {sG[i]}, {i + 1}, {vG}')
dF = AG.alloc('dF', 16) if False else xf
aY = V.alloc('ay', 16); vOut = V.alloc('yo', 4); vDa = V.alloc('da', 4)
for it in range(3):
    A(f's_add_u32 {sT[0]}, {sW}, {4 * it}')
    if it == 2: A(f's_cmp_ge_u32 {sT[0]}, 10'); A('s_cbranch_scc1 Laux_end')
    A(f's_add_u32 {sT[1]}, {sT[0]}, 10'); A(f's_cmp_eq_u32 {sT[0]}, 9'); A(f's_cselect_b32 {sT[1]}, 0, {sT[1]}'); A(f's_lshl_b32 {sT[1]}, {sT[1]}, 13')
    for t in range(4):
        A(f'v_xor_b32 {vDa[t]}, {32 * t}, {vB0}'); A(f'v_add_u32 {vDa[t]}, {sT[1]}, {vDa[t]}')
    for kk in range(2):
        for t in range(4):
            for h in range(2):
                b = (kk * 4 + t) * 4 + 2 * h
                A(f'ds_read_b64_tr_b16 {dF[b:b + 2]}, {vDa[t]} offset:{kk * 4096 + h * 512}')
    A('s_waitcnt lgkmcnt(0)')
    for kk in range(2):
        for t in range(4):
            b = (kk * 4 + t) * 4
            A(f'v_mfma_f32_16x16x32_bf16 {aY[4 * t:4 * t + 4]}, {hA[4 * kk:4 * kk + 4]}, {dF[b:b + 4]}, {0 if kk == 0 else aY[4 * t:4 * t + 4]}')
    A(f's_mul_i32 {sT[1]}, {sA}, 10'); A(f's_add_u32 {sT[1]}, {sT[1]}, {sT[0]}'); A(f's_lshl_b32 {sT[1]}, {sT[1]}, 10'); A(f's_add_u32 {sT[1]}, {sT[1]}, {WS_Y}')
    A(f'v_mov_b32 {vOut[1]}, {sTag}'); A(f'v_mov_b32 {vOut[3]}, {sTag}')
    for q, r in ((0, 0), (2, 1)):
        A(f'v_cndmask_b32 {vOut[q]}, {aY[r]}, {aY[4 + r]}, {sG[0]}'); A(f'v_cndmask_b32 {vOut[q]}, {vOut[q]}, {aY[8 + r]}, {sG[1]}'); A(f'v_cndmask_b32 {vOut[q]}, {vOut[q]}, {aY[12 + r]}, {sG[2]}')
    A(f'buffer_store_dwordx4 {vOut}, {vL16}, {sWS}, {sT[1]} offen sc1')
A.label('Laux_end')
write_stamps(None, 0)
A.label('Lend')
A('s_endpgm')
A.raw(f'''.section .rodata,"a"
.p2align 6
.amdhsa_kernel {NAME}_kernel
  .amdhsa_next_free_vgpr 512
  .amdhsa_next_free_sgpr 102
  .amdhsa_accum_offset 256
  .amdhsa_group_segment_fixed_size 0
  .amdhsa_kernarg_size 88
  .amdhsa_user_sgpr_count 2
  .amdhsa_user_sgpr_kernarg_segment_ptr 1
  .amdhsa_system_sgpr_workgroup_id_x 1
  .amdhsa_float_denorm_mode_32 3
.end_amdhsa_kernel''')
txt = A.render()
open(sys.argv[1], 'w').write(txt)
print('lines', txt.count('\n'), 'nops added', A.nops_added, 'vmax', V.maxused, 'amax', AG.maxused, 'smax', S.maxused, file=sys.stderr)
```

```python
import sys, math, struct
from asmlib import Asm, RegAlloc, Reg
NAME = "recurrent_scan__sliding_local_dilated__moe_arch_mod__prompt"
OPTS = set(sys.argv[2:])
STAMPS = 'stamps' in OPTS
def opt(name, default):
    for o in OPTS:
        if o.startswith(name + '='): return type(default)(o[len(name) + 1:])
    return default
DUMP = opt('dump', '')
NT = {k: (' nt' if k in opt('nt', 'FX') else '') for k in 'WXOFRS'}
STAMPW = opt('sw', 2)

def f32(x): return '0x%08x' % struct.unpack('<I', struct.pack('<f', x))[0]
L2E = math.log2(math.e)

def tables():
    U = []; SL = []
    for cc in range(5):
        h0 = (16 * cc) // 5
        slot = [((16 * cc + q) // 5) - h0 for q in range(16)]
        s1 = [q for q in range(16) if slot[q] == 1]; s2 = [q for q in range(16) if slot[q] == 2]
        t0 = s1[:4]; e1 = s1[4]; t3 = s2[1:]; e2 = s2[0]
        rest = [q for q in range(16) if q not in t0 and q not in t3]
        t1 = []; t2 = []
        for res in range(4):
            pair = [q for q in rest if q % 4 == res]
            if e1 in pair: a = e1; b = pair[0] if pair[1] == e1 else pair[1]
            elif e2 in pair: b = e2; a = pair[0] if pair[1] == e2 else pair[1]
            else: a, b = pair
            t1.append(a); t2.append(b)
        tl = [sorted(t0, key=lambda q: q % 4), t1, t2, sorted(t3, key=lambda q: q % 4)]
        u = 0; sl = 0
        for t in range(4):
            for g in range(4):
                q = tl[t][g]
                u |= (q // 4) << (2 * (4 * t + g)); sl |= slot[q] << (2 * (4 * t + g))
        U.append(u); SL.append(sl)
    return U, SL
UT, SLT = tables()

SLOT = 30848; ONES_OFF = 30720; XOFF = 16384; SPARE = 24576
WIN = [0, 0, 2 * SLOT, 2 * SLOT, 4 * SLOT]; WI = [0, 0, 1, 1, 2]
SCR = 5 * SLOT
L_M = SCR; L_R = SCR + 512; L_CS = SCR + 1024
L_CSV = SCR + 1536
L_CSF = SCR + 1792
L_INFO = SCR + 1800; L_UF = SCR + 1796; L_UPD = SCR + 2048; SENT = -2
LDS_BYTES = 163840
WS_SX = 0x100000; WS_O = 0x400000; WS_FL = 0x700000; WS_Y = 0x710000; WS_ST = 0x800000; WS_JUNK = 0x900000; WS_SIG = 0x7f0000; WS_BC = 0x7e0000; WS_DUMP = 0x1000000
DBG_VAL = 64; DBG_IDX = 192
NSIG = 220 + 27
NEG_INF = '0xff800000'
SCALE_L2E = (20 ** -0.5) * L2E
MFMA = 'v_mfma_f32_16x16x32_bf16'
VLOC = [(0, 0), (0, 1), (0, 2), (1, 0), (1, 1), (1, 2), (2, 0), (2, 1), (2, 2), (3, 0)]
OLOC = [(3, 1), (3, 2), (4, 0), (4, 1), (4, 2), (0, 0), (0, 1), (0, 2), (1, 0), (1, 1)]

A = Asm()
V = RegAlloc('v', 1, 128); AG = RegAlloc('a', 0, 128); S = RegAlloc('s', 3, 102)

class Em:
    def __init__(self): self.vm = []; self.lg = []
    def reset(self): self.vm = []; self.lg = []
    def cnt(self, q, tag, mx):
        if tag == 'all': n = 0
        elif tag not in q: return None
        else: n = len(q) - 1 - max(i for i, t in enumerate(q) if t == tag)
        n = min(n, mx)
        del q[:len(q) - n]
        return n
    def __call__(self, it):
        if isinstance(it, list):
            for x in it: self(x)
            return
        if isinstance(it, tuple) and it[0] == 'W':
            parts = []
            if it[1] is not None:
                n = self.cnt(self.vm, it[1], 63)
                if n is not None: parts.append(f'vmcnt({n})')
            if it[2] is not None:
                n = self.cnt(self.lg, it[2], 15)
                if n is not None: parts.append(f'lgkmcnt({n})')
            if parts: A('s_waitcnt ' + ' '.join(parts))
            return
        if isinstance(it, tuple) and it[0] == 'L': A.label(it[1]); return
        text, tag = (it, None) if isinstance(it, str) else it
        if text.startswith('ds_'):
            if 'lgthr' in OPTS and len(self.lg) >= 15: A('s_waitcnt lgkmcnt(14)'); del self.lg[:len(self.lg) - 14]
            self.lg.append(tag)
        elif text.startswith('buffer_'):
            if len(self.vm) >= 63: A('s_waitcnt vmcnt(55)'); del self.vm[:len(self.vm) - 55]
            self.vm.append(tag)
        A(text)
E = Em()
def W(vm=None, lg=None): return ('W', vm, lg)

def merge(a, b, na=1, nb=1):
    out = []; i = j = 0
    while i < len(a) or j < len(b):
        out += a[i:i + na]; i += na
        out += b[j:j + nb]; j += nb
    return out
def spread(a, b):
    out = []; j = 0
    for i, x in enumerate(a):
        out.append(x)
        while j < len(b) and j * len(a) < (i + 1) * len(b): out.append(b[j]); j += 1
    return out + b[j:]

sST = []
FINE = opt('fine', '')
def fstamp(grp):
    return stamp(True) if grp == FINE else []
def stamp(force=False):
    if not STAMPS: return []
    if FINE and not force and len(sST) > 0: return []
    r = S.alloc(f'stamp{len(sST)}', 2); sST.append(r)
    return [f's_memtime {r}' if 'clk' in OPTS else f's_memrealtime {r}']
def bf16r(dst, src): return [f'v_cvt_pk_bf16_f32 {dst}, {src}, {src}', f'v_lshlrev_b32 {dst}, 16, {dst}']
def mk_srd(dst, ptr, nbytes, add=0):
    if add > 0: L = [f's_add_u32 {dst[0]}, {ptr[0]}, {add}', f's_addc_u32 {dst[1]}, {ptr[1]}, 0']
    elif add < 0: L = [f's_sub_u32 {dst[0]}, {ptr[0]}, {-add}', f's_subb_u32 {dst[1]}, {ptr[1]}, 0']
    else: L = [f's_mov_b64 {dst[0:2]}, {ptr}']
    return L + [f's_mov_b32 {dst[2]}, {nbytes - add}', f's_mov_b32 {dst[3]}, 0x20000']
def spin_guard(): return [f's_sub_u32 {sSpin}, {sSpin}, 1', 's_cbranch_scc1 Lend']
def stats(sumreg, sq4, st, tmp, vdiag, mk1, mk2):
    return [f'v_cndmask_b32 {tmp[0]}, {sq4[0]}, {sq4[1]}, {mk1}', f'v_cndmask_b32 {tmp[1]}, {sq4[2]}, {sq4[3]}, {mk1}',
            f'v_cndmask_b32 {tmp[0]}, {tmp[0]}, {tmp[1]}, {mk2}', (f'ds_bpermute_b32 {tmp[0]}, {vdiag}, {tmp[0]}', 'bp'),
            f'v_mul_f32 {tmp[1]}, {f32(-1 / 640)}, {sumreg}'] + bf16r(st[0], tmp[1]) + [f'v_mul_f32 {tmp[1]}, {tmp[1]}, {tmp[1]}',
            f'v_mov_b32 {tmp[2]}, {f32(1 / 640)}', W(lg='bp'),
            f'v_fma_f32 {tmp[0]}, {tmp[0]}, {tmp[2]}, -{tmp[1]}', f'v_max_f32 {tmp[0]}, 0, {tmp[0]}'] + bf16r(tmp[0], tmp[0]) + \
           [f'v_add_f32 {tmp[0]}, {f32(1e-5)}, {tmp[0]}'] + bf16r(tmp[0], tmp[0]) + [f'v_sqrt_f32 {tmp[0]}, {tmp[0]}'] + bf16r(tmp[0], tmp[0]) + \
           [f'v_rcp_f32 {st[1]}, {tmp[0]}']
def wave_max_u32(r, sdst, st):
    return [f'v_max_u32_dpp {r}, {r}, {r} row_ror:{sh} row_mask:0xf bank_mask:0xf' for sh in (8, 4, 2, 1)] + \
           [f'v_readlane_b32 {sdst}, {r}, 0', f'v_readlane_b32 {st[0]}, {r}, 16', f'v_readlane_b32 {st[1]}, {r}, 32', f'v_readlane_b32 {st[2]}, {r}, 48',
            f's_max_u32 {sdst}, {sdst}, {st[0]}', f's_max_u32 {st[1]}, {st[1]}, {st[2]}', f's_max_u32 {sdst}, {sdst}, {st[1]}']
def poll_top2(t, sK0, sK1, st):
    L = A.newlabel('Lpt'); Ld = A.newlabel('Lptd')
    return [('L', L)] + spin_guard() + [
        f'buffer_load_dword {t[0]}, {vL4}, {sDBG}, 0 offen offset:{DBG_VAL} sc1',
        f'v_lshrrev_b32 {t[1]}, 1, {vL4}', f'v_and_b32 {t[1]}, 0x3c, {t[1]}', f'v_add_u32 {t[1]}, 128, {t[1]}', W('all'),
        f'ds_bpermute_b32 {t[1]}, {t[1]}, {t[0]}', f'v_and_b32 {t[2]}, 4, {vL4}', f'v_lshlrev_b32 {t[2]}, 2, {t[2]}', W(lg='all'),
        f'v_bfe_u32 {t[1]}, {t[1]}, {t[2]}, 16', f'v_cmp_ne_u32 vcc, 0, {t[0]}', f'v_cmp_ne_u32 {st[0:2]}, 0, {t[1]}',
        f's_and_b32 {st[0]}, {st[0]}, vcc_lo', f's_cmp_eq_u32 {st[0]}, -1', f's_cbranch_scc1 {Ld}', 's_sleep 2', f's_branch {L}', ('L', Ld),
        f'v_lshlrev_b32 {t[2]}, 4, {vL4}', f'v_and_b32 {t[3]}, 63, {t[1]}', f'v_add_u32 {t[3]}, {t[3]}, {t[2]}', f'v_sub_u32 {t[3]}, 2047, {t[3]}',
        f'v_bfe_u32 {t[1]}, {t[1]}, 6, 6', f'v_add_u32 {t[1]}, {t[1]}, {t[2]}', f'v_sub_u32 {t[1]}, 2047, {t[1]}',
        f'v_and_b32 {t[2]}, 0xffff0000, {t[0]}', f'v_or_b32 {t[3]}, {t[3]}, {t[2]}', f'v_lshl_or_b32 {t[1]}, {t[0]}, 16, {t[1]}',
        f'v_cmp_gt_u32 vcc, 128, {vL4}', f'v_cndmask_b32 {t[3]}, 0, {t[3]}, vcc', f'v_cndmask_b32 {t[1]}, 0, {t[1]}, vcc', f'v_mov_b32 {t[0]}, {t[3]}'] + \
        wave_max_u32(t[0], sK0, st) + [f'v_cmp_eq_u32 vcc, {sK0}, {t[3]}', f'v_cndmask_b32 {t[0]}, {t[3]}, {t[1]}, vcc'] + wave_max_u32(t[0], sK1, st)
def round_pairs(x, n):
    L = [f'v_cvt_pk_bf16_f32 {x[i + 1]}, {x[i]}, {x[i + 1]}' for i in range(0, n, 2)]
    for i in range(0, n, 2): L += [f'v_lshlrev_b32 {x[i]}, 16, {x[i + 1]}', f'v_and_b32 {x[i + 1]}, 0xffff0000, {x[i + 1]}']
    return L
def silu_into(g, z, n):
    return [f'v_mul_f32 {g[i]}, {f32(-L2E)}, {z[i]}' for i in range(n)] + [f'v_exp_f32 {g[i]}, {g[i]}' for i in range(n)] + \
           [f'v_add_f32 {g[i]}, 1.0, {g[i]}' for i in range(n)] + [f'v_rcp_f32 {g[i]}, {g[i]}' for i in range(n)] + \
           [f'v_mul_f32 {g[i]}, {g[i]}, {z[i]}' for i in range(n)] + round_pairs(g, n)
def cvt2(dst, acc): return [f'v_cvt_pk_bf16_f32 {dst[0]}, {acc[0]}, {acc[1]}', f'v_cvt_pk_bf16_f32 {dst[1]}, {acc[2]}, {acc[3]}']
def tr_parts(vrow, vphi32, vc, tmp):
    return [f'v_bfe_u32 {tmp}, {vLane}, 2, 2', f'v_and_b32 {vc}, 3, {vLane}', f'v_lshl_add_u32 {vrow}, {vG}, 3, {tmp}', f'v_lshlrev_b32 {vrow}, 7, {vrow}',
            f'v_lshlrev_b32 {vphi32}, 2, {vLane}', f'v_and_b32 {vphi32}, 0x60, {vphi32}']
def save_state(): return (dict(V.used), set(V.taken), dict(S.used), set(S.taken), dict(AG.used), set(AG.taken), list(sST))
def load_state(st):
    V.used, V.taken, S.used, S.taken, AG.used, AG.taken = [x.copy() for x in st[:6]]; sST[:] = st[6]; E.reset()
def write_stamps(who, kind):
    if not STAMPS: return
    E([W('all')] + stamp(True) + ['s_waitcnt lgkmcnt(0)', f's_cmp_lg_u32 {sWv}, {who}', 's_cbranch_scc1 Lend',
       f's_mul_i32 {sT[0]}, s2, 128', f's_add_u32 {sT[0]}, {sT[0]}, {WS_ST}', 's_mov_b64 exec, 1', f'v_mov_b32 {vt[2]}, 0'])
    print(kind, 'stamps', len(sST), file=sys.stderr)
    for i in range(16):
        j = min(i, len(sST) - 1)
        E([f'v_mov_b32 {vt[0]}, {sST[j][0]}', f'v_mov_b32 {vt[1]}, {sST[j][1]}', f'buffer_store_dwordx2 {vt[0:2]}, {vt[2]}, {sWS}, {sT[0]} offen offset:{8 * i}', 's_nop 1'])
def signal():
    return ['s_mov_b64 exec, 1', f's_lshl_b32 {sT[0]}, s2, 2', f's_add_u32 {sT[0]}, {sT[0]}, {WS_SIG}', f'v_mov_b32 {vt[0]}, {sTag}', f'v_mov_b32 {vt[1]}, {sT[0]}',
            f'buffer_store_dword {vt[0]}, {vt[1]}, {sWS}, 0 offen sc1', 's_mov_b64 exec, -1']

sKA = S.alloc('ka', 16); sKB = S.alloc('kb', 6, 4)
sWS = S.alloc('srdws', 4); sDBG = S.alloc('srddbg', 4)
sWv = S.alloc('wv'); sW = S.alloc('w'); sH = S.alloc('h'); sRB = S.alloc('rb'); sC = S.alloc('c')
sT = S.alloc('t', 4); sTag = S.alloc('tag'); sSpin = S.alloc('spin')
A.raw(f'''; @launch grid=(256,1,1) block=(512,1,1) lds={LDS_BYTES}
.amdgcn_target "amdgcn-amd-amdhsa--gfx950"
.text
.globl {NAME}_kernel
.p2align 8
.type {NAME}_kernel,@function
{NAME}_kernel:''')
vLane = V.alloc('lane'); vG = V.alloc('g'); vTt = V.alloc('t16'); vt = V.alloc('vt', 8); vL4 = V.alloc('lane4'); vL16 = V.alloc('lane16')
pX, pW, pWO, pWR, pWG, pWU, pWD = sKA[0:2], sKA[2:4], sKA[4:6], sKA[8:10], sKA[10:12], sKA[12:14], sKA[14:16]
pOUT, pDBG, pWS = sKB[0:2], sKB[2:4], sKB[4:6]
E([f's_load_dwordx16 {sKA}, s[0:1], 0', f's_load_dwordx4 {sKB[0:4]}, s[0:1], 64', f's_load_dwordx2 {sKB[4:6]}, s[0:1], 80'] + stamp() +
  [f'v_lshrrev_b32 {vt[0]}, 6, v0', f'v_and_b32 {vLane}, 63, v0', 's_cmp_ge_u32 s2, 256', 's_cbranch_scc1 Lend',
   f'v_readfirstlane_b32 {sWv}, {vt[0]}', f'v_lshrrev_b32 {vG}, 4, {vLane}', f'v_and_b32 {vTt}, 15, {vLane}',
   f'v_lshlrev_b32 {vL4}, 2, {vLane}', f'v_lshlrev_b32 {vL16}, 4, {vLane}', f's_mov_b32 {sSpin}, 200000',
   f's_and_b32 {sT[0]}, s2, 7', f's_lshr_b32 {sT[1]}, s2, 3', f's_and_b32 {sT[2]}, {sT[0]}, 1', f's_lshr_b32 {sT[0]}, {sT[0]}, 1', f's_add_u32 {sT[3]}, {sT[2]}, 4',
   f's_and_b32 {sW}, {sWv}, 3', f's_lshr_b32 {sH}, {sWv}, 2',
   f's_cmp_lt_u32 {sT[1]}, {sT[3]}', 's_cbranch_scc1 Laux'])
st_common = save_state()
def get_tag():
    return mk_srd(sWS, pWS, 0x10000000, opt('wsoff', 0) << 20) + mk_srd(sDBG, pDBG, 256) + [f's_load_dword {sTag}, {sWS[0:2]}, 0']
def fin_tag(): return [f's_add_u32 {sTag}, {sTag}, 0x9e3779b8', f's_or_b32 {sTag}, {sTag}, 1']
if opt('map', 0) == 0:
    E([f's_mul_i32 {sT[0]}, {sT[0]}, 55', f's_mul_i32 {sT[2]}, {sT[2]}, 28', f's_add_u32 {sT[0]}, {sT[0]}, {sT[2]}', f's_add_u32 {sT[0]}, {sT[0]}, {sT[1]}',
       f's_sub_u32 {sT[0]}, {sT[0]}, {sT[3]}', f's_mul_i32 {sRB}, {sT[0]}, 6554', f's_lshr_b32 {sRB}, {sRB}, 16', f's_mul_i32 {sT[1]}, {sRB}, 10', f's_sub_u32 {sC}, {sT[0]}, {sT[1]}'])
else:
    E([f's_lshr_b32 {sC}, {sT[0]}, 1', f's_and_b32 {sT[0]}, {sT[0]}, 1',
       f's_mul_i32 {sT[0]}, {sT[0]}, 55', f's_mul_i32 {sT[2]}, {sT[2]}, 28', f's_add_u32 {sT[0]}, {sT[0]}, {sT[2]}', f's_add_u32 {sT[0]}, {sT[0]}, {sT[1]}',
       f's_sub_u32 {sT[0]}, {sT[0]}, {sT[3]}', f's_mul_i32 {sRB}, {sT[0]}, 13108', f's_lshr_b32 {sRB}, {sRB}, 16', f's_mul_i32 {sT[1]}, {sRB}, 5', f's_sub_u32 {sT[0]}, {sT[0]}, {sT[1]}',
       f's_mul_i32 {sC}, {sC}, 5', f's_add_u32 {sC}, {sC}, {sT[0]}'])
sCC = S.alloc('cc'); sU = S.alloc('U')
def sel_cc(dst, tab):
    L = [f's_mov_b32 {dst}, {tab[0]:#x}']
    for cc in range(1, 5): L += [f's_cmp_eq_u32 {sCC}, {cc}', f's_cselect_b32 {dst}, {tab[cc]:#x}, {dst}']
    return L
calc_cc = [f's_sub_u32 {sT[0]}, {sC}, 5', f's_cmp_ge_u32 {sC}, 5', f's_cselect_b32 {sCC}, {sT[0]}, {sC}'] + sel_cc(sU, UT)
vOnes = V.alloc('ones', 4); vrow = V.alloc('trrow'); vPhi = V.alloc('phi32'); _w8 = V.alloc('wr', 8); B3 = V.alloc('B3', 16); vWr = [_w8[i] for i in range(8)] + [B3[i] for i in range(4)]
def calc_wr(secoff):
    vc = vt[4]
    L = tr_parts(vrow, vPhi, vc, vt[3]) + [f'v_lshlrev_b32 {vt[6]}, 1, {vc}']
    if secoff: L += [f'v_add_u32 {vt[5]}, {secoff}, {vrow}']
    for t in range(4):
        L += [f'v_add_u32 {vt[7]}, {8 * t}, {vt[6]}', f'v_bfe_u32 {vt[7]}, {sU}, {vt[7]}, 2', f'v_lshl_add_u32 {vt[7]}, {vt[7]}, 2, {vc}', f'v_lshlrev_b32 {vt[7]}, 3, {vt[7]}',
              f'v_xad_u32 {vWr[t]}, {vt[7]}, {vPhi}, {vt[5] if secoff else vrow}']
    return L
def calc_wr_win(): return [f'v_add_u32 {vWr[4 * k + t]}, {2 * k * SLOT}, {vWr[t]}' for k in (1, 2) for t in range(4)]
def wreads(fb, slot, base, kk, tag):
    return [(f'ds_read_b64_tr_b16 {fb[4 * t + 2 * h:4 * t + 2 * h + 2]}, {vWr[WI[slot] * 4 + t]} offset:{slot * SLOT - WIN[slot] + base + kk * 4096 + h * 512}', tag)
            for t in range(4) for h in range(2)]
set_ones = [f'v_mov_b32 {vOnes[i]}, 0x3f803f80' for i in range(4)]
E([f's_cmp_eq_u32 {sWv}, 0', 's_cbranch_scc1 Lloader'])
st_main = save_state()

sTau = S.alloc('tau'); sOUT = S.alloc('srdout', 4)
B1 = V.alloc('B1', 16); B2 = V.alloc('B2', 16); vXr = B1[0:12]
E([f's_lshl_b32 {sTau}, {sW}, 1', f's_add_u32 {sTau}, {sTau}, {sH}'] + calc_cc + set_ones + [f's_lshl_b32 {sT[1]}, {sH}, 13'] + calc_wr(sT[1]))
vXe = V.alloc('xea')
E([f'v_lshrrev_b32 {vt[6]}, 1, {vTt}', f'v_xor_b32 {vt[5]}, {vt[6]}, {vG}', f'v_lshlrev_b32 {vt[5]}, 4, {vt[5]}', f'v_lshl_add_u32 {vt[5]}, {vTt}, 7, {vt[5]}',
   f's_lshl_b32 {sT[0]}, {sTau}, 11', f's_xor_b32 {sT[1]}, {sT[0]}, 2048', f's_add_u32 {sT[0]}, {sT[0]}, {XOFF - 2048}', f's_add_u32 {sT[1]}, {sT[1]}, {XOFF - 2048}',
   f'v_add_u32 {vXr[0]}, {sT[0]}, {vt[5]}', f'v_add_u32 {vXr[2]}, {sT[1]}, {vt[5]}',
   f's_cmp_eq_u32 {sTau}, 1', f's_cselect_b64 vcc, -1, 0', f's_cselect_b32 {sT[2]}, 0x00010001, 0', f's_mov_b32 {sT[3]}, {sT[2]}',
   f'v_mov_b32 {vt[7]}, {ONES_OFF}', f'v_cndmask_b32 {vXr[2]}, {vXr[2]}, {vt[7]}, vcc', f'v_cndmask_b32 {vXr[0]}, {vXr[0]}, {vt[7]}, {sT[2:4]}',
   f'v_xor_b32 {vXr[1]}, 64, {vXr[0]}', f'v_xor_b32 {vXr[3]}, 64, {vXr[2]}',
   f'v_lshrrev_b32 {vt[4]}, 1, {vG}', f'v_xor_b32 {vt[4]}, {vt[4]}, {vt[6]}', f'v_lshlrev_b32 {vt[4]}, 4, {vt[4]}', f'v_lshl_add_u32 {vt[4]}, {vTt}, 7, {vt[4]}',
   f'v_and_b32 {vt[3]}, 1, {vG}', f'v_lshl_add_u32 {vXe}, {vt[3]}, 3, {vt[4]}', f'v_add_u32 {vt[0]}, {sT[0]}, {vXe}',
   f'v_xor_b32 {vt[1]}, 32, {vt[0]}', f'v_xor_b32 {vt[2]}, 64, {vt[0]}', f'v_xor_b32 {vt[3]}, 0x60, {vt[0]}',
   's_waitcnt lgkmcnt(0)'] + get_tag() + mk_srd(sOUT, pOUT, 2048 * 1280))
S.free('ka', 'kb')
later = calc_wr_win() + [f'v_add_u32 {vXr[4 * k + j]}, {2 * k * SLOT}, {vXr[j]}' for k in (1, 2) for j in range(4)]
E(later)
sSL = S.alloc('SL'); sM = {}
E(sel_cc(sSL, SLT))
for t in (1, 2):
    E([f'v_lshlrev_b32 {vt[6]}, 1, {vG}', f'v_add_u32 {vt[6]}, {8 * t}, {vt[6]}', f'v_bfe_u32 {vt[6]}, {sSL}, {vt[6]}, 2'])
    for sl in (0, 3, t):
        sM[(sl, t)] = S.alloc(f'm{sl}{t}', 2); E(f'v_cmp_eq_u32 {sM[(sl, t)]}, {sl}, {vt[6]}')
S.free('SL', 'U')
sK1 = S.alloc('k1', 2); sK2 = S.alloc('k2', 2); vDiag = B1[12]
E([f's_mov_b32 {sK1[0]}, 0xaaaaaaaa', f's_mov_b32 {sK1[1]}, 0xaaaaaaaa', f's_mov_b32 {sK2[0]}, 0xcccccccc', f's_mov_b32 {sK2[1]}, 0xcccccccc',
   f'v_lshrrev_b32 {vDiag}, 2, {vTt}', f'v_lshl_add_u32 {vDiag}, {vDiag}, 4, {vTt}', f'v_lshlrev_b32 {vDiag}, 2, {vDiag}'])
def lmask(f): return sum(1 << l for l in range(64) if f(l >> 4, l & 15))
MCA = lmask(lambda g, t: t - 4 * g - (t & 1) >= 0); MCB = lmask(lambda g, t: t - 4 * g - 2 - (t & 1) >= 0)
vPM = V.alloc('pm', 4); sCA = S.alloc('ca', 2); sCB = S.alloc('cb', 2); sFirst = S.alloc('first')
E([f's_mov_b32 {sCA[0]}, {MCA & 0xffffffff:#x}', f's_mov_b32 {sCA[1]}, {MCA >> 32:#x}', f's_mov_b32 {sCB[0]}, {MCB & 0xffffffff:#x}', f's_mov_b32 {sCB[1]}, {MCB >> 32:#x}',
   f'v_mov_b32 {vt[4]}, 0xffff', f'v_not_b32 {vt[5]}, {vt[4]}', f'v_cndmask_b32 {vt[4]}, {vt[4]}, {vt[5]}, {sK1}',
   f'v_cndmask_b32 {vPM[2]}, 0, {vt[4]}, {sCA}', f'v_cndmask_b32 {vPM[3]}, 0, {vt[4]}, {sCB}', f'v_xor_b32 {vPM[0]}, {vPM[2]}, {vt[4]}', f'v_xor_b32 {vPM[1]}, {vPM[3]}, {vt[4]}',
   f's_cmp_eq_u32 {sRB}, 0', f's_cselect_b32 {sT[0]}, {sTau}, 0', f's_cmp_eq_u32 {sT[0]}, 2', f's_cselect_b32 {sFirst}, {NEG_INF}, 0'])
XK = AG.alloc('XK', 80); XT = AG.alloc('XT', 16); F = [AG.alloc('F0', 16), AG.alloc('F1', 16)]
acc = V.alloc('acc', 32); accS = B2[0:8]; vXb = V.alloc('xb', 8)
def XKf(k): return XK[4 * k:4 * k + 4]
def p1_reads(s, kk):
    sl = s % 5; off = sl * SLOT - WIN[sl]; tag = ('r', s, kk)
    return [(f'ds_read_b128 {XKf(2 * s + kk)}, {vXr[WI[sl] * 4 + kk]} offset:{off}', tag), (f'ds_read_b128 {XT[4 * kk:4 * kk + 4]}, {vXr[WI[sl] * 4 + 2 + kk]} offset:{off}', tag)] + wreads(F[kk], sl, 0, kk, tag)
def p1_mfmas(s, kk):
    z = (s == 0 and kk == 0); x = XKf(2 * s + kk); xt = XT[4 * kk:4 * kk + 4]
    L = [f'{MFMA} {accS[0:4]}, {vOnes}, {x}, {0 if z else accS[0:4]}', f'{MFMA} {accS[4:8]}, {x}, {x}, {0 if z else accS[4:8]}']
    for t in range(4):
        for pos, xx in enumerate((x, xt)):
            a = acc[pos * 16 + 4 * t:pos * 16 + 4 * t + 4]
            L.append(f'{MFMA} {a}, {F[kk][4 * t:4 * t + 4]}, {xx}, {0 if z else a}')
    return L
vSt = V.alloc('st', 4); vSa = V.alloc('sa'); vEx = V.alloc('exa'); vScB = V.alloc('scb'); vSc = [vSt[3], vScB]
sOb = S.alloc('ob', 5, 1); sOst = S.alloc('ost'); sFl = S.alloc('fl'); sSx = S.alloc('ssx', 4, 1); sCs = S.alloc('cscale'); sVx = S.alloc('vx', 2, 1)
vRka = B3[4:6]
E([f's_mul_i32 {sT[0]}, {sRB}, 6', f's_add_u32 {sT[0]}, {sT[0]}, {sTau}', f's_sub_u32 {sT[0]}, {sT[0]}, 2', f's_lshl_b32 {sFl}, {sT[0]}, 7', f's_add_u32 {sFl}, {sFl}, {WS_FL}',
   f's_mul_i32 {sOb[0]}, {sT[0]}, 20480', f's_add_u32 {sOb[0]}, {sOb[0]}, {WS_O}', f's_lshl_b32 {sT[0]}, {sC}, 11', f's_add_u32 {sOst}, {sT[0]}, {sOb[0]}',
   f's_lshl_b32 {sT[0]}, s2, 12', f's_add_u32 {sT[0]}, {sT[0]}, {WS_JUNK}', f's_add_u32 {sT[1]}, {sT[0]}, 2048', f's_cmp_eq_u32 {sTau}, 1',
   f's_cselect_b32 {sOst}, {sT[0]}, {sOst}', f's_cselect_b32 {sFl}, {sT[1]}, {sFl}'] +
  [f's_add_u32 {sOb[i]}, {sOb[0]}, {4096 * i}' for i in range(1, 5)] +
  [f's_mul_i32 {sT[0]}, {sRB}, 10', f's_add_u32 {sT[0]}, {sT[0]}, {sC}', f's_mul_i32 {sSx[0]}, {sT[0]}, 12288', f's_lshl_b32 {sT[0]}, {sTau}, 10', f's_add_u32 {sSx[0]}, {sSx[0]}, {sT[0]}',
   f's_add_u32 {sSx[0]}, {sSx[0]}, {WS_SX - 2048}', f's_add_u32 {sSx[1]}, {sSx[0]}, 6144', f's_sub_u32 {sSx[2]}, {sSx[0]}, 6144', f's_add_u32 {sSx[3]}, {sSx[0]}, 12288',
   f's_mov_b32 {sCs}, {f32(SCALE_L2E)}',
   f's_lshl_b32 {sT[0]}, {sTau}, 6', f's_add_u32 {sT[0]}, {sT[0]}, {L_M}', f'v_lshl_add_u32 {vSa}, {vTt}, 2, {sT[0]}',
   f'v_and_b32 {vt[4]}, 1, {vLane}', f'v_lshl_add_u32 {vt[4]}, {vG}, 2, {vt[4]}', f'v_lshl_add_u32 {vt[4]}, {vt[4]}, 2, {sT[0]}', f'v_subrev_u32 {vt[5]}, 64, {vt[4]}',
   f'v_cndmask_b32 {vRka[0]}, {vt[5]}, {vt[4]}, {sCA}', f'v_cndmask_b32 {vRka[1]}, {vt[5]}, {vt[4]}, {sCB}',
   f's_mul_i32 {sVx[0]}, {sW}, {SLOT}', f's_add_u32 {sVx[0]}, {sVx[0]}, {SPARE}', f'v_add_u32 {vEx}, {sVx[0]}, {vL16}',
   f's_lshl_b32 {sT[1]}, {sH}, 11', f's_add_u32 {sVx[0]}, {sVx[0]}, {sT[1]}', f's_cmp_eq_u32 {sH}, 0', f's_cselect_b32 {sVx[1]}, {SLOT - 2048}, {sT[1]}',
   f'v_lshlrev_b32 {B3[6]}, 4, {vG}', f's_lshl_b32 {sT[0]}, {sH}, 8', f's_add_u32 {sT[0]}, {sT[0]}, {L_CS}', f'v_add_u32 {B3[6]}, {sT[0]}, {B3[6]}', f'v_xor_b32 {B3[7]}, 64, {vSa}'])
E(stamp())
for s in range(10):
    A.comment(f'pass1 unit {s}')

    E(['s_waitcnt lgkmcnt(0)', 's_barrier']); E.lg = []
    if s == 0:
        E(stamp() + p1_reads(0, 0) + [f'ds_read_b64 {vXb[2 * n:2 * n + 2]}, {vt[n]}' for n in range(4)] + fin_tag())
    else:
        E(merge(p1_mfmas(s - 1, 1), p1_reads(s, 0), 1, 2))
    E(W(lg=('r', s, 0)))
    E(merge(p1_mfmas(s, 0), p1_reads(s, 1), 1, 2))
lastm = p1_mfmas(9, 1)
E(W(lg='all')); E(lastm[:2])
adj = [f's_lshl_b32 {sT[1]}, {sH}, 13'] + [f'v_subrev_u32 {vWr[i]}, {sT[1]}, {vWr[i]}' for i in range(8)]
E(merge(lastm[2:5], adj, 1, 3))
E(merge(lastm[5:], stats(accS[0], accS[4:8], vSt[0:2], vt, vDiag, sK1, sK2), 1, 3))
S.free('k2')
E([f'ds_write_b32 {vSa}, {vSt[0]}', f'ds_write_b32 {vSa}, {vSt[1]} offset:512', f's_cmp_lg_u32 {sTau}, 1', 's_cbranch_scc1 Lnocs',
   's_mov_b32 exec_lo, 0x00010001', 's_mov_b32 exec_hi, 0x00010001'] +
  [f'ds_write_b128 {B3[6]}, {acc[4 * t:4 * t + 4]} offset:{64 * t}' for t in range(4)] + ['s_mov_b64 exec, -1', ('L', 'Lnocs')])
def dump_regs(regs):
    n = len(regs)
    E([f's_mul_i32 {sT[0]}, {sRB}, 10', f's_add_u32 {sT[0]}, {sT[0]}, {sC}', f's_lshl_b32 {sT[0]}, {sT[0]}, 3', f's_add_u32 {sT[0]}, {sT[0]}, {sTau}',
       f's_mul_i32 {sT[0]}, {sT[0]}, {n * 256}', f's_add_u32 {sT[0]}, {sT[0]}, {WS_DUMP}', 's_nop 7'])
    for r in regs: A(f'buffer_store_dword {r}, {vL4}, {sWS}, {sT[0]} offen'); A(f's_add_u32 {sT[0]}, {sT[0]}, 256')
    A('s_waitcnt vmcnt(0)')
E(stamp())
E(['s_waitcnt lgkmcnt(0)', 's_barrier'] + stamp()); E.lg = []
accV = B1; F3 = XT
FR = [F[0], F[1], F3]
def p2_reads(k): sl, sub = VLOC[k // 2]; return wreads(FR[k % 3], sl, sub * 8192, k % 2, ('v', k))
def p2_range(k0, k1, kmax, started, fill=()):
    L = []; fill = list(fill); n = k1 - k0
    for k in range(k0, k1):
        for kk in (k, k + 1, k + 2):
            if kk not in started and kk < kmax: L += p2_reads(kk); started.add(kk)
        m = [f'{MFMA} {accV[4 * t:4 * t + 4]}, {XKf(k)}, {FR[k % 3][4 * t:4 * t + 4]}, {0 if k == 0 else accV[4 * t:4 * t + 4]}' for t in range(4)]
        cnt = -(-len(fill) // (k1 - k)); f = fill[:cnt]; fill = fill[cnt:]
        L += [W(lg=('v', k))] + spread(m, f)
    for kk in (k1, k1 + 1, k1 + 2):
        if kk not in started and kk < kmax: L += p2_reads(kk); started.add(kk)
    return L
vCS = B2; vQ8 = acc[0:8]; vK16 = acc[16:32]
def fix_qk(dst, a16, negm):
    L = []
    for t in range(4):
        L += [f'v_fmac_f32 {a16[4 * t + i]}, {vCS[4 * t + i]}, {negm}' for i in range(4)] + cvt2(dst[2 * t:2 * t + 2], a16[4 * t:4 * t + 4])
    return L
E([(f'ds_read_b32 {vSt[2]}, {B3[7]}', 'cs')] + [(f'ds_read_b128 {vCS[4 * t:4 * t + 4]}, {B3[6]} offset:{64 * t}', 'cs') for t in range(4)] +
  [f'ds_read_b32 {vSc[0]}, {vRka[0]} offset:512', f'ds_read_b32 {vSc[1]}, {vRka[1]} offset:520', f's_cmp_eq_u32 {sH}, 0', W(lg='cs')] +
  fix_qk(vK16[0:8], acc[16:32], vSt[2]) + ['s_cbranch_scc0 Lh1'])
st_b1 = (list(E.vm), list(E.lg))
for h in range(2):
    if h: A.label('Lh1')
    E.vm, E.lg = list(st_b1[0]), list(st_b1[1])
    started = set()
    E([f'ds_write_b128 {vEx}, {vK16[4 * i:4 * i + 4]} offset:{h * 2048 + i * 1024}' for i in range(2)])
    if h == 1: E(fix_qk(vK16[8:16], acc[0:16], vSt[0]) + [f'ds_write_b128 {vEx}, {vK16[8 + 4 * i:12 + 4 * i]} offset:{4096 + i * 1024}' for i in range(2)])
    E.lg[-1] = 'exw'
    if h == 0: E(p2_range(0, 0, 6, started) + fix_qk(vQ8, acc[0:16], vSt[0]) + [f'v_subrev_u32 {vt[0]}, {SLOT}, {vEx}'])
    E([W(lg='exw'), 's_barrier'])
    if h == 0:
        E([(f'ds_read_b128 {vK16[8 + 4 * i:12 + 4 * i]}, {vEx} offset:{2048 + i * 1024}', 'ex') for i in range(2)] +
          [(f'ds_read_b128 {vK16[4 * i:4 * i + 4]}, {vt[0]} offset:{4096 + i * 1024}', 'ex') for i in range(2)] + [f'v_mov_b32 {vt[4 + i]}, {sFirst}' for i in range(4)] +
          [W(lg='all'), 's_branch Lh_join'])
    else:
        E([f's_cmp_eq_u32 {sTau}, 1', 's_cbranch_scc1 Lhalo'] + [(f'ds_read_b128 {vQ8[4 * i:4 * i + 4]}, {vEx} offset:{i * 1024}', 'ex') for i in range(2)] +
          [f'v_mov_b32 {vt[4 + i]}, 0' for i in range(4)] + [W(lg='all')])
A.label('Lh_join')
E.lg = []
E(stamp())
vQ = B3
def QO(sl): return vQ[sl * 4:sl * 4 + 4]
KO = {1: 0, 0: 2, 3: 2, 2: 4}
def SA(sl, pc): return {0: vCS[0:8], 3: vCS[8:16], 1: acc[8:16], 2: vCS[0:8]}[sl][pc * 4:pc * 4 + 4]
def s_mfma(sl): return [f'{MFMA} {SA(sl, pc)}, {vK16[8 * pc + KO[sl]:8 * pc + KO[sl] + 4]}, {QO(sl)}, {0 if pc else vt[4:8]}' for pc in range(2)]
def mrg(sl):
    p = SA(sl, 0); c = SA(sl, 1); d = QO(sl)
    return [f'v_cndmask_b32 {p[0]}, {p[0]}, {p[1]}, {sK1}', f'v_cndmask_b32 {c[0]}, {c[0]}, {c[1]}, {sK1}', f'v_cndmask_b32 {p[2]}, {p[2]}, {p[3]}, {sK1}',
            f'v_cndmask_b32 {c[2]}, {c[2]}, {c[3]}, {sK1}', f'v_cndmask_b32 {d[0]}, {p[0]}, {c[0]}, {sCA}', f'v_cndmask_b32 {d[2]}, {p[2]}, {c[2]}, {sCB}']
def qmask(sl): return [f'v_cndmask_b32 {QO(sl)[i]}, 0, {vQ8[2 + i]}, {sM[(sl, 1 + i // 2)]}' for i in range(4)]
q1 = [f'v_mov_b32 {QO(1)[0]}, {vQ8[0]}', f'v_mov_b32 {QO(1)[1]}, {vQ8[1]}'] + [f'v_cndmask_b32 {QO(1)[2 + i]}, 0, {vQ8[2 + i]}, {sM[(1, 1)]}' for i in range(2)]
q2 = [f'v_cndmask_b32 {QO(2)[i]}, 0, {vQ8[4 + i]}, {sM[(2, 2)]}' for i in range(2)] + [f'v_mov_b32 {QO(2)[2]}, {vQ8[6]}', f'v_mov_b32 {QO(2)[3]}, {vQ8[7]}']
def pub(sl, so): return [f'v_mov_b32 {QO(sl)[1]}, {sTag}', f'v_mov_b32 {QO(sl)[3]}, {sTag}'] + mrg(sl) + [f'buffer_store_dwordx4 {QO(sl)}, {vL16}, {sWS}, {so} offen sc1']
E(qmask(0) + qmask(3)[:2] + s_mfma(0) + qmask(3)[2:] + q1[:2] + s_mfma(3) + q1[2:] + q2[:2] + s_mfma(1) + pub(0, sSx[0]) + pub(3, sSx[1]))
E(stamp())
started = set()
E([f's_cmp_eq_u32 {sH}, 0', 's_cbranch_scc1 Lpf_done'] + p2_range(0, 0, 6, started) + [('L', 'Lpf_done')])
def softmax(sls):
    n = len(sls); mx = [vt[i] for i in range(n)]; tp = [vt[2 + i] for i in range(n)]
    L = []
    for sl in sls: L += [f'v_mul_f32 {QO(sl)[2 * j]}, {QO(sl)[2 * j]}, {vSc[j]}' for j in range(2)]
    L += [f'v_max_f32 {mx[i]}, {QO(sl)[0]}, {QO(sl)[2]}' for i, sl in enumerate(sls)]
    for sw in ('v_permlane32_swap_b32', 'v_permlane16_swap_b32'):
        L += [f'v_mov_b32 {tp[i]}, {mx[i]}' for i in range(n)] + [f'{sw} {mx[i]}, {tp[i]}' for i in range(n)] + [f'v_max_f32 {mx[i]}, {mx[i]}, {tp[i]}' for i in range(n)]
    for i, sl in enumerate(sls): L += [f'v_sub_f32 {QO(sl)[j]}, {QO(sl)[j]}, {mx[i]}' for j in (0, 2)]
    for sl in sls: L += [f'v_exp_f32 {QO(sl)[j]}, {QO(sl)[j]}' for j in (0, 2)]
    for sl in sls: d = QO(sl); L += [f'v_cvt_pk_bf16_f32 {d[0]}, {d[0]}, {d[0]}', f'v_cvt_pk_bf16_f32 {d[1]}, {d[2]}, {d[2]}']
    for sl in sls: d = QO(sl); L += [f'v_and_b32 {d[2]}, {d[0]}, {vPM[2]}', f'v_and_b32 {d[3]}, {d[1]}, {vPM[3]}', f'v_and_b32 {d[0]}, {d[0]}, {vPM[0]}', f'v_and_b32 {d[1]}, {d[1]}, {vPM[1]}']
    return L
def gate_calc(xb, xn, g, upd=None):
    n = 2 * xb.n; L = []
    for i in range(n // 2): L += [f'v_lshlrev_b32 {xn[2 * i]}, 16, {xb[i]}', f'v_and_b32 {xn[2 * i + 1]}, 0xffff0000, {xb[i]}']
    L += [f'v_add_f32 {xn[i]}, {xn[i]}, {vSt[0]}' for i in range(n)] + round_pairs(xn, n) + [f'v_mul_f32 {xn[i]}, {xn[i]}, {vSt[1]}' for i in range(n)] + round_pairs(xn, n)
    if upd is not None: L += [W(lg='all')] + [f'v_add_f32 {xn[i]}, {xn[i]}, {upd[i]}' for i in range(n)] + round_pairs(xn, n)
    return L + silu_into(g, xn, n)[:-n]
PK = XK[0:16]
fill1 = q2[2:] + [f'v_mul_f32 {vt[0]}, {sCs}, {vSt[1]}'] + s_mfma(2) + [f'v_mul_f32 {vSc[j]}, {vSc[j]}, {vt[0]}' for j in range(2)] + mrg(1) + mrg(2) + softmax([1, 2])
KA, KB = opt('ka', 6), opt('kb', 17)
E([f'v_mov_b32 {vCS[8 + i]}, -1' for i in range(4)] + [(f'buffer_store_dwordx4 {vCS[8:12]}, {vL16}, {sWS}, {sOst} offen offset:{1024 * i} sc1', 'clr') for i in range(2)])
E(p2_range(0, KA, 12, started, fill1))
E(p2_range(KA, 9, 12, started))
E('s_barrier')
vRx = acc[24:32]; vNm = vCS[0:8]; vCv = vCS[8:12]
def rx_loads(): return [(f'buffer_load_dwordx4 {vRx[4 * d:4 * d + 4]}, {vL16}, {sWS}, {sSx[2 + d]} offen sc1', 'rx') for d in range(2)]
def vstat_reads(): return [f's_lshl_b32 {sT[0]}, {sTau}, 6', f's_add_u32 {sT[0]}, {sT[0]}, {L_M}', f'v_lshl_add_u32 {vt[0]}, {vG}, 4, {sT[0]}',
                           f'ds_read_b128 {vNm[0:4]}, {vt[0]}', f'ds_read_b128 {vNm[4:8]}, {vt[0]} offset:512',
                           f'v_lshl_add_u32 {vEx}, {vLane}, 3, {sVx[0]}', f'v_lshlrev_b32 {vt[1]}, 4, {vTt}', f'v_add_u32 {vt[1]}, {L_CSV}, {vt[1]}', f'v_mov_b32 {vt[2]}, {L_CSF}',
                           f'v_subrev_u32 {vt[4]}, {sVx[1]}, {vEx}']
E(p2_range(9, KB, 20, started))
E([f's_lshl_b32 {sT[0]}, {sC}, 2', f'v_mov_b32 {vt[0]}, {sT[0]}', f'v_mov_b32 {vt[1]}, {sTag}', W('clr')] + rx_loads() + ['s_mov_b64 exec, 1',
   f'buffer_store_dword {vt[1]}, {vt[0]}, {sWS}, {sFl} offen sc1', 's_mov_b64 exec, -1'] + vstat_reads())
E(p2_range(KB, 20, 20, started))
E(stamp())
vV = accV
def vfix():
    L = []
    for t in range(4):
        a = accV[4 * t:4 * t + 4]
        L += [f'v_fmac_f32 {a[i]}, {vNm[i]}, {vCv[t]}' for i in range(4)] + [f'v_mul_f32 {a[i]}, {a[i]}, {vNm[4 + i]}' for i in range(4)]
        L += cvt2(vV[4 * t + 2:4 * t + 4], a)[::-1] + [f'ds_write_b64 {vEx}, {vV[4 * t + 2:4 * t + 4]} offset:{512 * t}']
    return L
E([('L', 'Lcsv')] + spin_guard() + [f'ds_read_b32 {vt[3]}, {vt[2]}', f'ds_read_b128 {vCv}, {vt[1]}', W(lg='all'), f'v_readfirstlane_b32 {sT[2]}, {vt[3]}',
   f's_cmp_eq_u32 {sT[2]}, 0', 's_cbranch_scc1 Lcsv'])
E(vfix())
E([W('rx'), ('L', 'Lrx_chk')])
for d in range(2):
    E([f'v_cmp_eq_u32 vcc, {sTag}, {vRx[4 * d + 1]}', f'v_cmp_eq_u32 {sT[2 * d:2 * d + 2]}, {sTag}, {vRx[4 * d + 3]}', f's_and_b64 {sT[2 * d:2 * d + 2]}, {sT[2 * d:2 * d + 2]}, vcc',
       f's_cmp_eq_u32 {sCC}, {4 * d}', f's_cselect_b64 {sT[2 * d:2 * d + 2]}, -1, {sT[2 * d:2 * d + 2]}'])
E([f's_and_b64 {sT[0:2]}, {sT[0:2]}, {sT[2:4]}',
   f's_cmp_eq_u64 {sT[0:2]}, -1', 's_cbranch_scc1 Lrx_ok'] + spin_guard() + rx_loads() + [W('all'), 's_branch Lrx_chk', ('L', 'Lrx_ok')] + stamp())
for d, sl in ((0, 0), (1, 3)):
    E([f's_cmp_eq_u32 {sCC}, {4 * d}', 's_cselect_b64 vcc, -1, 0'])
    for j in (0, 2): E([f'v_cndmask_b32 {vRx[4 * d + j]}, {vRx[4 * d + j]}, 0, vcc', f'v_add_f32 {QO(sl)[j]}, {QO(sl)[j]}, {vRx[4 * d + j]}'])
E(['s_setprio 2', 's_waitcnt lgkmcnt(0)', 's_barrier'] + stamp()); E.lg = []
E([(f'ds_read_b64 {vV[4 * t:4 * t + 2]}, {vt[4]} offset:{512 * t}', 'vp') for t in range(4)])
vO = acc; vSum = vCS
PVL = [(0, 1), (1, 1), (2, 2), (3, 2), (1, 0), (2, 0), (1, 3), (2, 3)]
def OO(t, sl): b = PVL.index((t, sl)) * 4; return vO[b:b + 4]
def SM(sl): return vSum[4 * sl:4 * sl + 4]
def pv(sls): return [f'{MFMA} {SM(sl)}, {vOnes}, {QO(sl)}, 0' for sl in sls] + [f'{MFMA} {OO(t, sl)}, {vV[4 * t:4 * t + 4]}, {QO(sl)}, 0' for (t, sl) in PVL if sl in sls]
ch = softmax([0, 3])
E(ch[:12]); E(W(lg='vp')); E(spread(ch[12:], pv([1, 2])))
vOst = vt
def onorm(t, o, rc): return [f'v_mul_f32 {o[i]}, {o[i]}, {rc}' for i in range(4)] + cvt2(vOst[2 * t:2 * t + 2], o) + [f'v_min_u32 {vOst[2 * t + i]}, -2, {vOst[2 * t + i]}' for i in range(2)]
E(spread(pv([0, 3]), [f'v_rcp_f32 {SM(sl)[0]}, {SM(sl)[0]}' for sl in (1, 2)] + onorm(0, OO(0, 1), SM(1)[0])) + onorm(3, OO(3, 2), SM(2)[0]) + [f'v_rcp_f32 {SM(sl)[0]}, {SM(sl)[0]}' for sl in (0, 3)])
for t in (1, 2):
    d = OO(t, t); rc = SM(t)[2]
    E([f'v_cndmask_b32 {rc}, {SM(t)[0]}, {SM(0)[0]}, {sM[(0, t)]}', f'v_cndmask_b32 {rc}, {rc}, {SM(3)[0]}, {sM[(3, t)]}'])
    for sl in (0, 3): E([f'v_cndmask_b32 {d[r]}, {d[r]}, {OO(t, sl)[r]}, {sM[(sl, t)]}' for r in range(4)])
    E(onorm(t, d, rc) + [f'buffer_store_dwordx4 {vOst[4 * (t - 1):4 * t]}, {vL16}, {sWS}, {sOst} offen offset:{(t - 1) * 1024} sc1'])
E(stamp())
vFl = B3[0]
fl_load = (f'buffer_load_dword {vFl}, {vL4}, {sWS}, {sFl} offen sc1', 'fl')
E(['s_setprio 0', fl_load] + gate_calc(vXb, acc[0:16], acc[16:32]) + [f'v_accvgpr_write_b32 {PK[i]}, {acc[17 + 2 * i]}' for i in range(8)] + [f'v_accvgpr_write_b32 {PK[8 + i]}, {vXb[i]}' for i in range(8)])
vWr_p1 = list(vWr); vWr[8:12] = [vSt[2], vSt[3], vSa, vScB]
E([f'v_and_b32 {vt[2]}, 3, {vLane}', f'v_lshl_add_u32 {vt[2]}, {vt[2]}, 3, {vPhi}', f'v_add_u32 {vWr[0]}, {vt[2]}, {vrow}'] +
  [f'v_xor_b32 {vWr[t]}, {32 * t}, {vWr[0]}' for t in (1, 2, 3)] + calc_wr_win())
FR = [XK[16 * i:16 * i + 16] for i in range(1, 5)] + [XT, F[0], F[1]]; NF = 7
def wo_reads(k): sl, sub = OLOC[k // 2]; return wreads(FR[k % NF], sl, sub * 8192, k % 2, ('o', k))
OFG = [acc[4 * i:4 * i + 4] for i in range(8)] + [B[4 * i:4 * i + 4] for B in (B1, B2, B3) for i in range(4)]
accO = [vXb[0:4], vXb[4:8], vPM, vOnes]
sJ = S.alloc('j')
NPRE = opt('npre', 0)
for k in range(NPRE): E(wo_reads(k))
E([W('fl'), ('L', 'Lfl_chk'), f'v_cmp_eq_u32 vcc, {sTag}, {vFl}', f's_mov_b32 {sJ}, 0', f's_and_b32 {sT[0]}, vcc_lo, 0x3ff', f's_cmp_lg_u32 {sT[0]}, 0x3ff', 's_cbranch_scc1 Lfl_re'] + stamp())
E.vm = []
for k in range(20):
    if k % 2 == 0: A.label(f'Lld_{k // 2}')
    E((f'buffer_load_dwordx4 {OFG[k]}, {vL16}, {sWS}, {sOb[k // 4]} offen offset:{(k % 4) * 1024} sc1', ('of', k // 2)))
E([f's_cmp_lg_u32 {sJ}, 0', 's_cbranch_scc1 Ldisp'])
for k in range(NPRE, NF): E(wo_reads(k))
E([f'v_mov_b32 {vt[6]}, {L_INFO}'])
def chk(j):
    a, b = OFG[2 * j], OFG[2 * j + 1]
    return [('L', f'Lchk_{j}'), W(('of', j)), f'v_max3_u32 {vt[0]}, {a[0]}, {a[1]}, {a[2]}', f'v_max3_u32 {vt[1]}, {b[0]}, {b[1]}, {b[2]}', f'v_max3_u32 {vt[0]}, {vt[0]}, {a[3]}, {b[3]}',
            f'v_max_u32 {vt[0]}, {vt[0]}, {vt[1]}', f'v_cmp_eq_u32 vcc, -1, {vt[0]}', f's_cbranch_vccnz Lre_{j}']
vXf = acc[0:16]; vGt = acc[16:32]; vOa = B1[0:2]; vRow = B1[2]; vTa = B1[4:8]; vTr = B1[3]; vOst = B1[8:16]
tail = []
for i in range(8):
    tail += [f'v_accvgpr_read_b32 {vGt[2 * i + 1]}, {PK[i]}', f'v_accvgpr_read_b32 {vXf[2 * i + 1]}, {PK[8 + i]}']
for x in (vGt, vXf):
    for i in range(8): tail += [f'v_lshlrev_b32 {x[2 * i]}, 16, {x[2 * i + 1]}', f'v_and_b32 {x[2 * i + 1]}, 0xffff0000, {x[2 * i + 1]}']
oadr = [f's_mul_i32 {sT[0]}, {sRB}, 96', f's_lshl_b32 {sT[1]}, {sTau}, 4', f's_add_u32 {sT[0]}, {sT[0]}, {sT[1]}', f's_sub_u32 {sT[0]}, {sT[0]}, 32',
        f'v_add_u32 {vRow}, {sT[0]}, {vTt}', f'v_lshrrev_b32 {vt[2]}, 3, {vLane}', f'v_add_u32 {vt[2]}, {sT[0]}, {vt[2]}', f'v_mul_u32_u24 {vt[2]}, 1280, {vt[2]}',
        f'v_and_b32 {vt[3]}, 7, {vLane}', f'v_xor_b32 {vt[3]}, {vt[3]}, {vG}', f'v_lshl_add_u32 {vOa[0]}, {vt[3]}, 4, {vt[2]}', f'v_xor_b32 {vOa[1]}, 64, {vOa[0]}',
        f'v_add_u32 {vOa[1]}, {8 * 1280}, {vOa[1]}',
        f's_lshl_b32 {sT[0]}, {sTau}, 11', f's_add_u32 {sT[0]}, {sT[0]}, {2 * SLOT}', f'v_add_u32 {vTa[0]}, {sT[0]}, {vXe}', f'v_xor_b32 {vTa[1]}, 32, {vTa[0]}',
        f'v_xor_b32 {vTa[2]}, 64, {vTa[0]}', f'v_xor_b32 {vTa[3]}, 0x60, {vTa[0]}', f'v_add_u32 {vTr}, {sT[0]}, {vL16}', f's_lshl_b32 {sFl}, {sC}, 7']
fills = {5: tail[:16], 6: tail[16:32], 7: tail[32:48], 8: oadr}
for j in range(10):
    E(chk(j))
    if j == 0: E(stamp())
    if j == 1:
        E([('L', 'Linfo')] + spin_guard() + [f'ds_read_b64 {vt[4:6]}, {vt[6]}', W(lg='all'), f'v_readfirstlane_b32 {sT[3]}, {vt[4]}', f's_cmp_eq_u32 {sT[3]}, {SENT}', 's_cbranch_scc1 Linfo'])
    for k in (2 * j, 2 * j + 1):
        m = [f'{MFMA} {accO[n]}, {FR[k % NF][4 * n:4 * n + 4]}, {OFG[k]}, {0 if k == 0 else accO[n]}' for n in range(4)]
        f = fills.get(j, []); f = f[:len(f) // 2] if k % 2 == 0 else f[len(f) // 2:]
        E([W(lg=('o', k))] + spread(m, f) + (wo_reads(k + NF) if k + NF < 20 else []))
E(stamp())
E([f'v_and_b32 {vt[2]}, {vt[4]}, {vt[5]}', f'v_readfirstlane_b32 {sT[3]}, {vt[2]}', f's_cmp_eq_u32 {sT[3]}, -1', 's_cbranch_scc0 Lfix', ('L', 'Lnofix')])
for n in range(4):
    a = accO[n]
    E([f'v_fma_f32 {a[i]}, {a[i]}, {vGt[4 * n + i]}, {vXf[4 * n + i]}' for i in range(4)] + cvt2(vOst[2 * n:2 * n + 2], a) + [f'ds_write_b64 {vTa[n]}, {vOst[2 * n:2 * n + 2]}'])
E([(f'ds_read_b128 {B2[4 * i:4 * i + 4]}, {vTr} offset:{1024 * i}', ('fin', i)) for i in range(2)])
for i in range(2): E([W(lg=('fin', i)), f'buffer_store_dwordx4 {B2[4 * i:4 * i + 4]}, {vOa[i]}, {sOUT}, {sFl} offen{NT["S"]}'])
write_stamps(STAMPW, 'main')
E('s_endpgm')
E([('L', 'Lfl_re')] + spin_guard() + [fl_load, W('all'), 's_branch Lfl_chk'])
for j in range(10): E([('L', f'Lre_{j}'), f's_mov_b32 {sJ}, {j + 1}', 's_branch Lprobe'])
E([('L', 'Lprobe'), f'v_min_u32 {vt[1]}, 19, {vLane}', f'v_lshlrev_b32 {vt[1]}, 10, {vt[1]}', ('L', 'Lprobe2')] + spin_guard() +
  [f'buffer_load_dword {vt[0]}, {vt[1]}, {sWS}, {sOb[0]} offen offset:1020 sc1', W('all'), f'v_cmp_eq_u32 vcc, -1, {vt[0]}', 's_cbranch_vccnz Lprobe2'])
for j in range(9): E([f's_cmp_eq_u32 {sJ}, {j + 1}', f's_cbranch_scc1 Lld_{j}'])
E('s_branch Lld_9')
A.label('Ldisp')
for j in range(9): E([f's_cmp_eq_u32 {sJ}, {j + 1}', f's_cbranch_scc1 Lchk_{j}'])
E('s_branch Lchk_9')
E([('L', 'Lfix'), f'v_mov_b32 {vt[6]}, {L_UF}', ('L', 'Lfix_w')] + spin_guard() + [f'ds_read_b32 {vt[2]}, {vt[6]}', W(lg='all'), f'v_readfirstlane_b32 {sT[3]}, {vt[2]}',
   f's_cmp_eq_u32 {sT[3]}, 0', 's_cbranch_scc1 Lfix_w',
   f'v_mov_b32 {vt[2]}, {L_UPD + 512}', f'v_mov_b32 {vt[3]}, {L_UPD}', f'v_cmp_eq_u32 vcc, {vt[4]}, {vRow}', f'v_cndmask_b32 {vt[2]}, {vt[2]}, {vt[3]}, vcc',
   f'v_mov_b32 {vt[3]}, {L_UPD + 256}', f'v_cmp_eq_u32 vcc, {vt[5]}, {vRow}', f'v_cndmask_b32 {vt[2]}, {vt[2]}, {vt[3]}, vcc', f'v_lshl_add_u32 {vt[2]}, {vG}, 4, {vt[2]}'] +
  [f'ds_read_b128 {B3[4 * n:4 * n + 4]}, {vt[2]} offset:{64 * n}' for n in range(4)] + [f'v_accvgpr_read_b32 {vOst[i]}, {PK[8 + i]}' for i in range(8)] +
  gate_calc(vOst, B2, vGt, B3) + round_pairs(vGt, 16)[8:] + ['s_branch Lnofix'])

A.label('Lhalo'); E.reset()
FR = [F[0], F[1], F3]
started = set()
E(['s_setprio 2'] + signal() + p2_range(0, 9, 12, started)); E('s_barrier')
E(vstat_reads() + p2_range(9, 20, 20, started))
E(['s_mov_b64 exec, 0xffff'] + [f'ds_write_b32 {vt[1]}, {accV[4 * t]} offset:{4 * t}' for t in range(4)] +
  [f'ds_write_b32 {vt[2]}, {vt[2]}', 's_mov_b64 exec, -1', f'ds_read_b128 {vCv}, {vt[1]}', W(lg='all')])
E(vfix() + ['s_waitcnt lgkmcnt(0)', 's_barrier', 's_endpgm'])

load_state(st_main); vWr[:] = vWr_p1
A.label('Lloader')
BIAS = 4096
sX = S.alloc('srdx', 4); sWQ = S.alloc('srdq', 4); sWK = S.alloc('srdk', 4); sWV = S.alloc('srdv', 4); sWO = S.alloc('srdwo', 4)
vW = V.alloc('vw', 8); vX = V.alloc('vx', 14); sWk = S.alloc('wk', 10, 1); sXk = S.alloc('xk'); sRho = S.alloc('rho'); sStr = S.alloc('stride')
l3 = vt[1]; l7 = vt[2]; vch = V.alloc('chunkw')
E(['s_setprio 3', f'v_lshrrev_b32 {l3}, 3, {vLane}', f'v_and_b32 {l7}, 7, {vLane}',
   f'v_and_b32 {vt[4]}, 1, {vG}', f'v_lshlrev_b32 {vt[4]}, 1, {vt[4]}', f'v_xor_b32 {vt[4]}, {vt[4]}, {l7}', f's_lshl_b32 {sT[3]}, {sC}, 7', f'v_lshl_add_u32 {vch}, {vt[4]}, 4, {sT[3]}',
   f'v_mov_b32 {vt[3]}, 3840', f'v_mad_u32_u24 {vW[0]}, {l3}, {vt[3]}, {vch}', f'v_xor_b32 {vW[1]}, 64, {vW[0]}', f'v_add_u32 {vW[1]}, {8 * 3840 - 1024}, {vW[1]}'] +
  [f'v_add_u32 {vW[j]}, {(j - j % 2) * 8 * 3840 - ((j % 4) - (j % 2)) * 1024}, {vW[j % 2]}' for j in range(2, 8)] +
  [f's_mul_i32 {sT[2]}, {sRB}, 96', f's_sub_u32 {sT[2]}, {sT[2]}, 16', f'v_add_u32 {vt[3]}, {sT[2]}, {l3}',
   f'v_xor_b32 {vt[5]}, {l7}, {vG}', f'v_lshlrev_b32 {vt[5]}, 4, {vt[5]}', f'v_xor_b32 {vt[6]}, 64, {vt[5]}', f'v_mov_b32 {vt[7]}, 2047', f'v_mov_b32 {vt[4]}, 1280'])
for j in range(14):
    E([f'v_add_u32 {vX[j]}, {8 * j}, {vt[3]}', f'v_med3_i32 {vX[j]}, {vX[j]}, 0, {vt[7]}', f'v_mad_u32_u24 {vX[j]}, {vX[j]}, {vt[4]}, {vt[5 + j % 2]}',
       f'v_add_u32 {vX[j]}, {BIAS - (j % 4) * 1024}, {vX[j]}'])
WSZ = 640 * 3840
E([f's_and_b32 {sStr}, {sRB}, 3', f's_lshl_b32 {sStr}, {sStr}, 2', f's_lshr_b32 {sStr}, 0x9731, {sStr}', f's_and_b32 {sStr}, {sStr}, 15', f's_mov_b32 {sRho}, {sC}',
   's_waitcnt lgkmcnt(0)'] + mk_srd(sX, pX, 2048 * 1280, -BIAS) + mk_srd(sWQ, pW, WSZ) + mk_srd(sWK, pW, WSZ, 1280))
def grp(m0, items):
    L = [f's_mov_b32 m0, {m0}']
    for j, (vo, srd, so, nt, tag) in enumerate(items):
        L.append((f'buffer_load_dwordx4 {vo}, {srd}, {so} offen' + (f' offset:{1024 * j}' if j else '') + f'{nt} lds', tag))
    return L
def unit_loads(s):
    sb = (s % 5) * SLOT; tag = ('u', s)
    L = [f's_mul_i32 {sWk[s]}, {sRho}, {64 * 3840}', f's_lshl_b32 {sXk}, {sRho}, 7']
    xs = [grp(sb + XOFF + q * 4096, [(vX[j], sX, sXk, NT['X'], tag) for j in range(4 * q, min(4 * q + 4, 14))]) for q in range(4)]
    ws = [grp(sb + sec * 8192 + q * 4096, [(vW[j], srd, sWk[s], NT['W'], tag) for j in range(4 * q, 4 * q + 4)]) for q in range(2) for sec, srd in ((0, sWQ), (1, sWK))]
    for a, b in zip(xs, ws): L += a + b
    return L + [[f's_add_u32 {sRho}, {sRho}, {sStr}', f's_sub_u32 {sT[2]}, {sRho}, 10', f's_cmp_ge_u32 {sRho}, 10', f's_cselect_b32 {sRho}, {sT[2]}, {sRho}']]
def v_loads(j):
    sl, sub = VLOC[j]; L = []
    for q in range(2): L += grp(sl * SLOT + sub * 8192 + q * 4096, [(vW[i], sWV, sWk[j], NT['W'], ('v', j)) for i in range(4 * q, 4 * q + 4)])
    return L
E(unit_loads(0) + stamp() + get_tag() + mk_srd(sWV, pW, WSZ, 2560) + mk_srd(sWO, pWO, 640 * 1280, -BIAS))
S.free('ka', 'kb')
setup = [calc_cc] + set_ones + [f'v_lshlrev_b32 {vt[0]}, 4, {l7}']
for s in range(5):
    if s in (2, 4): setup += [f'v_add_u32 {vt[0]}, {2 * SLOT}, {vt[0]}']
    setup += [f'ds_write_b128 {vt[0]}, {vOnes} offset:{s * SLOT - WIN[s] + ONES_OFF}']
setup += [f'v_mov_b32 {vt[0]}, {L_CSF}', f'v_mov_b32 {vt[4]}, 0', f'v_mov_b32 {vt[5]}, 0', f'v_mov_b32 {vt[6]}, {SENT}', f'v_mov_b32 {vt[7]}, {SENT}', f'ds_write_b128 {vt[0]}, {vt[4:8]}']
vOsh = V.alloc('osh'); vOrest = V.alloc('orest', 2); vOt = V.alloc('ot', 40); s20480 = S.alloc('c20480'); sUt = S.alloc('ut'); sOk = S.alloc('ok')
setup += [f's_mov_b32 {s20480}, 20480', f'v_lshrrev_b32 {vOsh}, 5, {vLane}', f'v_lshlrev_b32 {vOsh}, 3, {vOsh}', f'v_and_b32 {vt[3]}, 3, {l3}', f'v_mul_u32_u24 {vt[3]}, 1280, {vt[3]}',
          f'v_add_u32 {vOrest[0]}, {vt[3]}, {vch}', f'v_xor_b32 {vOrest[1]}, 64, {vOrest[0]}']
setup += calc_wr(None) + calc_wr_win()
E(spread(unit_loads(1), setup))
def o_addr(j):
    L = []
    for i in range(8):
        d = vOt[8 * j + i]
        L += [[f's_mov_b32 {sUt}, {UT[j] >> (16 * (i >> 2) + 2 * (i & 3)):#x}', f'v_bfe_u32 {d}, {sUt}, {vOsh}, 2'], f'v_mad_u32_u24 {d}, {d}, {s20480}, {vOrest[i % 2]}',
              f'v_add_u32 {d}, {BIAS + 4 * (i & 3) * 1280 - (i % 4) * 1024}, {d}']
    return L
def o_loads(j):
    sl, sub = OLOC[j]; L = [f's_mov_b32 {sOk}, {j * 64 * 1280}']
    for q in range(2): L += grp(sl * SLOT + sub * 8192 + q * 4096, [(vOt[8 * (j % 5) + i], sWO, sOk, NT['O'], ('o', j)) for i in range(4 * q, 4 * q + 4)])
    return L
LF = AG.alloc('LF', 32); lacc = V.alloc('lacc', 16)
for s in range(10):
    A.comment(f'loader unit {s}')
    E([W(('u', s), 'all')] + (stamp() if s in (0, 5, 9) else []) + ['s_barrier'])
    if s == 0: E(fin_tag())
    if s <= 7: nl = unit_loads(s + 2)
    elif s == 8: nl = v_loads(0) + v_loads(1) + v_loads(2) + v_loads(3)
    else: nl = v_loads(4) + v_loads(5)
    cs = wreads(LF[0:16], s % 5, 0, 0, 'q0') + wreads(LF[16:32], s % 5, 0, 1, 'q1')
    for kk in range(2):
        cs += [W(lg=f'q{kk}')] + [f'{MFMA} {lacc[4 * t:4 * t + 4]}, {LF[16 * kk + 4 * t:16 * kk + 4 * t + 4]}, {vOnes}, {0 if (s == 0 and kk == 0) else lacc[4 * t:4 * t + 4]}' for t in range(4)]
    if s == 9:
        cs += [f'v_lshlrev_b32 {vt[0]}, 4, {vG}', f'v_add_u32 {vt[0]}, {L_CS}, {vt[0]}'] + [f'ds_write_b128 {vt[0]}, {lacc[4 * t:4 * t + 4]} offset:{64 * t}' for t in range(4)]
    if 1 <= s <= 5: cs += o_addr(s - 1)
    E(spread(nl, cs))
S.free('srdx', 'srdq', 'srdk')
E(stamp() + [W(('v', 2), 'all')] + stamp() + ['s_barrier'])
E(v_loads(6) + v_loads(7) + v_loads(8) + [W(('v', 5))] + stamp() + ['s_barrier'])
E(v_loads(9) + o_loads(0) + o_loads(1) + [W(('v', 9))] + stamp() + ['s_barrier'])
sKy0 = S.alloc('key0'); sKy1 = S.alloc('key1'); sI0 = S.alloc('i0'); sI1 = S.alloc('i1')
E(o_loads(2) + o_loads(3) + o_loads(4) + [f's_lshl_b32 {sT[0]}, s2, 7', f's_add_u32 {sT[0]}, {sT[0]}, {WS_BC}', f'v_mov_b32 {vt[0]}, {sT[0]}', ('L', 'Lbc')] + spin_guard() +
  [f'buffer_load_dwordx4 {vt[4:8]}, {vt[0]}, {sWS}, 0 offen sc1', W('all'), f'v_readfirstlane_b32 {sKy0}, {vt[4]}', f'v_readfirstlane_b32 {sT[0]}, {vt[5]}',
   f'v_readfirstlane_b32 {sKy1}, {vt[6]}', f'v_readfirstlane_b32 {sT[1]}, {vt[7]}', f's_cmp_lg_u32 {sT[0]}, {sTag}', 's_cbranch_scc1 Lbc', f's_cmp_lg_u32 {sT[1]}, {sTag}', 's_cbranch_scc1 Lbc',
   f's_mul_i32 {sT[0]}, {sRB}, 96'])
for k, i in ((sKy0, sI0), (sKy1, sI1)):
    E([f's_and_b32 {i}, {k}, 0x7ff', f's_sub_u32 {i}, 2047, {i}', f's_sub_u32 {sT[1]}, {i}, {sT[0]}', f's_cmp_lt_u32 {sT[1]}, 96', f's_cselect_b32 {i}, {i}, -1'])
E([f'v_mov_b32 {vt[0]}, {sI0}', f'v_mov_b32 {vt[1]}, {sI1}', f'v_mov_b32 {vt[2]}, {L_INFO}'] + stamp() + ['s_barrier'])
for j in range(5, 10): E(o_loads(j))
E([W('all')] + stamp() + [f'ds_write_b64 {vt[2]}, {vt[0:2]}', f's_and_b32 {sT[1]}, {sI0}, {sI1}', f's_cmp_eq_u32 {sT[1]}, -1', 's_cbranch_scc1 Lw0_done'])
vY = Reg('v', 16, 108)
E([('L', 'Ly_poll')] + spin_guard() + [f's_lshl_b32 {sT[0]}, {sC}, 10', f's_add_u32 {sT[0]}, {sT[0]}, {WS_Y}'])
for j in range(27): E([f'buffer_load_dwordx4 {vY[4 * j:4 * j + 4]}, {vL16}, {sWS}, {sT[0]} offen sc1', f's_add_u32 {sT[0]}, {sT[0]}, 10240'])
E([W('all'), f'v_xor_b32 {vt[0]}, {sTag}, {vY[1]}'])
for j in range(27):
    for q in (1, 3):
        if j or q == 3: E([f'v_xor_b32 {vt[1]}, {sTag}, {vY[4 * j + q]}', f'v_or_b32 {vt[0]}, {vt[0]}, {vt[1]}'])
E([f'v_cmp_ne_u32 vcc, 0, {vt[0]}', 's_cmp_lg_u64 vcc, 0', 's_cbranch_scc1 Ly_poll'])
for j in range(1, 27): E([f'v_add_f32 {vY[0]}, {vY[0]}, {vY[4 * j]}', f'v_add_f32 {vY[2]}, {vY[2]}, {vY[4 * j + 2]}'])
for k, y, off in ((sKy0, vY[0], 0), (sKy1, vY[2], 256)):
    E([f's_lshr_b32 {sT[0]}, {k}, 16', f's_cmp_ge_u32 {sT[0]}, 0x8000', f's_cselect_b32 {sT[1]}, 0x8000, -1', f's_xor_b32 {sT[0]}, {sT[0]}, {sT[1]}', f's_lshl_b32 {sT[0]}, {sT[0]}, 16',
       f'v_mov_b32 {vt[0]}, {sT[0]}', f'v_mul_f32 {vt[0]}, {f32(-L2E)}, {vt[0]}', f'v_exp_f32 {vt[0]}, {vt[0]}', f'v_add_f32 {vt[0]}, 1.0, {vt[0]}', f'v_rcp_f32 {vt[0]}, {vt[0]}'] +
      bf16r(vt[0], vt[0]) + bf16r(y, y) + [f'v_mul_f32 {y}, {y}, {vt[0]}'] + bf16r(y, y) + [f'v_add_u32 {vt[1]}, {L_UPD}, {vL4}', f'ds_write_b32 {vt[1]}, {y} offset:{off}'])
E([f'v_mov_b32 {vt[0]}, 0', f'ds_write_b32 {vt[1]}, {vt[0]} offset:512', f'v_mov_b32 {vt[0]}, {L_UF}', f'ds_write_b32 {vt[0]}, {vt[0]}', ('L', 'Lw0_done'), 's_waitcnt lgkmcnt(0)'])
if STAMPW == 0: write_stamps(0, 'loader')
E('s_endpgm')

load_state(st_common)
A.label('Laux')
sA = sRB
E([f's_mul_i32 {sA}, {sT[0]}, 9', f's_lshl_b32 {sT[2]}, {sT[2]}, 2', f's_add_u32 {sA}, {sA}, {sT[2]}', f's_add_u32 {sA}, {sA}, {sT[1]}',
   f's_cmp_lt_u32 {sA}, 32', 's_cbranch_scc1 Laux2', f's_cmp_lg_u32 {sWv}, 0', 's_cbranch_scc1 Lend',
   's_waitcnt lgkmcnt(0)'] + get_tag() + ['s_waitcnt lgkmcnt(0)'] + fin_tag() + signal() + [f's_cmp_lg_u32 {sA}, 32', 's_cbranch_scc1 Lend'])
sKy0 = S.alloc('key0'); sKy1 = S.alloc('key1')
E(poll_top2(vt, sKy0, sKy1, sT) + [f'v_mov_b32 {vt[4]}, {sKy0}', f'v_mov_b32 {vt[5]}, {sTag}', f'v_mov_b32 {vt[6]}, {sKy1}', f'v_mov_b32 {vt[7]}, {sTag}',
   f'v_lshlrev_b32 {vt[0]}, 7, {vLane}', f's_mov_b32 {sT[0]}, {WS_BC}'])
for i in range(4): E([f'buffer_store_dwordx4 {vt[4:8]}, {vt[0]}, {sWS}, {sT[0]} offen sc1', f's_add_u32 {sT[0]}, {sT[0]}, 8192'])
E([f's_mov_b32 {sT[0]}, {WS_SIG}', ('L', 'Lmaster')] + spin_guard() +
  ['s_sleep 16', f'buffer_load_dwordx4 {vt[0:4]}, {vL16}, {sWS}, {sT[0]} offen sc1', W('all')] + [f'v_xor_b32 {vt[i]}, {sTag}, {vt[i]}' for i in range(4)] +
  [f'v_or3_b32 {vt[0]}, {vt[0]}, {vt[1]}, {vt[2]}', f'v_or_b32 {vt[0]}, {vt[0]}, {vt[3]}', f'v_cmp_ne_u32 vcc, 0, {vt[0]}', 's_cbranch_vccnz Lmaster',
   's_mov_b64 exec, 1', f'buffer_store_dword {vt[5]}, {vt[0]}, {sWS}, 0 offen sc1', 's_endpgm', ('L', 'Laux2')])
S.free('key0', 'key1')
AX_SCR = 19 * 8192
L_WR = AX_SCR; L_KEY = AX_SCR + 2048; L_XS = AX_SCR + 2560; L_H = AX_SCR + 6144; L_U = AX_SCR + 6400
XS_STRIDE = 1344
l3 = vt[1]; l7 = vt[2]
sMW = S.alloc('mw'); sSo = S.alloc('so'); vB0 = V.alloc('b0'); vTw = V.alloc('tw', 3); wf = AG.alloc('wf', 80)
E([f'v_lshrrev_b32 {l3}, 3, {vLane}', f'v_and_b32 {l7}, 7, {vLane}', f's_lshl_b32 {sMW}, {sW}, 11', f's_lshl_b32 {sT[0]}, {sA}, 6', f's_lshl_b32 {sT[1]}, {sW}, 4',
   f's_add_u32 {sT[0]}, {sT[0]}, {sT[1]}', f'v_add_u32 {vt[3]}, {sT[0]}, {l3}', f'v_mul_u32_u24 {vt[3]}, 1280, {vt[3]}', f's_cmp_eq_u32 {sH}, 0', 's_cbranch_scc0 Laux_ld'])
st_aux = save_state()
def adma(sub, voff, srd, soff, nt, tag):
    return [f's_add_u32 m0, {sMW}, {sub * 8192}', f's_mov_b32 {sSo}, {soff}', (f'buffer_load_dwordx4 {voff[0]}, {srd}, {sSo} offen{nt} lds', tag),
            (f'buffer_load_dwordx4 {voff[1]}, {srd}, {sSo} offen offset:1024{nt} lds', tag)]
calc_tw = tr_parts(vB0, vt[5], vt[4], vt[6]) + [f'v_add_u32 {vB0}, {vB0}, {vt[5]}', f'v_lshl_add_u32 {vB0}, {vt[4]}, 3, {vB0}', f's_lshl_b32 {sT[0]}, {sW}, 5',
          f'v_xor_b32 {vTw[0]}, {sT[0]}, {vB0}', f'v_add_u32 {vTw[1]}, {7 * 8192}, {vTw[0]}', f'v_add_u32 {vTw[2]}, {14 * 8192}, {vTw[0]}']
def areads(subs):
    return [f'ds_read_b64_tr_b16 {wf[4 * k + 2 * h:4 * k + 2 * h + 2]}, {vTw[subs[k // 2] // 7]} offset:{(subs[k // 2] % 7) * 8192 + (k % 2) * 4096 + h * 512}' for k in range(20) for h in range(2)]
sX = S.alloc('srdx', 4); sWR_ = S.alloc('srdwr', 4); aXo = V.alloc('axo', 2)
E([f'v_xor_b32 {vt[4]}, {l7}, {vG}', f'v_lshl_add_u32 {aXo[0]}, {vt[4]}, 4, {vt[3]}', f'v_xor_b32 {aXo[1]}, 64, {aXo[0]}', f'v_add_u32 {aXo[1]}, {8 * 1280 - 1024}, {aXo[1]}',
   's_waitcnt lgkmcnt(0)'] + mk_srd(sX, pX, 2048 * 1280) + mk_srd(sWR_, pWR, 1280) +
  [f's_mov_b32 m0, {L_WR}', 's_nop 0', f'buffer_load_dwordx4 {vL16}, {sWR_}, 0 offen lds', 's_mov_b64 exec, 0xffff', f'buffer_load_dwordx4 {vL16}, {sWR_}, 0 offen offset:1024 lds', 's_mov_b64 exec, -1'])
for u in range(10): E(adma(u, aXo, sX, u * 128, NT['R'], ('x', u)))
vOnes = V.alloc('ones', 4); vRa = V.alloc('ra'); vXr = V.alloc('xr', 4)
sK1 = S.alloc('k1', 2); sK2 = S.alloc('k2', 2); vDiag = V.alloc('diag'); vSt = V.alloc('st', 2)
E(get_tag() + [f'v_mov_b32 {vOnes[i]}, 0x3f803f80' for i in range(4)] +
  [f'v_lshlrev_b32 {vRa}, 4, {vG}', f'v_add_u32 {vRa}, {L_WR}, {vRa}', f'v_lshrrev_b32 {vt[6]}, 1, {vTt}', f'v_xor_b32 {vt[6]}, {vt[6]}, {vG}', f'v_lshlrev_b32 {vt[6]}, 4, {vt[6]}',
   f'v_lshl_add_u32 {vt[6]}, {vTt}, 7, {vt[6]}', f'v_add_u32 {vXr[0]}, {sMW}, {vt[6]}', f'v_xor_b32 {vXr[1]}, 64, {vXr[0]}', f'v_add_u32 {vXr[2]}, {5 * 8192}, {vXr[0]}',
   f'v_add_u32 {vXr[3]}, {5 * 8192}, {vXr[1]}', f's_mov_b32 {sK1[0]}, 0xaaaaaaaa', f's_mov_b32 {sK1[1]}, 0xaaaaaaaa', f's_mov_b32 {sK2[0]}, 0xcccccccc', f's_mov_b32 {sK2[1]}, 0xcccccccc',
   f'v_lshrrev_b32 {vDiag}, 2, {vTt}', f'v_lshl_add_u32 {vDiag}, {vDiag}, 4, {vTt}', f'v_lshlrev_b32 {vDiag}, 2, {vDiag}'] + calc_tw + ['s_waitcnt lgkmcnt(0)'] + fin_tag())
rb_ = AG.alloc('rb', 32)
a4 = V.alloc('a4', 16); aSum, aSq, aDot, aSw = a4[0:4], a4[4:8], a4[8:12], a4[12:16]
def r_reads(u):
    b = (u % 2) * 16; L = [W(('x', u))]
    for kk in range(2):
        L += [(f'ds_read_b128 {rb_[b + 8 * kk:b + 8 * kk + 4]}, {vXr[(u // 5) * 2 + kk]} offset:{(u % 5) * 8192}', ('rr', u)),
              (f'ds_read_b128 {rb_[b + 8 * kk + 4:b + 8 * kk + 8]}, {vRa} offset:{(2 * u + kk) * 64}', ('rr', u))]
    return L
E(r_reads(0))
for u in range(10):
    if u < 9: E(r_reads(u + 1))
    E(W(lg=('rr', u)))
    for kk in range(2):
        b = (u % 2) * 16 + 8 * kk; x = rb_[b:b + 4]; r = rb_[b + 4:b + 8]
        E([f'{MFMA} {ac}, {a}, {bb}, {0 if (u == 0 and kk == 0) else ac}' for ac, a, bb in ((aSq, x, x), (aSum, vOnes, x), (aDot, r, x), (aSw, r, vOnes))])
E(stamp() + stats(aSum[0], aSq, vSt, vt, vDiag, sK1, sK2) +
  [f'v_fma_f32 {vt[0]}, {vSt[0]}, {aSw[0]}, {aDot[0]}', f'v_mul_f32 {vt[0]}, {vt[0]}, {vSt[1]}', f'v_cvt_pk_bf16_f32 {vt[0]}, {vt[0]}, {vt[0]}',
   f'v_ashrrev_i32 {vt[1]}, 31, {vt[0]}', f'v_or_b32 {vt[1]}, 0x80000000, {vt[1]}', f'v_xor_b32 {vt[0]}, {vt[0]}, {vt[1]}', f'v_and_b32 {vt[0]}, 0xffff0000, {vt[0]}',
   f'v_max_u32 {vt[0]}, 0x10000, {vt[0]}', f's_lshl_b32 {sT[0]}, {sW}, 4', f'v_add_u32 {vt[1]}, {sT[0]}, {vTt}', f'v_sub_u32 {vt[2]}, 63, {vt[1]}', f'v_or_b32 {vt[0]}, {vt[0]}, {vt[2]}',
   f'v_lshlrev_b32 {vt[1]}, 2, {vt[1]}', f'v_add_u32 {vt[1]}, {L_KEY}, {vt[1]}', f'ds_write_b32 {vt[1]}, {vt[0]}', W(lg='all'), 's_barrier'])
sKy0 = S.alloc('key0'); sKy1 = S.alloc('key1')
E([f's_cmp_lg_u32 {sW}, 0', 's_cbranch_scc1 Lpub_done', f'v_add_u32 {vt[1]}, {L_KEY}, {vL4}', f'ds_read_b32 {vt[2]}, {vt[1]}', W(lg='all'), f'v_mov_b32 {vt[0]}, {vt[2]}'] +
  wave_max_u32(vt[0], sKy0, sT) + [f'v_cmp_eq_u32 vcc, {sKy0}, {vt[2]}', f'v_cndmask_b32 {vt[0]}, {vt[2]}, 0, vcc'] + wave_max_u32(vt[0], sKy1, sT) +
  [f's_and_b32 {sT[0]}, {sKy0}, 0xffff0000', f's_lshr_b32 {sT[1]}, {sKy1}, 16', f's_or_b32 {sT[0]}, {sT[0]}, {sT[1]}', f's_and_b32 {sT[1]}, {sKy0}, 63', f's_and_b32 {sT[2]}, {sKy1}, 63',
   f's_lshl_b32 {sT[2]}, {sT[2]}, 6', f's_or_b32 {sT[1]}, {sT[1]}, {sT[2]}', f's_xor_b32 {sT[1]}, {sT[1]}, 0x8fff', f's_lshl_b32 {sT[2]}, {sA}, 2', f's_lshl_b32 {sT[3]}, {sA}, 1',
   f'v_mov_b32 {vt[0]}, {sT[0]}', f'v_mov_b32 {vt[1]}, {sT[1]}', f'v_mov_b32 {vt[2]}, {sT[2]}', f'v_mov_b32 {vt[3]}, {sT[3]}', 's_mov_b64 exec, 1',
   f'buffer_store_dword {vt[0]}, {vt[2]}, {sDBG}, 0 offen offset:{DBG_VAL} sc1', f'buffer_store_short {vt[1]}, {vt[3]}, {sDBG}, 0 offen offset:{DBG_IDX} sc1', 's_mov_b64 exec, -1'] + signal() + [
   ('L', 'Lpub_done')] + stamp() + [f's_cmp_ge_u32 {sA}, 27', 's_cbranch_scc1 Lend', 's_barrier'])
E(areads([10 + u for u in range(9)] + [9]) + [W(lg='all'), 's_barrier'] + stamp())
xr = V.alloc('xraw', 10); xv = V.alloc('xv', 20)
def half_sum(r, tmp):
    return [f'v_add_f32_dpp {r}, {r}, {r} row_ror:{sh} row_mask:0xf bank_mask:0xf' for sh in (8, 4, 2, 1)] + [f'v_mov_b32 {tmp}, {r}', f'v_permlane16_swap_b32 {r}, {tmp}', f'v_add_f32 {r}, {r}, {tmp}']
E([f's_cmp_lg_u32 {sW}, 0', 's_cbranch_scc1 Lsel_done'] + poll_top2(vt, sKy0, sKy1, sT) +
  [f's_and_b32 {sT[0]}, {sKy0}, 0x7ff', f's_sub_u32 {sT[0]}, 2047, {sT[0]}', f's_mul_i32 {sT[0]}, {sT[0]}, 1280', f's_and_b32 {sT[1]}, {sKy1}, 0x7ff', f's_sub_u32 {sT[1]}, 2047, {sT[1]}',
   f's_mul_i32 {sT[1]}, {sT[1]}, 1280', f'v_mov_b32 {vt[0]}, {sT[0]}', f'v_mov_b32 {vt[1]}, {sT[1]}', f'v_cmp_gt_u32 vcc, 32, {vLane}', f'v_cndmask_b32 {vt[0]}, {vt[1]}, {vt[0]}, vcc',
   f'v_and_b32 {vt[6]}, 31, {vLane}', f'v_lshl_add_u32 {vt[0]}, {vt[6]}, 3, {vt[0]}'] +
  [(f'buffer_load_dwordx2 {xr[2 * i:2 * i + 2]}, {vt[0]}, {sX}, 0 offen offset:{256 * i}', 'xs') for i in range(5)] + [W('xs')])
for i in range(10): E([f'v_lshlrev_b32 {xv[2 * i]}, 16, {xr[i]}', f'v_and_b32 {xv[2 * i + 1]}, 0xffff0000, {xr[i]}'])
E([f'v_add_f32 {vt[2]}, {xv[0]}, {xv[1]}'] + [f'v_add_f32 {vt[2]}, {vt[2]}, {xv[i]}' for i in range(2, 20)] + half_sum(vt[2], vt[3]) +
  [f'v_mul_f32 {vt[2]}, {f32(1 / 640)}, {vt[2]}', f'v_mov_b32 {vt[4]}, 0'])
for i in range(20): E([f'v_sub_f32 {vt[5]}, {xv[i]}, {vt[2]}', f'v_fmac_f32 {vt[4]}, {vt[5]}, {vt[5]}'])
E(half_sum(vt[4], vt[3]) + [f'v_mul_f32 {vt[4]}, {f32(1 / 640)}, {vt[4]}'] + bf16r(vt[4], vt[4]) + [f'v_add_f32 {vt[4]}, {f32(1e-5)}, {vt[4]}'] + bf16r(vt[4], vt[4]) +
  [f'v_sqrt_f32 {vt[4]}, {vt[4]}'] + bf16r(vt[4], vt[4]) + [f'v_rcp_f32 {vt[4]}, {vt[4]}'] + bf16r(vt[2], vt[2]) + [f'v_sub_f32 {xv[i]}, {xv[i]}, {vt[2]}' for i in range(20)] +
  round_pairs(xv, 20) + [f'v_mul_f32 {xv[i]}, {xv[i]}, {vt[4]}' for i in range(20)] + [f'v_cvt_pk_bf16_f32 {xr[i]}, {xv[2 * i]}, {xv[2 * i + 1]}' for i in range(10)] +
  [f'v_lshrrev_b32 {vt[0]}, 5, {vLane}', f'v_mul_u32_u24 {vt[0]}, {XS_STRIDE}, {vt[0]}', f'v_lshl_add_u32 {vt[0]}, {vt[6]}, 3, {vt[0]}', f'v_add_u32 {vt[0]}, {L_XS}, {vt[0]}'] +
  [f'ds_write_b64 {vt[0]}, {xr[2 * i:2 * i + 2]} offset:{256 * i}' for i in range(5)] + [W(lg='all'), ('L', 'Lsel_done')] + stamp() + ['s_barrier', 's_branch Laux_mm'])
aux_stamps = list(sST); aux_S = (dict(S.used), set(S.taken))
load_state(st_aux)
S.used, S.taken = dict(aux_S[0]), set(aux_S[1]); sST[:] = aux_stamps
A.label('Laux_ld')
sWG_ = S.alloc('srdg', 4); sWU_ = S.alloc('srdu', 4); sWD_ = S.alloc('srdd', 4); aGo = V.alloc('ago', 2); aDo = V.alloc('ado', 2)
E([f's_cmp_ge_u32 {sA}, 27', 's_cbranch_scc1 Lend',
   f'v_and_b32 {vt[4]}, 1, {vG}', f'v_lshlrev_b32 {vt[4]}, 1, {vt[4]}', f'v_xor_b32 {vt[4]}, {vt[4]}, {l7}', f'v_lshlrev_b32 {vt[4]}, 4, {vt[4]}',
   f'v_add_u32 {aDo[0]}, {vt[3]}, {vt[4]}', f'v_xor_b32 {aDo[1]}, 64, {aDo[0]}', f'v_add_u32 {aDo[1]}, {8 * 1280 - 1024}, {aDo[1]}',
   f'v_add_u32 {vt[5]}, {sT[1]}, {l3}', f'v_mul_u32_u24 {vt[5]}, 3456, {vt[5]}', f's_lshl_b32 {sT[2]}, {sA}, 7', f'v_add3_u32 {aGo[0]}, {vt[5]}, {vt[4]}, {sT[2]}',
   f'v_xor_b32 {aGo[1]}, 64, {aGo[0]}', f'v_add_u32 {aGo[1]}, {8 * 3456 - 1024}, {aGo[1]}'] + calc_tw + ['s_waitcnt lgkmcnt(0)'] + get_tag() +
  mk_srd(sWG_, pWG, 640 * 3456) + mk_srd(sWU_, pWU, 640 * 3456) + mk_srd(sWD_, pWD, 1728 * 1280))
if opt('gdelay', 0): E(f's_sleep {opt("gdelay", 0)}')
for u in range(9): E(adma(10 + u, aGo, sWG_, u * 64 * 3456, NT['F'], 'g'))
E(['s_waitcnt lgkmcnt(0)'] + fin_tag() + ['s_barrier'])
E(adma(9, aGo, sWG_, 9 * 64 * 3456, NT['F'], 'g'))
for u in range(9): E(adma(u, aGo, sWU_, u * 64 * 3456, NT['F'], 'u'))
E([W('g'), 's_barrier', 's_barrier'])
E(adma(9, aGo, sWU_, 9 * 64 * 3456, NT['F'], 'u'))
for u in range(9): E(adma(10 + u, aDo, sWD_, u * 128, NT['F'], 'd'))
E([W('u'), 's_barrier'] + areads(list(range(10))))
A.label('Laux_mm')
xf = Reg('v', 40, 80); aG = Reg('v', 120, 4); aU = Reg('v', 124, 4); tq = Reg('v', 36, 4)
E([f'v_and_b32 {vt[0]}, 1, {vLane}', f'v_mul_u32_u24 {vt[1]}, {XS_STRIDE}, {vt[0]}', f'v_lshl_add_u32 {vt[1]}, {vG}, 4, {vt[1]}', f'v_add_u32 {vt[1]}, {L_XS}, {vt[1]}'] +
  [f'ds_read_b128 {xf[4 * k:4 * k + 4]}, {vt[1]} offset:{64 * k}' for k in range(20)] + ['s_waitcnt lgkmcnt(0)', 's_barrier'])
E([f's_cmp_eq_u32 {sH}, 0', 's_cbranch_scc1 Lno_d9'] + adma(0, aDo, sWD_, 9 * 128, NT['F'], 'd') + [('L', 'Lno_d9')])
E([f'{MFMA} {aG if k % 2 == 0 else aU}, {wf[4 * k:4 * k + 4]}, {xf[4 * k:4 * k + 4]}, {0 if k < 2 else (aG if k % 2 == 0 else aU)}' for k in range(20)])
E([f's_lshl_b32 {sT[0]}, {sW}, 7', f's_add_u32 {sT[0]}, {sT[0]}, {L_U}', f'v_lshl_add_u32 {vt[2]}, {vG}, 1, {vt[0]}', f'v_lshl_add_u32 {vt[2]}, {vt[2]}, 4, {sT[0]}'] +
  [f'v_add_f32 {aG[i]}, {aG[i]}, {aU[i]}' for i in range(4)] + round_pairs(aG, 4) +
  [f's_cmp_eq_u32 {sH}, 0', 's_cbranch_scc1 Lgw', f'ds_write_b128 {vt[2]}, {aG}', 's_waitcnt lgkmcnt(0)', 's_barrier', 's_waitcnt vmcnt(0)', 's_branch Lhd', ('L', 'Lgw')] +
  silu_into(tq, aG, 4) + ['s_barrier', f'ds_read_b128 {aU}, {vt[2]}', f's_lshl_b32 {sT[0]}, {sW}, 5', f's_add_u32 {sT[0]}, {sT[0]}, {L_H}', f'v_lshlrev_b32 {vt[4]}, 7, {vt[0]}',
   f'v_lshl_add_u32 {vt[5]}, {vG}, 3, {vt[4]}', f'v_add_u32 {vt[5]}, {sT[0]}, {vt[5]}', 's_waitcnt lgkmcnt(0)'] + [f'v_mul_f32 {tq[i]}, {tq[i]}, {aU[i]}' for i in range(4)] +
  cvt2(vt[2:4], tq) + [f'ds_write_b64 {vt[5]}, {vt[2:4]}', 's_waitcnt lgkmcnt(0)', ('L', 'Lhd'), 's_barrier'] + stamp())
hA = xf[0:8]; aY = xf[8:24]; vOut = xf[24:28]; vDa = xf[28:32]
sG = [S.alloc(f'gm{i}', 2) for i in range(3)]
E([f'v_lshlrev_b32 {vt[4]}, 7, {vt[0]}', f'v_lshl_add_u32 {vt[5]}, {vG}, 4, {vt[4]}', f'v_add_u32 {vt[5]}, {L_H}, {vt[5]}'] +
  [f'ds_read_b128 {hA[4 * kk:4 * kk + 4]}, {vt[5]} offset:{64 * kk}' for kk in range(2)] + [f'v_cmp_eq_u32 {sG[i]}, {i + 1}, {vG}' for i in range(3)] +
  [f's_mov_b32 {sC}, {sWv}', ('L', 'Ldown'),
   f's_add_u32 {sT[1]}, {sC}, 10', f's_cmp_eq_u32 {sC}, 9', f's_cselect_b32 {sT[1]}, 0, {sT[1]}', f's_lshl_b32 {sT[1]}, {sT[1]}, 13', f'v_add_u32 {vDa[0]}, {sT[1]}, {vB0}'] +
  [f'v_xor_b32 {vDa[t]}, {32 * t}, {vDa[0]}' for t in (1, 2, 3)] +
  [f'ds_read_b64_tr_b16 {wf[(kk * 4 + t) * 4 + 2 * h:(kk * 4 + t) * 4 + 2 * h + 2]}, {vDa[t]} offset:{kk * 4096 + h * 512}' for kk in range(2) for t in range(4) for h in range(2)] +
  [f's_mul_i32 {sT[1]}, {sA}, 10', f's_add_u32 {sT[1]}, {sT[1]}, {sC}', f's_lshl_b32 {sT[1]}, {sT[1]}, 10', f's_add_u32 {sT[1]}, {sT[1]}, {WS_Y}',
   f'v_mov_b32 {vOut[1]}, {sTag}', f'v_mov_b32 {vOut[3]}, {sTag}', 's_waitcnt lgkmcnt(0)'] +
  [f'{MFMA} {aY[4 * t:4 * t + 4]}, {hA[4 * kk:4 * kk + 4]}, {wf[(kk * 4 + t) * 4:(kk * 4 + t) * 4 + 4]}, {0 if kk == 0 else aY[4 * t:4 * t + 4]}' for kk in range(2) for t in range(4)])
for q, r in ((0, 0), (2, 1)):
    E([f'v_cndmask_b32 {vOut[q]}, {aY[r]}, {aY[4 + r]}, {sG[0]}', f'v_cndmask_b32 {vOut[q]}, {vOut[q]}, {aY[8 + r]}, {sG[1]}', f'v_cndmask_b32 {vOut[q]}, {vOut[q]}, {aY[12 + r]}, {sG[2]}'])
E([f'buffer_store_dwordx4 {vOut}, {vL16}, {sWS}, {sT[1]} offen sc1', f's_add_u32 {sC}, {sC}, 8', f's_cmp_lt_u32 {sC}, 10', 's_cbranch_scc1 Ldown'])
write_stamps(0, 'aux')
A.label('Lend')
A('s_endpgm')
A.raw(f'''.section .rodata,"a"
.p2align 6
.amdhsa_kernel {NAME}_kernel
  .amdhsa_next_free_vgpr 256
  .amdhsa_next_free_sgpr 102
  .amdhsa_accum_offset 128
  .amdhsa_group_segment_fixed_size 0
  .amdhsa_kernarg_size 88
  .amdhsa_user_sgpr_count 2
  .amdhsa_user_sgpr_kernarg_segment_ptr 1
  .amdhsa_system_sgpr_workgroup_id_x 1
  .amdhsa_float_denorm_mode_32 3
.end_amdhsa_kernel''')
txt = A.render()
open(sys.argv[1], 'w').write(txt)
print('lines', txt.count('\n'), 'nops added', A.nops_added, 'vmax', V.maxused, 'amax', AG.maxused, 'smax', S.maxused, file=sys.stderr)
```

```python
import sys, math, struct
from asmlib import Asm, RegAlloc, Reg
NAME = "recurrent_scan__sliding_local_dilated__moe_arch_mod__prompt"
OPTS = set(sys.argv[2:])
STAMPS = 'stamps' in OPTS
def opt(name, default):
    for o in OPTS:
        if o.startswith(name + '='): return type(default)(o[len(name) + 1:])
    return default
DUMP = opt('dump', '')
NT = {k: (' nt' if k in opt('nt', 'FX') else '') for k in 'WXOFRS'}
STAMPW = opt('sw', 2)

def f32(x): return '0x%08x' % struct.unpack('<I', struct.pack('<f', x))[0]
L2E = math.log2(math.e)

def tables():
    U = []; SL = []
    for cc in range(5):
        h0 = (16 * cc) // 5
        slot = [((16 * cc + q) // 5) - h0 for q in range(16)]
        s1 = [q for q in range(16) if slot[q] == 1]; s2 = [q for q in range(16) if slot[q] == 2]
        t0 = s1[:4]; e1 = s1[4]; t3 = s2[1:]; e2 = s2[0]
        rest = [q for q in range(16) if q not in t0 and q not in t3]
        t1 = []; t2 = []
        for res in range(4):
            pair = [q for q in rest if q % 4 == res]
            if e1 in pair: a = e1; b = pair[0] if pair[1] == e1 else pair[1]
            elif e2 in pair: b = e2; a = pair[0] if pair[1] == e2 else pair[1]
            else: a, b = pair
            t1.append(a); t2.append(b)
        tl = [sorted(t0, key=lambda q: q % 4), t1, t2, sorted(t3, key=lambda q: q % 4)]
        u = 0; sl = 0
        for t in range(4):
            for g in range(4):
                q = tl[t][g]
                u |= (q // 4) << (2 * (4 * t + g)); sl |= slot[q] << (2 * (4 * t + g))
        U.append(u); SL.append(sl)
    return U, SL
UT, SLT = tables()

SLOT = 30848; ONES_OFF = 30720; XOFF = 16384; SPARE = 24576
WIN = [0, 0, 2 * SLOT, 2 * SLOT, 4 * SLOT]; WI = [0, 0, 1, 1, 2]
SCR = 5 * SLOT
L_M = SCR; L_R = SCR + 512; L_CS = SCR + 1024
L_CSV = SCR + 1536
L_CSF = SCR + 1792
L_INFO = SCR + 1800; L_UF = SCR + 1796; L_UPD = SCR + 2048; SENT = -2
LDS_BYTES = 163840
WS_SX = 0x100000; WS_O = 0x400000; WS_FL = 0x700000; WS_Y = 0x710000; WS_ST = 0x800000; WS_JUNK = 0x900000; WS_SIG = 0x7f0000; WS_BC = 0x7e0000; WS_DUMP = 0x1000000
DBG_VAL = 64; DBG_IDX = 192
NSIG = 220 + 27
NEG_INF = '0xff800000'
SCALE_L2E = (20 ** -0.5) * L2E
MFMA = 'v_mfma_f32_16x16x32_bf16'
VLOC = [(0, 0), (0, 1), (0, 2), (1, 0), (1, 1), (1, 2), (2, 0), (2, 1), (2, 2), (3, 0)]
OLOC = [(3, 1), (3, 2), (4, 0), (4, 1), (4, 2), (0, 0), (0, 1), (0, 2), (1, 0), (1, 1)]

A = Asm()
V = RegAlloc('v', 1, 128); AG = RegAlloc('a', 0, 128); S = RegAlloc('s', 3, 102)

class Em:
    def __init__(self): self.vm = []; self.lg = []
    def reset(self): self.vm = []; self.lg = []
    def cnt(self, q, tag, mx):
        if tag == 'all': n = 0
        elif tag not in q: return None
        else: n = len(q) - 1 - max(i for i, t in enumerate(q) if t == tag)
        n = min(n, mx)
        del q[:len(q) - n]
        return n
    def __call__(self, it):
        if isinstance(it, list):
            for x in it: self(x)
            return
        if isinstance(it, tuple) and it[0] == 'W':
            parts = []
            if it[1] is not None:
                n = self.cnt(self.vm, it[1], 63)
                if n is not None: parts.append(f'vmcnt({n})')
            if it[2] is not None:
                n = self.cnt(self.lg, it[2], 15)
                if n is not None: parts.append(f'lgkmcnt({n})')
            if parts: A('s_waitcnt ' + ' '.join(parts))
            return
        if isinstance(it, tuple) and it[0] == 'L': A.label(it[1]); return
        text, tag = (it, None) if isinstance(it, str) else it
        if text.startswith('ds_'):
            if 'lgthr' in OPTS and len(self.lg) >= 15: A('s_waitcnt lgkmcnt(14)'); del self.lg[:len(self.lg) - 14]
            self.lg.append(tag)
        elif text.startswith('buffer_'):
            if len(self.vm) >= 63: A('s_waitcnt vmcnt(55)'); del self.vm[:len(self.vm) - 55]
            self.vm.append(tag)
        A(text)
E = Em()
def W(vm=None, lg=None): return ('W', vm, lg)

def merge(a, b, na=1, nb=1):
    out = []; i = j = 0
    while i < len(a) or j < len(b):
        out += a[i:i + na]; i += na
        out += b[j:j + nb]; j += nb
    return out
def spread(a, b):
    out = []; j = 0
    for i, x in enumerate(a):
        out.append(x)
        while j < len(b) and j * len(a) < (i + 1) * len(b): out.append(b[j]); j += 1
    return out + b[j:]

sST = []
FINE = opt('fine', '')
def fstamp(grp):
    return stamp(True) if grp == FINE else []
def stamp(force=False):
    if not STAMPS: return []
    if FINE and not force and len(sST) > 0: return []
    r = S.alloc(f'stamp{len(sST)}', 2); sST.append(r)
    return [f's_memtime {r}' if 'clk' in OPTS else f's_memrealtime {r}']
def bf16r(dst, src): return [f'v_cvt_pk_bf16_f32 {dst}, {src}, {src}', f'v_lshlrev_b32 {dst}, 16, {dst}']
def mk_srd(dst, ptr, nbytes, add=0):
    if add > 0: L = [f's_add_u32 {dst[0]}, {ptr[0]}, {add}', f's_addc_u32 {dst[1]}, {ptr[1]}, 0']
    elif add < 0: L = [f's_sub_u32 {dst[0]}, {ptr[0]}, {-add}', f's_subb_u32 {dst[1]}, {ptr[1]}, 0']
    else: L = [f's_mov_b64 {dst[0:2]}, {ptr}']
    return L + [f's_mov_b32 {dst[2]}, {nbytes - add}', f's_mov_b32 {dst[3]}, 0x20000']
def spin_guard(): return [f's_sub_u32 {sSpin}, {sSpin}, 1', 's_cbranch_scc1 Lend']
def stats(sumreg, sq4, st, tmp, vdiag, mk1, mk2):
    return [f'v_cndmask_b32 {tmp[0]}, {sq4[0]}, {sq4[1]}, {mk1}', f'v_cndmask_b32 {tmp[1]}, {sq4[2]}, {sq4[3]}, {mk1}',
            f'v_cndmask_b32 {tmp[0]}, {tmp[0]}, {tmp[1]}, {mk2}', (f'ds_bpermute_b32 {tmp[0]}, {vdiag}, {tmp[0]}', 'bp'),
            f'v_mul_f32 {tmp[1]}, {f32(-1 / 640)}, {sumreg}'] + bf16r(st[0], tmp[1]) + [f'v_mul_f32 {tmp[1]}, {tmp[1]}, {tmp[1]}',
            f'v_mov_b32 {tmp[2]}, {f32(1 / 640)}', W(lg='bp'),
            f'v_fma_f32 {tmp[0]}, {tmp[0]}, {tmp[2]}, -{tmp[1]}', f'v_max_f32 {tmp[0]}, 0, {tmp[0]}'] + bf16r(tmp[0], tmp[0]) + \
           [f'v_add_f32 {tmp[0]}, {f32(1e-5)}, {tmp[0]}'] + bf16r(tmp[0], tmp[0]) + [f'v_sqrt_f32 {tmp[0]}, {tmp[0]}'] + bf16r(tmp[0], tmp[0]) + \
           [f'v_rcp_f32 {st[1]}, {tmp[0]}']
def wave_max_u32(r, sdst, st):
    return [f'v_max_u32_dpp {r}, {r}, {r} row_ror:{sh} row_mask:0xf bank_mask:0xf' for sh in (8, 4, 2, 1)] + \
           [f'v_readlane_b32 {sdst}, {r}, 0', f'v_readlane_b32 {st[0]}, {r}, 16', f'v_readlane_b32 {st[1]}, {r}, 32', f'v_readlane_b32 {st[2]}, {r}, 48',
            f's_max_u32 {sdst}, {sdst}, {st[0]}', f's_max_u32 {st[1]}, {st[1]}, {st[2]}', f's_max_u32 {sdst}, {sdst}, {st[1]}']
def poll_top2(t, sK0, sK1, st):
    L = A.newlabel('Lpt'); Ld = A.newlabel('Lptd')
    return [('L', L)] + spin_guard() + [
        f'buffer_load_dword {t[0]}, {vL4}, {sDBG}, 0 offen offset:{DBG_VAL} sc1',
        f'v_lshrrev_b32 {t[1]}, 1, {vL4}', f'v_and_b32 {t[1]}, 0x3c, {t[1]}', f'v_add_u32 {t[1]}, 128, {t[1]}', W('all'),
        f'ds_bpermute_b32 {t[1]}, {t[1]}, {t[0]}', f'v_and_b32 {t[2]}, 4, {vL4}', f'v_lshlrev_b32 {t[2]}, 2, {t[2]}', W(lg='all'),
        f'v_bfe_u32 {t[1]}, {t[1]}, {t[2]}, 16', f'v_cmp_ne_u32 vcc, 0, {t[0]}', f'v_cmp_ne_u32 {st[0:2]}, 0, {t[1]}',
        f's_and_b32 {st[0]}, {st[0]}, vcc_lo', f's_cmp_eq_u32 {st[0]}, -1', f's_cbranch_scc1 {Ld}', 's_sleep 2', f's_branch {L}', ('L', Ld),
        f'v_lshlrev_b32 {t[2]}, 4, {vL4}', f'v_and_b32 {t[3]}, 63, {t[1]}', f'v_add_u32 {t[3]}, {t[3]}, {t[2]}', f'v_sub_u32 {t[3]}, 2047, {t[3]}',
        f'v_bfe_u32 {t[1]}, {t[1]}, 6, 6', f'v_add_u32 {t[1]}, {t[1]}, {t[2]}', f'v_sub_u32 {t[1]}, 2047, {t[1]}',
        f'v_and_b32 {t[2]}, 0xffff0000, {t[0]}', f'v_or_b32 {t[3]}, {t[3]}, {t[2]}', f'v_lshl_or_b32 {t[1]}, {t[0]}, 16, {t[1]}',
        f'v_cmp_gt_u32 vcc, 128, {vL4}', f'v_cndmask_b32 {t[3]}, 0, {t[3]}, vcc', f'v_cndmask_b32 {t[1]}, 0, {t[1]}, vcc', f'v_mov_b32 {t[0]}, {t[3]}'] + \
        wave_max_u32(t[0], sK0, st) + [f'v_cmp_eq_u32 vcc, {sK0}, {t[3]}', f'v_cndmask_b32 {t[0]}, {t[3]}, {t[1]}, vcc'] + wave_max_u32(t[0], sK1, st)
def round_pairs(x, n):
    L = [f'v_cvt_pk_bf16_f32 {x[i + 1]}, {x[i]}, {x[i + 1]}' for i in range(0, n, 2)]
    for i in range(0, n, 2): L += [f'v_lshlrev_b32 {x[i]}, 16, {x[i + 1]}', f'v_and_b32 {x[i + 1]}, 0xffff0000, {x[i + 1]}']
    return L
def silu_into(g, z, n):
    return [f'v_mul_f32 {g[i]}, {f32(-L2E)}, {z[i]}' for i in range(n)] + [f'v_exp_f32 {g[i]}, {g[i]}' for i in range(n)] + \
           [f'v_add_f32 {g[i]}, 1.0, {g[i]}' for i in range(n)] + [f'v_rcp_f32 {g[i]}, {g[i]}' for i in range(n)] + \
           [f'v_mul_f32 {g[i]}, {g[i]}, {z[i]}' for i in range(n)] + round_pairs(g, n)
def cvt2(dst, acc): return [f'v_cvt_pk_bf16_f32 {dst[0]}, {acc[0]}, {acc[1]}', f'v_cvt_pk_bf16_f32 {dst[1]}, {acc[2]}, {acc[3]}']
def tr_parts(vrow, vphi32, vc, tmp):
    return [f'v_bfe_u32 {tmp}, {vLane}, 2, 2', f'v_and_b32 {vc}, 3, {vLane}', f'v_lshl_add_u32 {vrow}, {vG}, 3, {tmp}', f'v_lshlrev_b32 {vrow}, 7, {vrow}',
            f'v_lshlrev_b32 {vphi32}, 2, {vLane}', f'v_and_b32 {vphi32}, 0x60, {vphi32}']
def save_state(): return (dict(V.used), set(V.taken), dict(S.used), set(S.taken), dict(AG.used), set(AG.taken), list(sST))
def load_state(st):
    V.used, V.taken, S.used, S.taken, AG.used, AG.taken = [x.copy() for x in st[:6]]; sST[:] = st[6]; E.reset()
def write_stamps(who, kind):
    if not STAMPS: return
    E([W('all')] + stamp(True) + ['s_waitcnt lgkmcnt(0)', f's_cmp_lg_u32 {sWv}, {who}', 's_cbranch_scc1 Lend',
       f's_mul_i32 {sT[0]}, s2, 128', f's_add_u32 {sT[0]}, {sT[0]}, {WS_ST}', 's_mov_b64 exec, 1', f'v_mov_b32 {vt[2]}, 0'])
    print(kind, 'stamps', len(sST), file=sys.stderr)
    lk = opt('leak', -1)
    if lk >= 0 and kind == opt('leakk', 'main'):
        Lp = A.newlabel('Lpad')
        E([f's_sub_u32 {sT[1]}, {sST[lk][0]}, {sST[0][0]}', f's_mul_i32 {sT[1]}, {sT[1]}, 5', f's_add_u32 {sT[1]}, {sT[1]}, 3000', ('L', Lp), f's_memrealtime {sT[2:4]}', 's_waitcnt lgkmcnt(0)',
           f's_sub_u32 {sT[2]}, {sT[2]}, {sST[0][0]}', f's_cmp_lt_u32 {sT[2]}, {sT[1]}', f's_cbranch_scc1 {Lp}'])
    for i in range(16):
        j = min(i, len(sST) - 1)
        E([f'v_mov_b32 {vt[0]}, {sST[j][0]}', f'v_mov_b32 {vt[1]}, {sST[j][1]}', f'buffer_store_dwordx2 {vt[0:2]}, {vt[2]}, {sWS}, {sT[0]} offen offset:{8 * i}', 's_nop 1'])
def signal():
    return ['s_mov_b64 exec, 1', f's_lshl_b32 {sT[0]}, s2, 2', f's_add_u32 {sT[0]}, {sT[0]}, {WS_SIG}', f'v_mov_b32 {vt[0]}, {sTag}', f'v_mov_b32 {vt[1]}, {sT[0]}',
            f'buffer_store_dword {vt[0]}, {vt[1]}, {sWS}, 0 offen sc1', 's_mov_b64 exec, -1']

sKA = S.alloc('ka', 16); sKB = S.alloc('kb', 6, 4)
sWS = S.alloc('srdws', 4); sDBG = S.alloc('srddbg', 4)
sWv = S.alloc('wv'); sW = S.alloc('w'); sH = S.alloc('h'); sRB = S.alloc('rb'); sC = S.alloc('c')
sT = S.alloc('t', 4); sTag = S.alloc('tag'); sSpin = S.alloc('spin')
A.raw(f'''; @launch grid=(256,1,1) block=(512,1,1) lds={LDS_BYTES}
.amdgcn_target "amdgcn-amd-amdhsa--gfx950"
.text
.globl {NAME}_kernel
.p2align 8
.type {NAME}_kernel,@function
{NAME}_kernel:''')
vLane = V.alloc('lane'); vG = V.alloc('g'); vTt = V.alloc('t16'); vt = V.alloc('vt', 8); vL4 = V.alloc('lane4'); vL16 = V.alloc('lane16')
pX, pW, pWO, pWR, pWG, pWU, pWD = sKA[0:2], sKA[2:4], sKA[4:6], sKA[8:10], sKA[10:12], sKA[12:14], sKA[14:16]
pOUT, pDBG, pWS = sKB[0:2], sKB[2:4], sKB[4:6]
E([f's_load_dwordx16 {sKA}, s[0:1], 0', f's_load_dwordx4 {sKB[0:4]}, s[0:1], 64', f's_load_dwordx2 {sKB[4:6]}, s[0:1], 80'] + stamp() +
  [f'v_lshrrev_b32 {vt[0]}, 6, v0', f'v_and_b32 {vLane}, 63, v0', 's_cmp_ge_u32 s2, 256', 's_cbranch_scc1 Lend',
   f'v_readfirstlane_b32 {sWv}, {vt[0]}', f'v_lshrrev_b32 {vG}, 4, {vLane}', f'v_and_b32 {vTt}, 15, {vLane}',
   f'v_lshlrev_b32 {vL4}, 2, {vLane}', f'v_lshlrev_b32 {vL16}, 4, {vLane}', f's_mov_b32 {sSpin}, 200000',
   f's_and_b32 {sT[0]}, s2, 7', f's_lshr_b32 {sT[1]}, s2, 3', f's_and_b32 {sT[2]}, {sT[0]}, 1', f's_lshr_b32 {sT[0]}, {sT[0]}, 1', f's_add_u32 {sT[3]}, {sT[2]}, 4',
   f's_and_b32 {sW}, {sWv}, 3', f's_lshr_b32 {sH}, {sWv}, 2',
   f's_cmp_lt_u32 {sT[1]}, {sT[3]}', 's_cbranch_scc1 Laux'])
st_common = save_state()
def get_tag():
    return mk_srd(sWS, pWS, 0x10000000, opt('wsoff', 0) << 20) + mk_srd(sDBG, pDBG, 256) + [f's_load_dword {sTag}, {sWS[0:2]}, 0']
def fin_tag(): return [f's_add_u32 {sTag}, {sTag}, 0x9e3779b8', f's_or_b32 {sTag}, {sTag}, 1']
if opt('map', 0) == 0:
    E([f's_mul_i32 {sT[0]}, {sT[0]}, 55', f's_mul_i32 {sT[2]}, {sT[2]}, 28', f's_add_u32 {sT[0]}, {sT[0]}, {sT[2]}', f's_add_u32 {sT[0]}, {sT[0]}, {sT[1]}',
       f's_sub_u32 {sT[0]}, {sT[0]}, {sT[3]}', f's_mul_i32 {sRB}, {sT[0]}, 6554', f's_lshr_b32 {sRB}, {sRB}, 16', f's_mul_i32 {sT[1]}, {sRB}, 10', f's_sub_u32 {sC}, {sT[0]}, {sT[1]}'])
else:
    E([f's_lshr_b32 {sC}, {sT[0]}, 1', f's_and_b32 {sT[0]}, {sT[0]}, 1',
       f's_mul_i32 {sT[0]}, {sT[0]}, 55', f's_mul_i32 {sT[2]}, {sT[2]}, 28', f's_add_u32 {sT[0]}, {sT[0]}, {sT[2]}', f's_add_u32 {sT[0]}, {sT[0]}, {sT[1]}',
       f's_sub_u32 {sT[0]}, {sT[0]}, {sT[3]}', f's_mul_i32 {sRB}, {sT[0]}, 13108', f's_lshr_b32 {sRB}, {sRB}, 16', f's_mul_i32 {sT[1]}, {sRB}, 5', f's_sub_u32 {sT[0]}, {sT[0]}, {sT[1]}',
       f's_mul_i32 {sC}, {sC}, 5', f's_add_u32 {sC}, {sC}, {sT[0]}'])
sCC = S.alloc('cc'); sU = S.alloc('U')
def sel_cc(dst, tab):
    L = [f's_mov_b32 {dst}, {tab[0]:#x}']
    for cc in range(1, 5): L += [f's_cmp_eq_u32 {sCC}, {cc}', f's_cselect_b32 {dst}, {tab[cc]:#x}, {dst}']
    return L
calc_cc = [f's_sub_u32 {sT[0]}, {sC}, 5', f's_cmp_ge_u32 {sC}, 5', f's_cselect_b32 {sCC}, {sT[0]}, {sC}'] + sel_cc(sU, UT)
vOnes = V.alloc('ones', 4); vrow = V.alloc('trrow'); vPhi = V.alloc('phi32'); _w8 = V.alloc('wr', 8); B3 = V.alloc('B3', 16); vWr = [_w8[i] for i in range(8)] + [B3[i] for i in range(4)]
def calc_wr(secoff):
    vc = vt[4]
    L = tr_parts(vrow, vPhi, vc, vt[3]) + [f'v_lshlrev_b32 {vt[6]}, 1, {vc}']
    if secoff: L += [f'v_add_u32 {vt[5]}, {secoff}, {vrow}']
    for t in range(4):
        L += [f'v_add_u32 {vt[7]}, {8 * t}, {vt[6]}', f'v_bfe_u32 {vt[7]}, {sU}, {vt[7]}, 2', f'v_lshl_add_u32 {vt[7]}, {vt[7]}, 2, {vc}', f'v_lshlrev_b32 {vt[7]}, 3, {vt[7]}',
              f'v_xad_u32 {vWr[t]}, {vt[7]}, {vPhi}, {vt[5] if secoff else vrow}']
    return L
def calc_wr_win(): return [f'v_add_u32 {vWr[4 * k + t]}, {2 * k * SLOT}, {vWr[t]}' for k in (1, 2) for t in range(4)]
def wreads(fb, slot, base, kk, tag):
    return [(f'ds_read_b64_tr_b16 {fb[4 * t + 2 * h:4 * t + 2 * h + 2]}, {vWr[WI[slot] * 4 + t]} offset:{slot * SLOT - WIN[slot] + base + kk * 4096 + h * 512}', tag)
            for t in range(4) for h in range(2)]
set_ones = [f'v_mov_b32 {vOnes[i]}, 0x3f803f80' for i in range(4)]
E([f's_cmp_eq_u32 {sWv}, 0', 's_cbranch_scc1 Lloader'])
st_main = save_state()

sTau = S.alloc('tau'); sOUT = S.alloc('srdout', 4)
B1 = V.alloc('B1', 16); B2 = V.alloc('B2', 16); vXr = B1[0:12]
E([f's_lshl_b32 {sTau}, {sW}, 1', f's_add_u32 {sTau}, {sTau}, {sH}'] + calc_cc + set_ones + [f's_lshl_b32 {sT[1]}, {sH}, 13'] + calc_wr(sT[1]))
vXe = V.alloc('xea')
E([f'v_lshrrev_b32 {vt[6]}, 1, {vTt}', f'v_xor_b32 {vt[5]}, {vt[6]}, {vG}', f'v_lshlrev_b32 {vt[5]}, 4, {vt[5]}', f'v_lshl_add_u32 {vt[5]}, {vTt}, 7, {vt[5]}',
   f's_lshl_b32 {sT[0]}, {sTau}, 11', f's_xor_b32 {sT[1]}, {sT[0]}, 2048', f's_add_u32 {sT[0]}, {sT[0]}, {XOFF - 2048}', f's_add_u32 {sT[1]}, {sT[1]}, {XOFF - 2048}',
   f'v_add_u32 {vXr[0]}, {sT[0]}, {vt[5]}', f'v_add_u32 {vXr[2]}, {sT[1]}, {vt[5]}',
   f's_cmp_eq_u32 {sTau}, 1', f's_cselect_b64 vcc, -1, 0', f's_cselect_b32 {sT[2]}, 0x00010001, 0', f's_mov_b32 {sT[3]}, {sT[2]}',
   f'v_mov_b32 {vt[7]}, {ONES_OFF}', f'v_cndmask_b32 {vXr[2]}, {vXr[2]}, {vt[7]}, vcc', f'v_cndmask_b32 {vXr[0]}, {vXr[0]}, {vt[7]}, {sT[2:4]}',
   f'v_xor_b32 {vXr[1]}, 64, {vXr[0]}', f'v_xor_b32 {vXr[3]}, 64, {vXr[2]}',
   f'v_lshrrev_b32 {vt[4]}, 1, {vG}', f'v_xor_b32 {vt[4]}, {vt[4]}, {vt[6]}', f'v_lshlrev_b32 {vt[4]}, 4, {vt[4]}', f'v_lshl_add_u32 {vt[4]}, {vTt}, 7, {vt[4]}',
   f'v_and_b32 {vt[3]}, 1, {vG}', f'v_lshl_add_u32 {vXe}, {vt[3]}, 3, {vt[4]}', f'v_add_u32 {vt[0]}, {sT[0]}, {vXe}',
   f'v_xor_b32 {vt[1]}, 32, {vt[0]}', f'v_xor_b32 {vt[2]}, 64, {vt[0]}', f'v_xor_b32 {vt[3]}, 0x60, {vt[0]}',
   's_waitcnt lgkmcnt(0)'] + get_tag() + mk_srd(sOUT, pOUT, 2048 * 1280))
S.free('ka', 'kb')
later = calc_wr_win() + [f'v_add_u32 {vXr[4 * k + j]}, {2 * k * SLOT}, {vXr[j]}' for k in (1, 2) for j in range(4)]
E(later)
sSL = S.alloc('SL'); sM = {}
E(sel_cc(sSL, SLT))
for t in (1, 2):
    E([f'v_lshlrev_b32 {vt[6]}, 1, {vG}', f'v_add_u32 {vt[6]}, {8 * t}, {vt[6]}', f'v_bfe_u32 {vt[6]}, {sSL}, {vt[6]}, 2'])
    for sl in (0, 3, t):
        sM[(sl, t)] = S.alloc(f'm{sl}{t}', 2); E(f'v_cmp_eq_u32 {sM[(sl, t)]}, {sl}, {vt[6]}')
S.free('SL', 'U')
sK1 = S.alloc('k1', 2); sK2 = S.alloc('k2', 2); vDiag = B1[12]
E([f's_mov_b32 {sK1[0]}, 0xaaaaaaaa', f's_mov_b32 {sK1[1]}, 0xaaaaaaaa', f's_mov_b32 {sK2[0]}, 0xcccccccc', f's_mov_b32 {sK2[1]}, 0xcccccccc',
   f'v_lshrrev_b32 {vDiag}, 2, {vTt}', f'v_lshl_add_u32 {vDiag}, {vDiag}, 4, {vTt}', f'v_lshlrev_b32 {vDiag}, 2, {vDiag}'])
def lmask(f): return sum(1 << l for l in range(64) if f(l >> 4, l & 15))
MCA = lmask(lambda g, t: t - 4 * g - (t & 1) >= 0); MCB = lmask(lambda g, t: t - 4 * g - 2 - (t & 1) >= 0)
vPM = V.alloc('pm', 4); sCA = S.alloc('ca', 2); sCB = S.alloc('cb', 2); sFirst = S.alloc('first')
E([f's_mov_b32 {sCA[0]}, {MCA & 0xffffffff:#x}', f's_mov_b32 {sCA[1]}, {MCA >> 32:#x}', f's_mov_b32 {sCB[0]}, {MCB & 0xffffffff:#x}', f's_mov_b32 {sCB[1]}, {MCB >> 32:#x}',
   f'v_mov_b32 {vt[4]}, 0xffff', f'v_not_b32 {vt[5]}, {vt[4]}', f'v_cndmask_b32 {vt[4]}, {vt[4]}, {vt[5]}, {sK1}',
   f'v_cndmask_b32 {vPM[2]}, 0, {vt[4]}, {sCA}', f'v_cndmask_b32 {vPM[3]}, 0, {vt[4]}, {sCB}', f'v_xor_b32 {vPM[0]}, {vPM[2]}, {vt[4]}', f'v_xor_b32 {vPM[1]}, {vPM[3]}, {vt[4]}',
   f's_cmp_eq_u32 {sRB}, 0', f's_cselect_b32 {sT[0]}, {sTau}, 0', f's_cmp_eq_u32 {sT[0]}, 2', f's_cselect_b32 {sFirst}, {NEG_INF}, 0'])
XK = AG.alloc('XK', 80); XT = AG.alloc('XT', 16); F = [AG.alloc('F0', 16), AG.alloc('F1', 16)]
acc = V.alloc('acc', 32); accS = B2[0:8]; vXb = V.alloc('xb', 8)
def XKf(k): return XK[4 * k:4 * k + 4]
def p1_reads(s, kk):
    sl = s % 5; off = sl * SLOT - WIN[sl]; tag = ('r', s, kk)
    return [(f'ds_read_b128 {XKf(2 * s + kk)}, {vXr[WI[sl] * 4 + kk]} offset:{off}', tag), (f'ds_read_b128 {XT[4 * kk:4 * kk + 4]}, {vXr[WI[sl] * 4 + 2 + kk]} offset:{off}', tag)] + wreads(F[kk], sl, 0, kk, tag)
def p1_mfmas(s, kk):
    z = (s == 0 and kk == 0); x = XKf(2 * s + kk); xt = XT[4 * kk:4 * kk + 4]
    L = [f'{MFMA} {accS[0:4]}, {vOnes}, {x}, {0 if z else accS[0:4]}', f'{MFMA} {accS[4:8]}, {x}, {x}, {0 if z else accS[4:8]}']
    for t in range(4):
        for pos, xx in enumerate((x, xt)):
            a = acc[pos * 16 + 4 * t:pos * 16 + 4 * t + 4]
            L.append(f'{MFMA} {a}, {F[kk][4 * t:4 * t + 4]}, {xx}, {0 if z else a}')
    return L
vSt = V.alloc('st', 4); vSa = V.alloc('sa'); vEx = V.alloc('exa'); vScB = V.alloc('scb'); vSc = [vSt[3], vScB]
sOb = S.alloc('ob', 5, 1); sOst = S.alloc('ost'); sFl = S.alloc('fl'); sSx = S.alloc('ssx', 4, 1); sCs = S.alloc('cscale'); sVx = S.alloc('vx', 2, 1)
vRka = B3[4:6]
E([f's_mul_i32 {sT[0]}, {sRB}, 6', f's_add_u32 {sT[0]}, {sT[0]}, {sTau}', f's_sub_u32 {sT[0]}, {sT[0]}, 2', f's_lshl_b32 {sFl}, {sT[0]}, 7', f's_add_u32 {sFl}, {sFl}, {WS_FL}',
   f's_mul_i32 {sOb[0]}, {sT[0]}, 20480', f's_add_u32 {sOb[0]}, {sOb[0]}, {WS_O}', f's_lshl_b32 {sT[0]}, {sC}, 11', f's_add_u32 {sOst}, {sT[0]}, {sOb[0]}',
   f's_lshl_b32 {sT[0]}, s2, 12', f's_add_u32 {sT[0]}, {sT[0]}, {WS_JUNK}', f's_add_u32 {sT[1]}, {sT[0]}, 2048', f's_cmp_eq_u32 {sTau}, 1',
   f's_cselect_b32 {sOst}, {sT[0]}, {sOst}', f's_cselect_b32 {sFl}, {sT[1]}, {sFl}'] +
  [f's_add_u32 {sOb[i]}, {sOb[0]}, {4096 * i}' for i in range(1, 5)] +
  [f's_mul_i32 {sT[0]}, {sRB}, 10', f's_add_u32 {sT[0]}, {sT[0]}, {sC}', f's_mul_i32 {sSx[0]}, {sT[0]}, 12288', f's_lshl_b32 {sT[0]}, {sTau}, 10', f's_add_u32 {sSx[0]}, {sSx[0]}, {sT[0]}',
   f's_add_u32 {sSx[0]}, {sSx[0]}, {WS_SX - 2048}', f's_add_u32 {sSx[1]}, {sSx[0]}, 6144', f's_sub_u32 {sSx[2]}, {sSx[0]}, 6144', f's_add_u32 {sSx[3]}, {sSx[0]}, 12288',
   f's_mov_b32 {sCs}, {f32(SCALE_L2E)}',
   f's_lshl_b32 {sT[0]}, {sTau}, 6', f's_add_u32 {sT[0]}, {sT[0]}, {L_M}', f'v_lshl_add_u32 {vSa}, {vTt}, 2, {sT[0]}',
   f'v_and_b32 {vt[4]}, 1, {vLane}', f'v_lshl_add_u32 {vt[4]}, {vG}, 2, {vt[4]}', f'v_lshl_add_u32 {vt[4]}, {vt[4]}, 2, {sT[0]}', f'v_subrev_u32 {vt[5]}, 64, {vt[4]}',
   f'v_cndmask_b32 {vRka[0]}, {vt[5]}, {vt[4]}, {sCA}', f'v_cndmask_b32 {vRka[1]}, {vt[5]}, {vt[4]}, {sCB}',
   f's_mul_i32 {sVx[0]}, {sW}, {SLOT}', f's_add_u32 {sVx[0]}, {sVx[0]}, {SPARE}', f'v_add_u32 {vEx}, {sVx[0]}, {vL16}',
   f's_lshl_b32 {sT[1]}, {sH}, 11', f's_add_u32 {sVx[0]}, {sVx[0]}, {sT[1]}', f's_cmp_eq_u32 {sH}, 0', f's_cselect_b32 {sVx[1]}, {SLOT - 2048}, {sT[1]}',
   f'v_lshlrev_b32 {B3[6]}, 4, {vG}', f's_lshl_b32 {sT[0]}, {sH}, 8', f's_add_u32 {sT[0]}, {sT[0]}, {L_CS}', f'v_add_u32 {B3[6]}, {sT[0]}, {B3[6]}', f'v_xor_b32 {B3[7]}, 64, {vSa}'])
E(stamp())
for s in range(10):
    A.comment(f'pass1 unit {s}')

    E(['s_waitcnt lgkmcnt(0)', 's_barrier']); E.lg = []
    if s == 0:
        E(stamp() + p1_reads(0, 0) + [f'ds_read_b64 {vXb[2 * n:2 * n + 2]}, {vt[n]}' for n in range(4)] + fin_tag())
    else:
        E(merge(p1_mfmas(s - 1, 1), p1_reads(s, 0), 1, 2))
    E(W(lg=('r', s, 0)))
    E(merge(p1_mfmas(s, 0), p1_reads(s, 1), 1, 2))
lastm = p1_mfmas(9, 1)
E(W(lg='all')); E(lastm[:2])
adj = [f's_lshl_b32 {sT[1]}, {sH}, 13'] + [f'v_subrev_u32 {vWr[i]}, {sT[1]}, {vWr[i]}' for i in range(8)]
E(merge(lastm[2:5], adj, 1, 3))
E(merge(lastm[5:], stats(accS[0], accS[4:8], vSt[0:2], vt, vDiag, sK1, sK2), 1, 3))
S.free('k2')
E([f'ds_write_b32 {vSa}, {vSt[0]}', f'ds_write_b32 {vSa}, {vSt[1]} offset:512', f's_cmp_lg_u32 {sTau}, 1', 's_cbranch_scc1 Lnocs',
   's_mov_b32 exec_lo, 0x00010001', 's_mov_b32 exec_hi, 0x00010001'] +
  [f'ds_write_b128 {B3[6]}, {acc[4 * t:4 * t + 4]} offset:{64 * t}' for t in range(4)] + ['s_mov_b64 exec, -1', ('L', 'Lnocs')])
def dump_regs(regs):
    n = len(regs)
    E([f's_mul_i32 {sT[0]}, {sRB}, 10', f's_add_u32 {sT[0]}, {sT[0]}, {sC}', f's_lshl_b32 {sT[0]}, {sT[0]}, 3', f's_add_u32 {sT[0]}, {sT[0]}, {sTau}',
       f's_mul_i32 {sT[0]}, {sT[0]}, {n * 256}', f's_add_u32 {sT[0]}, {sT[0]}, {WS_DUMP}', 's_nop 7'])
    for r in regs: A(f'buffer_store_dword {r}, {vL4}, {sWS}, {sT[0]} offen'); A(f's_add_u32 {sT[0]}, {sT[0]}, 256')
    A('s_waitcnt vmcnt(0)')
E(stamp())
E(['s_waitcnt lgkmcnt(0)', 's_barrier'] + stamp()); E.lg = []
accV = B1; F3 = XT
FR = [F[0], F[1], F3]
def p2_reads(k): sl, sub = VLOC[k // 2]; return wreads(FR[k % 3], sl, sub * 8192, k % 2, ('v', k))
def p2_range(k0, k1, kmax, started, fill=()):
    L = []; fill = list(fill); n = k1 - k0
    for k in range(k0, k1):
        for kk in (k, k + 1, k + 2):
            if kk not in started and kk < kmax: L += p2_reads(kk); started.add(kk)
        m = [f'{MFMA} {accV[4 * t:4 * t + 4]}, {XKf(k)}, {FR[k % 3][4 * t:4 * t + 4]}, {0 if k == 0 else accV[4 * t:4 * t + 4]}' for t in range(4)]
        cnt = -(-len(fill) // (k1 - k)); f = fill[:cnt]; fill = fill[cnt:]
        L += [W(lg=('v', k))] + spread(m, f)
    for kk in (k1, k1 + 1, k1 + 2):
        if kk not in started and kk < kmax: L += p2_reads(kk); started.add(kk)
    return L
vCS = B2; vQ8 = acc[0:8]; vK16 = acc[16:32]
def fix_qk(dst, a16, negm):
    L = []
    for t in range(4):
        L += [f'v_fmac_f32 {a16[4 * t + i]}, {vCS[4 * t + i]}, {negm}' for i in range(4)] + cvt2(dst[2 * t:2 * t + 2], a16[4 * t:4 * t + 4])
    return L
E([(f'ds_read_b32 {vSt[2]}, {B3[7]}', 'cs')] + [(f'ds_read_b128 {vCS[4 * t:4 * t + 4]}, {B3[6]} offset:{64 * t}', 'cs') for t in range(4)] +
  [f'ds_read_b32 {vSc[0]}, {vRka[0]} offset:512', f'ds_read_b32 {vSc[1]}, {vRka[1]} offset:520', f's_cmp_eq_u32 {sH}, 0', W(lg='cs')] +
  fix_qk(vK16[0:8], acc[16:32], vSt[2]) + ['s_cbranch_scc0 Lh1'])
st_b1 = (list(E.vm), list(E.lg))
for h in range(2):
    if h: A.label('Lh1')
    E.vm, E.lg = list(st_b1[0]), list(st_b1[1])
    started = set()
    E([f'ds_write_b128 {vEx}, {vK16[4 * i:4 * i + 4]} offset:{h * 2048 + i * 1024}' for i in range(2)])
    if h == 1: E(fix_qk(vK16[8:16], acc[0:16], vSt[0]) + [f'ds_write_b128 {vEx}, {vK16[8 + 4 * i:12 + 4 * i]} offset:{4096 + i * 1024}' for i in range(2)])
    E.lg[-1] = 'exw'
    if h == 0: E(p2_range(0, 0, 6, started) + fix_qk(vQ8, acc[0:16], vSt[0]) + [f'v_subrev_u32 {vt[0]}, {SLOT}, {vEx}'])
    E([W(lg='exw'), 's_barrier'])
    if h == 0:
        E([(f'ds_read_b128 {vK16[8 + 4 * i:12 + 4 * i]}, {vEx} offset:{2048 + i * 1024}', 'ex') for i in range(2)] +
          [(f'ds_read_b128 {vK16[4 * i:4 * i + 4]}, {vt[0]} offset:{4096 + i * 1024}', 'ex') for i in range(2)] + [f'v_mov_b32 {vt[4 + i]}, {sFirst}' for i in range(4)] +
          [W(lg='all'), 's_branch Lh_join'])
    else:
        E([f's_cmp_eq_u32 {sTau}, 1', 's_cbranch_scc1 Lhalo'] + [(f'ds_read_b128 {vQ8[4 * i:4 * i + 4]}, {vEx} offset:{i * 1024}', 'ex') for i in range(2)] +
          [f'v_mov_b32 {vt[4 + i]}, 0' for i in range(4)] + [W(lg='all')])
A.label('Lh_join')
E.lg = []
E(stamp())
vQ = B3
def QO(sl): return vQ[sl * 4:sl * 4 + 4]
KO = {1: 0, 0: 2, 3: 2, 2: 4}
def SA(sl, pc): return {0: vCS[0:8], 3: vCS[8:16], 1: acc[8:16], 2: vCS[0:8]}[sl][pc * 4:pc * 4 + 4]
def s_mfma(sl): return [f'{MFMA} {SA(sl, pc)}, {vK16[8 * pc + KO[sl]:8 * pc + KO[sl] + 4]}, {QO(sl)}, {0 if pc else vt[4:8]}' for pc in range(2)]
def mrg(sl):
    p = SA(sl, 0); c = SA(sl, 1); d = QO(sl)
    return [f'v_cndmask_b32 {p[0]}, {p[0]}, {p[1]}, {sK1}', f'v_cndmask_b32 {c[0]}, {c[0]}, {c[1]}, {sK1}', f'v_cndmask_b32 {p[2]}, {p[2]}, {p[3]}, {sK1}',
            f'v_cndmask_b32 {c[2]}, {c[2]}, {c[3]}, {sK1}', f'v_cndmask_b32 {d[0]}, {p[0]}, {c[0]}, {sCA}', f'v_cndmask_b32 {d[2]}, {p[2]}, {c[2]}, {sCB}']
def qmask(sl): return [f'v_cndmask_b32 {QO(sl)[i]}, 0, {vQ8[2 + i]}, {sM[(sl, 1 + i // 2)]}' for i in range(4)]
q1 = [f'v_mov_b32 {QO(1)[0]}, {vQ8[0]}', f'v_mov_b32 {QO(1)[1]}, {vQ8[1]}'] + [f'v_cndmask_b32 {QO(1)[2 + i]}, 0, {vQ8[2 + i]}, {sM[(1, 1)]}' for i in range(2)]
q2 = [f'v_cndmask_b32 {QO(2)[i]}, 0, {vQ8[4 + i]}, {sM[(2, 2)]}' for i in range(2)] + [f'v_mov_b32 {QO(2)[2]}, {vQ8[6]}', f'v_mov_b32 {QO(2)[3]}, {vQ8[7]}']
def pub(sl, so): return [f'v_mov_b32 {QO(sl)[1]}, {sTag}', f'v_mov_b32 {QO(sl)[3]}, {sTag}'] + mrg(sl) + [f'buffer_store_dwordx4 {QO(sl)}, {vL16}, {sWS}, {so} offen sc1']
E(qmask(0) + qmask(3)[:2] + s_mfma(0) + qmask(3)[2:] + q1[:2] + s_mfma(3) + q1[2:] + q2[:2] + s_mfma(1) + pub(0, sSx[0]) + pub(3, sSx[1]))
E(stamp())
started = set()
E([f's_cmp_eq_u32 {sH}, 0', 's_cbranch_scc1 Lpf_done'] + p2_range(0, 0, 6, started) + [('L', 'Lpf_done')])
def softmax(sls):
    n = len(sls); mx = [vt[i] for i in range(n)]; tp = [vt[2 + i] for i in range(n)]
    L = []
    for sl in sls: L += [f'v_mul_f32 {QO(sl)[2 * j]}, {QO(sl)[2 * j]}, {vSc[j]}' for j in range(2)]
    L += [f'v_max_f32 {mx[i]}, {QO(sl)[0]}, {QO(sl)[2]}' for i, sl in enumerate(sls)]
    for sw in ('v_permlane32_swap_b32', 'v_permlane16_swap_b32'):
        L += [f'v_mov_b32 {tp[i]}, {mx[i]}' for i in range(n)] + [f'{sw} {mx[i]}, {tp[i]}' for i in range(n)] + [f'v_max_f32 {mx[i]}, {mx[i]}, {tp[i]}' for i in range(n)]
    for i, sl in enumerate(sls): L += [f'v_sub_f32 {QO(sl)[j]}, {QO(sl)[j]}, {mx[i]}' for j in (0, 2)]
    for sl in sls: L += [f'v_exp_f32 {QO(sl)[j]}, {QO(sl)[j]}' for j in (0, 2)]
    for sl in sls: d = QO(sl); L += [f'v_cvt_pk_bf16_f32 {d[0]}, {d[0]}, {d[0]}', f'v_cvt_pk_bf16_f32 {d[1]}, {d[2]}, {d[2]}']
    for sl in sls: d = QO(sl); L += [f'v_and_b32 {d[2]}, {d[0]}, {vPM[2]}', f'v_and_b32 {d[3]}, {d[1]}, {vPM[3]}', f'v_and_b32 {d[0]}, {d[0]}, {vPM[0]}', f'v_and_b32 {d[1]}, {d[1]}, {vPM[1]}']
    return L
def gate_calc(xb, xn, g, upd=None):
    n = 2 * xb.n; L = []
    for i in range(n // 2): L += [f'v_lshlrev_b32 {xn[2 * i]}, 16, {xb[i]}', f'v_and_b32 {xn[2 * i + 1]}, 0xffff0000, {xb[i]}']
    L += [f'v_add_f32 {xn[i]}, {xn[i]}, {vSt[0]}' for i in range(n)] + round_pairs(xn, n) + [f'v_mul_f32 {xn[i]}, {xn[i]}, {vSt[1]}' for i in range(n)] + round_pairs(xn, n)
    if upd is not None: L += [W(lg='all')] + [f'v_add_f32 {xn[i]}, {xn[i]}, {upd[i]}' for i in range(n)] + round_pairs(xn, n)
    return L + silu_into(g, xn, n)[:-n]
PK = XK[0:16]
fill1 = q2[2:] + [f'v_mul_f32 {vt[0]}, {sCs}, {vSt[1]}'] + s_mfma(2) + [f'v_mul_f32 {vSc[j]}, {vSc[j]}, {vt[0]}' for j in range(2)] + mrg(1) + mrg(2) + softmax([1, 2])
KA, KB = opt('ka', 6), opt('kb', 17)
E([f'v_mov_b32 {vCS[8 + i]}, -1' for i in range(4)] + [(f'buffer_store_dwordx4 {vCS[8:12]}, {vL16}, {sWS}, {sOst} offen offset:{1024 * i} sc1', 'clr') for i in range(2)])
E(p2_range(0, KA, 12, started, fill1))
E(p2_range(KA, 9, 12, started))
E('s_barrier')
vRx = acc[24:32]; vNm = vCS[0:8]; vCv = vCS[8:12]
def rx_loads(): return [(f'buffer_load_dwordx4 {vRx[4 * d:4 * d + 4]}, {vL16}, {sWS}, {sSx[2 + d]} offen sc1', 'rx') for d in range(2)]
def vstat_reads(): return [f's_lshl_b32 {sT[0]}, {sTau}, 6', f's_add_u32 {sT[0]}, {sT[0]}, {L_M}', f'v_lshl_add_u32 {vt[0]}, {vG}, 4, {sT[0]}',
                           f'ds_read_b128 {vNm[0:4]}, {vt[0]}', f'ds_read_b128 {vNm[4:8]}, {vt[0]} offset:512',
                           f'v_lshl_add_u32 {vEx}, {vLane}, 3, {sVx[0]}', f'v_lshlrev_b32 {vt[1]}, 4, {vTt}', f'v_add_u32 {vt[1]}, {L_CSV}, {vt[1]}', f'v_mov_b32 {vt[2]}, {L_CSF}',
                           f'v_subrev_u32 {vt[4]}, {sVx[1]}, {vEx}']
E(p2_range(9, KB, 20, started))
E([f's_lshl_b32 {sT[0]}, {sC}, 2', f'v_mov_b32 {vt[0]}, {sT[0]}', f'v_mov_b32 {vt[1]}, {sTag}', W('clr')] + rx_loads() + ['s_mov_b64 exec, 1',
   f'buffer_store_dword {vt[1]}, {vt[0]}, {sWS}, {sFl} offen sc1', 's_mov_b64 exec, -1'] + vstat_reads())
E(p2_range(KB, 20, 20, started))
E(stamp())
vV = accV
def vfix():
    L = []
    for t in range(4):
        a = accV[4 * t:4 * t + 4]
        L += [f'v_fmac_f32 {a[i]}, {vNm[i]}, {vCv[t]}' for i in range(4)] + [f'v_mul_f32 {a[i]}, {a[i]}, {vNm[4 + i]}' for i in range(4)]
        L += cvt2(vV[4 * t + 2:4 * t + 4], a)[::-1] + [f'ds_write_b64 {vEx}, {vV[4 * t + 2:4 * t + 4]} offset:{512 * t}']
    return L
E([('L', 'Lcsv')] + spin_guard() + [f'ds_read_b32 {vt[3]}, {vt[2]}', f'ds_read_b128 {vCv}, {vt[1]}', W(lg='all'), f'v_readfirstlane_b32 {sT[2]}, {vt[3]}',
   f's_cmp_eq_u32 {sT[2]}, 0', 's_cbranch_scc1 Lcsv'])
E(vfix())
E([W('rx'), ('L', 'Lrx_chk')])
for d in range(2):
    E([f'v_cmp_eq_u32 vcc, {sTag}, {vRx[4 * d + 1]}', f'v_cmp_eq_u32 {sT[2 * d:2 * d + 2]}, {sTag}, {vRx[4 * d + 3]}', f's_and_b64 {sT[2 * d:2 * d + 2]}, {sT[2 * d:2 * d + 2]}, vcc',
       f's_cmp_eq_u32 {sCC}, {4 * d}', f's_cselect_b64 {sT[2 * d:2 * d + 2]}, -1, {sT[2 * d:2 * d + 2]}'])
E([f's_and_b64 {sT[0:2]}, {sT[0:2]}, {sT[2:4]}',
   f's_cmp_eq_u64 {sT[0:2]}, -1', 's_cbranch_scc1 Lrx_ok'] + spin_guard() + rx_loads() + [W('all'), 's_branch Lrx_chk', ('L', 'Lrx_ok')] + stamp())
for d, sl in ((0, 0), (1, 3)):
    E([f's_cmp_eq_u32 {sCC}, {4 * d}', 's_cselect_b64 vcc, -1, 0'])
    for j in (0, 2): E([f'v_cndmask_b32 {vRx[4 * d + j]}, {vRx[4 * d + j]}, 0, vcc', f'v_add_f32 {QO(sl)[j]}, {QO(sl)[j]}, {vRx[4 * d + j]}'])
E(['s_setprio 2', 's_waitcnt lgkmcnt(0)', 's_barrier'] + stamp()); E.lg = []
E([(f'ds_read_b64 {vV[4 * t:4 * t + 2]}, {vt[4]} offset:{512 * t}', 'vp') for t in range(4)])
vO = acc; vSum = vCS
PVL = [(0, 1), (1, 1), (2, 2), (3, 2), (1, 0), (2, 0), (1, 3), (2, 3)]
def OO(t, sl): b = PVL.index((t, sl)) * 4; return vO[b:b + 4]
def SM(sl): return vSum[4 * sl:4 * sl + 4]
def pv(sls): return [f'{MFMA} {SM(sl)}, {vOnes}, {QO(sl)}, 0' for sl in sls] + [f'{MFMA} {OO(t, sl)}, {vV[4 * t:4 * t + 4]}, {QO(sl)}, 0' for (t, sl) in PVL if sl in sls]
ch = softmax([0, 3])
E(ch[:12]); E(W(lg='vp')); E(spread(ch[12:], pv([1, 2])))
vOst = vt
def onorm(t, o, rc): return [f'v_mul_f32 {o[i]}, {o[i]}, {rc}' for i in range(4)] + cvt2(vOst[2 * t:2 * t + 2], o) + [f'v_min_u32 {vOst[2 * t + i]}, -2, {vOst[2 * t + i]}' for i in range(2)]
E(spread(pv([0, 3]), [f'v_rcp_f32 {SM(sl)[0]}, {SM(sl)[0]}' for sl in (1, 2)] + onorm(0, OO(0, 1), SM(1)[0])) + onorm(3, OO(3, 2), SM(2)[0]) + [f'v_rcp_f32 {SM(sl)[0]}, {SM(sl)[0]}' for sl in (0, 3)])
for t in (1, 2):
    d = OO(t, t); rc = SM(t)[2]
    E([f'v_cndmask_b32 {rc}, {SM(t)[0]}, {SM(0)[0]}, {sM[(0, t)]}', f'v_cndmask_b32 {rc}, {rc}, {SM(3)[0]}, {sM[(3, t)]}'])
    for sl in (0, 3): E([f'v_cndmask_b32 {d[r]}, {d[r]}, {OO(t, sl)[r]}, {sM[(sl, t)]}' for r in range(4)])
    E(onorm(t, d, rc) + [f'buffer_store_dwordx4 {vOst[4 * (t - 1):4 * t]}, {vL16}, {sWS}, {sOst} offen offset:{(t - 1) * 1024} sc1'])
E(stamp())
vFl = B3[0]
fl_load = (f'buffer_load_dword {vFl}, {vL4}, {sWS}, {sFl} offen sc1', 'fl')
E(['s_setprio 0', fl_load] + gate_calc(vXb, acc[0:16], acc[16:32]) + [f'v_accvgpr_write_b32 {PK[i]}, {acc[17 + 2 * i]}' for i in range(8)] + [f'v_accvgpr_write_b32 {PK[8 + i]}, {vXb[i]}' for i in range(8)])
vWr_p1 = list(vWr); vWr[8:12] = [vSt[2], vSt[3], vSa, vScB]
E([f'v_and_b32 {vt[2]}, 3, {vLane}', f'v_lshl_add_u32 {vt[2]}, {vt[2]}, 3, {vPhi}', f'v_add_u32 {vWr[0]}, {vt[2]}, {vrow}'] +
  [f'v_xor_b32 {vWr[t]}, {32 * t}, {vWr[0]}' for t in (1, 2, 3)] + calc_wr_win())
FR = [XK[16 * i:16 * i + 16] for i in range(1, 5)] + [XT, F[0], F[1]]; NF = 7
def wo_reads(k): sl, sub = OLOC[k // 2]; return wreads(FR[k % NF], sl, sub * 8192, k % 2, ('o', k))
OFG = [acc[4 * i:4 * i + 4] for i in range(8)] + [B[4 * i:4 * i + 4] for B in (B1, B2, B3) for i in range(4)]
accO = [vXb[0:4], vXb[4:8], vPM, vOnes]
sJ = S.alloc('j')
NPRE = opt('npre', 0)
for k in range(NPRE): E(wo_reads(k))
E([W('fl'), ('L', 'Lfl_chk'), f'v_cmp_eq_u32 vcc, {sTag}, {vFl}', f's_mov_b32 {sJ}, 0', f's_and_b32 {sT[0]}, vcc_lo, 0x3ff', f's_cmp_lg_u32 {sT[0]}, 0x3ff', 's_cbranch_scc1 Lfl_re'] + stamp())
E.vm = []
for k in range(20):
    if k % 2 == 0: A.label(f'Lld_{k // 2}')
    E((f'buffer_load_dwordx4 {OFG[k]}, {vL16}, {sWS}, {sOb[k // 4]} offen offset:{(k % 4) * 1024} sc1', ('of', k // 2)))
E([f's_cmp_lg_u32 {sJ}, 0', 's_cbranch_scc1 Ldisp'])
for k in range(NPRE, NF): E(wo_reads(k))
E([f'v_mov_b32 {vt[6]}, {L_INFO}'])
def chk(j):
    a, b = OFG[2 * j], OFG[2 * j + 1]
    return [('L', f'Lchk_{j}'), W(('of', j)), f'v_max3_u32 {vt[0]}, {a[0]}, {a[1]}, {a[2]}', f'v_max3_u32 {vt[1]}, {b[0]}, {b[1]}, {b[2]}', f'v_max3_u32 {vt[0]}, {vt[0]}, {a[3]}, {b[3]}',
            f'v_max_u32 {vt[0]}, {vt[0]}, {vt[1]}', f'v_cmp_eq_u32 vcc, -1, {vt[0]}', f's_cbranch_vccnz Lre_{j}']
vXf = acc[0:16]; vGt = acc[16:32]; vOa = B1[0:2]; vRow = B1[2]; vTa = B1[4:8]; vTr = B1[3]; vOst = B1[8:16]
tail = []
for i in range(8):
    tail += [f'v_accvgpr_read_b32 {vGt[2 * i + 1]}, {PK[i]}', f'v_accvgpr_read_b32 {vXf[2 * i + 1]}, {PK[8 + i]}']
for x in (vGt, vXf):
    for i in range(8): tail += [f'v_lshlrev_b32 {x[2 * i]}, 16, {x[2 * i + 1]}', f'v_and_b32 {x[2 * i + 1]}, 0xffff0000, {x[2 * i + 1]}']
oadr = [f's_mul_i32 {sT[0]}, {sRB}, 96', f's_lshl_b32 {sT[1]}, {sTau}, 4', f's_add_u32 {sT[0]}, {sT[0]}, {sT[1]}', f's_sub_u32 {sT[0]}, {sT[0]}, 32',
        f'v_add_u32 {vRow}, {sT[0]}, {vTt}', f'v_lshrrev_b32 {vt[2]}, 3, {vLane}', f'v_add_u32 {vt[2]}, {sT[0]}, {vt[2]}', f'v_mul_u32_u24 {vt[2]}, 1280, {vt[2]}',
        f'v_and_b32 {vt[3]}, 7, {vLane}', f'v_xor_b32 {vt[3]}, {vt[3]}, {vG}', f'v_lshl_add_u32 {vOa[0]}, {vt[3]}, 4, {vt[2]}', f'v_xor_b32 {vOa[1]}, 64, {vOa[0]}',
        f'v_add_u32 {vOa[1]}, {8 * 1280}, {vOa[1]}',
        f's_lshl_b32 {sT[0]}, {sTau}, 11', f's_add_u32 {sT[0]}, {sT[0]}, {2 * SLOT}', f'v_add_u32 {vTa[0]}, {sT[0]}, {vXe}', f'v_xor_b32 {vTa[1]}, 32, {vTa[0]}',
        f'v_xor_b32 {vTa[2]}, 64, {vTa[0]}', f'v_xor_b32 {vTa[3]}, 0x60, {vTa[0]}', f'v_add_u32 {vTr}, {sT[0]}, {vL16}', f's_lshl_b32 {sFl}, {sC}, 7']
fills = {5: tail[:16], 6: tail[16:32], 7: tail[32:48], 8: oadr}
for j in range(10):
    E(chk(j))
    if j == 0: E(stamp())
    if j == 1:
        E([('L', 'Linfo')] + spin_guard() + [f'ds_read_b64 {vt[4:6]}, {vt[6]}', W(lg='all'), f'v_readfirstlane_b32 {sT[3]}, {vt[4]}', f's_cmp_eq_u32 {sT[3]}, {SENT}', 's_cbranch_scc1 Linfo'])
    for k in (2 * j, 2 * j + 1):
        m = [f'{MFMA} {accO[n]}, {FR[k % NF][4 * n:4 * n + 4]}, {OFG[k]}, {0 if k == 0 else accO[n]}' for n in range(4)]
        f = fills.get(j, []); f = f[:len(f) // 2] if k % 2 == 0 else f[len(f) // 2:]
        E([W(lg=('o', k))] + spread(m, f) + (wo_reads(k + NF) if k + NF < 20 else []))
E(stamp())
E([f'v_and_b32 {vt[2]}, {vt[4]}, {vt[5]}', f'v_readfirstlane_b32 {sT[3]}, {vt[2]}', f's_cmp_eq_u32 {sT[3]}, -1', 's_cbranch_scc0 Lfix', ('L', 'Lnofix')])
for n in range(4):
    a = accO[n]
    E([f'v_fma_f32 {a[i]}, {a[i]}, {vGt[4 * n + i]}, {vXf[4 * n + i]}' for i in range(4)] + cvt2(vOst[2 * n:2 * n + 2], a) + [f'ds_write_b64 {vTa[n]}, {vOst[2 * n:2 * n + 2]}'])
E([(f'ds_read_b128 {B2[4 * i:4 * i + 4]}, {vTr} offset:{1024 * i}', ('fin', i)) for i in range(2)])
for i in range(2): E([W(lg=('fin', i)), f'buffer_store_dwordx4 {B2[4 * i:4 * i + 4]}, {vOa[i]}, {sOUT}, {sFl} offen{NT["S"]}'])
write_stamps(STAMPW, 'main')
E('s_endpgm')
E([('L', 'Lfl_re')] + spin_guard() + [fl_load, W('all'), 's_branch Lfl_chk'])
for j in range(10): E([('L', f'Lre_{j}'), f's_mov_b32 {sJ}, {j + 1}', 's_branch Lprobe'])
E([('L', 'Lprobe'), f'v_min_u32 {vt[1]}, 19, {vLane}', f'v_lshlrev_b32 {vt[1]}, 10, {vt[1]}', ('L', 'Lprobe2')] + spin_guard() +
  [f'buffer_load_dword {vt[0]}, {vt[1]}, {sWS}, {sOb[0]} offen offset:1020 sc1', W('all'), f'v_cmp_eq_u32 vcc, -1, {vt[0]}', 's_cbranch_vccnz Lprobe2'])
for j in range(9): E([f's_cmp_eq_u32 {sJ}, {j + 1}', f's_cbranch_scc1 Lld_{j}'])
E('s_branch Lld_9')
A.label('Ldisp')
for j in range(9): E([f's_cmp_eq_u32 {sJ}, {j + 1}', f's_cbranch_scc1 Lchk_{j}'])
E('s_branch Lchk_9')
E([('L', 'Lfix'), f'v_mov_b32 {vt[6]}, {L_UF}', ('L', 'Lfix_w')] + spin_guard() + [f'ds_read_b32 {vt[2]}, {vt[6]}', W(lg='all'), f'v_readfirstlane_b32 {sT[3]}, {vt[2]}',
   f's_cmp_eq_u32 {sT[3]}, 0', 's_cbranch_scc1 Lfix_w',
   f'v_mov_b32 {vt[2]}, {L_UPD + 512}', f'v_mov_b32 {vt[3]}, {L_UPD}', f'v_cmp_eq_u32 vcc, {vt[4]}, {vRow}', f'v_cndmask_b32 {vt[2]}, {vt[2]}, {vt[3]}, vcc',
   f'v_mov_b32 {vt[3]}, {L_UPD + 256}', f'v_cmp_eq_u32 vcc, {vt[5]}, {vRow}', f'v_cndmask_b32 {vt[2]}, {vt[2]}, {vt[3]}, vcc', f'v_lshl_add_u32 {vt[2]}, {vG}, 4, {vt[2]}'] +
  [f'ds_read_b128 {B3[4 * n:4 * n + 4]}, {vt[2]} offset:{64 * n}' for n in range(4)] + [f'v_accvgpr_read_b32 {vOst[i]}, {PK[8 + i]}' for i in range(8)] +
  gate_calc(vOst, B2, vGt, B3) + round_pairs(vGt, 16)[8:] + ['s_branch Lnofix'])

A.label('Lhalo'); E.reset()
FR = [F[0], F[1], F3]
started = set()
E(['s_setprio 2'] + signal() + p2_range(0, 9, 12, started)); E('s_barrier')
E(vstat_reads() + p2_range(9, 20, 20, started))
E(['s_mov_b64 exec, 0xffff'] + [f'ds_write_b32 {vt[1]}, {accV[4 * t]} offset:{4 * t}' for t in range(4)] +
  [f'ds_write_b32 {vt[2]}, {vt[2]}', 's_mov_b64 exec, -1', f'ds_read_b128 {vCv}, {vt[1]}', W(lg='all')])
E(vfix() + ['s_waitcnt lgkmcnt(0)', 's_barrier', 's_endpgm'])

load_state(st_main); vWr[:] = vWr_p1
A.label('Lloader')
BIAS = 4096
sX = S.alloc('srdx', 4); sWQ = S.alloc('srdq', 4); sWK = S.alloc('srdk', 4); sWV = S.alloc('srdv', 4); sWO = S.alloc('srdwo', 4)
vW = V.alloc('vw', 8); vX = V.alloc('vx', 14); sWk = S.alloc('wk', 10, 1); sXk = S.alloc('xk'); sRho = S.alloc('rho'); sStr = S.alloc('stride')
l3 = vt[1]; l7 = vt[2]; vch = V.alloc('chunkw')
E(['s_setprio 3', f'v_lshrrev_b32 {l3}, 3, {vLane}', f'v_and_b32 {l7}, 7, {vLane}',
   f'v_and_b32 {vt[4]}, 1, {vG}', f'v_lshlrev_b32 {vt[4]}, 1, {vt[4]}', f'v_xor_b32 {vt[4]}, {vt[4]}, {l7}', f's_lshl_b32 {sT[3]}, {sC}, 7', f'v_lshl_add_u32 {vch}, {vt[4]}, 4, {sT[3]}',
   f'v_mov_b32 {vt[3]}, 3840', f'v_mad_u32_u24 {vW[0]}, {l3}, {vt[3]}, {vch}', f'v_xor_b32 {vW[1]}, 64, {vW[0]}', f'v_add_u32 {vW[1]}, {8 * 3840 - 1024}, {vW[1]}'] +
  [f'v_add_u32 {vW[j]}, {(j - j % 2) * 8 * 3840 - ((j % 4) - (j % 2)) * 1024}, {vW[j % 2]}' for j in range(2, 8)] +
  [f's_mul_i32 {sT[2]}, {sRB}, 96', f's_sub_u32 {sT[2]}, {sT[2]}, 16', f'v_add_u32 {vt[3]}, {sT[2]}, {l3}',
   f'v_xor_b32 {vt[5]}, {l7}, {vG}', f'v_lshlrev_b32 {vt[5]}, 4, {vt[5]}', f'v_xor_b32 {vt[6]}, 64, {vt[5]}', f'v_mov_b32 {vt[7]}, 2047', f'v_mov_b32 {vt[4]}, 1280'])
for j in range(14):
    E([f'v_add_u32 {vX[j]}, {8 * j}, {vt[3]}', f'v_med3_i32 {vX[j]}, {vX[j]}, 0, {vt[7]}', f'v_mad_u32_u24 {vX[j]}, {vX[j]}, {vt[4]}, {vt[5 + j % 2]}',
       f'v_add_u32 {vX[j]}, {BIAS - (j % 4) * 1024}, {vX[j]}'])
WSZ = 640 * 3840
E([f's_and_b32 {sStr}, {sRB}, 3', f's_lshl_b32 {sStr}, {sStr}, 2', f's_lshr_b32 {sStr}, 0x9731, {sStr}', f's_and_b32 {sStr}, {sStr}, 15', f's_mov_b32 {sRho}, {sC}',
   's_waitcnt lgkmcnt(0)'] + mk_srd(sX, pX, 2048 * 1280, -BIAS) + mk_srd(sWQ, pW, WSZ) + mk_srd(sWK, pW, WSZ, 1280))
def grp(m0, items):
    L = [f's_mov_b32 m0, {m0}']
    for j, (vo, srd, so, nt, tag) in enumerate(items):
        L.append((f'buffer_load_dwordx4 {vo}, {srd}, {so} offen' + (f' offset:{1024 * j}' if j else '') + f'{nt} lds', tag))
    return L
def unit_loads(s):
    sb = (s % 5) * SLOT; tag = ('u', s)
    L = [f's_mul_i32 {sWk[s]}, {sRho}, {64 * 3840}', f's_lshl_b32 {sXk}, {sRho}, 7']
    xs = [grp(sb + XOFF + q * 4096, [(vX[j], sX, sXk, NT['X'], tag) for j in range(4 * q, min(4 * q + 4, 14))]) for q in range(4)]
    ws = [grp(sb + sec * 8192 + q * 4096, [(vW[j], srd, sWk[s], NT['W'], tag) for j in range(4 * q, 4 * q + 4)]) for q in range(2) for sec, srd in ((0, sWQ), (1, sWK))]
    for a, b in zip(xs, ws): L += a + b
    return L + [[f's_add_u32 {sRho}, {sRho}, {sStr}', f's_sub_u32 {sT[2]}, {sRho}, 10', f's_cmp_ge_u32 {sRho}, 10', f's_cselect_b32 {sRho}, {sT[2]}, {sRho}']]
def v_loads(j):
    sl, sub = VLOC[j]; L = []
    for q in range(2): L += grp(sl * SLOT + sub * 8192 + q * 4096, [(vW[i], sWV, sWk[j], NT['W'], ('v', j)) for i in range(4 * q, 4 * q + 4)])
    return L
E(unit_loads(0) + stamp() + get_tag() + mk_srd(sWV, pW, WSZ, 2560) + mk_srd(sWO, pWO, 640 * 1280, -BIAS))
S.free('ka', 'kb')
setup = [calc_cc] + set_ones + [f'v_lshlrev_b32 {vt[0]}, 4, {l7}']
for s in range(5):
    if s in (2, 4): setup += [f'v_add_u32 {vt[0]}, {2 * SLOT}, {vt[0]}']
    setup += [f'ds_write_b128 {vt[0]}, {vOnes} offset:{s * SLOT - WIN[s] + ONES_OFF}']
setup += [f'v_mov_b32 {vt[0]}, {L_CSF}', f'v_mov_b32 {vt[4]}, 0', f'v_mov_b32 {vt[5]}, 0', f'v_mov_b32 {vt[6]}, {SENT}', f'v_mov_b32 {vt[7]}, {SENT}', f'ds_write_b128 {vt[0]}, {vt[4:8]}']
vOsh = V.alloc('osh'); vOrest = V.alloc('orest', 2); vOt = V.alloc('ot', 40); s20480 = S.alloc('c20480'); sUt = S.alloc('ut'); sOk = S.alloc('ok')
setup += [f's_mov_b32 {s20480}, 20480', f'v_lshrrev_b32 {vOsh}, 5, {vLane}', f'v_lshlrev_b32 {vOsh}, 3, {vOsh}', f'v_and_b32 {vt[3]}, 3, {l3}', f'v_mul_u32_u24 {vt[3]}, 1280, {vt[3]}',
          f'v_add_u32 {vOrest[0]}, {vt[3]}, {vch}', f'v_xor_b32 {vOrest[1]}, 64, {vOrest[0]}']
setup += calc_wr(None) + calc_wr_win()
E(spread(unit_loads(1), setup))
def o_addr(j):
    L = []
    for i in range(8):
        d = vOt[8 * j + i]
        L += [[f's_mov_b32 {sUt}, {UT[j] >> (16 * (i >> 2) + 2 * (i & 3)):#x}', f'v_bfe_u32 {d}, {sUt}, {vOsh}, 2'], f'v_mad_u32_u24 {d}, {d}, {s20480}, {vOrest[i % 2]}',
              f'v_add_u32 {d}, {BIAS + 4 * (i & 3) * 1280 - (i % 4) * 1024}, {d}']
    return L
def o_loads(j):
    sl, sub = OLOC[j]; L = [f's_mov_b32 {sOk}, {j * 64 * 1280}']
    for q in range(2): L += grp(sl * SLOT + sub * 8192 + q * 4096, [(vOt[8 * (j % 5) + i], sWO, sOk, NT['O'], ('o', j)) for i in range(4 * q, 4 * q + 4)])
    return L
LF = AG.alloc('LF', 32); lacc = V.alloc('lacc', 16)
for s in range(10):
    A.comment(f'loader unit {s}')
    E([W(('u', s), 'all')] + (stamp() if s in (0, 5, 9) else []) + ['s_barrier'])
    if s == 0: E(fin_tag())
    if s <= 7: nl = unit_loads(s + 2)
    elif s == 8: nl = v_loads(0) + v_loads(1) + v_loads(2) + v_loads(3)
    else: nl = v_loads(4) + v_loads(5)
    cs = wreads(LF[0:16], s % 5, 0, 0, 'q0') + wreads(LF[16:32], s % 5, 0, 1, 'q1')
    for kk in range(2):
        cs += [W(lg=f'q{kk}')] + [f'{MFMA} {lacc[4 * t:4 * t + 4]}, {LF[16 * kk + 4 * t:16 * kk + 4 * t + 4]}, {vOnes}, {0 if (s == 0 and kk == 0) else lacc[4 * t:4 * t + 4]}' for t in range(4)]
    if s == 9:
        cs += [f'v_lshlrev_b32 {vt[0]}, 4, {vG}', f'v_add_u32 {vt[0]}, {L_CS}, {vt[0]}'] + [f'ds_write_b128 {vt[0]}, {lacc[4 * t:4 * t + 4]} offset:{64 * t}' for t in range(4)]
    if 1 <= s <= 5: cs += o_addr(s - 1)
    E(spread(nl, cs))
S.free('srdx', 'srdq', 'srdk')
E(stamp() + [W(('v', 2), 'all')] + stamp() + ['s_barrier'])
E(v_loads(6) + v_loads(7) + v_loads(8) + [W(('v', 5))] + stamp() + ['s_barrier'])
E(v_loads(9) + o_loads(0) + o_loads(1) + [W(('v', 9))] + stamp() + ['s_barrier'])
sKy0 = S.alloc('key0'); sKy1 = S.alloc('key1'); sI0 = S.alloc('i0'); sI1 = S.alloc('i1')
E(o_loads(2) + o_loads(3) + o_loads(4) + [f's_lshl_b32 {sT[0]}, s2, 7', f's_add_u32 {sT[0]}, {sT[0]}, {WS_BC}', f'v_mov_b32 {vt[0]}, {sT[0]}', ('L', 'Lbc')] + spin_guard() +
  [f'buffer_load_dwordx4 {vt[4:8]}, {vt[0]}, {sWS}, 0 offen sc1', W('all'), f'v_readfirstlane_b32 {sKy0}, {vt[4]}', f'v_readfirstlane_b32 {sT[0]}, {vt[5]}',
   f'v_readfirstlane_b32 {sKy1}, {vt[6]}', f'v_readfirstlane_b32 {sT[1]}, {vt[7]}', f's_cmp_lg_u32 {sT[0]}, {sTag}', 's_cbranch_scc1 Lbc', f's_cmp_lg_u32 {sT[1]}, {sTag}', 's_cbranch_scc1 Lbc',
   f's_mul_i32 {sT[0]}, {sRB}, 96'])
for k, i in ((sKy0, sI0), (sKy1, sI1)):
    E([f's_and_b32 {i}, {k}, 0x7ff', f's_sub_u32 {i}, 2047, {i}', f's_sub_u32 {sT[1]}, {i}, {sT[0]}', f's_cmp_lt_u32 {sT[1]}, 96', f's_cselect_b32 {i}, {i}, -1'])
E([f'v_mov_b32 {vt[0]}, {sI0}', f'v_mov_b32 {vt[1]}, {sI1}', f'v_mov_b32 {vt[2]}, {L_INFO}'] + stamp() + ['s_barrier'])
for j in range(5, 10): E(o_loads(j))
E([W('all')] + stamp() + [f'ds_write_b64 {vt[2]}, {vt[0:2]}', f's_and_b32 {sT[1]}, {sI0}, {sI1}', f's_cmp_eq_u32 {sT[1]}, -1', 's_cbranch_scc1 Lw0_done'])
vY = Reg('v', 16, 108)
E([('L', 'Ly_poll')] + spin_guard() + [f's_lshl_b32 {sT[0]}, {sC}, 10', f's_add_u32 {sT[0]}, {sT[0]}, {WS_Y}'])
for j in range(27): E([f'buffer_load_dwordx4 {vY[4 * j:4 * j + 4]}, {vL16}, {sWS}, {sT[0]} offen sc1', f's_add_u32 {sT[0]}, {sT[0]}, 10240'])
E([W('all'), f'v_xor_b32 {vt[0]}, {sTag}, {vY[1]}'])
for j in range(27):
    for q in (1, 3):
        if j or q == 3: E([f'v_xor_b32 {vt[1]}, {sTag}, {vY[4 * j + q]}', f'v_or_b32 {vt[0]}, {vt[0]}, {vt[1]}'])
E([f'v_cmp_ne_u32 vcc, 0, {vt[0]}', 's_cmp_lg_u64 vcc, 0', 's_cbranch_scc1 Ly_poll'])
for j in range(1, 27): E([f'v_add_f32 {vY[0]}, {vY[0]}, {vY[4 * j]}', f'v_add_f32 {vY[2]}, {vY[2]}, {vY[4 * j + 2]}'])
for k, y, off in ((sKy0, vY[0], 0), (sKy1, vY[2], 256)):
    E([f's_lshr_b32 {sT[0]}, {k}, 16', f's_cmp_ge_u32 {sT[0]}, 0x8000', f's_cselect_b32 {sT[1]}, 0x8000, -1', f's_xor_b32 {sT[0]}, {sT[0]}, {sT[1]}', f's_lshl_b32 {sT[0]}, {sT[0]}, 16',
       f'v_mov_b32 {vt[0]}, {sT[0]}', f'v_mul_f32 {vt[0]}, {f32(-L2E)}, {vt[0]}', f'v_exp_f32 {vt[0]}, {vt[0]}', f'v_add_f32 {vt[0]}, 1.0, {vt[0]}', f'v_rcp_f32 {vt[0]}, {vt[0]}'] +
      bf16r(vt[0], vt[0]) + bf16r(y, y) + [f'v_mul_f32 {y}, {y}, {vt[0]}'] + bf16r(y, y) + [f'v_add_u32 {vt[1]}, {L_UPD}, {vL4}', f'ds_write_b32 {vt[1]}, {y} offset:{off}'])
E([f'v_mov_b32 {vt[0]}, 0', f'ds_write_b32 {vt[1]}, {vt[0]} offset:512', f'v_mov_b32 {vt[0]}, {L_UF}', f'ds_write_b32 {vt[0]}, {vt[0]}', ('L', 'Lw0_done'), 's_waitcnt lgkmcnt(0)'])
if STAMPW == 0: write_stamps(0, 'loader')
E('s_endpgm')

load_state(st_common)
A.label('Laux')
sA = sRB
E([f's_mul_i32 {sA}, {sT[0]}, 9', f's_lshl_b32 {sT[2]}, {sT[2]}, 2', f's_add_u32 {sA}, {sA}, {sT[2]}', f's_add_u32 {sA}, {sA}, {sT[1]}',
   f's_cmp_lt_u32 {sA}, 32', 's_cbranch_scc1 Laux2', f's_cmp_lg_u32 {sWv}, 0', 's_cbranch_scc1 Lend',
   's_waitcnt lgkmcnt(0)'] + get_tag() + ['s_waitcnt lgkmcnt(0)'] + fin_tag() + signal() + [f's_cmp_lg_u32 {sA}, 32', 's_cbranch_scc1 Lend'])
sKy0 = S.alloc('key0'); sKy1 = S.alloc('key1')
E(poll_top2(vt, sKy0, sKy1, sT) + [f'v_mov_b32 {vt[4]}, {sKy0}', f'v_mov_b32 {vt[5]}, {sTag}', f'v_mov_b32 {vt[6]}, {sKy1}', f'v_mov_b32 {vt[7]}, {sTag}',
   f'v_lshlrev_b32 {vt[0]}, 7, {vLane}', f's_mov_b32 {sT[0]}, {WS_BC}'])
for i in range(4): E([f'buffer_store_dwordx4 {vt[4:8]}, {vt[0]}, {sWS}, {sT[0]} offen sc1', f's_add_u32 {sT[0]}, {sT[0]}, 8192'])
E([f's_mov_b32 {sT[0]}, {WS_SIG}', ('L', 'Lmaster')] + spin_guard() +
  ['s_sleep 16', f'buffer_load_dwordx4 {vt[0:4]}, {vL16}, {sWS}, {sT[0]} offen sc1', W('all')] + [f'v_xor_b32 {vt[i]}, {sTag}, {vt[i]}' for i in range(4)] +
  [f'v_or3_b32 {vt[0]}, {vt[0]}, {vt[1]}, {vt[2]}', f'v_or_b32 {vt[0]}, {vt[0]}, {vt[3]}', f'v_cmp_ne_u32 vcc, 0, {vt[0]}', 's_cbranch_vccnz Lmaster',
   's_mov_b64 exec, 1', f'buffer_store_dword {vt[5]}, {vt[0]}, {sWS}, 0 offen sc1', 's_endpgm', ('L', 'Laux2')])
S.free('key0', 'key1')
AX_SCR = 19 * 8192
L_WR = AX_SCR; L_KEY = AX_SCR + 2048; L_XS = AX_SCR + 2560; L_H = AX_SCR + 6144; L_U = AX_SCR + 6400
XS_STRIDE = 1344
l3 = vt[1]; l7 = vt[2]
sMW = S.alloc('mw'); sSo = S.alloc('so'); vB0 = V.alloc('b0'); vTw = V.alloc('tw', 3); wf = AG.alloc('wf', 80)
E([f'v_lshrrev_b32 {l3}, 3, {vLane}', f'v_and_b32 {l7}, 7, {vLane}', f's_lshl_b32 {sMW}, {sW}, 11', f's_lshl_b32 {sT[0]}, {sA}, 6', f's_lshl_b32 {sT[1]}, {sW}, 4',
   f's_add_u32 {sT[0]}, {sT[0]}, {sT[1]}', f'v_add_u32 {vt[3]}, {sT[0]}, {l3}', f'v_mul_u32_u24 {vt[3]}, 1280, {vt[3]}', f's_cmp_eq_u32 {sH}, 0', 's_cbranch_scc0 Laux_ld'])
st_aux = save_state()
def adma(sub, voff, srd, soff, nt, tag):
    return [f's_add_u32 m0, {sMW}, {sub * 8192}', f's_mov_b32 {sSo}, {soff}', (f'buffer_load_dwordx4 {voff[0]}, {srd}, {sSo} offen{nt} lds', tag),
            (f'buffer_load_dwordx4 {voff[1]}, {srd}, {sSo} offen offset:1024{nt} lds', tag)]
calc_tw = tr_parts(vB0, vt[5], vt[4], vt[6]) + [f'v_add_u32 {vB0}, {vB0}, {vt[5]}', f'v_lshl_add_u32 {vB0}, {vt[4]}, 3, {vB0}', f's_lshl_b32 {sT[0]}, {sW}, 5',
          f'v_xor_b32 {vTw[0]}, {sT[0]}, {vB0}', f'v_add_u32 {vTw[1]}, {7 * 8192}, {vTw[0]}', f'v_add_u32 {vTw[2]}, {14 * 8192}, {vTw[0]}']
def areads(subs):
    return [f'ds_read_b64_tr_b16 {wf[4 * k + 2 * h:4 * k + 2 * h + 2]}, {vTw[subs[k // 2] // 7]} offset:{(subs[k // 2] % 7) * 8192 + (k % 2) * 4096 + h * 512}' for k in range(20) for h in range(2)]
sX = S.alloc('srdx', 4); sWR_ = S.alloc('srdwr', 4); aXo = V.alloc('axo', 2)
E([f'v_xor_b32 {vt[4]}, {l7}, {vG}', f'v_lshl_add_u32 {aXo[0]}, {vt[4]}, 4, {vt[3]}', f'v_xor_b32 {aXo[1]}, 64, {aXo[0]}', f'v_add_u32 {aXo[1]}, {8 * 1280 - 1024}, {aXo[1]}',
   's_waitcnt lgkmcnt(0)'] + mk_srd(sX, pX, 2048 * 1280) + mk_srd(sWR_, pWR, 1280) +
  [f's_mov_b32 m0, {L_WR}', 's_nop 0', f'buffer_load_dwordx4 {vL16}, {sWR_}, 0 offen lds', 's_mov_b64 exec, 0xffff', f'buffer_load_dwordx4 {vL16}, {sWR_}, 0 offen offset:1024 lds', 's_mov_b64 exec, -1'])
for u in range(10): E(adma(u, aXo, sX, u * 128, NT['R'], ('x', u)))
vOnes = V.alloc('ones', 4); vRa = V.alloc('ra'); vXr = V.alloc('xr', 4)
sK1 = S.alloc('k1', 2); sK2 = S.alloc('k2', 2); vDiag = V.alloc('diag'); vSt = V.alloc('st', 2)
E(get_tag() + [f'v_mov_b32 {vOnes[i]}, 0x3f803f80' for i in range(4)] +
  [f'v_lshlrev_b32 {vRa}, 4, {vG}', f'v_add_u32 {vRa}, {L_WR}, {vRa}', f'v_lshrrev_b32 {vt[6]}, 1, {vTt}', f'v_xor_b32 {vt[6]}, {vt[6]}, {vG}', f'v_lshlrev_b32 {vt[6]}, 4, {vt[6]}',
   f'v_lshl_add_u32 {vt[6]}, {vTt}, 7, {vt[6]}', f'v_add_u32 {vXr[0]}, {sMW}, {vt[6]}', f'v_xor_b32 {vXr[1]}, 64, {vXr[0]}', f'v_add_u32 {vXr[2]}, {5 * 8192}, {vXr[0]}',
   f'v_add_u32 {vXr[3]}, {5 * 8192}, {vXr[1]}', f's_mov_b32 {sK1[0]}, 0xaaaaaaaa', f's_mov_b32 {sK1[1]}, 0xaaaaaaaa', f's_mov_b32 {sK2[0]}, 0xcccccccc', f's_mov_b32 {sK2[1]}, 0xcccccccc',
   f'v_lshrrev_b32 {vDiag}, 2, {vTt}', f'v_lshl_add_u32 {vDiag}, {vDiag}, 4, {vTt}', f'v_lshlrev_b32 {vDiag}, 2, {vDiag}'] + calc_tw + ['s_waitcnt lgkmcnt(0)'] + fin_tag())
rb_ = AG.alloc('rb', 32)
a4 = V.alloc('a4', 16); aSum, aSq, aDot, aSw = a4[0:4], a4[4:8], a4[8:12], a4[12:16]
def r_reads(u):
    b = (u % 2) * 16; L = [W(('x', u))]
    for kk in range(2):
        L += [(f'ds_read_b128 {rb_[b + 8 * kk:b + 8 * kk + 4]}, {vXr[(u // 5) * 2 + kk]} offset:{(u % 5) * 8192}', ('rr', u)),
              (f'ds_read_b128 {rb_[b + 8 * kk + 4:b + 8 * kk + 8]}, {vRa} offset:{(2 * u + kk) * 64}', ('rr', u))]
    return L
E(r_reads(0))
for u in range(10):
    if u < 9: E(r_reads(u + 1))
    E(W(lg=('rr', u)))
    for kk in range(2):
        b = (u % 2) * 16 + 8 * kk; x = rb_[b:b + 4]; r = rb_[b + 4:b + 8]
        E([f'{MFMA} {ac}, {a}, {bb}, {0 if (u == 0 and kk == 0) else ac}' for ac, a, bb in ((aSq, x, x), (aSum, vOnes, x), (aDot, r, x), (aSw, r, vOnes))])
E(stamp() + stats(aSum[0], aSq, vSt, vt, vDiag, sK1, sK2) +
  [f'v_fma_f32 {vt[0]}, {vSt[0]}, {aSw[0]}, {aDot[0]}', f'v_mul_f32 {vt[0]}, {vt[0]}, {vSt[1]}', f'v_cvt_pk_bf16_f32 {vt[0]}, {vt[0]}, {vt[0]}',
   f'v_ashrrev_i32 {vt[1]}, 31, {vt[0]}', f'v_or_b32 {vt[1]}, 0x80000000, {vt[1]}', f'v_xor_b32 {vt[0]}, {vt[0]}, {vt[1]}', f'v_and_b32 {vt[0]}, 0xffff0000, {vt[0]}',
   f'v_max_u32 {vt[0]}, 0x10000, {vt[0]}', f's_lshl_b32 {sT[0]}, {sW}, 4', f'v_add_u32 {vt[1]}, {sT[0]}, {vTt}', f'v_sub_u32 {vt[2]}, 63, {vt[1]}', f'v_or_b32 {vt[0]}, {vt[0]}, {vt[2]}',
   f'v_lshlrev_b32 {vt[1]}, 2, {vt[1]}', f'v_add_u32 {vt[1]}, {L_KEY}, {vt[1]}', f'ds_write_b32 {vt[1]}, {vt[0]}', W(lg='all'), 's_barrier'])
sKy0 = S.alloc('key0'); sKy1 = S.alloc('key1')
E([f's_cmp_lg_u32 {sW}, 0', 's_cbranch_scc1 Lpub_done', f'v_add_u32 {vt[1]}, {L_KEY}, {vL4}', f'ds_read_b32 {vt[2]}, {vt[1]}', W(lg='all'), f'v_mov_b32 {vt[0]}, {vt[2]}'] +
  wave_max_u32(vt[0], sKy0, sT) + [f'v_cmp_eq_u32 vcc, {sKy0}, {vt[2]}', f'v_cndmask_b32 {vt[0]}, {vt[2]}, 0, vcc'] + wave_max_u32(vt[0], sKy1, sT) +
  [f's_and_b32 {sT[0]}, {sKy0}, 0xffff0000', f's_lshr_b32 {sT[1]}, {sKy1}, 16', f's_or_b32 {sT[0]}, {sT[0]}, {sT[1]}', f's_and_b32 {sT[1]}, {sKy0}, 63', f's_and_b32 {sT[2]}, {sKy1}, 63',
   f's_lshl_b32 {sT[2]}, {sT[2]}, 6', f's_or_b32 {sT[1]}, {sT[1]}, {sT[2]}', f's_xor_b32 {sT[1]}, {sT[1]}, 0x8fff', f's_lshl_b32 {sT[2]}, {sA}, 2', f's_lshl_b32 {sT[3]}, {sA}, 1',
   f'v_mov_b32 {vt[0]}, {sT[0]}', f'v_mov_b32 {vt[1]}, {sT[1]}', f'v_mov_b32 {vt[2]}, {sT[2]}', f'v_mov_b32 {vt[3]}, {sT[3]}', 's_mov_b64 exec, 1',
   f'buffer_store_dword {vt[0]}, {vt[2]}, {sDBG}, 0 offen offset:{DBG_VAL} sc1', f'buffer_store_short {vt[1]}, {vt[3]}, {sDBG}, 0 offen offset:{DBG_IDX} sc1', 's_mov_b64 exec, -1'] + signal() + [
   ('L', 'Lpub_done')] + stamp() + [f's_cmp_ge_u32 {sA}, 27', 's_cbranch_scc1 Lend', 's_barrier'])
E(areads([10 + u for u in range(9)] + [9]) + [W(lg='all'), 's_barrier'] + stamp())
xr = V.alloc('xraw', 10); xv = V.alloc('xv', 20)
def half_sum(r, tmp):
    return [f'v_add_f32_dpp {r}, {r}, {r} row_ror:{sh} row_mask:0xf bank_mask:0xf' for sh in (8, 4, 2, 1)] + [f'v_mov_b32 {tmp}, {r}', f'v_permlane16_swap_b32 {r}, {tmp}', f'v_add_f32 {r}, {r}, {tmp}']
E([f's_cmp_lg_u32 {sW}, 0', 's_cbranch_scc1 Lsel_done'] + poll_top2(vt, sKy0, sKy1, sT) +
  [f's_and_b32 {sT[0]}, {sKy0}, 0x7ff', f's_sub_u32 {sT[0]}, 2047, {sT[0]}', f's_mul_i32 {sT[0]}, {sT[0]}, 1280', f's_and_b32 {sT[1]}, {sKy1}, 0x7ff', f's_sub_u32 {sT[1]}, 2047, {sT[1]}',
   f's_mul_i32 {sT[1]}, {sT[1]}, 1280', f'v_mov_b32 {vt[0]}, {sT[0]}', f'v_mov_b32 {vt[1]}, {sT[1]}', f'v_cmp_gt_u32 vcc, 32, {vLane}', f'v_cndmask_b32 {vt[0]}, {vt[1]}, {vt[0]}, vcc',
   f'v_and_b32 {vt[6]}, 31, {vLane}', f'v_lshl_add_u32 {vt[0]}, {vt[6]}, 3, {vt[0]}'] +
  [(f'buffer_load_dwordx2 {xr[2 * i:2 * i + 2]}, {vt[0]}, {sX}, 0 offen offset:{256 * i}', 'xs') for i in range(5)] + [W('xs')])
for i in range(10): E([f'v_lshlrev_b32 {xv[2 * i]}, 16, {xr[i]}', f'v_and_b32 {xv[2 * i + 1]}, 0xffff0000, {xr[i]}'])
E([f'v_add_f32 {vt[2]}, {xv[0]}, {xv[1]}'] + [f'v_add_f32 {vt[2]}, {vt[2]}, {xv[i]}' for i in range(2, 20)] + half_sum(vt[2], vt[3]) +
  [f'v_mul_f32 {vt[2]}, {f32(1 / 640)}, {vt[2]}', f'v_mov_b32 {vt[4]}, 0'])
for i in range(20): E([f'v_sub_f32 {vt[5]}, {xv[i]}, {vt[2]}', f'v_fmac_f32 {vt[4]}, {vt[5]}, {vt[5]}'])
E(half_sum(vt[4], vt[3]) + [f'v_mul_f32 {vt[4]}, {f32(1 / 640)}, {vt[4]}'] + bf16r(vt[4], vt[4]) + [f'v_add_f32 {vt[4]}, {f32(1e-5)}, {vt[4]}'] + bf16r(vt[4], vt[4]) +
  [f'v_sqrt_f32 {vt[4]}, {vt[4]}'] + bf16r(vt[4], vt[4]) + [f'v_rcp_f32 {vt[4]}, {vt[4]}'] + bf16r(vt[2], vt[2]) + [f'v_sub_f32 {xv[i]}, {xv[i]}, {vt[2]}' for i in range(20)] +
  round_pairs(xv, 20) + [f'v_mul_f32 {xv[i]}, {xv[i]}, {vt[4]}' for i in range(20)] + [f'v_cvt_pk_bf16_f32 {xr[i]}, {xv[2 * i]}, {xv[2 * i + 1]}' for i in range(10)] +
  [f'v_lshrrev_b32 {vt[0]}, 5, {vLane}', f'v_mul_u32_u24 {vt[0]}, {XS_STRIDE}, {vt[0]}', f'v_lshl_add_u32 {vt[0]}, {vt[6]}, 3, {vt[0]}', f'v_add_u32 {vt[0]}, {L_XS}, {vt[0]}'] +
  [f'ds_write_b64 {vt[0]}, {xr[2 * i:2 * i + 2]} offset:{256 * i}' for i in range(5)] + [W(lg='all'), ('L', 'Lsel_done')] + stamp() + ['s_barrier', 's_branch Laux_mm'])
aux_stamps = list(sST); aux_S = (dict(S.used), set(S.taken))
load_state(st_aux)
S.used, S.taken = dict(aux_S[0]), set(aux_S[1]); sST[:] = aux_stamps
A.label('Laux_ld')
sWG_ = S.alloc('srdg', 4); sWU_ = S.alloc('srdu', 4); sWD_ = S.alloc('srdd', 4); aGo = V.alloc('ago', 2); aDo = V.alloc('ado', 2)
E([f's_cmp_ge_u32 {sA}, 27', 's_cbranch_scc1 Lend',
   f'v_and_b32 {vt[4]}, 1, {vG}', f'v_lshlrev_b32 {vt[4]}, 1, {vt[4]}', f'v_xor_b32 {vt[4]}, {vt[4]}, {l7}', f'v_lshlrev_b32 {vt[4]}, 4, {vt[4]}',
   f'v_add_u32 {aDo[0]}, {vt[3]}, {vt[4]}', f'v_xor_b32 {aDo[1]}, 64, {aDo[0]}', f'v_add_u32 {aDo[1]}, {8 * 1280 - 1024}, {aDo[1]}',
   f'v_add_u32 {vt[5]}, {sT[1]}, {l3}', f'v_mul_u32_u24 {vt[5]}, 3456, {vt[5]}', f's_lshl_b32 {sT[2]}, {sA}, 7', f'v_add3_u32 {aGo[0]}, {vt[5]}, {vt[4]}, {sT[2]}',
   f'v_xor_b32 {aGo[1]}, 64, {aGo[0]}', f'v_add_u32 {aGo[1]}, {8 * 3456 - 1024}, {aGo[1]}'] + calc_tw + ['s_waitcnt lgkmcnt(0)'] + get_tag() +
  mk_srd(sWG_, pWG, 640 * 3456) + mk_srd(sWU_, pWU, 640 * 3456) + mk_srd(sWD_, pWD, 1728 * 1280))
if opt('gdelay', 0): E(f's_sleep {opt("gdelay", 0)}')
for u in range(9): E(adma(10 + u, aGo, sWG_, u * 64 * 3456, NT['F'], 'g'))
E(['s_waitcnt lgkmcnt(0)'] + fin_tag() + ['s_barrier'])
E(adma(9, aGo, sWG_, 9 * 64 * 3456, NT['F'], 'g'))
for u in range(9): E(adma(u, aGo, sWU_, u * 64 * 3456, NT['F'], 'u'))
E([W('g'), 's_barrier', 's_barrier'])
E(adma(9, aGo, sWU_, 9 * 64 * 3456, NT['F'], 'u'))
for u in range(9): E(adma(10 + u, aDo, sWD_, u * 128, NT['F'], 'd'))
E([W('u'), 's_barrier'] + areads(list(range(10))))
A.label('Laux_mm')
xf = Reg('v', 40, 80); aG = Reg('v', 120, 4); aU = Reg('v', 124, 4); tq = Reg('v', 36, 4)
E([f'v_and_b32 {vt[0]}, 1, {vLane}', f'v_mul_u32_u24 {vt[1]}, {XS_STRIDE}, {vt[0]}', f'v_lshl_add_u32 {vt[1]}, {vG}, 4, {vt[1]}', f'v_add_u32 {vt[1]}, {L_XS}, {vt[1]}'] +
  [f'ds_read_b128 {xf[4 * k:4 * k + 4]}, {vt[1]} offset:{64 * k}' for k in range(20)] + ['s_waitcnt lgkmcnt(0)', 's_barrier'])
E([f's_cmp_eq_u32 {sH}, 0', 's_cbranch_scc1 Lno_d9'] + adma(0, aDo, sWD_, 9 * 128, NT['F'], 'd') + [('L', 'Lno_d9')])
E([f'{MFMA} {aG if k % 2 == 0 else aU}, {wf[4 * k:4 * k + 4]}, {xf[4 * k:4 * k + 4]}, {0 if k < 2 else (aG if k % 2 == 0 else aU)}' for k in range(20)])
E([f's_lshl_b32 {sT[0]}, {sW}, 7', f's_add_u32 {sT[0]}, {sT[0]}, {L_U}', f'v_lshl_add_u32 {vt[2]}, {vG}, 1, {vt[0]}', f'v_lshl_add_u32 {vt[2]}, {vt[2]}, 4, {sT[0]}'] +
  [f'v_add_f32 {aG[i]}, {aG[i]}, {aU[i]}' for i in range(4)] + round_pairs(aG, 4) +
  [f's_cmp_eq_u32 {sH}, 0', 's_cbranch_scc1 Lgw', f'ds_write_b128 {vt[2]}, {aG}', 's_waitcnt lgkmcnt(0)', 's_barrier', 's_waitcnt vmcnt(0)', 's_branch Lhd', ('L', 'Lgw')] +
  silu_into(tq, aG, 4) + ['s_barrier', f'ds_read_b128 {aU}, {vt[2]}', f's_lshl_b32 {sT[0]}, {sW}, 5', f's_add_u32 {sT[0]}, {sT[0]}, {L_H}', f'v_lshlrev_b32 {vt[4]}, 7, {vt[0]}',
   f'v_lshl_add_u32 {vt[5]}, {vG}, 3, {vt[4]}', f'v_add_u32 {vt[5]}, {sT[0]}, {vt[5]}', 's_waitcnt lgkmcnt(0)'] + [f'v_mul_f32 {tq[i]}, {tq[i]}, {aU[i]}' for i in range(4)] +
  cvt2(vt[2:4], tq) + [f'ds_write_b64 {vt[5]}, {vt[2:4]}', 's_waitcnt lgkmcnt(0)', ('L', 'Lhd'), 's_barrier'] + stamp())
hA = xf[0:8]; aY = xf[8:24]; vOut = xf[24:28]; vDa = xf[28:32]
sG = [S.alloc(f'gm{i}', 2) for i in range(3)]
E([f'v_lshlrev_b32 {vt[4]}, 7, {vt[0]}', f'v_lshl_add_u32 {vt[5]}, {vG}, 4, {vt[4]}', f'v_add_u32 {vt[5]}, {L_H}, {vt[5]}'] +
  [f'ds_read_b128 {hA[4 * kk:4 * kk + 4]}, {vt[5]} offset:{64 * kk}' for kk in range(2)] + [f'v_cmp_eq_u32 {sG[i]}, {i + 1}, {vG}' for i in range(3)] +
  [f's_mov_b32 {sC}, {sWv}', ('L', 'Ldown'),
   f's_add_u32 {sT[1]}, {sC}, 10', f's_cmp_eq_u32 {sC}, 9', f's_cselect_b32 {sT[1]}, 0, {sT[1]}', f's_lshl_b32 {sT[1]}, {sT[1]}, 13', f'v_add_u32 {vDa[0]}, {sT[1]}, {vB0}'] +
  [f'v_xor_b32 {vDa[t]}, {32 * t}, {vDa[0]}' for t in (1, 2, 3)] +
  [f'ds_read_b64_tr_b16 {wf[(kk * 4 + t) * 4 + 2 * h:(kk * 4 + t) * 4 + 2 * h + 2]}, {vDa[t]} offset:{kk * 4096 + h * 512}' for kk in range(2) for t in range(4) for h in range(2)] +
  [f's_mul_i32 {sT[1]}, {sA}, 10', f's_add_u32 {sT[1]}, {sT[1]}, {sC}', f's_lshl_b32 {sT[1]}, {sT[1]}, 10', f's_add_u32 {sT[1]}, {sT[1]}, {WS_Y}',
   f'v_mov_b32 {vOut[1]}, {sTag}', f'v_mov_b32 {vOut[3]}, {sTag}', 's_waitcnt lgkmcnt(0)'] +
  [f'{MFMA} {aY[4 * t:4 * t + 4]}, {hA[4 * kk:4 * kk + 4]}, {wf[(kk * 4 + t) * 4:(kk * 4 + t) * 4 + 4]}, {0 if kk == 0 else aY[4 * t:4 * t + 4]}' for kk in range(2) for t in range(4)])
for q, r in ((0, 0), (2, 1)):
    E([f'v_cndmask_b32 {vOut[q]}, {aY[r]}, {aY[4 + r]}, {sG[0]}', f'v_cndmask_b32 {vOut[q]}, {vOut[q]}, {aY[8 + r]}, {sG[1]}', f'v_cndmask_b32 {vOut[q]}, {vOut[q]}, {aY[12 + r]}, {sG[2]}'])
E([f'buffer_store_dwordx4 {vOut}, {vL16}, {sWS}, {sT[1]} offen sc1', f's_add_u32 {sC}, {sC}, 8', f's_cmp_lt_u32 {sC}, 10', 's_cbranch_scc1 Ldown'])
write_stamps(0, 'aux')
A.label('Lend')
A('s_endpgm')
A.raw(f'''.section .rodata,"a"
.p2align 6
.amdhsa_kernel {NAME}_kernel
  .amdhsa_next_free_vgpr 256
  .amdhsa_next_free_sgpr 102
  .amdhsa_accum_offset 128
  .amdhsa_group_segment_fixed_size 0
  .amdhsa_kernarg_size 88
  .amdhsa_user_sgpr_count 2
  .amdhsa_user_sgpr_kernarg_segment_ptr 1
  .amdhsa_system_sgpr_workgroup_id_x 1
  .amdhsa_float_denorm_mode_32 3
.end_amdhsa_kernel''')
txt = A.render()
open(sys.argv[1], 'w').write(txt)
print('lines', txt.count('\n'), 'nops added', A.nops_added, 'vmax', V.maxused, 'amax', AG.maxused, 'smax', S.maxused, file=sys.stderr)
```

```python
import sys, math, struct
from asmlib import Asm, RegAlloc, Reg
NAME = "recurrent_scan__sliding_local_dilated__moe_arch_mod__prompt"
OPTS = set(sys.argv[2:])
STAMPS = 'stamps' in OPTS
def opt(name, default):
    for o in OPTS:
        if o.startswith(name + '='): return type(default)(o[len(name) + 1:])
    return default
DUMP = opt('dump', '')
NT = {k: (' nt' if k in opt('nt', 'F') else '') for k in 'WXOFRS'}
STAMPW = opt('sw', 2)

def f32(x): return '0x%08x' % struct.unpack('<I', struct.pack('<f', x))[0]
L2E = math.log2(math.e)

def tables():
    U = []; SL = []
    for cc in range(5):
        h0 = (16 * cc) // 5
        slot = [((16 * cc + q) // 5) - h0 for q in range(16)]
        s1 = [q for q in range(16) if slot[q] == 1]; s2 = [q for q in range(16) if slot[q] == 2]
        t0 = s1[:4]; e1 = s1[4]; t3 = s2[1:]; e2 = s2[0]
        rest = [q for q in range(16) if q not in t0 and q not in t3]
        t1 = []; t2 = []
        for res in range(4):
            pair = [q for q in rest if q % 4 == res]
            if e1 in pair: a = e1; b = pair[0] if pair[1] == e1 else pair[1]
            elif e2 in pair: b = e2; a = pair[0] if pair[1] == e2 else pair[1]
            else: a, b = pair
            t1.append(a); t2.append(b)
        tl = [sorted(t0, key=lambda q: q % 4), t1, t2, sorted(t3, key=lambda q: q % 4)]
        u = 0; sl = 0
        for t in range(4):
            for g in range(4):
                q = tl[t][g]
                u |= (q // 4) << (2 * (4 * t + g)); sl |= slot[q] << (2 * (4 * t + g))
        U.append(u); SL.append(sl)
    return U, SL
UT, SLT = tables()

SLOT = 39040; VOFF = 16384; XOFF = 24576; ONES_OFF = 38912; NSL = 4; ND = 4; NI = 10 - ND
SCR = 4 * SLOT
L_M = SCR; L_R = SCR + 512; L_CS = SCR + 1024
L_CSV = SCR + 1536
L_CSF = SCR + 1792; L_UF = SCR + 1796; L_INFO = SCR + 1800; L_QF = SCR + 1808; L_UPD = SCR + 2048; SENT = -2
EXB = 2 * SLOT + XOFF; VXB = 3 * SLOT + XOFF
OWIN = [0, SLOT + XOFF]
OLOC = [0, 8192, XOFF, EXB + 20480, SLOT + XOFF + 16384, XOFF + 8192, XOFF + 16384, SLOT + XOFF, SLOT + XOFF + 8192, VOFF]
LDS_BYTES = 163840
WS_SX = 0x100000; WS_O = 0x400000; WS_FL = 0x700000; WS_Y = 0x710000; WS_ST = 0x800000; WS_STAT = 0x7d0000; WS_SIG = 0x7f0000; WS_BC = 0x7e0000; WS_DUMP = 0x1000000
DBG_VAL = 64; DBG_IDX = 192
NSIG = 220 + 27
NEG_INF = '0xff800000'
SCALE_L2E = (20 ** -0.5) * L2E
MFMA = 'v_mfma_f32_16x16x32_bf16'

A = Asm()
V = RegAlloc('v', 1, 128); AG = RegAlloc('a', 0, 128); S = RegAlloc('s', 3, 102)

class Em:
    def __init__(self): self.vm = []; self.lg = []
    def reset(self): self.vm = []; self.lg = []
    def cnt(self, q, tag, mx):
        if tag == 'all': n = 0
        elif tag not in q: return None
        else: n = len(q) - 1 - max(i for i, t in enumerate(q) if t == tag)
        n = min(n, mx)
        del q[:len(q) - n]
        return n
    def __call__(self, it):
        if isinstance(it, list):
            for x in it: self(x)
            return
        if isinstance(it, tuple) and it[0] == 'W':
            parts = []
            if it[1] is not None:
                n = self.cnt(self.vm, it[1], 63)
                if n is not None: parts.append(f'vmcnt({n})')
            if it[2] is not None:
                n = self.cnt(self.lg, it[2], 15)
                if n is not None: parts.append(f'lgkmcnt({n})')
            if parts: A('s_waitcnt ' + ' '.join(parts))
            return
        if isinstance(it, tuple) and it[0] == 'L': A.label(it[1]); return
        text, tag = (it, None) if isinstance(it, str) else it
        if text.startswith('ds_'):
            if 'lgthr' in OPTS and len(self.lg) >= 15: A('s_waitcnt lgkmcnt(14)'); del self.lg[:len(self.lg) - 14]
            self.lg.append(tag)
        elif text.startswith('buffer_'):
            if len(self.vm) >= 63: A('s_waitcnt vmcnt(55)'); del self.vm[:len(self.vm) - 55]
            self.vm.append(tag)
        A(text)
E = Em()
def W(vm=None, lg=None): return ('W', vm, lg)

def merge(a, b, na=1, nb=1):
    out = []; i = j = 0
    while i < len(a) or j < len(b):
        out += a[i:i + na]; i += na
        out += b[j:j + nb]; j += nb
    return out
def spread(a, b):
    out = []; j = 0
    for i, x in enumerate(a):
        out.append(x)
        while j < len(b) and j * len(a) < (i + 1) * len(b): out.append(b[j]); j += 1
    return out + b[j:]

sST = []
FINE = opt('fine', '')
def fstamp(grp):
    return stamp(True) if grp == FINE else []
def stamp(force=False):
    if not STAMPS: return []
    if FINE and not force and len(sST) > 0: return []
    r = S.alloc(f'stamp{len(sST)}', 2); sST.append(r)
    return [f's_memtime {r}' if 'clk' in OPTS else f's_memrealtime {r}']
def bf16r(dst, src): return [f'v_cvt_pk_bf16_f32 {dst}, {src}, {src}', f'v_lshlrev_b32 {dst}, 16, {dst}']
def mk_srd(dst, ptr, nbytes, add=0):
    if add > 0: L = [f's_add_u32 {dst[0]}, {ptr[0]}, {add}', f's_addc_u32 {dst[1]}, {ptr[1]}, 0']
    elif add < 0: L = [f's_sub_u32 {dst[0]}, {ptr[0]}, {-add}', f's_subb_u32 {dst[1]}, {ptr[1]}, 0']
    else: L = [f's_mov_b64 {dst[0:2]}, {ptr}']
    return L + [f's_mov_b32 {dst[2]}, {nbytes - add}', f's_mov_b32 {dst[3]}, 0x20000']
def spin_guard(): return [f's_sub_u32 {sSpin}, {sSpin}, 1', 's_cbranch_scc1 Lend']
def stats(sumreg, sq4, st, tmp, vdiag, mk1, mk2):
    return [f'v_cndmask_b32 {tmp[0]}, {sq4[0]}, {sq4[1]}, {mk1}', f'v_cndmask_b32 {tmp[1]}, {sq4[2]}, {sq4[3]}, {mk1}',
            f'v_cndmask_b32 {tmp[0]}, {tmp[0]}, {tmp[1]}, {mk2}', (f'ds_bpermute_b32 {tmp[0]}, {vdiag}, {tmp[0]}', 'bp'),
            f'v_mul_f32 {tmp[1]}, {f32(-1 / 640)}, {sumreg}'] + bf16r(st[0], tmp[1]) + [f'v_mul_f32 {tmp[1]}, {tmp[1]}, {tmp[1]}',
            f'v_mov_b32 {tmp[2]}, {f32(1 / 640)}', W(lg='bp'),
            f'v_fma_f32 {tmp[0]}, {tmp[0]}, {tmp[2]}, -{tmp[1]}', f'v_max_f32 {tmp[0]}, 0, {tmp[0]}'] + bf16r(tmp[0], tmp[0]) + \
           [f'v_add_f32 {tmp[0]}, {f32(1e-5)}, {tmp[0]}'] + bf16r(tmp[0], tmp[0]) + [f'v_sqrt_f32 {tmp[0]}, {tmp[0]}'] + bf16r(tmp[0], tmp[0]) + \
           [f'v_rcp_f32 {st[1]}, {tmp[0]}']
def wave_max_u32(r, sdst, st):
    return [f'v_max_u32_dpp {r}, {r}, {r} row_ror:{sh} row_mask:0xf bank_mask:0xf' for sh in (8, 4, 2, 1)] + \
           [f'v_readlane_b32 {sdst}, {r}, 0', f'v_readlane_b32 {st[0]}, {r}, 16', f'v_readlane_b32 {st[1]}, {r}, 32', f'v_readlane_b32 {st[2]}, {r}, 48',
            f's_max_u32 {sdst}, {sdst}, {st[0]}', f's_max_u32 {st[1]}, {st[1]}, {st[2]}', f's_max_u32 {sdst}, {sdst}, {st[1]}']
def poll_top2(t, sK0, sK1, st):
    L = A.newlabel('Lpt'); Ld = A.newlabel('Lptd')
    return [('L', L)] + spin_guard() + [
        f'buffer_load_dword {t[0]}, {vL4}, {sDBG}, 0 offen offset:{DBG_VAL} sc1',
        f'v_lshrrev_b32 {t[1]}, 1, {vL4}', f'v_and_b32 {t[1]}, 0x3c, {t[1]}', f'v_add_u32 {t[1]}, 128, {t[1]}', W('all'),
        f'ds_bpermute_b32 {t[1]}, {t[1]}, {t[0]}', f'v_and_b32 {t[2]}, 4, {vL4}', f'v_lshlrev_b32 {t[2]}, 2, {t[2]}', W(lg='all'),
        f'v_bfe_u32 {t[1]}, {t[1]}, {t[2]}, 16', f'v_cmp_ne_u32 vcc, 0, {t[0]}', f'v_cmp_ne_u32 {st[0:2]}, 0, {t[1]}',
        f's_and_b32 {st[0]}, {st[0]}, vcc_lo', f's_cmp_eq_u32 {st[0]}, -1', f's_cbranch_scc1 {Ld}', 's_sleep 2', f's_branch {L}', ('L', Ld),
        f'v_lshlrev_b32 {t[2]}, 4, {vL4}', f'v_and_b32 {t[3]}, 63, {t[1]}', f'v_add_u32 {t[3]}, {t[3]}, {t[2]}', f'v_sub_u32 {t[3]}, 2047, {t[3]}',
        f'v_bfe_u32 {t[1]}, {t[1]}, 6, 6', f'v_add_u32 {t[1]}, {t[1]}, {t[2]}', f'v_sub_u32 {t[1]}, 2047, {t[1]}',
        f'v_and_b32 {t[2]}, 0xffff0000, {t[0]}', f'v_or_b32 {t[3]}, {t[3]}, {t[2]}', f'v_lshl_or_b32 {t[1]}, {t[0]}, 16, {t[1]}',
        f'v_cmp_gt_u32 vcc, 128, {vL4}', f'v_cndmask_b32 {t[3]}, 0, {t[3]}, vcc', f'v_cndmask_b32 {t[1]}, 0, {t[1]}, vcc', f'v_mov_b32 {t[0]}, {t[3]}'] + \
        wave_max_u32(t[0], sK0, st) + [f'v_cmp_eq_u32 vcc, {sK0}, {t[3]}', f'v_cndmask_b32 {t[0]}, {t[3]}, {t[1]}, vcc'] + wave_max_u32(t[0], sK1, st)
def round_pairs(x, n):
    L = [f'v_cvt_pk_bf16_f32 {x[i + 1]}, {x[i]}, {x[i + 1]}' for i in range(0, n, 2)]
    for i in range(0, n, 2): L += [f'v_lshlrev_b32 {x[i]}, 16, {x[i + 1]}', f'v_and_b32 {x[i + 1]}, 0xffff0000, {x[i + 1]}']
    return L
def silu_into(g, z, n):
    return [f'v_mul_f32 {g[i]}, {f32(-L2E)}, {z[i]}' for i in range(n)] + [f'v_exp_f32 {g[i]}, {g[i]}' for i in range(n)] + \
           [f'v_add_f32 {g[i]}, 1.0, {g[i]}' for i in range(n)] + [f'v_rcp_f32 {g[i]}, {g[i]}' for i in range(n)] + \
           [f'v_mul_f32 {g[i]}, {g[i]}, {z[i]}' for i in range(n)] + round_pairs(g, n)
def cvt2(dst, acc): return [f'v_cvt_pk_bf16_f32 {dst[0]}, {acc[0]}, {acc[1]}', f'v_cvt_pk_bf16_f32 {dst[1]}, {acc[2]}, {acc[3]}']
def tr_parts(vrow, vphi32, vc, tmp):
    return [f'v_bfe_u32 {tmp}, {vLane}, 2, 2', f'v_and_b32 {vc}, 3, {vLane}', f'v_lshl_add_u32 {vrow}, {vG}, 3, {tmp}', f'v_lshlrev_b32 {vrow}, 7, {vrow}',
            f'v_lshlrev_b32 {vphi32}, 2, {vLane}', f'v_and_b32 {vphi32}, 0x60, {vphi32}']
def save_state(): return (dict(V.used), set(V.taken), dict(S.used), set(S.taken), dict(AG.used), set(AG.taken), list(sST))
def load_state(st):
    V.used, V.taken, S.used, S.taken, AG.used, AG.taken = [x.copy() for x in st[:6]]; sST[:] = st[6]; E.reset()
def write_stamps(who, kind):
    if not STAMPS: return
    E([W('all')] + stamp(True) + ['s_waitcnt lgkmcnt(0)', f's_cmp_lg_u32 {sWv}, {who}', 's_cbranch_scc1 Lend',
       f's_mul_i32 {sT[0]}, s2, 128', f's_add_u32 {sT[0]}, {sT[0]}, {WS_ST}', 's_mov_b64 exec, 1', f'v_mov_b32 {vt[2]}, 0'])
    print(kind, 'stamps', len(sST), file=sys.stderr)
    lk = opt('leak', -1)
    if lk >= 0 and kind == opt('leakk', 'main'):
        Lp = A.newlabel('Lpad')
        E([f's_sub_u32 {sT[1]}, {sST[lk][0]}, {sST[0][0]}', f's_mul_i32 {sT[1]}, {sT[1]}, 5', f's_add_u32 {sT[1]}, {sT[1]}, 3000', ('L', Lp), f's_memrealtime {sT[2:4]}', 's_waitcnt lgkmcnt(0)',
           f's_sub_u32 {sT[2]}, {sT[2]}, {sST[0][0]}', f's_cmp_lt_u32 {sT[2]}, {sT[1]}', f's_cbranch_scc1 {Lp}'])
    for i in range(16):
        j = min(i, len(sST) - 1)
        E([f'v_mov_b32 {vt[0]}, {sST[j][0]}', f'v_mov_b32 {vt[1]}, {sST[j][1]}', f'buffer_store_dwordx2 {vt[0:2]}, {vt[2]}, {sWS}, {sT[0]} offen offset:{8 * i}', 's_nop 1'])
def signal():
    return ['s_mov_b64 exec, 1', f's_lshl_b32 {sT[0]}, s2, 2', f's_add_u32 {sT[0]}, {sT[0]}, {WS_SIG}', f'v_mov_b32 {vt[0]}, {sTag}', f'v_mov_b32 {vt[1]}, {sT[0]}',
            f'buffer_store_dword {vt[0]}, {vt[1]}, {sWS}, 0 offen sc1', 's_mov_b64 exec, -1']

sKA = S.alloc('ka', 16); sKB = S.alloc('kb', 6, 4)
sWS = S.alloc('srdws', 4); sDBG = S.alloc('srddbg', 4)
sWv = S.alloc('wv'); sW = S.alloc('w'); sH = S.alloc('h'); sRB = S.alloc('rb'); sC = S.alloc('c')
sT = S.alloc('t', 4); sTag = S.alloc('tag'); sSpin = S.alloc('spin')
A.raw(f'''; @launch grid=(256,1,1) block=(512,1,1) lds={LDS_BYTES}
.amdgcn_target "amdgcn-amd-amdhsa--gfx950"
.text
.globl {NAME}_kernel
.p2align 8
.type {NAME}_kernel,@function
{NAME}_kernel:''')
vLane = V.alloc('lane'); vG = V.alloc('g'); vTt = V.alloc('t16'); vt = V.alloc('vt', 8); vL4 = V.alloc('lane4'); vL16 = V.alloc('lane16')
pX, pW, pWO, pWR, pWG, pWU, pWD = sKA[0:2], sKA[2:4], sKA[4:6], sKA[8:10], sKA[10:12], sKA[12:14], sKA[14:16]
pOUT, pDBG, pWS = sKB[0:2], sKB[2:4], sKB[4:6]
E([f's_load_dwordx16 {sKA}, s[0:1], 0', f's_load_dwordx4 {sKB[0:4]}, s[0:1], 64', f's_load_dwordx2 {sKB[4:6]}, s[0:1], 80'] + stamp() +
  [f'v_lshrrev_b32 {vt[0]}, 6, v0', f'v_and_b32 {vLane}, 63, v0', 's_cmp_ge_u32 s2, 256', 's_cbranch_scc1 Lend',
   f'v_readfirstlane_b32 {sWv}, {vt[0]}', f'v_lshrrev_b32 {vG}, 4, {vLane}', f'v_and_b32 {vTt}, 15, {vLane}',
   f'v_lshlrev_b32 {vL4}, 2, {vLane}', f'v_lshlrev_b32 {vL16}, 4, {vLane}', f's_mov_b32 {sSpin}, 200000',
   f's_and_b32 {sT[0]}, s2, 7', f's_lshr_b32 {sT[1]}, s2, 3', f's_and_b32 {sT[2]}, {sT[0]}, 1', f's_lshr_b32 {sT[0]}, {sT[0]}, 1', f's_add_u32 {sT[3]}, {sT[2]}, 4',
   f's_and_b32 {sW}, {sWv}, 3', f's_lshr_b32 {sH}, {sWv}, 2',
   f's_cmp_lt_u32 {sT[1]}, {sT[3]}', 's_cbranch_scc1 Laux'])
st_common = save_state()
def get_tag():
    return mk_srd(sWS, pWS, 0x10000000, opt('wsoff', 0) << 20) + mk_srd(sDBG, pDBG, 256) + [f's_load_dword {sTag}, {sWS[0:2]}, 0']
def fin_tag(): return [f's_add_u32 {sTag}, {sTag}, 0x9e3779b8', f's_or_b32 {sTag}, {sTag}, 1']
if opt('map', 0) == 0:
    E([f's_mul_i32 {sT[0]}, {sT[0]}, 55', f's_mul_i32 {sT[2]}, {sT[2]}, 28', f's_add_u32 {sT[0]}, {sT[0]}, {sT[2]}', f's_add_u32 {sT[0]}, {sT[0]}, {sT[1]}',
       f's_sub_u32 {sT[0]}, {sT[0]}, {sT[3]}', f's_mul_i32 {sRB}, {sT[0]}, 6554', f's_lshr_b32 {sRB}, {sRB}, 16', f's_mul_i32 {sT[1]}, {sRB}, 10', f's_sub_u32 {sC}, {sT[0]}, {sT[1]}'])
else:
    E([f's_lshr_b32 {sC}, {sT[0]}, 1', f's_and_b32 {sT[0]}, {sT[0]}, 1',
       f's_mul_i32 {sT[0]}, {sT[0]}, 55', f's_mul_i32 {sT[2]}, {sT[2]}, 28', f's_add_u32 {sT[0]}, {sT[0]}, {sT[2]}', f's_add_u32 {sT[0]}, {sT[0]}, {sT[1]}',
       f's_sub_u32 {sT[0]}, {sT[0]}, {sT[3]}', f's_mul_i32 {sRB}, {sT[0]}, 13108', f's_lshr_b32 {sRB}, {sRB}, 16', f's_mul_i32 {sT[1]}, {sRB}, 5', f's_sub_u32 {sT[0]}, {sT[0]}, {sT[1]}',
       f's_mul_i32 {sC}, {sC}, 5', f's_add_u32 {sC}, {sC}, {sT[0]}'])
sCC = S.alloc('cc'); sU = S.alloc('U')
def sel_cc(dst, tab):
    L = [f's_mov_b32 {dst}, {tab[0]:#x}']
    for cc in range(1, 5): L += [f's_cmp_eq_u32 {sCC}, {cc}', f's_cselect_b32 {dst}, {tab[cc]:#x}, {dst}']
    return L
calc_cc = [f's_sub_u32 {sT[0]}, {sC}, 5', f's_cmp_ge_u32 {sC}, 5', f's_cselect_b32 {sCC}, {sT[0]}, {sC}'] + sel_cc(sU, UT)
vOnes = V.alloc('ones', 4); vrow = V.alloc('trrow'); vPhi = V.alloc('phi32'); vWr = V.alloc('wr', 8)
def calc_wr(secoff):
    vc = vt[4]
    L = tr_parts(vrow, vPhi, vc, vt[3]) + [f'v_lshlrev_b32 {vt[6]}, 1, {vc}', f'v_add_u32 {vt[5]}, {secoff}, {vrow}']
    for t in range(4):
        L += [f'v_add_u32 {vt[7]}, {8 * t}, {vt[6]}', f'v_bfe_u32 {vt[7]}, {sU}, {vt[7]}, 2', f'v_lshl_add_u32 {vt[7]}, {vt[7]}, 2, {vc}', f'v_lshlrev_b32 {vt[7]}, 3, {vt[7]}',
              f'v_xad_u32 {vWr[t]}, {vt[7]}, {vPhi}, {vt[5]}']
    return L + [f'v_add_u32 {vWr[4 + t]}, {2 * SLOT}, {vWr[t]}' for t in range(4)]
def trs(dst, areg, off, tag): return [(f'ds_read_b64_tr_b16 {dst[2 * h:2 * h + 2]}, {areg} offset:{off + h * 512}', tag) for h in range(2)]
set_ones = [f'v_mov_b32 {vOnes[i]}, 0x3f803f80' for i in range(4)]
E([f's_cmp_eq_u32 {sWv}, 0', 's_cbranch_scc1 Lloader'])
st_main = save_state()

sTau = S.alloc('tau'); sOUT = S.alloc('srdout', 4)
acc = V.alloc('acc', 32); B1 = V.alloc('B1', 16); B2 = V.alloc('B2', 16); B3 = V.alloc('B3', 16)
vXb = V.alloc('xb', 8); vPM = V.alloc('pm', 4); vSt = V.alloc('st', 4); vVr = B2[8:12]
vXe = V.alloc('xea'); vEx = V.alloc('exa'); vScB = V.alloc('scb'); vSc = [vSt[3], vScB]
vXr = B2[0:8]; accV = B1
sVx = S.alloc('vx')
E([f's_lshl_b32 {sTau}, {sW}, 1', f's_add_u32 {sTau}, {sTau}, {sH}'] + calc_cc + [f's_lshl_b32 {sT[1]}, {sH}, 13', f's_cmp_eq_u32 {sTau}, 1', f's_cselect_b32 {sT[1]}, 0, {sT[1]}'] + calc_wr(sT[1]))
E([f'v_lshrrev_b32 {vt[6]}, 1, {vTt}', f'v_xor_b32 {vt[5]}, {vt[6]}, {vG}', f'v_lshlrev_b32 {vt[5]}, 4, {vt[5]}', f'v_lshl_add_u32 {vt[5]}, {vTt}, 7, {vt[5]}',
   f's_lshl_b32 {sT[0]}, {sTau}, 11', f's_xor_b32 {sT[2]}, {sT[0]}, 2048', f's_add_u32 {sT[0]}, {sT[0]}, {XOFF - 2048}', f's_add_u32 {sT[2]}, {sT[2]}, {XOFF - 2048}',
   f'v_add_u32 {vXr[0]}, {sT[0]}, {vt[5]}', f'v_add_u32 {vXr[2]}, {sT[2]}, {vt[5]}',
   f's_mul_i32 {sT[3]}, {sW}, 6144', f's_add_u32 {sT[3]}, {sT[3]}, {EXB - 4096}', f'v_add_u32 {vEx}, {sT[3]}, {vL16}',
   f's_lshl_b32 {sVx}, {sTau}, 11', f's_add_u32 {sVx}, {sVx}, {VXB - 2048}',
   's_waitcnt lgkmcnt(0)'] + get_tag() + [f's_cmp_eq_u32 {sTau}, 1', 's_cbranch_scc1 Lhalo'])
st_halo = save_state()
E([f'v_xor_b32 {vXr[1]}, 64, {vXr[0]}', f'v_xor_b32 {vXr[3]}, 64, {vXr[2]}'] + [f'v_add_u32 {vXr[4 + j]}, {2 * SLOT}, {vXr[j]}' for j in range(4)] +
  [f's_cmp_eq_u32 {sH}, 0', 's_cselect_b64 vcc, 0, -1', f's_sub_u32 {sT[1]}, {VOFF}, {sT[1]}', f'v_cndmask_b32 {vVr[0]}, {vWr[0]}, {vWr[2]}, vcc', f'v_cndmask_b32 {vVr[1]}, {vWr[1]}, {vWr[3]}, vcc',
   f'v_add_u32 {vVr[0]}, {sT[1]}, {vVr[0]}', f'v_add_u32 {vVr[1]}, {sT[1]}, {vVr[1]}', f'v_add_u32 {vVr[2]}, {2 * SLOT}, {vVr[0]}', f'v_add_u32 {vVr[3]}, {2 * SLOT}, {vVr[1]}',
   f'v_lshrrev_b32 {vt[4]}, 1, {vG}', f'v_xor_b32 {vt[4]}, {vt[4]}, {vt[6]}', f'v_lshlrev_b32 {vt[4]}, 4, {vt[4]}', f'v_lshl_add_u32 {vt[4]}, {vTt}, 7, {vt[4]}',
   f'v_and_b32 {vt[3]}, 1, {vG}', f'v_lshl_add_u32 {vXe}, {vt[3]}, 3, {vt[4]}', f'v_add_u32 {vt[0]}, {sT[0]}, {vXe}',
   f'v_xor_b32 {vt[1]}, 32, {vt[0]}', f'v_xor_b32 {vt[2]}, 64, {vt[0]}', f'v_xor_b32 {vt[3]}, 0x60, {vt[0]}'] + mk_srd(sOUT, pOUT, 2048 * 1280) + set_ones)
S.free('ka', 'kb')
sSL = S.alloc('SL'); sM = {}
E(sel_cc(sSL, SLT))
for t in (1, 2):
    E([f'v_lshlrev_b32 {vt[6]}, 1, {vG}', f'v_add_u32 {vt[6]}, {8 * t}, {vt[6]}', f'v_bfe_u32 {vt[6]}, {sSL}, {vt[6]}, 2'])
    for sl in (0, 3, t):
        sM[(sl, t)] = S.alloc(f'm{sl}{t}', 2); E(f'v_cmp_eq_u32 {sM[(sl, t)]}, {sl}, {vt[6]}')
S.free('SL', 'U')
def lmask(f): return sum(1 << l for l in range(64) if f(l >> 4, l & 15))
MCA = lmask(lambda g, t: t - 4 * g - (t & 1) >= 0); MCB = lmask(lambda g, t: t - 4 * g - 2 - (t & 1) >= 0)
sK1 = S.alloc('k1', 2); sCA = S.alloc('ca', 2); sCB = S.alloc('cb', 2); sFirst = S.alloc('first')
sOb = S.alloc('ob', 5, 1); sOst = S.alloc('ost'); sFl = S.alloc('fl'); sSx = S.alloc('ssx', 4, 1); sCs = S.alloc('cscale')
vRka = B3[0:2]; vSa = B3[2]; vCa = B3[3]; vQf = B3[4]
E([f's_mov_b32 {sK1[0]}, 0xaaaaaaaa', f's_mov_b32 {sK1[1]}, 0xaaaaaaaa',
   f's_mov_b32 {sCA[0]}, {MCA & 0xffffffff:#x}', f's_mov_b32 {sCA[1]}, {MCA >> 32:#x}', f's_mov_b32 {sCB[0]}, {MCB & 0xffffffff:#x}', f's_mov_b32 {sCB[1]}, {MCB >> 32:#x}',
   f'v_mov_b32 {vt[4]}, 0xffff', f'v_not_b32 {vt[5]}, {vt[4]}', f'v_cndmask_b32 {vt[4]}, {vt[4]}, {vt[5]}, {sK1}',
   f'v_cndmask_b32 {vPM[2]}, 0, {vt[4]}, {sCA}', f'v_cndmask_b32 {vPM[3]}, 0, {vt[4]}, {sCB}', f'v_xor_b32 {vPM[0]}, {vPM[2]}, {vt[4]}', f'v_xor_b32 {vPM[1]}, {vPM[3]}, {vt[4]}',
   f's_cmp_eq_u32 {sRB}, 0', f's_cselect_b32 {sT[0]}, {sTau}, 0', f's_cmp_eq_u32 {sT[0]}, 2', f's_cselect_b32 {sFirst}, {NEG_INF}, 0',
   f's_mul_i32 {sT[0]}, {sRB}, 6', f's_add_u32 {sT[0]}, {sT[0]}, {sTau}', f's_sub_u32 {sT[0]}, {sT[0]}, 2', f's_lshl_b32 {sFl}, {sT[0]}, 7', f's_add_u32 {sFl}, {sFl}, {WS_FL}',
   f's_mul_i32 {sOb[0]}, {sT[0]}, 20480', f's_add_u32 {sOb[0]}, {sOb[0]}, {WS_O}', f's_lshl_b32 {sT[0]}, {sC}, 11', f's_add_u32 {sOst}, {sT[0]}, {sOb[0]}'] +
  [f's_add_u32 {sOb[i]}, {sOb[0]}, {4096 * i}' for i in range(1, 5)] +
  [f's_mul_i32 {sT[0]}, {sRB}, 10', f's_add_u32 {sT[0]}, {sT[0]}, {sC}', f's_mul_i32 {sSx[0]}, {sT[0]}, 12288', f's_lshl_b32 {sT[0]}, {sTau}, 10', f's_add_u32 {sSx[0]}, {sSx[0]}, {sT[0]}',
   f's_add_u32 {sSx[0]}, {sSx[0]}, {WS_SX - 2048}', f's_add_u32 {sSx[1]}, {sSx[0]}, 6144', f's_sub_u32 {sSx[2]}, {sSx[0]}, 6144', f's_add_u32 {sSx[3]}, {sSx[0]}, 12288',
   f's_mov_b32 {sCs}, {f32(SCALE_L2E)}',
   f's_lshl_b32 {sT[0]}, {sTau}, 6', f's_add_u32 {sT[0]}, {sT[0]}, {L_M}', f'v_lshl_add_u32 {vSa}, {vTt}, 2, {sT[0]}',
   f'v_and_b32 {vt[4]}, 1, {vLane}', f'v_lshl_add_u32 {vt[4]}, {vG}, 2, {vt[4]}', f'v_lshl_add_u32 {vt[4]}, {vt[4]}, 2, {sT[0]}', f'v_subrev_u32 {vt[5]}, 64, {vt[4]}',
   f'v_cndmask_b32 {vRka[0]}, {vt[5]}, {vt[4]}, {sCA}', f'v_cndmask_b32 {vRka[1]}, {vt[5]}, {vt[4]}, {sCB}',
   f'v_lshlrev_b32 {vCa}, 4, {vG}', f's_lshl_b32 {sT[0]}, {sH}, 8', f's_add_u32 {sT[0]}, {sT[0]}, {L_CS}', f'v_add_u32 {vCa}, {sT[0]}, {vCa}', f'v_mov_b32 {vQf}, {L_QF}'] +
  [f'v_mov_b32 {B3[8 + i]}, -1' for i in range(4)])
XK = AG.alloc('XK', 16 * ND); XT = AG.alloc('XT', 16); F = [AG.alloc('F0', 24), AG.alloc('F1', 24)]
AALL = Reg('a', 0, 128)
def XF(s, kk, pos):
    if s < NI: return XT[8 * kk + 4 * pos:8 * kk + 4 * pos + 4]
    b = (s - NI) * 16 + 8 * kk + 4 * pos; return XK[b:b + 4]
def sw(s): return (s % NSL) // 2
def so(s): return (s % 2) * SLOT
def v_reads(s, kk, fb, tag): return [x for i in range(2) for x in trs(fb[4 * i:4 * i + 4], vVr[2 * sw(s) + i], so(s) + kk * 4096, tag)]
def p1_reads(s, kk):
    tag = ('r', s, kk)
    L = [(f'ds_read_b128 {XF(s, kk, pos)}, {vXr[4 * sw(s) + 2 * pos + kk]} offset:{so(s)}', tag) for pos in range(2)]
    for t in range(4): L += trs(F[kk][4 * t:4 * t + 4], vWr[4 * sw(s) + t], so(s) + kk * 4096, tag)
    if s < NI: L += v_reads(s, kk, F[kk][16:24], tag)
    return L
def v_mfmas(s, kk, fb):
    z = (s == 0 and kk == 0)
    return [f'{MFMA} {accV[8 * pos + 4 * i:8 * pos + 4 * i + 4]}, {XF(s, kk, pos)}, {fb[4 * i:4 * i + 4]}, {0 if z else accV[8 * pos + 4 * i:8 * pos + 4 * i + 4]}' for i in range(2) for pos in range(2)]
def p1_mfmas(s, kk, order=(0, 1)):
    z = (s == 0 and kk == 0); L = []
    for t in range(4):
        for pos in range(2):
            a = acc[pos * 16 + 4 * t:pos * 16 + 4 * t + 4]
            L.append(f'{MFMA} {a}, {F[kk][4 * t:4 * t + 4]}, {XF(s, kk, pos)}, {0 if z else a}')
    if s < NI: L += v_mfmas(s, kk, F[kk][16:24])
    return L
E(stamp())
CLR = opt('clr', 8)
for s in range(10):
    A.comment(f'pass1 unit {s}')
    E(['s_waitcnt lgkmcnt(0)', 's_barrier']); E.lg = []
    if s == 0:
        E(stamp() + p1_reads(0, 0) + [f'ds_read_b64 {vXb[2 * n:2 * n + 2]}, {vt[n]}' for n in range(4)] + fin_tag())
    else:
        E(merge(p1_mfmas(s - 1, 1), p1_reads(s, 0), 1, 2))
    if s == CLR: E([(f'buffer_store_dwordx4 {B3[8:12]}, {vL16}, {sWS}, {sOst} offen offset:{1024 * i} sc1', 'clr') for i in range(2)])
    E(W(lg=('r', s, 0)))
    rd = p1_reads(s, 1)
    if s == 9:
        rd += [f'ds_read_b32 {vSt[0]}, {vSa}', f'ds_read_b32 {vSt[1]}, {vSa} offset:512', f'v_xor_b32 {vSa}, 64, {vSa}', f'ds_read_b32 {vSt[2]}, {vSa}',
               f'ds_read_b32 {vSc[0]}, {vRka[0]} offset:512', f'ds_read_b32 {vSc[1]}, {vRka[1]} offset:520'] + [f'v_mov_b32 {vWr[4 + i]}, {vVr[i]}' for i in range(4)]
    E(merge(p1_mfmas(s, 0), rd, 1, 2))
vVr = vWr[4:8]
vCS = B2; vQ8 = acc[0:8]; vK16 = acc[16:32]
lastm = p1_mfmas(9, 1)
cs_reads = [f'ds_read_b32 {vt[3]}, {vQf}'] + [f'ds_read_b128 {vCS[4 * t:4 * t + 4]}, {vCa} offset:{64 * t}' for t in range(4)]
E([W(lg=('r', 9, 1))] + lastm[1::2] + lastm[0::2][:2] + cs_reads + lastm[0::2][2:] + stamp())
E([W(lg='all'), ('L', 'Lqf'), f'v_readfirstlane_b32 {sT[2]}, {vt[3]}', f's_cmp_eq_u32 {sT[2]}, 0', 's_cbranch_scc1 Lqf_re'] + stamp())
def fix_qk(dst, a16, negm):
    L = []
    for t in range(4):
        L += [f'v_fmac_f32 {a16[4 * t + i]}, {vCS[4 * t + i]}, {negm}' for i in range(4)] + cvt2(dst[2 * t:2 * t + 2], a16[4 * t:4 * t + 4])
    return L
E([f's_cmp_eq_u32 {sH}, 0'] + fix_qk(vK16[0:8], acc[16:32], vSt[2]) + ['s_cbranch_scc0 Lh1'])
for h in range(2):
    if h: A.label('Lh1')
    E.lg = []
    E([f'ds_write_b128 {vEx}, {vK16[4 * i:4 * i + 4]} offset:{h * 2048 + i * 1024}' for i in range(2)])
    if h == 1: E(fix_qk(vK16[8:16], acc[0:16], vSt[0]) + [f'ds_write_b128 {vEx}, {vK16[8 + 4 * i:12 + 4 * i]} offset:{4096 + i * 1024}' for i in range(2)])
    if h == 0: E(fix_qk(vQ8, acc[0:16], vSt[0]) + [f'v_subrev_u32 {vt[0]}, 6144, {vEx}'])
    E([f'v_mov_b32 {vt[4 + i]}, {sFirst}' for i in range(4)] + [W(lg='all'), 's_barrier'])
    if h == 0:
        E([f'ds_read_b128 {vK16[8 + 4 * i:12 + 4 * i]}, {vEx} offset:{2048 + i * 1024}' for i in range(2)] +
          [f'ds_read_b128 {vK16[4 * i:4 * i + 4]}, {vt[0]} offset:{4096 + i * 1024}' for i in range(2)] + ['s_branch Lh_join'])
    else:
        E([f'ds_read_b128 {vQ8[4 * i:4 * i + 4]}, {vEx} offset:{i * 1024}' for i in range(2)])
A.label('Lh_join')
E.lg = ['ex']
VF = Reg('a', XT.base, 64)
def tail_reads(k): return v_reads(NI + k // 2, k % 2, VF[8 * k:8 * k + 8], ('v', k))
E(tail_reads(0) + tail_reads(1) + [W(lg='ex')] + stamp())
vQ = B3
def QO(sl): return vQ[sl * 4:sl * 4 + 4]
KO = {1: 0, 0: 2, 3: 2, 2: 4}
def SA(sl, pc): return {0: vCS[0:8], 3: vCS[8:16], 1: acc[8:16], 2: vCS[0:8]}[sl][pc * 4:pc * 4 + 4]
def s_mfma(sl): return [f'{MFMA} {SA(sl, pc)}, {vK16[8 * pc + KO[sl]:8 * pc + KO[sl] + 4]}, {QO(sl)}, {0 if pc else vt[4:8]}' for pc in range(2)]
def mrg(sl):
    p = SA(sl, 0); c = SA(sl, 1); d = QO(sl)
    return [f'v_cndmask_b32 {p[0]}, {p[0]}, {p[1]}, {sK1}', f'v_cndmask_b32 {c[0]}, {c[0]}, {c[1]}, {sK1}', f'v_cndmask_b32 {p[2]}, {p[2]}, {p[3]}, {sK1}',
            f'v_cndmask_b32 {c[2]}, {c[2]}, {c[3]}, {sK1}', f'v_cndmask_b32 {d[0]}, {p[0]}, {c[0]}, {sCA}', f'v_cndmask_b32 {d[2]}, {p[2]}, {c[2]}, {sCB}']
def qmask(sl): return [f'v_cndmask_b32 {QO(sl)[i]}, 0, {vQ8[2 + i]}, {sM[(sl, 1 + i // 2)]}' for i in range(4)]
q1 = [f'v_mov_b32 {QO(1)[0]}, {vQ8[0]}', f'v_mov_b32 {QO(1)[1]}, {vQ8[1]}'] + [f'v_cndmask_b32 {QO(1)[2 + i]}, 0, {vQ8[2 + i]}, {sM[(1, 1)]}' for i in range(2)]
q2 = [f'v_cndmask_b32 {QO(2)[i]}, 0, {vQ8[4 + i]}, {sM[(2, 2)]}' for i in range(2)] + [f'v_mov_b32 {QO(2)[2]}, {vQ8[6]}', f'v_mov_b32 {QO(2)[3]}, {vQ8[7]}']
def pub(sl, sof): return [f'v_mov_b32 {QO(sl)[1]}, {sTag}', f'v_mov_b32 {QO(sl)[3]}, {sTag}'] + mrg(sl) + [f'buffer_store_dwordx4 {QO(sl)}, {vL16}, {sWS}, {sof} offen sc1']
E(['s_setprio 2'] + qmask(0) + qmask(3)[:2] + s_mfma(0) + qmask(3)[2:] + q1[:2] + s_mfma(3) + q1[2:] + q2[:2] + s_mfma(1) + pub(0, sSx[0]) + pub(3, sSx[1]) + ['s_setprio 0'])
E(stamp())
E([f's_lshl_b32 {sT[0]}, {sC}, 2', f'v_mov_b32 {vt[0]}, {sT[0]}', f'v_mov_b32 {vt[1]}, {sTag}', W('clr'), 's_mov_b64 exec, 1',
   f'buffer_store_dword {vt[1]}, {vt[0]}, {sWS}, {sFl} offen sc1', 's_mov_b64 exec, -1'])
def softmax(sls):
    n = len(sls); mx = [vt[i] for i in range(n)]; tp = [vt[2 + i] for i in range(n)]
    L = []
    for sl in sls: L += [f'v_mul_f32 {QO(sl)[2 * j]}, {QO(sl)[2 * j]}, {vSc[j]}' for j in range(2)]
    L += [f'v_max_f32 {mx[i]}, {QO(sl)[0]}, {QO(sl)[2]}' for i, sl in enumerate(sls)]
    for sw_ in ('v_permlane32_swap_b32', 'v_permlane16_swap_b32'):
        L += [f'v_mov_b32 {tp[i]}, {mx[i]}' for i in range(n)] + [f'{sw_} {mx[i]}, {tp[i]}' for i in range(n)] + [f'v_max_f32 {mx[i]}, {mx[i]}, {tp[i]}' for i in range(n)]
    for i, sl in enumerate(sls): L += [f'v_sub_f32 {QO(sl)[j]}, {QO(sl)[j]}, {mx[i]}' for j in (0, 2)]
    for sl in sls: L += [f'v_exp_f32 {QO(sl)[j]}, {QO(sl)[j]}' for j in (0, 2)]
    for sl in sls: d = QO(sl); L += [f'v_cvt_pk_bf16_f32 {d[0]}, {d[0]}, {d[0]}', f'v_cvt_pk_bf16_f32 {d[1]}, {d[2]}, {d[2]}']
    for sl in sls: d = QO(sl); L += [f'v_and_b32 {d[2]}, {d[0]}, {vPM[2]}', f'v_and_b32 {d[3]}, {d[1]}, {vPM[3]}', f'v_and_b32 {d[0]}, {d[0]}, {vPM[0]}', f'v_and_b32 {d[1]}, {d[1]}, {vPM[1]}']
    return L
def gate_calc(xb, xn, g, upd=None):
    n = 2 * xb.n; L = []
    for i in range(n // 2): L += [f'v_lshlrev_b32 {xn[2 * i]}, 16, {xb[i]}', f'v_and_b32 {xn[2 * i + 1]}, 0xffff0000, {xb[i]}']
    L += [f'v_add_f32 {xn[i]}, {xn[i]}, {vSt[0]}' for i in range(n)] + round_pairs(xn, n) + [f'v_mul_f32 {xn[i]}, {xn[i]}, {vSt[1]}' for i in range(n)] + round_pairs(xn, n)
    if upd is not None: L += [W(lg='all')] + [f'v_add_f32 {xn[i]}, {xn[i]}, {upd[i]}' for i in range(n)] + round_pairs(xn, n)
    return L + silu_into(g, xn, n)[:-n]
fill = q2[2:] + [f'v_mul_f32 {vt[0]}, {sCs}, {vSt[1]}'] + s_mfma(2) + [f'v_mul_f32 {vSc[j]}, {vSc[j]}, {vt[0]}' for j in range(2)] + mrg(1) + mrg(2) + softmax([1, 2])
vRx = acc[24:32]; vNm = acc[0:16]; vCv = acc[16:18]; vCf = acc[18]; vAd = acc[20:24]
def rx_loads(): return [(f'buffer_load_dwordx4 {vRx[4 * d:4 * d + 4]}, {vL16}, {sWS}, {sSx[2 + d]} offen sc1', 'rx') for d in range(2)]
vprep = [f's_lshl_b32 {sT[0]}, {sTau}, 6', f's_add_u32 {sT[0]}, {sT[0]}, {L_M}', f'v_lshl_add_u32 {vAd[0]}, {vG}, 4, {sT[0]}', f'v_xor_b32 {vAd[1]}, 64, {vAd[0]}'] + \
        [f'ds_read_b128 {vNm[8 * pos + 4 * q:8 * pos + 4 * q + 4]}, {vAd[pos]} offset:{512 * q}' for pos in range(2) for q in range(2)] + \
        [f's_lshl_b32 {sT[0]}, {sH}, 3', f's_add_u32 {sT[0]}, {sT[0]}, {L_CSV}', f'v_lshl_add_u32 {vAd[0]}, {vTt}, 4, {sT[0]}', f'v_mov_b32 {vAd[1]}, {L_CSF}',
         f'v_lshl_add_u32 {vEx}, {vLane}, 3, {sVx}', f's_lshl_b32 {sT[0]}, {sH}, 10', f'v_add_u32 {vAd[2]}, {sT[0]}, {vEx}',
         f's_lshl_b32 {sT[1]}, {sH}, 12', f's_sub_u32 {sT[1]}, 2048, {sT[1]}', f'v_add_u32 {vAd[3]}, {sT[1]}, {vAd[2]}', f'v_subrev_u32 {vEx}, 2048, {vEx}']
NK = 2 * ND; KF = opt('kf', 6); KR = opt('kr', 6)
for k in range(2, NK): E(tail_reads(k))
for k in range(NK):
    cnt = -(-len(fill) // (KF - k)) if k < KF else 0
    f = fill[:cnt]; fill = fill[cnt:]
    if k == KF: f = vprep
    if k == KR: E(rx_loads())
    E([W(lg=('v', k))] + spread(v_mfmas(NI + k // 2, k % 2, VF[8 * k:8 * k + 8]), f))
csv_reads = [f'ds_read_b32 {vCf}, {vAd[1]}', f'ds_read_b64 {vCv}, {vAd[0]}']
E(stamp() + csv_reads + [W(lg='all'), ('L', 'Lcsv'), f'v_readfirstlane_b32 {sT[2]}, {vCf}', f's_cmp_eq_u32 {sT[2]}, 0', 's_cbranch_scc1 Lcsv_re'])
def vfix(a, nm, cv, areg, off):
    return [f'v_fmac_f32 {a[i]}, {nm[i]}, {cv}' for i in range(4)] + [f'v_mul_f32 {a[i]}, {a[i]}, {nm[4 + i]}' for i in range(4)] + cvt2(a[0:2], a) + [f'ds_write_b64 {areg}, {a[0:2]} offset:{off}']
for pos in range(2):
    for i in range(2): E(vfix(accV[8 * pos + 4 * i:8 * pos + 4 * i + 4], vNm[8 * pos:8 * pos + 8], vCv[i], vAd[2 + pos], 512 * i))
E([W('rx'), ('L', 'Lrx_chk')])
for d in range(2):
    E([f'v_cmp_eq_u32 vcc, {sTag}, {vRx[4 * d + 1]}', f'v_cmp_eq_u32 {sT[2 * d:2 * d + 2]}, {sTag}, {vRx[4 * d + 3]}', f's_and_b64 {sT[2 * d:2 * d + 2]}, {sT[2 * d:2 * d + 2]}, vcc',
       f's_cmp_eq_u32 {sCC}, {4 * d}', f's_cselect_b64 {sT[2 * d:2 * d + 2]}, -1, {sT[2 * d:2 * d + 2]}'])
E([f's_and_b64 {sT[0:2]}, {sT[0:2]}, {sT[2:4]}', f's_cmp_eq_u64 {sT[0:2]}, -1', 's_cbranch_scc0 Lrx_re'] + stamp())
for d, sl in ((0, 0), (1, 3)):
    E([f's_cmp_eq_u32 {sCC}, {4 * d}', 's_cselect_b64 vcc, -1, 0'])
    for j in (0, 2): E([f'v_cndmask_b32 {vRx[4 * d + j]}, {vRx[4 * d + j]}, 0, vcc', f'v_add_f32 {QO(sl)[j]}, {QO(sl)[j]}, {vRx[4 * d + j]}'])
E(['s_setprio 2', 's_waitcnt lgkmcnt(0)', 's_barrier'] + stamp()); E.lg = []
vV = accV
E([(f'ds_read2st64_b64 {vV[4 * t:4 * t + 4]}, {vEx} offset0:{t} offset1:{t + 4}', 'vp') for t in range(4)])
vO = acc; vSum = vCS
PVL = [(0, 1), (1, 1), (2, 2), (3, 2), (1, 0), (2, 0), (1, 3), (2, 3)]
def OO(t, sl): b = PVL.index((t, sl)) * 4; return vO[b:b + 4]
def SM(sl): return vSum[4 * sl:4 * sl + 4]
def pv(sls): return [f'{MFMA} {SM(sl)}, {vOnes}, {QO(sl)}, 0' for sl in sls] + [f'{MFMA} {OO(t, sl)}, {vV[4 * t:4 * t + 4]}, {QO(sl)}, 0' for (t, sl) in PVL if sl in sls]
ch = softmax([0, 3])
E(ch[:12]); E(W(lg='vp')); E(spread(ch[12:], pv([1, 2])))
vOst = vt
def onorm(t, o, rc): return [f'v_mul_f32 {o[i]}, {o[i]}, {rc}' for i in range(4)] + cvt2(vOst[2 * t:2 * t + 2], o) + [f'v_min_u32 {vOst[2 * t + i]}, -2, {vOst[2 * t + i]}' for i in range(2)]
E(spread(pv([0, 3]), [f'v_rcp_f32 {SM(sl)[0]}, {SM(sl)[0]}' for sl in (1, 2)] + onorm(0, OO(0, 1), SM(1)[0])) + onorm(3, OO(3, 2), SM(2)[0]) + [f'v_rcp_f32 {SM(sl)[0]}, {SM(sl)[0]}' for sl in (0, 3)])
for t in (1, 2):
    d = OO(t, t); rc = SM(t)[2]
    E([f'v_cndmask_b32 {rc}, {SM(t)[0]}, {SM(0)[0]}, {sM[(0, t)]}', f'v_cndmask_b32 {rc}, {rc}, {SM(3)[0]}, {sM[(3, t)]}'])
    for sl in (0, 3): E([f'v_cndmask_b32 {d[r]}, {d[r]}, {OO(t, sl)[r]}, {sM[(sl, t)]}' for r in range(4)])
    E(onorm(t, d, rc) + [f'buffer_store_dwordx4 {vOst[4 * (t - 1):4 * t]}, {vL16}, {sWS}, {sOst} offen offset:{(t - 1) * 1024} sc1'])
E(stamp())
PK = AALL[0:16]
vFl = B3[0]
fl_load = (f'buffer_load_dword {vFl}, {vL4}, {sWS}, {sFl} offen sc1', 'fl')
E(['s_setprio 0', fl_load] + gate_calc(vXb, acc[0:16], acc[16:32]) + [f'v_accvgpr_write_b32 {PK[i]}, {acc[17 + 2 * i]}' for i in range(8)] + [f'v_accvgpr_write_b32 {PK[8 + i]}, {vXb[i]}' for i in range(8)])
E([f'v_and_b32 {vt[2]}, 3, {vLane}', f'v_lshl_add_u32 {vt[2]}, {vt[2]}, 3, {vPhi}', f'v_add_u32 {vWr[0]}, {vt[2]}, {vrow}'] +
  [f'v_xor_b32 {vWr[t]}, {32 * t}, {vWr[0]}' for t in (1, 2, 3)] + [f'v_add_u32 {vWr[4 + t]}, {OWIN[1]}, {vWr[t]}' for t in range(4)])
FR = [AALL[16 * i:16 * i + 16] for i in range(1, 8)]; NF = 7
def wo_reads(k):
    loc = OLOC[k // 2]; w_ = 1 if loc >= OWIN[1] else 0
    return [x for t in range(4) for x in trs(FR[k % NF][4 * t:4 * t + 4], vWr[4 * w_ + t], loc - OWIN[w_] + (k % 2) * 4096, ('o', k))]
OFG = [acc[4 * i:4 * i + 4] for i in range(8)] + [B[4 * i:4 * i + 4] for B in (B1, B2, B3) for i in range(4)]
accO = [vXb[0:4], vXb[4:8], vPM, vOnes]
sJ = S.alloc('j')
NPRE = opt('npre', 0)
for k in range(NPRE): E(wo_reads(k))
E([W('fl'), ('L', 'Lfl_chk'), f'v_cmp_eq_u32 vcc, {sTag}, {vFl}', f's_mov_b32 {sJ}, 0', f's_and_b32 {sT[0]}, vcc_lo, 0x3ff', f's_cmp_lg_u32 {sT[0]}, 0x3ff', 's_cbranch_scc1 Lfl_re'] + stamp())
E.vm = []
for k in range(20):
    if k % 2 == 0: A.label(f'Lld_{k // 2}')
    E((f'buffer_load_dwordx4 {OFG[k]}, {vL16}, {sWS}, {sOb[k // 4]} offen offset:{(k % 4) * 1024} sc1', ('of', k // 2)))
E([f's_cmp_lg_u32 {sJ}, 0', 's_cbranch_scc1 Ldisp'])
for k in range(NPRE, NF): E(wo_reads(k))
E([f'v_mov_b32 {vt[6]}, {L_INFO}'])
def chk(j):
    a, b = OFG[2 * j], OFG[2 * j + 1]
    return [('L', f'Lchk_{j}'), W(('of', j)), f'v_max3_u32 {vt[0]}, {a[0]}, {a[1]}, {a[2]}', f'v_max3_u32 {vt[1]}, {b[0]}, {b[1]}, {b[2]}', f'v_max3_u32 {vt[0]}, {vt[0]}, {a[3]}, {b[3]}',
            f'v_max_u32 {vt[0]}, {vt[0]}, {vt[1]}', f'v_cmp_eq_u32 vcc, -1, {vt[0]}', f's_cbranch_vccnz Lre_{j}']
vXf = acc[0:16]; vGt = acc[16:32]; vOa = B1[0:2]; vRow = B1[2]; vTa = B1[4:8]; vTr = B1[3]; vOst = B1[8:16]
tail = []
for i in range(8):
    tail += [f'v_accvgpr_read_b32 {vGt[2 * i + 1]}, {PK[i]}', f'v_accvgpr_read_b32 {vXf[2 * i + 1]}, {PK[8 + i]}']
for x in (vGt, vXf):
    for i in range(8): tail += [f'v_lshlrev_b32 {x[2 * i]}, 16, {x[2 * i + 1]}', f'v_and_b32 {x[2 * i + 1]}, 0xffff0000, {x[2 * i + 1]}']
oadr = [f's_mul_i32 {sT[0]}, {sRB}, 96', f's_lshl_b32 {sT[1]}, {sTau}, 4', f's_add_u32 {sT[0]}, {sT[0]}, {sT[1]}', f's_sub_u32 {sT[0]}, {sT[0]}, 32',
        f'v_add_u32 {vRow}, {sT[0]}, {vTt}', f'v_lshrrev_b32 {vt[2]}, 3, {vLane}', f'v_add_u32 {vt[2]}, {sT[0]}, {vt[2]}', f'v_mul_u32_u24 {vt[2]}, 1280, {vt[2]}',
        f'v_and_b32 {vt[3]}, 7, {vLane}', f'v_xor_b32 {vt[3]}, {vt[3]}, {vG}', f'v_lshl_add_u32 {vOa[0]}, {vt[3]}, 4, {vt[2]}', f'v_xor_b32 {vOa[1]}, 64, {vOa[0]}',
        f'v_add_u32 {vOa[1]}, {8 * 1280}, {vOa[1]}',
        f's_lshl_b32 {sT[0]}, {sTau}, 11', f's_add_u32 {sT[0]}, {sT[0]}, {EXB}', f'v_add_u32 {vTa[0]}, {sT[0]}, {vXe}', f'v_xor_b32 {vTa[1]}, 32, {vTa[0]}',
        f'v_xor_b32 {vTa[2]}, 64, {vTa[0]}', f'v_xor_b32 {vTa[3]}, 0x60, {vTa[0]}', f'v_add_u32 {vTr}, {sT[0]}, {vL16}', f's_lshl_b32 {sFl}, {sC}, 7']
fills = {6: tail[:16], 7: tail[16:40], 8: tail[40:48] + oadr}
info_read = (f'ds_read_b64 {vt[4:6]}, {vt[6]}', 'info')
for j in range(10):
    E(chk(j))
    if j == 0: E(stamp())
    if j == 4: E(info_read)
    if j == 5: E([W(lg='info'), ('L', 'Linfo'), f'v_readfirstlane_b32 {sT[3]}, {vt[4]}', f's_cmp_eq_u32 {sT[3]}, {SENT}', 's_cbranch_scc1 Linfo_re'])
    for k in (2 * j, 2 * j + 1):
        m = [f'{MFMA} {accO[n]}, {FR[k % NF][4 * n:4 * n + 4]}, {OFG[k]}, {0 if k == 0 else accO[n]}' for n in range(4)]
        f = fills.get(j, []); f = f[:len(f) // 2] if k % 2 == 0 else f[len(f) // 2:]
        E([W(lg=('o', k))] + spread(m, f) + (wo_reads(k + NF) if k + NF < 20 else []))
E(stamp())
E([f'v_and_b32 {vt[2]}, {vt[4]}, {vt[5]}', f'v_readfirstlane_b32 {sT[3]}, {vt[2]}', f's_cmp_eq_u32 {sT[3]}, -1', 's_cbranch_scc0 Lfix', ('L', 'Lnofix')])
for n in range(4):
    a = accO[n]
    E([f'v_fma_f32 {a[i]}, {a[i]}, {vGt[4 * n + i]}, {vXf[4 * n + i]}' for i in range(4)] + cvt2(vOst[2 * n:2 * n + 2], a) + [f'ds_write_b64 {vTa[n]}, {vOst[2 * n:2 * n + 2]}'])
E([(f'ds_read_b128 {B2[4 * i:4 * i + 4]}, {vTr} offset:{1024 * i}', ('fin', i)) for i in range(2)])
for i in range(2): E([W(lg=('fin', i)), f'buffer_store_dwordx4 {B2[4 * i:4 * i + 4]}, {vOa[i]}, {sOUT}, {sFl} offen{NT["S"]}'])
write_stamps(STAMPW, 'main')
E('s_endpgm')
E([('L', 'Lqf_re')] + spin_guard() + cs_reads + [W(lg='all'), 's_branch Lqf'])
E([('L', 'Lcsv_re')] + spin_guard() + csv_reads + [W(lg='all'), 's_branch Lcsv'])
E([('L', 'Lrx_re')] + spin_guard() + rx_loads() + [W('all'), 's_branch Lrx_chk'])
E([('L', 'Linfo_re')] + spin_guard() + [info_read, W(lg='all'), 's_branch Linfo'])
E([('L', 'Lfl_re')] + spin_guard() + [fl_load, W('all'), 's_branch Lfl_chk'])
for j in range(10): E([('L', f'Lre_{j}'), f's_mov_b32 {sJ}, {j + 1}', 's_branch Lprobe'])
E([('L', 'Lprobe'), f'v_min_u32 {vt[1]}, 19, {vLane}', f'v_lshlrev_b32 {vt[1]}, 10, {vt[1]}', ('L', 'Lprobe2')] + spin_guard() +
  [f'buffer_load_dword {vt[0]}, {vt[1]}, {sWS}, {sOb[0]} offen offset:1020 sc1', W('all'), f'v_cmp_eq_u32 vcc, -1, {vt[0]}', 's_cbranch_vccnz Lprobe2'])
for j in range(9): E([f's_cmp_eq_u32 {sJ}, {j + 1}', f's_cbranch_scc1 Lld_{j}'])
E('s_branch Lld_9')
A.label('Ldisp')
for j in range(9): E([f's_cmp_eq_u32 {sJ}, {j + 1}', f's_cbranch_scc1 Lchk_{j}'])
E('s_branch Lchk_9')
E([('L', 'Lfix'), f'v_mov_b32 {vt[6]}, {L_UF}', ('L', 'Lfix_w')] + spin_guard() + [f'ds_read_b32 {vt[2]}, {vt[6]}', W(lg='all'), f'v_readfirstlane_b32 {sT[3]}, {vt[2]}',
   f's_cmp_eq_u32 {sT[3]}, 0', 's_cbranch_scc1 Lfix_w',
   f'v_mov_b32 {vt[2]}, {L_UPD + 512}', f'v_mov_b32 {vt[3]}, {L_UPD}', f'v_cmp_eq_u32 vcc, {vt[4]}, {vRow}', f'v_cndmask_b32 {vt[2]}, {vt[2]}, {vt[3]}, vcc',
   f'v_mov_b32 {vt[3]}, {L_UPD + 256}', f'v_cmp_eq_u32 vcc, {vt[5]}, {vRow}', f'v_cndmask_b32 {vt[2]}, {vt[2]}, {vt[3]}, vcc', f'v_lshl_add_u32 {vt[2]}, {vG}, 4, {vt[2]}'] +
  [f'ds_read_b128 {B3[4 * n:4 * n + 4]}, {vt[2]} offset:{64 * n}' for n in range(4)] + [f'v_accvgpr_read_b32 {vOst[i]}, {PK[8 + i]}' for i in range(8)] +
  gate_calc(vOst, B2, vGt, B3) + round_pairs(vGt, 16)[8:] + ['s_branch Lnofix'])

load_state(st_halo)
A.label('Lhalo')
HF = [Reg('a', 0, 48), Reg('a', 48, 48)]; HXK = Reg('a', 96, 32); HXT = vXb
vSg = B3[0:4]; vSo = B3[4:6]
E(['s_mov_b32 vcc_lo, 0x00010001', 's_mov_b32 vcc_hi, 0x00010001', f'v_mov_b32 {vt[7]}, {ONES_OFF}', f'v_cndmask_b32 {vXr[0]}, {vXr[0]}, {vt[7]}, vcc', f'v_xor_b32 {vXr[1]}, 64, {vXr[0]}',
   f'v_add_u32 {vXr[4]}, {2 * SLOT}, {vXr[0]}', f'v_add_u32 {vXr[5]}, {2 * SLOT}, {vXr[1]}'] + set_ones +
  [f'v_and_b32 {vt[0]}, 7, {vLane}', f'v_lshlrev_b32 {vt[0]}, 4, {vt[0]}', f'v_mul_u32_u24 {vt[1]}, {SLOT}, {vG}', f'v_add_u32 {vt[0]}, {vt[0]}, {vt[1]}', f'ds_write_b128 {vt[0]}, {vOnes} offset:{ONES_OFF}',
   f'v_mov_b32 {vt[0]}, {L_CSF}', f'v_mov_b32 {vt[4]}, 0', f'v_mov_b32 {vt[5]}, 0', f'v_mov_b32 {vt[6]}, {SENT}', f'v_mov_b32 {vt[7]}, {SENT}', f'ds_write_b128 {vt[0]}, {vt[4:8]}',
   f'ds_write_b32 {vt[0]}, {vt[4]} offset:16',
   f's_mul_i32 {sT[0]}, {sRB}, 96', f's_sub_u32 {sT[0]}, {sT[0]}, 16', f'v_add_u32 {vSo[0]}, {sT[0]}, {vLane}', f'v_min_u32 {vt[1]}, 47, {vLane}', f'v_add3_u32 {vSo[1]}, {sT[0]}, {vt[1]}, 64',
   f'v_mov_b32 {vt[2]}, 2047', f'v_med3_i32 {vSo[0]}, {vSo[0]}, 0, {vt[2]}', f'v_med3_i32 {vSo[1]}, {vSo[1]}, 0, {vt[2]}', f'v_lshlrev_b32 {vSo[0]}, 3, {vSo[0]}', f'v_lshlrev_b32 {vSo[1]}, 3, {vSo[1]}'])
sSt = S.alloc('sst'); E(f's_mov_b32 {sSt}, {WS_STAT}')
def HX(s, kk): return HXT[4 * kk:4 * kk + 4] if s < NI else HXK[(s - NI) * 8 + 4 * kk:(s - NI) * 8 + 4 * kk + 4]
def h_reads(s, kk):
    tag = ('r', s, kk)
    L = [(f'ds_read_b128 {HX(s, kk)}, {vXr[4 * sw(s) + kk]} offset:{so(s)}', tag)]
    for sec in range(3 if s < NI else 2):
        for t in range(4): L += trs(HF[kk][16 * sec + 4 * t:16 * sec + 4 * t + 4], vWr[4 * sw(s) + t], so(s) + sec * 8192 + kk * 4096, tag)
    return L
def h_mfmas(s, kk):
    z = (s == 0 and kk == 0); L = []
    for sec in range(2):
        for t in range(4):
            a = acc[16 * sec + 4 * t:16 * sec + 4 * t + 4]; L.append(f'{MFMA} {a}, {HF[kk][16 * sec + 4 * t:16 * sec + 4 * t + 4]}, {HX(s, kk)}, {0 if z else a}')
    if s < NI:
        for t in range(4): a = accV[4 * t:4 * t + 4]; L.append(f'{MFMA} {a}, {HX(s, kk)}, {HF[kk][32 + 4 * t:36 + 4 * t]}, {0 if z else a}')
    return L
st_loads = [(f'buffer_load_dwordx2 {vSg[2 * i:2 * i + 2]}, {vSo[i]}, {sWS}, {sSt} offen sc1', 'st') for i in range(2)]
for s in range(10):
    A.comment(f'halo unit {s}')
    E(['s_waitcnt lgkmcnt(0)', 's_barrier']); E.lg = []
    if s == 0: E(fin_tag())
    E(h_reads(s, 0) + [W(lg=('r', s, 0))] + merge(h_mfmas(s, 0), h_reads(s, 1), 1, 3) + [W(lg=('r', s, 1))] + h_mfmas(s, 1))
    if s == 1: E(signal())
    if s == opt('stl', 6): E(st_loads)
    if s == 8:
        E([W('st'), ('L', 'Lst_chk'), f'v_cmp_ne_u32 vcc, {sTag}, {vSg[1]}', f'v_cmp_ne_u32 {sT[0:2]}, {sTag}, {vSg[3]}', f's_or_b64 {sT[0:2]}, {sT[0:2]}, vcc', 's_cbranch_scc1 Lst_re',
           f'v_add_u32 {vt[0]}, {L_M + 64}, {vL4}', f'v_min_u32 {vt[1]}, 47, {vLane}', f'v_lshlrev_b32 {vt[1]}, 2, {vt[1]}', f'v_add_u32 {vt[1]}, {L_M + 64 + 256}, {vt[1]}'])
        for i in range(2):
            E([f'v_lshlrev_b32 {vSg[2 * i + 1]}, 16, {vSg[2 * i]}', f'v_and_b32 {vSg[2 * i]}, 0xffff0000, {vSg[2 * i]}', f'v_rcp_f32 {vSg[2 * i + 1]}, {vSg[2 * i + 1]}',
               f'ds_write_b32 {vt[i]}, {vSg[2 * i]}', f'ds_write_b32 {vt[i]}, {vSg[2 * i + 1]} offset:512'])
        E([f'v_lshlrev_b32 {vt[2]}, 4, {vG}', f'v_add_u32 {vt[2]}, {L_CS}, {vt[2]}', f'v_mov_b32 {vt[3]}, {L_QF}', f'v_lshlrev_b32 {vt[4]}, 2, {vTt}', f'v_add_u32 {vt[4]}, {L_M + 64}, {vt[4]}',
           f'ds_read_b32 {vSt[0]}, {vt[4]}'])
E(['s_mov_b32 exec_lo, 0x00010001', 's_mov_b32 exec_hi, 0x00010001'] + [f'ds_write_b128 {vt[2]}, {acc[4 * j:4 * j + 4]} offset:{64 * j}' for j in range(8)] +
  [f'ds_write_b32 {vt[3]}, {vt[3]}', 's_mov_b64 exec, -1'] + [f'ds_read_b128 {vCS[4 * t:4 * t + 4]}, {vt[2]} offset:{256 + 64 * t}' for t in range(4)] + [W(lg='all')] +
  fix_qk(acc[16:24], acc[16:32], vSt[0]) + [f'ds_write_b128 {vEx}, {acc[16 + 4 * i:20 + 4 * i]} offset:{4096 + i * 1024}' for i in range(2)] + [W(lg='all'), 's_barrier'])
HV = Reg('a', 0, 96)
def ht_reads(k): return [x for t in range(4) for x in trs(HV[16 * (k % 6) + 4 * t:16 * (k % 6) + 4 * t + 4], vWr[4 * sw(NI + k // 2) + t], so(NI + k // 2) + VOFF + (k % 2) * 4096, ('v', k))]
for k in range(6): E(ht_reads(k))
for k in range(NK):
    E([W(lg=('v', k))] + [f'{MFMA} {accV[4 * t:4 * t + 4]}, {HX(NI + k // 2, k % 2)}, {HV[16 * (k % 6) + 4 * t:16 * (k % 6) + 4 * t + 4]}, {accV[4 * t:4 * t + 4]}' for t in range(4)])
    if k + 6 < NK: E(ht_reads(k + 6))
E([f'v_lshlrev_b32 {vt[1]}, 4, {vTt}', f'v_add_u32 {vt[1]}, {L_CSV}, {vt[1]}', f'v_mov_b32 {vt[2]}, {L_CSF}', f'v_lshlrev_b32 {vt[0]}, 4, {vG}', f'v_add_u32 {vt[0]}, {L_M + 64}, {vt[0]}',
   f'v_lshl_add_u32 {vEx}, {vLane}, 3, {sVx}', 's_mov_b64 exec, 0xffff'] + [f'ds_write_b32 {vt[1]}, {accV[4 * t]} offset:{4 * t}' for t in range(4)] +
  [f'ds_write_b32 {vt[2]}, {vt[2]}', 's_mov_b64 exec, -1', f'ds_read_b128 {acc[8:12]}, {vt[1]}', f'ds_read_b128 {acc[0:4]}, {vt[0]}', f'ds_read_b128 {acc[4:8]}, {vt[0]} offset:512', W(lg='all')])
for t in range(4): E(vfix(accV[4 * t:4 * t + 4], acc[0:8], acc[8 + t], vEx, 512 * t))
E(['s_waitcnt lgkmcnt(0)', 's_barrier', 's_endpgm'])
E([('L', 'Lst_re')] + spin_guard() + st_loads + [W('all'), 's_branch Lst_chk'])

load_state(st_main)
A.label('Lloader')
BIAS = 4096
sX = S.alloc('srdx', 4); sWQ = S.alloc('srdq', 4); sWK = S.alloc('srdk', 4); sWV = S.alloc('srdv', 4); sWO = S.alloc('srdwo', 4)
vW = V.alloc('vw', 8); vX = V.alloc('vx', 14); sWk = S.alloc('wk', 10, 1); sXk = S.alloc('xk'); sRho = S.alloc('rho'); sStr = S.alloc('stride')
l3 = vt[1]; l7 = vt[2]; vch = V.alloc('chunkw')
E(['s_setprio 3', f'v_lshrrev_b32 {l3}, 3, {vLane}', f'v_and_b32 {l7}, 7, {vLane}',
   f'v_and_b32 {vt[4]}, 1, {vG}', f'v_lshlrev_b32 {vt[4]}, 1, {vt[4]}', f'v_xor_b32 {vt[4]}, {vt[4]}, {l7}', f's_lshl_b32 {sT[3]}, {sC}, 7', f'v_lshl_add_u32 {vch}, {vt[4]}, 4, {sT[3]}',
   f'v_mov_b32 {vt[3]}, 3840', f'v_mad_u32_u24 {vW[0]}, {l3}, {vt[3]}, {vch}', f'v_xor_b32 {vW[1]}, 64, {vW[0]}', f'v_add_u32 {vW[1]}, {8 * 3840 - 1024}, {vW[1]}'] +
  [f'v_add_u32 {vW[j]}, {(j - j % 2) * 8 * 3840 - ((j % 4) - (j % 2)) * 1024}, {vW[j % 2]}' for j in range(2, 8)] +
  [f's_mul_i32 {sT[2]}, {sRB}, 96', f's_sub_u32 {sT[2]}, {sT[2]}, 16', f'v_add_u32 {vt[3]}, {sT[2]}, {l3}',
   f'v_xor_b32 {vt[5]}, {l7}, {vG}', f'v_lshlrev_b32 {vt[5]}, 4, {vt[5]}', f'v_xor_b32 {vt[6]}, 64, {vt[5]}', f'v_mov_b32 {vt[7]}, 2047', f'v_mov_b32 {vt[4]}, 1280'])
for j in range(14):
    E([f'v_add_u32 {vX[j]}, {8 * j}, {vt[3]}', f'v_med3_i32 {vX[j]}, {vX[j]}, 0, {vt[7]}', f'v_mad_u32_u24 {vX[j]}, {vX[j]}, {vt[4]}, {vt[5 + j % 2]}',
       f'v_add_u32 {vX[j]}, {BIAS - (j % 4) * 1024}, {vX[j]}'])
WSZ = 640 * 3840
E([f's_and_b32 {sStr}, {sRB}, 3', f's_lshl_b32 {sStr}, {sStr}, 2', f's_lshr_b32 {sStr}, 0x9731, {sStr}', f's_and_b32 {sStr}, {sStr}, 15', f's_mov_b32 {sRho}, {sC}',
   's_waitcnt lgkmcnt(0)'] + mk_srd(sX, pX, 2048 * 1280, -BIAS) + mk_srd(sWQ, pW, WSZ) + mk_srd(sWK, pW, WSZ, 1280) + mk_srd(sWV, pW, WSZ, 2560))
def grp(m0, items):
    L = [f's_mov_b32 m0, {m0}']
    for j, (vo, srd, sof, nt, tag) in enumerate(items):
        L.append((f'buffer_load_dwordx4 {vo}, {srd}, {sof} offen' + (f' offset:{1024 * j}' if j else '') + f'{nt} lds', tag))
    return L
def wgrp(s, sec, q, tag): return grp((s % NSL) * SLOT + sec * 8192 + q * 4096, [(vW[j], (sWQ, sWK, sWV)[sec], sWk[s], NT['W'], tag) for j in range(4 * q, 4 * q + 4)])
def unit_loads(s):
    sb = (s % NSL) * SLOT; tag = ('u', s)
    L = [f's_mul_i32 {sWk[s]}, {sRho}, {64 * 3840}', f's_lshl_b32 {sXk}, {sRho}, 7']
    xs = [grp(sb + XOFF + q * 4096, [(vX[j], sX, sXk, NT['X'], tag) for j in range(4 * q, min(4 * q + 4, 14))]) for q in range(4)]
    ws = [wgrp(s, sec, q, tag) for q in range(2) for sec in range(3 if s < NI else 2)]
    for i in range(max(len(xs), len(ws))):
        if i < len(xs): L += xs[i]
        if i < len(ws): L += ws[i]
    return L + [[f's_add_u32 {sRho}, {sRho}, {sStr}', f's_sub_u32 {sT[2]}, {sRho}, 10', f's_cmp_ge_u32 {sRho}, 10', f's_cselect_b32 {sRho}, {sT[2]}, {sRho}']]
E(unit_loads(0) + stamp() + get_tag() + mk_srd(sWO, pWO, 640 * 1280, -BIAS) + unit_loads(1))
S.free('ka', 'kb')
vOsh = V.alloc('osh'); vOrest = V.alloc('orest', 2); vOt = V.alloc('ot', 40); s20480 = S.alloc('c20480'); sUt = S.alloc('ut'); sOk = S.alloc('ok')
E([f's_mov_b32 {s20480}, 20480', f'v_lshrrev_b32 {vOsh}, 5, {vLane}', f'v_lshlrev_b32 {vOsh}, 3, {vOsh}', f'v_and_b32 {vt[3]}, 3, {l3}', f'v_mul_u32_u24 {vt[3]}, 1280, {vt[3]}',
   f'v_add_u32 {vOrest[0]}, {vt[3]}, {vch}', f'v_xor_b32 {vOrest[1]}, 64, {vOrest[0]}'])
def o_addr(j):
    L = []
    for i in range(8):
        d = vOt[8 * j + i]
        L += [[f's_mov_b32 {sUt}, {UT[j] >> (16 * (i >> 2) + 2 * (i & 3)):#x}', f'v_bfe_u32 {d}, {sUt}, {vOsh}, 2'], f'v_mad_u32_u24 {d}, {d}, {s20480}, {vOrest[i % 2]}',
              f'v_add_u32 {d}, {BIAS + 4 * (i & 3) * 1280 - (i % 4) * 1024}, {d}']
    return L
def o_loads(j):
    L = [f's_mov_b32 {sOk}, {j * 64 * 1280}']
    for q in range(2): L += grp(OLOC[j] + q * 4096, [(vOt[8 * (j % 5) + i], sWO, sOk, NT['O'], ('o', j)) for i in range(4 * q, 4 * q + 4)])
    return L
for s in range(10):
    A.comment(f'loader unit {s}')
    E([W(('u', s), 'all')] + (stamp() if s in (0, 5, 9) else []) + ['s_barrier'])
    if s == 0: E(fin_tag())
    if s <= 7: E(unit_loads(s + 2))
    elif s == 8:
        for u in range(NI, 10): E(wgrp(u, 2, 0, 'v') + wgrp(u, 2, 1, 'v'))
    else: E(o_loads(0) + o_loads(1) + o_loads(2))
    if 1 <= s <= 5: E(o_addr(s - 1))
S.free('srdx', 'srdq', 'srdk')
E([W('v')] + stamp() + ['s_barrier'])
sKy0 = S.alloc('key0'); sKy1 = S.alloc('key1'); sI0 = S.alloc('i0'); sI1 = S.alloc('i1')
for j in range(3, 9): E(o_loads(j))
E([f's_lshl_b32 {sT[0]}, s2, 7', f's_add_u32 {sT[0]}, {sT[0]}, {WS_BC}', f'v_mov_b32 {vt[0]}, {sT[0]}', ('L', 'Lbc')] + spin_guard() +
  [f'buffer_load_dwordx4 {vt[4:8]}, {vt[0]}, {sWS}, 0 offen sc1', W('all'), f'v_readfirstlane_b32 {sKy0}, {vt[4]}', f'v_readfirstlane_b32 {sT[0]}, {vt[5]}',
   f'v_readfirstlane_b32 {sKy1}, {vt[6]}', f'v_readfirstlane_b32 {sT[1]}, {vt[7]}', f's_cmp_lg_u32 {sT[0]}, {sTag}', 's_cbranch_scc1 Lbc', f's_cmp_lg_u32 {sT[1]}, {sTag}', 's_cbranch_scc1 Lbc',
   f's_mul_i32 {sT[0]}, {sRB}, 96'])
for k, i in ((sKy0, sI0), (sKy1, sI1)):
    E([f's_and_b32 {i}, {k}, 0x7ff', f's_sub_u32 {i}, 2047, {i}', f's_sub_u32 {sT[1]}, {i}, {sT[0]}', f's_cmp_lt_u32 {sT[1]}, 96', f's_cselect_b32 {i}, {i}, -1'])
E([f'v_mov_b32 {vt[0]}, {sI0}', f'v_mov_b32 {vt[1]}, {sI1}', f'v_mov_b32 {vt[2]}, {L_INFO}'] + stamp() + ['s_barrier'])
E(o_loads(9) + [W('all')] + stamp() + [f'ds_write_b64 {vt[2]}, {vt[0:2]}', f's_and_b32 {sT[1]}, {sI0}, {sI1}', f's_cmp_eq_u32 {sT[1]}, -1', 's_cbranch_scc1 Lw0_done'])
vY = Reg('v', 16, 108)
E([('L', 'Ly_poll')] + spin_guard() + [f's_lshl_b32 {sT[0]}, {sC}, 10', f's_add_u32 {sT[0]}, {sT[0]}, {WS_Y}'])
for j in range(27): E([f'buffer_load_dwordx4 {vY[4 * j:4 * j + 4]}, {vL16}, {sWS}, {sT[0]} offen sc1', f's_add_u32 {sT[0]}, {sT[0]}, 10240'])
E([W('all'), f'v_xor_b32 {vt[0]}, {sTag}, {vY[1]}'])
for j in range(27):
    for q in (1, 3):
        if j or q == 3: E([f'v_xor_b32 {vt[1]}, {sTag}, {vY[4 * j + q]}', f'v_or_b32 {vt[0]}, {vt[0]}, {vt[1]}'])
E([f'v_cmp_ne_u32 vcc, 0, {vt[0]}', 's_cmp_lg_u64 vcc, 0', 's_cbranch_scc1 Ly_poll'])
for j in range(1, 27): E([f'v_add_f32 {vY[0]}, {vY[0]}, {vY[4 * j]}', f'v_add_f32 {vY[2]}, {vY[2]}, {vY[4 * j + 2]}'])
for k, y, off in ((sKy0, vY[0], 0), (sKy1, vY[2], 256)):
    E([f's_lshr_b32 {sT[0]}, {k}, 16', f's_cmp_ge_u32 {sT[0]}, 0x8000', f's_cselect_b32 {sT[1]}, 0x8000, -1', f's_xor_b32 {sT[0]}, {sT[0]}, {sT[1]}', f's_lshl_b32 {sT[0]}, {sT[0]}, 16',
       f'v_mov_b32 {vt[0]}, {sT[0]}', f'v_mul_f32 {vt[0]}, {f32(-L2E)}, {vt[0]}', f'v_exp_f32 {vt[0]}, {vt[0]}', f'v_add_f32 {vt[0]}, 1.0, {vt[0]}', f'v_rcp_f32 {vt[0]}, {vt[0]}'] +
      bf16r(vt[0], vt[0]) + bf16r(y, y) + [f'v_mul_f32 {y}, {y}, {vt[0]}'] + bf16r(y, y) + [f'v_add_u32 {vt[1]}, {L_UPD}, {vL4}', f'ds_write_b32 {vt[1]}, {y} offset:{off}'])
E([f'v_mov_b32 {vt[0]}, 0', f'ds_write_b32 {vt[1]}, {vt[0]} offset:512', f'v_mov_b32 {vt[0]}, {L_UF}', f'ds_write_b32 {vt[0]}, {vt[0]}', ('L', 'Lw0_done'), 's_waitcnt lgkmcnt(0)'])
if STAMPW == 0: write_stamps(0, 'loader')
E('s_endpgm')

load_state(st_common)
A.label('Laux')
sA = sRB
E([f's_mul_i32 {sA}, {sT[0]}, 9', f's_lshl_b32 {sT[2]}, {sT[2]}, 2', f's_add_u32 {sA}, {sA}, {sT[2]}', f's_add_u32 {sA}, {sA}, {sT[1]}',
   f's_cmp_lt_u32 {sA}, 32', 's_cbranch_scc1 Laux2', f's_cmp_lg_u32 {sWv}, 0', 's_cbranch_scc1 Lend',
   's_waitcnt lgkmcnt(0)'] + get_tag() + ['s_waitcnt lgkmcnt(0)'] + fin_tag() + signal() + [f's_cmp_lg_u32 {sA}, 32', 's_cbranch_scc1 Lend'])
sKy0 = S.alloc('key0'); sKy1 = S.alloc('key1')
E(poll_top2(vt, sKy0, sKy1, sT) + [f'v_mov_b32 {vt[4]}, {sKy0}', f'v_mov_b32 {vt[5]}, {sTag}', f'v_mov_b32 {vt[6]}, {sKy1}', f'v_mov_b32 {vt[7]}, {sTag}',
   f'v_lshlrev_b32 {vt[0]}, 7, {vLane}', f's_mov_b32 {sT[0]}, {WS_BC}'])
for i in range(4): E([f'buffer_store_dwordx4 {vt[4:8]}, {vt[0]}, {sWS}, {sT[0]} offen sc1', f's_add_u32 {sT[0]}, {sT[0]}, 8192'])
E([f's_mov_b32 {sT[0]}, {WS_SIG}', ('L', 'Lmaster')] + spin_guard() +
  ['s_sleep 16', f'buffer_load_dwordx4 {vt[0:4]}, {vL16}, {sWS}, {sT[0]} offen sc1', W('all')] + [f'v_xor_b32 {vt[i]}, {sTag}, {vt[i]}' for i in range(4)] +
  [f'v_or3_b32 {vt[0]}, {vt[0]}, {vt[1]}, {vt[2]}', f'v_or_b32 {vt[0]}, {vt[0]}, {vt[3]}', f'v_cmp_ne_u32 vcc, 0, {vt[0]}', 's_cbranch_vccnz Lmaster',
   's_mov_b64 exec, 1', f'buffer_store_dword {vt[5]}, {vt[0]}, {sWS}, 0 offen sc1', 's_endpgm', ('L', 'Laux2')])
S.free('key0', 'key1')
AX_SCR = 19 * 8192
L_WR = AX_SCR; L_KEY = AX_SCR + 2048; L_XS = AX_SCR + 2560; L_H = AX_SCR + 6144; L_U = AX_SCR + 6400
XS_STRIDE = 1344
l3 = vt[1]; l7 = vt[2]
sMW = S.alloc('mw'); sSo = S.alloc('so'); vB0 = V.alloc('b0'); vTw = V.alloc('tw', 3); wf = AG.alloc('wf', 80)
E([f'v_lshrrev_b32 {l3}, 3, {vLane}', f'v_and_b32 {l7}, 7, {vLane}', f's_lshl_b32 {sMW}, {sW}, 11', f's_lshl_b32 {sT[0]}, {sA}, 6', f's_lshl_b32 {sT[1]}, {sW}, 4',
   f's_add_u32 {sT[0]}, {sT[0]}, {sT[1]}', f'v_add_u32 {vt[3]}, {sT[0]}, {l3}', f'v_mul_u32_u24 {vt[3]}, 1280, {vt[3]}', f's_cmp_eq_u32 {sH}, 0', 's_cbranch_scc0 Laux_ld'])
st_aux = save_state()
def adma(sub, voff, srd, soff, nt, tag):
    return [f's_add_u32 m0, {sMW}, {sub * 8192}', f's_mov_b32 {sSo}, {soff}', (f'buffer_load_dwordx4 {voff[0]}, {srd}, {sSo} offen{nt} lds', tag),
            (f'buffer_load_dwordx4 {voff[1]}, {srd}, {sSo} offen offset:1024{nt} lds', tag)]
calc_tw = tr_parts(vB0, vt[5], vt[4], vt[6]) + [f'v_add_u32 {vB0}, {vB0}, {vt[5]}', f'v_lshl_add_u32 {vB0}, {vt[4]}, 3, {vB0}', f's_lshl_b32 {sT[0]}, {sW}, 5',
          f'v_xor_b32 {vTw[0]}, {sT[0]}, {vB0}', f'v_add_u32 {vTw[1]}, {7 * 8192}, {vTw[0]}', f'v_add_u32 {vTw[2]}, {14 * 8192}, {vTw[0]}']
def areads(subs):
    return [f'ds_read_b64_tr_b16 {wf[4 * k + 2 * h:4 * k + 2 * h + 2]}, {vTw[subs[k // 2] // 7]} offset:{(subs[k // 2] % 7) * 8192 + (k % 2) * 4096 + h * 512}' for k in range(20) for h in range(2)]
sX = S.alloc('srdx', 4); sWR_ = S.alloc('srdwr', 4); aXo = V.alloc('axo', 2)
E([f'v_xor_b32 {vt[4]}, {l7}, {vG}', f'v_lshl_add_u32 {aXo[0]}, {vt[4]}, 4, {vt[3]}', f'v_xor_b32 {aXo[1]}, 64, {aXo[0]}', f'v_add_u32 {aXo[1]}, {8 * 1280 - 1024}, {aXo[1]}',
   's_waitcnt lgkmcnt(0)'] + mk_srd(sX, pX, 2048 * 1280) + mk_srd(sWR_, pWR, 1280) +
  [f's_mov_b32 m0, {L_WR}', 's_nop 0', f'buffer_load_dwordx4 {vL16}, {sWR_}, 0 offen lds', 's_mov_b64 exec, 0xffff', f'buffer_load_dwordx4 {vL16}, {sWR_}, 0 offen offset:1024 lds', 's_mov_b64 exec, -1'])
for u in range(10): E(adma(u, aXo, sX, u * 128, NT['R'], ('x', u)))
vOnes = V.alloc('ones', 4); vRa = V.alloc('ra'); vXr = V.alloc('xr', 4)
sK1 = S.alloc('k1', 2); sK2 = S.alloc('k2', 2); vDiag = V.alloc('diag'); vSt = V.alloc('st', 2)
E(get_tag() + [f'v_mov_b32 {vOnes[i]}, 0x3f803f80' for i in range(4)] +
  [f'v_lshlrev_b32 {vRa}, 4, {vG}', f'v_add_u32 {vRa}, {L_WR}, {vRa}', f'v_lshrrev_b32 {vt[6]}, 1, {vTt}', f'v_xor_b32 {vt[6]}, {vt[6]}, {vG}', f'v_lshlrev_b32 {vt[6]}, 4, {vt[6]}',
   f'v_lshl_add_u32 {vt[6]}, {vTt}, 7, {vt[6]}', f'v_add_u32 {vXr[0]}, {sMW}, {vt[6]}', f'v_xor_b32 {vXr[1]}, 64, {vXr[0]}', f'v_add_u32 {vXr[2]}, {5 * 8192}, {vXr[0]}',
   f'v_add_u32 {vXr[3]}, {5 * 8192}, {vXr[1]}', f's_mov_b32 {sK1[0]}, 0xaaaaaaaa', f's_mov_b32 {sK1[1]}, 0xaaaaaaaa', f's_mov_b32 {sK2[0]}, 0xcccccccc', f's_mov_b32 {sK2[1]}, 0xcccccccc',
   f'v_lshrrev_b32 {vDiag}, 2, {vTt}', f'v_lshl_add_u32 {vDiag}, {vDiag}, 4, {vTt}', f'v_lshlrev_b32 {vDiag}, 2, {vDiag}'] + calc_tw + ['s_waitcnt lgkmcnt(0)'] + fin_tag())
rb_ = AG.alloc('rb', 32)
a4 = V.alloc('a4', 16); aSum, aSq, aDot, aSw = a4[0:4], a4[4:8], a4[8:12], a4[12:16]
def r_reads(u):
    b = (u % 2) * 16; L = [W(('x', u))]
    for kk in range(2):
        L += [(f'ds_read_b128 {rb_[b + 8 * kk:b + 8 * kk + 4]}, {vXr[(u // 5) * 2 + kk]} offset:{(u % 5) * 8192}', ('rr', u)),
              (f'ds_read_b128 {rb_[b + 8 * kk + 4:b + 8 * kk + 8]}, {vRa} offset:{(2 * u + kk) * 64}', ('rr', u))]
    return L
E(r_reads(0))
for u in range(10):
    if u < 9: E(r_reads(u + 1))
    E(W(lg=('rr', u)))
    for kk in range(2):
        b = (u % 2) * 16 + 8 * kk; x = rb_[b:b + 4]; r = rb_[b + 4:b + 8]
        E([f'{MFMA} {ac}, {a}, {bb}, {0 if (u == 0 and kk == 0) else ac}' for ac, a, bb in ((aSq, x, x), (aSum, vOnes, x), (aDot, r, x), (aSw, r, vOnes))])
E(stamp() + stats(aSum[0], aSq, vSt, vt, vDiag, sK1, sK2) +
  [f'v_lshrrev_b32 {vt[4]}, 16, {vt[0]}', f'v_or_b32 {vt[4]}, {vt[4]}, {vSt[0]}', f'v_mov_b32 {vt[5]}, {sTag}', f's_lshl_b32 {sT[0]}, {sA}, 9', f's_lshl_b32 {sT[1]}, {sW}, 7',
   f's_add_u32 {sT[0]}, {sT[0]}, {sT[1]}', f's_add_u32 {sT[0]}, {sT[0]}, {WS_STAT}', f'v_lshlrev_b32 {vt[6]}, 3, {vLane}', 's_mov_b64 exec, 0xffff',
   f'buffer_store_dwordx2 {vt[4:6]}, {vt[6]}, {sWS}, {sT[0]} offen sc1', 's_mov_b64 exec, -1'] +
  [f'v_fma_f32 {vt[0]}, {vSt[0]}, {aSw[0]}, {aDot[0]}', f'v_mul_f32 {vt[0]}, {vt[0]}, {vSt[1]}', f'v_cvt_pk_bf16_f32 {vt[0]}, {vt[0]}, {vt[0]}',
   f'v_ashrrev_i32 {vt[1]}, 31, {vt[0]}', f'v_or_b32 {vt[1]}, 0x80000000, {vt[1]}', f'v_xor_b32 {vt[0]}, {vt[0]}, {vt[1]}', f'v_and_b32 {vt[0]}, 0xffff0000, {vt[0]}',
   f'v_max_u32 {vt[0]}, 0x10000, {vt[0]}', f's_lshl_b32 {sT[0]}, {sW}, 4', f'v_add_u32 {vt[1]}, {sT[0]}, {vTt}', f'v_sub_u32 {vt[2]}, 63, {vt[1]}', f'v_or_b32 {vt[0]}, {vt[0]}, {vt[2]}',
   f'v_lshlrev_b32 {vt[1]}, 2, {vt[1]}', f'v_add_u32 {vt[1]}, {L_KEY}, {vt[1]}', f'ds_write_b32 {vt[1]}, {vt[0]}', W(lg='all'), 's_barrier'])
sKy0 = S.alloc('key0'); sKy1 = S.alloc('key1')
E([f's_cmp_lg_u32 {sW}, 0', 's_cbranch_scc1 Lpub_done', f'v_add_u32 {vt[1]}, {L_KEY}, {vL4}', f'ds_read_b32 {vt[2]}, {vt[1]}', W(lg='all'), f'v_mov_b32 {vt[0]}, {vt[2]}'] +
  wave_max_u32(vt[0], sKy0, sT) + [f'v_cmp_eq_u32 vcc, {sKy0}, {vt[2]}', f'v_cndmask_b32 {vt[0]}, {vt[2]}, 0, vcc'] + wave_max_u32(vt[0], sKy1, sT) +
  [f's_and_b32 {sT[0]}, {sKy0}, 0xffff0000', f's_lshr_b32 {sT[1]}, {sKy1}, 16', f's_or_b32 {sT[0]}, {sT[0]}, {sT[1]}', f's_and_b32 {sT[1]}, {sKy0}, 63', f's_and_b32 {sT[2]}, {sKy1}, 63',
   f's_lshl_b32 {sT[2]}, {sT[2]}, 6', f's_or_b32 {sT[1]}, {sT[1]}, {sT[2]}', f's_xor_b32 {sT[1]}, {sT[1]}, 0x8fff', f's_lshl_b32 {sT[2]}, {sA}, 2', f's_lshl_b32 {sT[3]}, {sA}, 1',
   f'v_mov_b32 {vt[0]}, {sT[0]}', f'v_mov_b32 {vt[1]}, {sT[1]}', f'v_mov_b32 {vt[2]}, {sT[2]}', f'v_mov_b32 {vt[3]}, {sT[3]}', 's_mov_b64 exec, 1',
   f'buffer_store_dword {vt[0]}, {vt[2]}, {sDBG}, 0 offen offset:{DBG_VAL} sc1', f'buffer_store_short {vt[1]}, {vt[3]}, {sDBG}, 0 offen offset:{DBG_IDX} sc1', 's_mov_b64 exec, -1'] + signal() + [
   ('L', 'Lpub_done')] + stamp() + [f's_cmp_ge_u32 {sA}, 27', 's_cbranch_scc1 Lend', 's_barrier'])
E(areads([10 + u for u in range(9)] + [9]) + [W(lg='all'), 's_barrier'] + stamp())
xr = V.alloc('xraw', 10); xv = V.alloc('xv', 20)
def half_sum(r, tmp):
    return [f'v_add_f32_dpp {r}, {r}, {r} row_ror:{sh} row_mask:0xf bank_mask:0xf' for sh in (8, 4, 2, 1)] + [f'v_mov_b32 {tmp}, {r}', f'v_permlane16_swap_b32 {r}, {tmp}', f'v_add_f32 {r}, {r}, {tmp}']
E([f's_cmp_lg_u32 {sW}, 0', 's_cbranch_scc1 Lsel_done'] + poll_top2(vt, sKy0, sKy1, sT) +
  [f's_and_b32 {sT[0]}, {sKy0}, 0x7ff', f's_sub_u32 {sT[0]}, 2047, {sT[0]}', f's_mul_i32 {sT[0]}, {sT[0]}, 1280', f's_and_b32 {sT[1]}, {sKy1}, 0x7ff', f's_sub_u32 {sT[1]}, 2047, {sT[1]}',
   f's_mul_i32 {sT[1]}, {sT[1]}, 1280', f'v_mov_b32 {vt[0]}, {sT[0]}', f'v_mov_b32 {vt[1]}, {sT[1]}', f'v_cmp_gt_u32 vcc, 32, {vLane}', f'v_cndmask_b32 {vt[0]}, {vt[1]}, {vt[0]}, vcc',
   f'v_and_b32 {vt[6]}, 31, {vLane}', f'v_lshl_add_u32 {vt[0]}, {vt[6]}, 3, {vt[0]}'] +
  [(f'buffer_load_dwordx2 {xr[2 * i:2 * i + 2]}, {vt[0]}, {sX}, 0 offen offset:{256 * i}', 'xs') for i in range(5)] + [W('xs')])
for i in range(10): E([f'v_lshlrev_b32 {xv[2 * i]}, 16, {xr[i]}', f'v_and_b32 {xv[2 * i + 1]}, 0xffff0000, {xr[i]}'])
E([f'v_add_f32 {vt[2]}, {xv[0]}, {xv[1]}'] + [f'v_add_f32 {vt[2]}, {vt[2]}, {xv[i]}' for i in range(2, 20)] + half_sum(vt[2], vt[3]) +
  [f'v_mul_f32 {vt[2]}, {f32(1 / 640)}, {vt[2]}', f'v_mov_b32 {vt[4]}, 0'])
for i in range(20): E([f'v_sub_f32 {vt[5]}, {xv[i]}, {vt[2]}', f'v_fmac_f32 {vt[4]}, {vt[5]}, {vt[5]}'])
E(half_sum(vt[4], vt[3]) + [f'v_mul_f32 {vt[4]}, {f32(1 / 640)}, {vt[4]}'] + bf16r(vt[4], vt[4]) + [f'v_add_f32 {vt[4]}, {f32(1e-5)}, {vt[4]}'] + bf16r(vt[4], vt[4]) +
  [f'v_sqrt_f32 {vt[4]}, {vt[4]}'] + bf16r(vt[4], vt[4]) + [f'v_rcp_f32 {vt[4]}, {vt[4]}'] + bf16r(vt[2], vt[2]) + [f'v_sub_f32 {xv[i]}, {xv[i]}, {vt[2]}' for i in range(20)] +
  round_pairs(xv, 20) + [f'v_mul_f32 {xv[i]}, {xv[i]}, {vt[4]}' for i in range(20)] + [f'v_cvt_pk_bf16_f32 {xr[i]}, {xv[2 * i]}, {xv[2 * i + 1]}' for i in range(10)] +
  [f'v_lshrrev_b32 {vt[0]}, 5, {vLane}', f'v_mul_u32_u24 {vt[0]}, {XS_STRIDE}, {vt[0]}', f'v_lshl_add_u32 {vt[0]}, {vt[6]}, 3, {vt[0]}', f'v_add_u32 {vt[0]}, {L_XS}, {vt[0]}'] +
  [f'ds_write_b64 {vt[0]}, {xr[2 * i:2 * i + 2]} offset:{256 * i}' for i in range(5)] + [W(lg='all'), ('L', 'Lsel_done')] + stamp() + ['s_barrier', 's_branch Laux_mm'])
aux_stamps = list(sST); aux_S = (dict(S.used), set(S.taken))
load_state(st_aux)
S.used, S.taken = dict(aux_S[0]), set(aux_S[1]); sST[:] = aux_stamps
A.label('Laux_ld')
sWG_ = S.alloc('srdg', 4); sWU_ = S.alloc('srdu', 4); sWD_ = S.alloc('srdd', 4); aGo = V.alloc('ago', 2); aDo = V.alloc('ado', 2)
E([f's_cmp_ge_u32 {sA}, 27', 's_cbranch_scc1 Lend',
   f'v_and_b32 {vt[4]}, 1, {vG}', f'v_lshlrev_b32 {vt[4]}, 1, {vt[4]}', f'v_xor_b32 {vt[4]}, {vt[4]}, {l7}', f'v_lshlrev_b32 {vt[4]}, 4, {vt[4]}',
   f'v_add_u32 {aDo[0]}, {vt[3]}, {vt[4]}', f'v_xor_b32 {aDo[1]}, 64, {aDo[0]}', f'v_add_u32 {aDo[1]}, {8 * 1280 - 1024}, {aDo[1]}',
   f'v_add_u32 {vt[5]}, {sT[1]}, {l3}', f'v_mul_u32_u24 {vt[5]}, 3456, {vt[5]}', f's_lshl_b32 {sT[2]}, {sA}, 7', f'v_add3_u32 {aGo[0]}, {vt[5]}, {vt[4]}, {sT[2]}',
   f'v_xor_b32 {aGo[1]}, 64, {aGo[0]}', f'v_add_u32 {aGo[1]}, {8 * 3456 - 1024}, {aGo[1]}'] + calc_tw + ['s_waitcnt lgkmcnt(0)'] + get_tag() +
  mk_srd(sWG_, pWG, 640 * 3456) + mk_srd(sWU_, pWU, 640 * 3456) + mk_srd(sWD_, pWD, 1728 * 1280))
if opt('gdelay', 0): E(f's_sleep {opt("gdelay", 0)}')
for u in range(9): E(adma(10 + u, aGo, sWG_, u * 64 * 3456, NT['F'], 'g'))
E(['s_waitcnt lgkmcnt(0)'] + fin_tag() + ['s_barrier'])
E(adma(9, aGo, sWG_, 9 * 64 * 3456, NT['F'], 'g'))
for u in range(9): E(adma(u, aGo, sWU_, u * 64 * 3456, NT['F'], 'u'))
E([W('g'), 's_barrier', 's_barrier'])
E(adma(9, aGo, sWU_, 9 * 64 * 3456, NT['F'], 'u'))
for u in range(9): E(adma(10 + u, aDo, sWD_, u * 128, NT['F'], 'd'))
E([W('u'), 's_barrier'] + areads(list(range(10))))
A.label('Laux_mm')
xf = Reg('v', 40, 80); aG = Reg('v', 120, 4); aU = Reg('v', 124, 4); tq = Reg('v', 36, 4)
E([f'v_and_b32 {vt[0]}, 1, {vLane}', f'v_mul_u32_u24 {vt[1]}, {XS_STRIDE}, {vt[0]}', f'v_lshl_add_u32 {vt[1]}, {vG}, 4, {vt[1]}', f'v_add_u32 {vt[1]}, {L_XS}, {vt[1]}'] +
  [f'ds_read_b128 {xf[4 * k:4 * k + 4]}, {vt[1]} offset:{64 * k}' for k in range(20)] + ['s_waitcnt lgkmcnt(0)', 's_barrier'])
E([f's_cmp_eq_u32 {sH}, 0', 's_cbranch_scc1 Lno_d9'] + adma(0, aDo, sWD_, 9 * 128, NT['F'], 'd') + [('L', 'Lno_d9')])
E([f'{MFMA} {aG if k % 2 == 0 else aU}, {wf[4 * k:4 * k + 4]}, {xf[4 * k:4 * k + 4]}, {0 if k < 2 else (aG if k % 2 == 0 else aU)}' for k in range(20)])
E([f's_lshl_b32 {sT[0]}, {sW}, 7', f's_add_u32 {sT[0]}, {sT[0]}, {L_U}', f'v_lshl_add_u32 {vt[2]}, {vG}, 1, {vt[0]}', f'v_lshl_add_u32 {vt[2]}, {vt[2]}, 4, {sT[0]}'] +
  [f'v_add_f32 {aG[i]}, {aG[i]}, {aU[i]}' for i in range(4)] + round_pairs(aG, 4) +
  [f's_cmp_eq_u32 {sH}, 0', 's_cbranch_scc1 Lgw', f'ds_write_b128 {vt[2]}, {aG}', 's_waitcnt lgkmcnt(0)', 's_barrier', 's_waitcnt vmcnt(0)', 's_branch Lhd', ('L', 'Lgw')] +
  silu_into(tq, aG, 4) + ['s_barrier', f'ds_read_b128 {aU}, {vt[2]}', f's_lshl_b32 {sT[0]}, {sW}, 5', f's_add_u32 {sT[0]}, {sT[0]}, {L_H}', f'v_lshlrev_b32 {vt[4]}, 7, {vt[0]}',
   f'v_lshl_add_u32 {vt[5]}, {vG}, 3, {vt[4]}', f'v_add_u32 {vt[5]}, {sT[0]}, {vt[5]}', 's_waitcnt lgkmcnt(0)'] + [f'v_mul_f32 {tq[i]}, {tq[i]}, {aU[i]}' for i in range(4)] +
  cvt2(vt[2:4], tq) + [f'ds_write_b64 {vt[5]}, {vt[2:4]}', 's_waitcnt lgkmcnt(0)', ('L', 'Lhd'), 's_barrier'] + stamp())
hA = xf[0:8]; aY = xf[8:24]; vOut = xf[24:28]; vDa = xf[28:32]
sG = [S.alloc(f'gm{i}', 2) for i in range(3)]
E([f'v_lshlrev_b32 {vt[4]}, 7, {vt[0]}', f'v_lshl_add_u32 {vt[5]}, {vG}, 4, {vt[4]}', f'v_add_u32 {vt[5]}, {L_H}, {vt[5]}'] +
  [f'ds_read_b128 {hA[4 * kk:4 * kk + 4]}, {vt[5]} offset:{64 * kk}' for kk in range(2)] + [f'v_cmp_eq_u32 {sG[i]}, {i + 1}, {vG}' for i in range(3)] +
  [f's_mov_b32 {sC}, {sWv}', ('L', 'Ldown'),
   f's_add_u32 {sT[1]}, {sC}, 10', f's_cmp_eq_u32 {sC}, 9', f's_cselect_b32 {sT[1]}, 0, {sT[1]}', f's_lshl_b32 {sT[1]}, {sT[1]}, 13', f'v_add_u32 {vDa[0]}, {sT[1]}, {vB0}'] +
  [f'v_xor_b32 {vDa[t]}, {32 * t}, {vDa[0]}' for t in (1, 2, 3)] +
  [f'ds_read_b64_tr_b16 {wf[(kk * 4 + t) * 4 + 2 * h:(kk * 4 + t) * 4 + 2 * h + 2]}, {vDa[t]} offset:{kk * 4096 + h * 512}' for kk in range(2) for t in range(4) for h in range(2)] +
  [f's_mul_i32 {sT[1]}, {sA}, 10', f's_add_u32 {sT[1]}, {sT[1]}, {sC}', f's_lshl_b32 {sT[1]}, {sT[1]}, 10', f's_add_u32 {sT[1]}, {sT[1]}, {WS_Y}',
   f'v_mov_b32 {vOut[1]}, {sTag}', f'v_mov_b32 {vOut[3]}, {sTag}', 's_waitcnt lgkmcnt(0)'] +
  [f'{MFMA} {aY[4 * t:4 * t + 4]}, {hA[4 * kk:4 * kk + 4]}, {wf[(kk * 4 + t) * 4:(kk * 4 + t) * 4 + 4]}, {0 if kk == 0 else aY[4 * t:4 * t + 4]}' for kk in range(2) for t in range(4)])
for q, r in ((0, 0), (2, 1)):
    E([f'v_cndmask_b32 {vOut[q]}, {aY[r]}, {aY[4 + r]}, {sG[0]}', f'v_cndmask_b32 {vOut[q]}, {vOut[q]}, {aY[8 + r]}, {sG[1]}', f'v_cndmask_b32 {vOut[q]}, {vOut[q]}, {aY[12 + r]}, {sG[2]}'])
E([f'buffer_store_dwordx4 {vOut}, {vL16}, {sWS}, {sT[1]} offen sc1', f's_add_u32 {sC}, {sC}, 8', f's_cmp_lt_u32 {sC}, 10', 's_cbranch_scc1 Ldown'])
write_stamps(0, 'aux')
A.label('Lend')
A('s_endpgm')
A.raw(f'''.section .rodata,"a"
.p2align 6
.amdhsa_kernel {NAME}_kernel
  .amdhsa_next_free_vgpr 256
  .amdhsa_next_free_sgpr 102
  .amdhsa_accum_offset 128
  .amdhsa_group_segment_fixed_size 0
  .amdhsa_kernarg_size 88
  .amdhsa_user_sgpr_count 2
  .amdhsa_user_sgpr_kernarg_segment_ptr 1
  .amdhsa_system_sgpr_workgroup_id_x 1
  .amdhsa_float_denorm_mode_32 3
.end_amdhsa_kernel''')
txt = A.render()
open(sys.argv[1], 'w').write(txt)
print('lines', txt.count('\n'), 'nops added', A.nops_added, 'vmax', V.maxused, 'amax', AG.maxused, 'smax', S.maxused, file=sys.stderr)
```

```python
import sys, math, struct
from asmlib import Asm, RegAlloc, Reg
NAME = "recurrent_scan__sliding_local_dilated__moe_arch_mod__prompt"
OPTS = set(sys.argv[2:])
STAMPS = 'stamps' in OPTS
def opt(name, default):
    for o in OPTS:
        if o.startswith(name + '='): return type(default)(o[len(name) + 1:])
    return default
DUMP = opt('dump', '')
NT = {k: (' nt' if k in opt('nt', 'F') else '') for k in 'WXOFRS'}
STAMPW = opt('sw', 2)

def f32(x): return '0x%08x' % struct.unpack('<I', struct.pack('<f', x))[0]
L2E = math.log2(math.e)

def tables():
    U = []; SL = []
    for cc in range(5):
        h0 = (16 * cc) // 5
        slot = [((16 * cc + q) // 5) - h0 for q in range(16)]
        s1 = [q for q in range(16) if slot[q] == 1]; s2 = [q for q in range(16) if slot[q] == 2]
        t0 = s1[:4]; e1 = s1[4]; t3 = s2[1:]; e2 = s2[0]
        rest = [q for q in range(16) if q not in t0 and q not in t3]
        t1 = []; t2 = []
        for res in range(4):
            pair = [q for q in rest if q % 4 == res]
            if e1 in pair: a = e1; b = pair[0] if pair[1] == e1 else pair[1]
            elif e2 in pair: b = e2; a = pair[0] if pair[1] == e2 else pair[1]
            else: a, b = pair
            t1.append(a); t2.append(b)
        tl = [sorted(t0, key=lambda q: q % 4), t1, t2, sorted(t3, key=lambda q: q % 4)]
        u = 0; sl = 0
        for t in range(4):
            for g in range(4):
                q = tl[t][g]
                u |= (q // 4) << (2 * (4 * t + g)); sl |= slot[q] << (2 * (4 * t + g))
        U.append(u); SL.append(sl)
    return U, SL
UT, SLT = tables()

SLOT = 39040; VOFF = 16384; XOFF = 24576; ONES_OFF = 38912; NSL = 4; ND = 4; NI = 10 - ND
SCR = 4 * SLOT
L_M = SCR; L_R = SCR + 512; L_CS = SCR + 1024
L_CSV = SCR + 1536
L_CSF = SCR + 1792; L_UF = SCR + 1796; L_INFO = SCR + 1800; L_QF = SCR + 1808; L_C2 = SCR + 1812; L_C3 = SCR + 1816; L_WF = SCR + 1820; L_UPD = SCR + 2048; SENT = -2
EXB = 2 * SLOT + XOFF; VXB = 3 * SLOT + XOFF
OWIN = [0, SLOT + XOFF]
OLOC = [0, 8192, XOFF, EXB + 20480, SLOT + XOFF + 16384, XOFF + 8192, XOFF + 16384, SLOT + XOFF, SLOT + XOFF + 8192]
KLOC = [b + 4096 * kk for b in OLOC for kk in range(2)] + [XOFF + 24576, SLOT + XOFF + 24576]
LDS_BYTES = 163840
WS_SX = 0x100000; WS_O = 0x400000; WS_FL = 0x700000; WS_Y = 0x710000; WS_ST = 0x800000; WS_STAT = 0x7d0000; WS_SIG = 0x7f0000; WS_BC = 0x7e0000; WS_DUMP = 0x1000000
DBG_VAL = 64; DBG_IDX = 192
NSIG = 220 + 27
NEG_INF = '0xff800000'
SCALE_L2E = (20 ** -0.5) * L2E
MFMA = 'v_mfma_f32_16x16x32_bf16'

A = Asm()
V = RegAlloc('v', 1, 128); AG = RegAlloc('a', 0, 128); S = RegAlloc('s', 3, 102)

class Em:
    def __init__(self): self.vm = []; self.lg = []
    def reset(self): self.vm = []; self.lg = []
    def cnt(self, q, tag, mx):
        if tag == 'all': n = 0
        elif tag not in q: return None
        else: n = len(q) - 1 - max(i for i, t in enumerate(q) if t == tag)
        n = min(n, mx)
        del q[:len(q) - n]
        return n
    def __call__(self, it):
        if isinstance(it, list):
            for x in it: self(x)
            return
        if isinstance(it, tuple) and it[0] == 'W':
            parts = []
            if it[1] is not None:
                n = self.cnt(self.vm, it[1], 63)
                if n is not None: parts.append(f'vmcnt({n})')
            if it[2] is not None:
                n = self.cnt(self.lg, it[2], 15)
                if n is not None: parts.append(f'lgkmcnt({n})')
            if parts: A('s_waitcnt ' + ' '.join(parts))
            return
        if isinstance(it, tuple) and it[0] == 'L': A.label(it[1]); return
        text, tag = (it, None) if isinstance(it, str) else it
        if text.startswith('ds_'):
            if 'lgthr' in OPTS and len(self.lg) >= 15: A('s_waitcnt lgkmcnt(14)'); del self.lg[:len(self.lg) - 14]
            self.lg.append(tag)
        elif text.startswith('buffer_'):
            if len(self.vm) >= 63: A('s_waitcnt vmcnt(55)'); del self.vm[:len(self.vm) - 55]
            self.vm.append(tag)
        A(text)
E = Em()
def W(vm=None, lg=None): return ('W', vm, lg)

def merge(a, b, na=1, nb=1):
    out = []; i = j = 0
    while i < len(a) or j < len(b):
        out += a[i:i + na]; i += na
        out += b[j:j + nb]; j += nb
    return out
def spread(a, b):
    out = []; j = 0
    for i, x in enumerate(a):
        out.append(x)
        while j < len(b) and j * len(a) < (i + 1) * len(b): out.append(b[j]); j += 1
    return out + b[j:]

sST = []
FINE = opt('fine', '')
def fstamp(grp):
    return stamp(True) if grp == FINE else []
def stamp(force=False):
    if not STAMPS: return []
    if FINE and not force and len(sST) > 0: return []
    r = S.alloc(f'stamp{len(sST)}', 2); sST.append(r)
    return [f's_memtime {r}' if 'clk' in OPTS else f's_memrealtime {r}']
def bf16r(dst, src): return [f'v_cvt_pk_bf16_f32 {dst}, {src}, {src}', f'v_lshlrev_b32 {dst}, 16, {dst}']
def mk_srd(dst, ptr, nbytes, add=0):
    if add > 0: L = [f's_add_u32 {dst[0]}, {ptr[0]}, {add}', f's_addc_u32 {dst[1]}, {ptr[1]}, 0']
    elif add < 0: L = [f's_sub_u32 {dst[0]}, {ptr[0]}, {-add}', f's_subb_u32 {dst[1]}, {ptr[1]}, 0']
    else: L = [f's_mov_b64 {dst[0:2]}, {ptr}']
    return L + [f's_mov_b32 {dst[2]}, {nbytes - add}', f's_mov_b32 {dst[3]}, 0x20000']
def spin_guard(): return [f's_sub_u32 {sSpin}, {sSpin}, 1', 's_cbranch_scc1 Lend']
def stats(sumreg, sq4, st, tmp, vdiag, mk1, mk2):
    return [f'v_cndmask_b32 {tmp[0]}, {sq4[0]}, {sq4[1]}, {mk1}', f'v_cndmask_b32 {tmp[1]}, {sq4[2]}, {sq4[3]}, {mk1}',
            f'v_cndmask_b32 {tmp[0]}, {tmp[0]}, {tmp[1]}, {mk2}', (f'ds_bpermute_b32 {tmp[0]}, {vdiag}, {tmp[0]}', 'bp'),
            f'v_mul_f32 {tmp[1]}, {f32(-1 / 640)}, {sumreg}'] + bf16r(st[0], tmp[1]) + [f'v_mul_f32 {tmp[1]}, {tmp[1]}, {tmp[1]}',
            f'v_mov_b32 {tmp[2]}, {f32(1 / 640)}', W(lg='bp'),
            f'v_fma_f32 {tmp[0]}, {tmp[0]}, {tmp[2]}, -{tmp[1]}', f'v_max_f32 {tmp[0]}, 0, {tmp[0]}'] + bf16r(tmp[0], tmp[0]) + \
           [f'v_add_f32 {tmp[0]}, {f32(1e-5)}, {tmp[0]}'] + bf16r(tmp[0], tmp[0]) + [f'v_sqrt_f32 {tmp[0]}, {tmp[0]}'] + bf16r(tmp[0], tmp[0]) + \
           [f'v_rcp_f32 {st[1]}, {tmp[0]}']
def wave_max_u32(r, sdst, st):
    return [f'v_max_u32_dpp {r}, {r}, {r} row_ror:{sh} row_mask:0xf bank_mask:0xf' for sh in (8, 4, 2, 1)] + \
           [f'v_readlane_b32 {sdst}, {r}, 0', f'v_readlane_b32 {st[0]}, {r}, 16', f'v_readlane_b32 {st[1]}, {r}, 32', f'v_readlane_b32 {st[2]}, {r}, 48',
            f's_max_u32 {sdst}, {sdst}, {st[0]}', f's_max_u32 {st[1]}, {st[1]}, {st[2]}', f's_max_u32 {sdst}, {sdst}, {st[1]}']
def poll_top2(t, sK0, sK1, st):
    L = A.newlabel('Lpt'); Ld = A.newlabel('Lptd')
    return [('L', L)] + spin_guard() + [
        f'buffer_load_dword {t[0]}, {vL4}, {sDBG}, 0 offen offset:{DBG_VAL} sc1',
        f'v_lshrrev_b32 {t[1]}, 1, {vL4}', f'v_and_b32 {t[1]}, 0x3c, {t[1]}', f'v_add_u32 {t[1]}, 128, {t[1]}', W('all'),
        f'ds_bpermute_b32 {t[1]}, {t[1]}, {t[0]}', f'v_and_b32 {t[2]}, 4, {vL4}', f'v_lshlrev_b32 {t[2]}, 2, {t[2]}', W(lg='all'),
        f'v_bfe_u32 {t[1]}, {t[1]}, {t[2]}, 16', f'v_cmp_ne_u32 vcc, 0, {t[0]}', f'v_cmp_ne_u32 {st[0:2]}, 0, {t[1]}',
        f's_and_b32 {st[0]}, {st[0]}, vcc_lo', f's_cmp_eq_u32 {st[0]}, -1', f's_cbranch_scc1 {Ld}', 's_sleep 2', f's_branch {L}', ('L', Ld),
        f'v_lshlrev_b32 {t[2]}, 4, {vL4}', f'v_and_b32 {t[3]}, 63, {t[1]}', f'v_add_u32 {t[3]}, {t[3]}, {t[2]}', f'v_sub_u32 {t[3]}, 2047, {t[3]}',
        f'v_bfe_u32 {t[1]}, {t[1]}, 6, 6', f'v_add_u32 {t[1]}, {t[1]}, {t[2]}', f'v_sub_u32 {t[1]}, 2047, {t[1]}',
        f'v_and_b32 {t[2]}, 0xffff0000, {t[0]}', f'v_or_b32 {t[3]}, {t[3]}, {t[2]}', f'v_lshl_or_b32 {t[1]}, {t[0]}, 16, {t[1]}',
        f'v_cmp_gt_u32 vcc, 128, {vL4}', f'v_cndmask_b32 {t[3]}, 0, {t[3]}, vcc', f'v_cndmask_b32 {t[1]}, 0, {t[1]}, vcc', f'v_mov_b32 {t[0]}, {t[3]}'] + \
        wave_max_u32(t[0], sK0, st) + [f'v_cmp_eq_u32 vcc, {sK0}, {t[3]}', f'v_cndmask_b32 {t[0]}, {t[3]}, {t[1]}, vcc'] + wave_max_u32(t[0], sK1, st)
def round_pairs(x, n):
    L = [f'v_cvt_pk_bf16_f32 {x[i + 1]}, {x[i]}, {x[i + 1]}' for i in range(0, n, 2)]
    for i in range(0, n, 2): L += [f'v_lshlrev_b32 {x[i]}, 16, {x[i + 1]}', f'v_and_b32 {x[i + 1]}, 0xffff0000, {x[i + 1]}']
    return L
def silu_into(g, z, n):
    return [f'v_mul_f32 {g[i]}, {f32(-L2E)}, {z[i]}' for i in range(n)] + [f'v_exp_f32 {g[i]}, {g[i]}' for i in range(n)] + \
           [f'v_add_f32 {g[i]}, 1.0, {g[i]}' for i in range(n)] + [f'v_rcp_f32 {g[i]}, {g[i]}' for i in range(n)] + \
           [f'v_mul_f32 {g[i]}, {g[i]}, {z[i]}' for i in range(n)] + round_pairs(g, n)
def cvt2(dst, acc): return [f'v_cvt_pk_bf16_f32 {dst[0]}, {acc[0]}, {acc[1]}', f'v_cvt_pk_bf16_f32 {dst[1]}, {acc[2]}, {acc[3]}']
def tr_parts(vrow, vphi32, vc, tmp):
    return [f'v_bfe_u32 {tmp}, {vLane}, 2, 2', f'v_and_b32 {vc}, 3, {vLane}', f'v_lshl_add_u32 {vrow}, {vG}, 3, {tmp}', f'v_lshlrev_b32 {vrow}, 7, {vrow}',
            f'v_lshlrev_b32 {vphi32}, 2, {vLane}', f'v_and_b32 {vphi32}, 0x60, {vphi32}']
def save_state(): return (dict(V.used), set(V.taken), dict(S.used), set(S.taken), dict(AG.used), set(AG.taken), list(sST))
def load_state(st):
    V.used, V.taken, S.used, S.taken, AG.used, AG.taken = [x.copy() for x in st[:6]]; sST[:] = st[6]; E.reset()
def write_stamps(who, kind):
    if not STAMPS: return
    E([W('all')] + stamp(True) + ['s_waitcnt lgkmcnt(0)', f's_cmp_lg_u32 {sWv}, {who}', 's_cbranch_scc1 Lend',
       f's_mul_i32 {sT[0]}, s2, 128', f's_add_u32 {sT[0]}, {sT[0]}, {WS_ST}', 's_mov_b64 exec, 1', f'v_mov_b32 {vt[2]}, 0'])
    print(kind, 'stamps', len(sST), file=sys.stderr)
    lk = opt('leak', -1)
    if lk >= 0 and kind == opt('leakk', 'main'):
        Lp = A.newlabel('Lpad')
        E([f's_sub_u32 {sT[1]}, {sST[lk][0]}, {sST[0][0]}', f's_mul_i32 {sT[1]}, {sT[1]}, 5', f's_add_u32 {sT[1]}, {sT[1]}, 3000', ('L', Lp), f's_memrealtime {sT[2:4]}', 's_waitcnt lgkmcnt(0)',
           f's_sub_u32 {sT[2]}, {sT[2]}, {sST[0][0]}', f's_cmp_lt_u32 {sT[2]}, {sT[1]}', f's_cbranch_scc1 {Lp}'])
    for i in range(16):
        j = min(i, len(sST) - 1)
        E([f'v_mov_b32 {vt[0]}, {sST[j][0]}', f'v_mov_b32 {vt[1]}, {sST[j][1]}', f'buffer_store_dwordx2 {vt[0:2]}, {vt[2]}, {sWS}, {sT[0]} offen offset:{8 * i}', 's_nop 1'])
def signal():
    return ['s_mov_b64 exec, 1', f's_lshl_b32 {sT[0]}, s2, 2', f's_add_u32 {sT[0]}, {sT[0]}, {WS_SIG}', f'v_mov_b32 {vt[0]}, {sTag}', f'v_mov_b32 {vt[1]}, {sT[0]}',
            f'buffer_store_dword {vt[0]}, {vt[1]}, {sWS}, 0 offen sc1', 's_mov_b64 exec, -1']

sKA = S.alloc('ka', 16); sKB = S.alloc('kb', 6, 4)
sWS = S.alloc('srdws', 4); sDBG = S.alloc('srddbg', 4)
sWv = S.alloc('wv'); sW = S.alloc('w'); sH = S.alloc('h'); sRB = S.alloc('rb'); sC = S.alloc('c')
sT = S.alloc('t', 4); sTag = S.alloc('tag'); sSpin = S.alloc('spin')
A.raw(f'''; @launch grid=(256,1,1) block=(512,1,1) lds={LDS_BYTES}
.amdgcn_target "amdgcn-amd-amdhsa--gfx950"
.text
.globl {NAME}_kernel
.p2align 8
.type {NAME}_kernel,@function
{NAME}_kernel:''')
vLane = V.alloc('lane'); vG = V.alloc('g'); vTt = V.alloc('t16'); vt = V.alloc('vt', 8); vL4 = V.alloc('lane4'); vL16 = V.alloc('lane16')
pX, pW, pWO, pWR, pWG, pWU, pWD = sKA[0:2], sKA[2:4], sKA[4:6], sKA[8:10], sKA[10:12], sKA[12:14], sKA[14:16]
pOUT, pDBG, pWS = sKB[0:2], sKB[2:4], sKB[4:6]
E([f's_load_dwordx16 {sKA}, s[0:1], 0', f's_load_dwordx4 {sKB[0:4]}, s[0:1], 64', f's_load_dwordx2 {sKB[4:6]}, s[0:1], 80'] + stamp() +
  [f'v_lshrrev_b32 {vt[0]}, 6, v0', f'v_and_b32 {vLane}, 63, v0', 's_cmp_ge_u32 s2, 256', 's_cbranch_scc1 Lend',
   f'v_readfirstlane_b32 {sWv}, {vt[0]}', f'v_lshrrev_b32 {vG}, 4, {vLane}', f'v_and_b32 {vTt}, 15, {vLane}',
   f'v_lshlrev_b32 {vL4}, 2, {vLane}', f'v_lshlrev_b32 {vL16}, 4, {vLane}', f's_mov_b32 {sSpin}, 200000',
   f's_and_b32 {sT[0]}, s2, 7', f's_lshr_b32 {sT[1]}, s2, 3', f's_and_b32 {sT[2]}, {sT[0]}, 1', f's_lshr_b32 {sT[0]}, {sT[0]}, 1', f's_add_u32 {sT[3]}, {sT[2]}, 4',
   f's_and_b32 {sW}, {sWv}, 3', f's_lshr_b32 {sH}, {sWv}, 2',
   f's_cmp_lt_u32 {sT[1]}, {sT[3]}', 's_cbranch_scc1 Laux'])
st_common = save_state()
def get_tag():
    return mk_srd(sWS, pWS, 0x10000000, opt('wsoff', 0) << 20) + mk_srd(sDBG, pDBG, 256) + [f's_load_dword {sTag}, {sWS[0:2]}, 0']
def fin_tag(): return [f's_add_u32 {sTag}, {sTag}, 0x9e3779b8', f's_or_b32 {sTag}, {sTag}, 1']
if opt('map', 1) == 0:
    E([f's_mul_i32 {sT[0]}, {sT[0]}, 55', f's_mul_i32 {sT[2]}, {sT[2]}, 28', f's_add_u32 {sT[0]}, {sT[0]}, {sT[2]}', f's_add_u32 {sT[0]}, {sT[0]}, {sT[1]}',
       f's_sub_u32 {sT[0]}, {sT[0]}, {sT[3]}', f's_mul_i32 {sRB}, {sT[0]}, 6554', f's_lshr_b32 {sRB}, {sRB}, 16', f's_mul_i32 {sT[1]}, {sRB}, 10', f's_sub_u32 {sC}, {sT[0]}, {sT[1]}'])
else:
    E([f's_lshr_b32 {sC}, {sT[0]}, 1', f's_and_b32 {sT[0]}, {sT[0]}, 1',
       f's_mul_i32 {sT[0]}, {sT[0]}, 55', f's_mul_i32 {sT[2]}, {sT[2]}, 28', f's_add_u32 {sT[0]}, {sT[0]}, {sT[2]}', f's_add_u32 {sT[0]}, {sT[0]}, {sT[1]}',
       f's_sub_u32 {sT[0]}, {sT[0]}, {sT[3]}', f's_mul_i32 {sRB}, {sT[0]}, 13108', f's_lshr_b32 {sRB}, {sRB}, 16', f's_mul_i32 {sT[1]}, {sRB}, 5', f's_sub_u32 {sT[0]}, {sT[0]}, {sT[1]}',
       f's_mul_i32 {sC}, {sC}, 5', f's_add_u32 {sC}, {sC}, {sT[0]}'])
sCC = S.alloc('cc'); sU = S.alloc('U')
def sel_cc(dst, tab):
    L = [f's_mov_b32 {dst}, {tab[0]:#x}']
    for cc in range(1, 5): L += [f's_cmp_eq_u32 {sCC}, {cc}', f's_cselect_b32 {dst}, {tab[cc]:#x}, {dst}']
    return L
calc_cc = [f's_sub_u32 {sT[0]}, {sC}, 5', f's_cmp_ge_u32 {sC}, 5', f's_cselect_b32 {sCC}, {sT[0]}, {sC}'] + sel_cc(sU, UT)
vOnes = V.alloc('ones', 4); vrow = V.alloc('trrow'); vPhi = V.alloc('phi32'); vWr = V.alloc('wr', 8)
def calc_wr(secoff):
    vc = vt[4]
    L = tr_parts(vrow, vPhi, vc, vt[3]) + [f'v_lshlrev_b32 {vt[6]}, 1, {vc}', f'v_add_u32 {vt[5]}, {secoff}, {vrow}']
    for t in range(4):
        L += [f'v_add_u32 {vt[7]}, {8 * t}, {vt[6]}', f'v_bfe_u32 {vt[7]}, {sU}, {vt[7]}, 2', f'v_lshl_add_u32 {vt[7]}, {vt[7]}, 2, {vc}', f'v_lshlrev_b32 {vt[7]}, 3, {vt[7]}',
              f'v_xad_u32 {vWr[t]}, {vt[7]}, {vPhi}, {vt[5]}']
    return L + [f'v_add_u32 {vWr[4 + t]}, {2 * SLOT}, {vWr[t]}' for t in range(4)]
def trs(dst, areg, off, tag): return [(f'ds_read_b64_tr_b16 {dst[2 * h:2 * h + 2]}, {areg} offset:{off + h * 512}', tag) for h in range(2)]
def cnt_arrive(addr, va, vb): return [f'v_mov_b32 {va}, {addr}', f'v_mov_b32 {vb}, 1', 's_mov_b64 exec, 1', f'ds_add_u32 {va}, {vb}', 's_mov_b64 exec, -1']
def cnt_wait(n, va, vb):
    L = A.newlabel('Lcw')
    return [('L', L)] + spin_guard() + [f'ds_read_b32 {vb}, {va}', W(lg='all'), f'v_readfirstlane_b32 {sT[2]}, {vb}', f's_cmp_lt_u32 {sT[2]}, {n}', f's_cbranch_scc1 {L}']
set_ones = [f'v_mov_b32 {vOnes[i]}, 0x3f803f80' for i in range(4)]
E([f's_cmp_eq_u32 {sWv}, 0', 's_cbranch_scc1 Lloader'])
st_main = save_state()

sTau = S.alloc('tau'); sOUT = S.alloc('srdout', 4)
acc = V.alloc('acc', 32); B1 = V.alloc('B1', 16); B2 = V.alloc('B2', 16); B3 = V.alloc('B3', 16)
vXb = V.alloc('xb', 8); vPM = V.alloc('pm', 4); vSt = V.alloc('st', 4); vVr = B2[8:12]
vXe = V.alloc('xea'); vEx = V.alloc('exa'); vScB = V.alloc('scb'); vSc = [vSt[3], vScB]
vXr = B2[0:8]; accV = B1
sVx = S.alloc('vx')
E([f's_lshl_b32 {sTau}, {sW}, 1', f's_add_u32 {sTau}, {sTau}, {sH}'] + calc_cc + [f's_lshl_b32 {sT[1]}, {sH}, 13', f's_cmp_eq_u32 {sTau}, 1', f's_cselect_b32 {sT[1]}, 0, {sT[1]}'] + calc_wr(sT[1]))
E([f'v_lshrrev_b32 {vt[6]}, 1, {vTt}', f'v_xor_b32 {vt[5]}, {vt[6]}, {vG}', f'v_lshlrev_b32 {vt[5]}, 4, {vt[5]}', f'v_lshl_add_u32 {vt[5]}, {vTt}, 7, {vt[5]}',
   f's_lshl_b32 {sT[0]}, {sTau}, 11', f's_xor_b32 {sT[2]}, {sT[0]}, 2048', f's_add_u32 {sT[0]}, {sT[0]}, {XOFF - 2048}', f's_add_u32 {sT[2]}, {sT[2]}, {XOFF - 2048}',
   f'v_add_u32 {vXr[0]}, {sT[0]}, {vt[5]}', f'v_add_u32 {vXr[2]}, {sT[2]}, {vt[5]}',
   f's_mul_i32 {sT[3]}, {sW}, 6144', f's_add_u32 {sT[3]}, {sT[3]}, {EXB - 4096}', f'v_add_u32 {vEx}, {sT[3]}, {vL16}',
   f's_lshl_b32 {sVx}, {sTau}, 11', f's_add_u32 {sVx}, {sVx}, {VXB - 2048}',
   's_waitcnt lgkmcnt(0)'] + get_tag() + [f's_cmp_eq_u32 {sTau}, 1', 's_cbranch_scc1 Lhalo'])
st_halo = save_state()
E([f'v_xor_b32 {vXr[1]}, 64, {vXr[0]}', f'v_xor_b32 {vXr[3]}, 64, {vXr[2]}'] + [f'v_add_u32 {vXr[4 + j]}, {2 * SLOT}, {vXr[j]}' for j in range(4)] +
  [f's_cmp_eq_u32 {sH}, 0', 's_cselect_b64 vcc, 0, -1', f's_sub_u32 {sT[1]}, {VOFF}, {sT[1]}', f'v_cndmask_b32 {vVr[0]}, {vWr[0]}, {vWr[2]}, vcc', f'v_cndmask_b32 {vVr[1]}, {vWr[1]}, {vWr[3]}, vcc',
   f'v_add_u32 {vVr[0]}, {sT[1]}, {vVr[0]}', f'v_add_u32 {vVr[1]}, {sT[1]}, {vVr[1]}', f'v_add_u32 {vVr[2]}, {2 * SLOT}, {vVr[0]}', f'v_add_u32 {vVr[3]}, {2 * SLOT}, {vVr[1]}',
   f'v_lshrrev_b32 {vt[4]}, 1, {vG}', f'v_xor_b32 {vt[4]}, {vt[4]}, {vt[6]}', f'v_lshlrev_b32 {vt[4]}, 4, {vt[4]}', f'v_lshl_add_u32 {vt[4]}, {vTt}, 7, {vt[4]}',
   f'v_and_b32 {vt[3]}, 1, {vG}', f'v_lshl_add_u32 {vXe}, {vt[3]}, 3, {vt[4]}', f'v_add_u32 {vt[0]}, {sT[0]}, {vXe}',
   f'v_xor_b32 {vt[1]}, 32, {vt[0]}', f'v_xor_b32 {vt[2]}, 64, {vt[0]}', f'v_xor_b32 {vt[3]}, 0x60, {vt[0]}'] + mk_srd(sOUT, pOUT, 2048 * 1280) + set_ones)
S.free('ka', 'kb')
sSL = S.alloc('SL'); sM = {}
E(sel_cc(sSL, SLT))
for t in (1, 2):
    E([f'v_lshlrev_b32 {vt[6]}, 1, {vG}', f'v_add_u32 {vt[6]}, {8 * t}, {vt[6]}', f'v_bfe_u32 {vt[6]}, {sSL}, {vt[6]}, 2'])
    for sl in (0, 3, t):
        sM[(sl, t)] = S.alloc(f'm{sl}{t}', 2); E(f'v_cmp_eq_u32 {sM[(sl, t)]}, {sl}, {vt[6]}')
S.free('SL', 'U')
def lmask(f): return sum(1 << l for l in range(64) if f(l >> 4, l & 15))
MCA = lmask(lambda g, t: t - 4 * g - (t & 1) >= 0); MCB = lmask(lambda g, t: t - 4 * g - 2 - (t & 1) >= 0)
sK1 = S.alloc('k1', 2); sCA = S.alloc('ca', 2); sCB = S.alloc('cb', 2); sFirst = S.alloc('first')
sOb = S.alloc('ob', 5, 1); sOst = S.alloc('ost'); sFl = S.alloc('fl'); sSx = S.alloc('ssx', 4, 1); sCs = S.alloc('cscale')
vRka = B3[0:2]; vSa = B3[2]; vCa = B3[3]; vQf = B3[4]
E([f's_mov_b32 {sK1[0]}, 0xaaaaaaaa', f's_mov_b32 {sK1[1]}, 0xaaaaaaaa',
   f's_mov_b32 {sCA[0]}, {MCA & 0xffffffff:#x}', f's_mov_b32 {sCA[1]}, {MCA >> 32:#x}', f's_mov_b32 {sCB[0]}, {MCB & 0xffffffff:#x}', f's_mov_b32 {sCB[1]}, {MCB >> 32:#x}',
   f'v_mov_b32 {vt[4]}, 0xffff', f'v_not_b32 {vt[5]}, {vt[4]}', f'v_cndmask_b32 {vt[4]}, {vt[4]}, {vt[5]}, {sK1}',
   f'v_cndmask_b32 {vPM[2]}, 0, {vt[4]}, {sCA}', f'v_cndmask_b32 {vPM[3]}, 0, {vt[4]}, {sCB}', f'v_xor_b32 {vPM[0]}, {vPM[2]}, {vt[4]}', f'v_xor_b32 {vPM[1]}, {vPM[3]}, {vt[4]}',
   f's_cmp_eq_u32 {sRB}, 0', f's_cselect_b32 {sT[0]}, {sTau}, 0', f's_cmp_eq_u32 {sT[0]}, 2', f's_cselect_b32 {sFirst}, {NEG_INF}, 0',
   f's_mul_i32 {sT[0]}, {sRB}, 6', f's_add_u32 {sT[0]}, {sT[0]}, {sTau}', f's_sub_u32 {sT[0]}, {sT[0]}, 2', f's_lshl_b32 {sFl}, {sT[0]}, 7', f's_add_u32 {sFl}, {sFl}, {WS_FL}',
   f's_mul_i32 {sOb[0]}, {sT[0]}, 20480', f's_add_u32 {sOb[0]}, {sOb[0]}, {WS_O}', f's_lshl_b32 {sT[0]}, {sC}, 11', f's_add_u32 {sOst}, {sT[0]}, {sOb[0]}'] +
  [f's_add_u32 {sOb[i]}, {sOb[0]}, {4096 * i}' for i in range(1, 5)] +
  [f's_mul_i32 {sT[0]}, {sRB}, 10', f's_add_u32 {sT[0]}, {sT[0]}, {sC}', f's_mul_i32 {sSx[0]}, {sT[0]}, 12288', f's_lshl_b32 {sT[0]}, {sTau}, 10', f's_add_u32 {sSx[0]}, {sSx[0]}, {sT[0]}',
   f's_add_u32 {sSx[0]}, {sSx[0]}, {WS_SX - 2048}', f's_add_u32 {sSx[1]}, {sSx[0]}, 6144', f's_sub_u32 {sSx[2]}, {sSx[0]}, 6144', f's_add_u32 {sSx[3]}, {sSx[0]}, 12288',
   f's_mov_b32 {sCs}, {f32(SCALE_L2E)}',
   f's_lshl_b32 {sT[0]}, {sTau}, 6', f's_add_u32 {sT[0]}, {sT[0]}, {L_M}', f'v_lshl_add_u32 {vSa}, {vTt}, 2, {sT[0]}',
   f'v_and_b32 {vt[4]}, 1, {vLane}', f'v_lshl_add_u32 {vt[4]}, {vG}, 2, {vt[4]}', f'v_lshl_add_u32 {vt[4]}, {vt[4]}, 2, {sT[0]}', f'v_subrev_u32 {vt[5]}, 64, {vt[4]}',
   f'v_cndmask_b32 {vRka[0]}, {vt[5]}, {vt[4]}, {sCA}', f'v_cndmask_b32 {vRka[1]}, {vt[5]}, {vt[4]}, {sCB}',
   f'v_lshlrev_b32 {vCa}, 4, {vG}', f's_lshl_b32 {sT[0]}, {sH}, 8', f's_add_u32 {sT[0]}, {sT[0]}, {L_CS}', f'v_add_u32 {vCa}, {sT[0]}, {vCa}', f'v_mov_b32 {vQf}, {L_QF}'] +
  [f'v_mov_b32 {B3[8 + i]}, -1' for i in range(4)])
XK = AG.alloc('XK', 16 * ND); XT = AG.alloc('XT', 16); F = [AG.alloc('F0', 24), AG.alloc('F1', 24)]
AALL = Reg('a', 0, 128)
def XF(s, kk, pos):
    if s < NI: return XT[8 * kk + 4 * pos:8 * kk + 4 * pos + 4]
    b = (s - NI) * 16 + 8 * kk + 4 * pos; return XK[b:b + 4]
def sw(s): return (s % NSL) // 2
def so(s): return (s % 2) * SLOT
def v_reads(s, kk, fb, tag): return [x for i in range(2) for x in trs(fb[4 * i:4 * i + 4], vVr[2 * sw(s) + i], so(s) + kk * 4096, tag)]
def p1_reads(s, kk):
    tag = ('r', s, kk)
    L = [(f'ds_read_b128 {XF(s, kk, pos)}, {vXr[4 * sw(s) + 2 * pos + kk]} offset:{so(s)}', tag) for pos in range(2)]
    for t in range(4): L += trs(F[kk][4 * t:4 * t + 4], vWr[4 * sw(s) + t], so(s) + kk * 4096, tag)
    if s < NI: L += v_reads(s, kk, F[kk][16:24], tag)
    return L
def v_mfmas(s, kk, fb):
    z = (s == 0 and kk == 0)
    return [f'{MFMA} {accV[8 * pos + 4 * i:8 * pos + 4 * i + 4]}, {XF(s, kk, pos)}, {fb[4 * i:4 * i + 4]}, {0 if z else accV[8 * pos + 4 * i:8 * pos + 4 * i + 4]}' for i in range(2) for pos in range(2)]
def p1_mfmas(s, kk, order=(0, 1)):
    z = (s == 0 and kk == 0); L = []
    for t in range(4):
        for pos in range(2):
            a = acc[pos * 16 + 4 * t:pos * 16 + 4 * t + 4]
            L.append(f'{MFMA} {a}, {F[kk][4 * t:4 * t + 4]}, {XF(s, kk, pos)}, {0 if z else a}')
    if s < NI: L += v_mfmas(s, kk, F[kk][16:24])
    return L
E(stamp())
CLR = opt('clr', 4)
for s in range(10):
    A.comment(f'pass1 unit {s}')
    E(['s_waitcnt lgkmcnt(0)', 's_barrier']); E.lg = []
    if s == 0:
        E(stamp() + p1_reads(0, 0) + [f'ds_read_b64 {vXb[2 * n:2 * n + 2]}, {vt[n]}' for n in range(4)] + fin_tag())
    else:
        E(merge(p1_mfmas(s - 1, 1), p1_reads(s, 0), 1, 2))
    if s == CLR: E([(f'buffer_store_dwordx4 {B3[8:12]}, {vL16}, {sWS}, {sOst} offen offset:{1024 * i} sc1', 'clr') for i in range(2)])
    E(W(lg=('r', s, 0)))
    rd = p1_reads(s, 1)
    if s == 9:
        rd += [f'ds_read_b32 {vSt[0]}, {vSa}', f'ds_read_b32 {vSt[1]}, {vSa} offset:512', f'v_xor_b32 {vSa}, 64, {vSa}', f'ds_read_b32 {vSt[2]}, {vSa}',
               f'ds_read_b32 {vSc[0]}, {vRka[0]} offset:512', f'ds_read_b32 {vSc[1]}, {vRka[1]} offset:520'] + [f'v_mov_b32 {vWr[4 + i]}, {vVr[i]}' for i in range(4)]
    E(merge(p1_mfmas(s, 0), rd, 1, 2))
vVr = vWr[4:8]
vCS = B2; vQ8 = acc[0:8]; vK16 = acc[16:32]
lastm = p1_mfmas(9, 1)
cs_reads = [f'ds_read_b32 {vt[3]}, {vQf}'] + [f'ds_read_b128 {vCS[4 * t:4 * t + 4]}, {vCa} offset:{64 * t}' for t in range(4)]
E([W(lg=('r', 9, 1))] + lastm[1::2] + lastm[0::2][:2] + cs_reads + lastm[0::2][2:] + stamp())
E([W(lg='all'), ('L', 'Lqf'), f'v_readfirstlane_b32 {sT[2]}, {vt[3]}', f's_cmp_eq_u32 {sT[2]}, 0', 's_cbranch_scc1 Lqf_re'] + stamp())
def fix_qk(dst, a16, negm):
    L = []
    for t in range(4):
        L += [f'v_fmac_f32 {a16[4 * t + i]}, {vCS[4 * t + i]}, {negm}' for i in range(4)] + cvt2(dst[2 * t:2 * t + 2], a16[4 * t:4 * t + 4])
    return L
E([f's_cmp_eq_u32 {sH}, 0'] + fix_qk(vK16[0:8], acc[16:32], vSt[2]) + ['s_cbranch_scc0 Lh1'])
for h in range(2):
    if h: A.label('Lh1')
    E.lg = []
    E([f'ds_write_b128 {vEx}, {vK16[4 * i:4 * i + 4]} offset:{h * 2048 + i * 1024}' for i in range(2)])
    if h == 1: E(fix_qk(vK16[8:16], acc[0:16], vSt[0]) + [f'ds_write_b128 {vEx}, {vK16[8 + 4 * i:12 + 4 * i]} offset:{4096 + i * 1024}' for i in range(2)])
    E(cnt_arrive(L_C2, vt[1], vt[2]))
    if h == 0: E(fix_qk(vQ8, acc[0:16], vSt[0]) + [f'v_subrev_u32 {vt[0]}, 6144, {vEx}'])
    E([f'v_mov_b32 {vt[4 + i]}, {sFirst}' for i in range(4)] + cnt_wait(8, vt[1], vt[2]))
    if h == 0:
        E([f'ds_read_b128 {vK16[8 + 4 * i:12 + 4 * i]}, {vEx} offset:{2048 + i * 1024}' for i in range(2)] +
          [f'ds_read_b128 {vK16[4 * i:4 * i + 4]}, {vt[0]} offset:{4096 + i * 1024}' for i in range(2)] + ['s_branch Lh_join'])
    else:
        E([f'ds_read_b128 {vQ8[4 * i:4 * i + 4]}, {vEx} offset:{i * 1024}' for i in range(2)])
A.label('Lh_join')
E.lg = ['ex']
VF = Reg('a', XT.base, 64)
def tail_reads(k): return v_reads(NI + k // 2, k % 2, VF[8 * k:8 * k + 8], ('v', k))
E(tail_reads(0) + tail_reads(1) + [W(lg='ex')] + stamp())
vQ = B3
def QO(sl): return vQ[sl * 4:sl * 4 + 4]
KO = {1: 0, 0: 2, 3: 2, 2: 4}
def SA(sl, pc): return {0: vCS[0:8], 3: vCS[8:16], 1: acc[8:16], 2: vCS[0:8]}[sl][pc * 4:pc * 4 + 4]
def s_mfma(sl): return [f'{MFMA} {SA(sl, pc)}, {vK16[8 * pc + KO[sl]:8 * pc + KO[sl] + 4]}, {QO(sl)}, {0 if pc else vt[4:8]}' for pc in range(2)]
def mrg(sl):
    p = SA(sl, 0); c = SA(sl, 1); d = QO(sl)
    return [f'v_cndmask_b32 {p[0]}, {p[0]}, {p[1]}, {sK1}', f'v_cndmask_b32 {c[0]}, {c[0]}, {c[1]}, {sK1}', f'v_cndmask_b32 {p[2]}, {p[2]}, {p[3]}, {sK1}',
            f'v_cndmask_b32 {c[2]}, {c[2]}, {c[3]}, {sK1}', f'v_cndmask_b32 {d[0]}, {p[0]}, {c[0]}, {sCA}', f'v_cndmask_b32 {d[2]}, {p[2]}, {c[2]}, {sCB}']
def qmask(sl): return [f'v_cndmask_b32 {QO(sl)[i]}, 0, {vQ8[2 + i]}, {sM[(sl, 1 + i // 2)]}' for i in range(4)]
q1 = [f'v_mov_b32 {QO(1)[0]}, {vQ8[0]}', f'v_mov_b32 {QO(1)[1]}, {vQ8[1]}'] + [f'v_cndmask_b32 {QO(1)[2 + i]}, 0, {vQ8[2 + i]}, {sM[(1, 1)]}' for i in range(2)]
q2 = [f'v_cndmask_b32 {QO(2)[i]}, 0, {vQ8[4 + i]}, {sM[(2, 2)]}' for i in range(2)] + [f'v_mov_b32 {QO(2)[2]}, {vQ8[6]}', f'v_mov_b32 {QO(2)[3]}, {vQ8[7]}']
def pub(sl, sof): return [f'v_mov_b32 {QO(sl)[1]}, {sTag}', f'v_mov_b32 {QO(sl)[3]}, {sTag}'] + mrg(sl) + [f'buffer_store_dwordx4 {QO(sl)}, {vL16}, {sWS}, {sof} offen sc1']
E(['s_setprio 2'] + qmask(0) + qmask(3)[:2] + s_mfma(0) + qmask(3)[2:] + q1[:2] + s_mfma(3) + q1[2:] + q2[:2] + s_mfma(1) + pub(0, sSx[0]) + pub(3, sSx[1]) + ['s_setprio 0'])
E(stamp())
E([f's_lshl_b32 {sT[0]}, {sC}, 2', f'v_mov_b32 {vt[0]}, {sT[0]}', f'v_mov_b32 {vt[1]}, {sTag}', W('clr'), 's_mov_b64 exec, 1',
   f'buffer_store_dword {vt[1]}, {vt[0]}, {sWS}, {sFl} offen sc1', 's_mov_b64 exec, -1'])
def softmax(sls):
    n = len(sls); mx = [vt[i] for i in range(n)]; tp = [vt[2 + i] for i in range(n)]
    L = []
    for sl in sls: L += [f'v_mul_f32 {QO(sl)[2 * j]}, {QO(sl)[2 * j]}, {vSc[j]}' for j in range(2)]
    L += [f'v_max_f32 {mx[i]}, {QO(sl)[0]}, {QO(sl)[2]}' for i, sl in enumerate(sls)]
    for sw_ in ('v_permlane32_swap_b32', 'v_permlane16_swap_b32'):
        L += [f'v_mov_b32 {tp[i]}, {mx[i]}' for i in range(n)] + [f'{sw_} {mx[i]}, {tp[i]}' for i in range(n)] + [f'v_max_f32 {mx[i]}, {mx[i]}, {tp[i]}' for i in range(n)]
    for i, sl in enumerate(sls): L += [f'v_sub_f32 {QO(sl)[j]}, {QO(sl)[j]}, {mx[i]}' for j in (0, 2)]
    for sl in sls: L += [f'v_exp_f32 {QO(sl)[j]}, {QO(sl)[j]}' for j in (0, 2)]
    for sl in sls: d = QO(sl); L += [f'v_cvt_pk_bf16_f32 {d[0]}, {d[0]}, {d[0]}', f'v_cvt_pk_bf16_f32 {d[1]}, {d[2]}, {d[2]}']
    for sl in sls: d = QO(sl); L += [f'v_and_b32 {d[2]}, {d[0]}, {vPM[2]}', f'v_and_b32 {d[3]}, {d[1]}, {vPM[3]}', f'v_and_b32 {d[0]}, {d[0]}, {vPM[0]}', f'v_and_b32 {d[1]}, {d[1]}, {vPM[1]}']
    return L
def gate_calc(xb, xn, g, upd=None):
    n = 2 * xb.n; L = []
    for i in range(n // 2): L += [f'v_lshlrev_b32 {xn[2 * i]}, 16, {xb[i]}', f'v_and_b32 {xn[2 * i + 1]}, 0xffff0000, {xb[i]}']
    L += [f'v_add_f32 {xn[i]}, {xn[i]}, {vSt[0]}' for i in range(n)] + round_pairs(xn, n) + [f'v_mul_f32 {xn[i]}, {xn[i]}, {vSt[1]}' for i in range(n)] + round_pairs(xn, n)
    if upd is not None: L += [W(lg='all')] + [f'v_add_f32 {xn[i]}, {xn[i]}, {upd[i]}' for i in range(n)] + round_pairs(xn, n)
    return L + silu_into(g, xn, n)[:-n]
fill = q2[2:] + [f'v_mul_f32 {vt[0]}, {sCs}, {vSt[1]}'] + s_mfma(2) + [f'v_mul_f32 {vSc[j]}, {vSc[j]}, {vt[0]}' for j in range(2)] + mrg(1) + mrg(2) + softmax([1, 2])
vRx = acc[24:32]; vNm = acc[0:16]; vCv = acc[16:18]; vCf = acc[18]; vAd = acc[20:24]
def rx_loads(): return [(f'buffer_load_dwordx4 {vRx[4 * d:4 * d + 4]}, {vL16}, {sWS}, {sSx[2 + d]} offen sc1', 'rx') for d in range(2)]
vprep = [f's_lshl_b32 {sT[0]}, {sTau}, 6', f's_add_u32 {sT[0]}, {sT[0]}, {L_M}', f'v_lshl_add_u32 {vAd[0]}, {vG}, 4, {sT[0]}', f'v_xor_b32 {vAd[1]}, 64, {vAd[0]}'] + \
        [f'ds_read_b128 {vNm[8 * pos + 4 * q:8 * pos + 4 * q + 4]}, {vAd[pos]} offset:{512 * q}' for pos in range(2) for q in range(2)] + \
        [f's_lshl_b32 {sT[0]}, {sH}, 3', f's_add_u32 {sT[0]}, {sT[0]}, {L_CSV}', f'v_lshl_add_u32 {vAd[0]}, {vTt}, 4, {sT[0]}', f'v_mov_b32 {vAd[1]}, {L_CSF}',
         f'v_lshl_add_u32 {vEx}, {vLane}, 3, {sVx}', f's_lshl_b32 {sT[0]}, {sH}, 10', f'v_add_u32 {vAd[2]}, {sT[0]}, {vEx}',
         f's_lshl_b32 {sT[1]}, {sH}, 12', f's_sub_u32 {sT[1]}, 2048, {sT[1]}', f'v_add_u32 {vAd[3]}, {sT[1]}, {vAd[2]}', f'v_subrev_u32 {vEx}, 2048, {vEx}']
NK = 2 * ND; KF = opt('kf', 6); KR = opt('kr', 6)
for k in range(2, NK): E(tail_reads(k))
for k in range(NK):
    cnt = -(-len(fill) // (KF - k)) if k < KF else 0
    f = fill[:cnt]; fill = fill[cnt:]
    if k == KF: f = vprep
    if k == KR: E(rx_loads())
    E([W(lg=('v', k))] + spread(v_mfmas(NI + k // 2, k % 2, VF[8 * k:8 * k + 8]), f))
csv_reads = [f'ds_read_b32 {vCf}, {vAd[1]}', f'ds_read_b64 {vCv}, {vAd[0]}']
E(stamp() + csv_reads + [W(lg='all'), ('L', 'Lcsv'), f'v_readfirstlane_b32 {sT[2]}, {vCf}', f's_cmp_eq_u32 {sT[2]}, 0', 's_cbranch_scc1 Lcsv_re'])
def vfix(a, nm, cv, areg, off):
    return [f'v_fmac_f32 {a[i]}, {nm[i]}, {cv}' for i in range(4)] + [f'v_mul_f32 {a[i]}, {a[i]}, {nm[4 + i]}' for i in range(4)] + cvt2(a[0:2], a) + [f'ds_write_b64 {areg}, {a[0:2]} offset:{off}']
for pos in range(2):
    for i in range(2): E(vfix(accV[8 * pos + 4 * i:8 * pos + 4 * i + 4], vNm[8 * pos:8 * pos + 8], vCv[i], vAd[2 + pos], 512 * i))
E(cnt_arrive(L_C3, vt[4], vt[5]) + [W('rx'), ('L', 'Lrx_chk')])
for d in range(2):
    E([f'v_cmp_eq_u32 vcc, {sTag}, {vRx[4 * d + 1]}', f'v_cmp_eq_u32 {sT[2 * d:2 * d + 2]}, {sTag}, {vRx[4 * d + 3]}', f's_and_b64 {sT[2 * d:2 * d + 2]}, {sT[2 * d:2 * d + 2]}, vcc',
       f's_cmp_eq_u32 {sCC}, {4 * d}', f's_cselect_b64 {sT[2 * d:2 * d + 2]}, -1, {sT[2 * d:2 * d + 2]}'])
E([f's_and_b64 {sT[0:2]}, {sT[0:2]}, {sT[2:4]}', f's_cmp_eq_u64 {sT[0:2]}, -1', 's_cbranch_scc0 Lrx_re'] + stamp())
for d, sl in ((0, 0), (1, 3)):
    E([f's_cmp_eq_u32 {sCC}, {4 * d}', 's_cselect_b64 vcc, -1, 0'])
    for j in (0, 2): E([f'v_cndmask_b32 {vRx[4 * d + j]}, {vRx[4 * d + j]}, 0, vcc', f'v_add_f32 {QO(sl)[j]}, {QO(sl)[j]}, {vRx[4 * d + j]}'])
E(['s_setprio 2'] + cnt_wait(7, vt[4], vt[5]) + stamp())
vV = accV
E([(f'ds_read2st64_b64 {vV[4 * t:4 * t + 4]}, {vEx} offset0:{t} offset1:{t + 4}', 'vp') for t in range(4)])
vO = acc; vSum = vCS
PVL = [(0, 1), (1, 1), (2, 2), (3, 2), (1, 0), (2, 0), (1, 3), (2, 3)]
def OO(t, sl): b = PVL.index((t, sl)) * 4; return vO[b:b + 4]
def SM(sl): return vSum[4 * sl:4 * sl + 4]
def pv(sls): return [f'{MFMA} {SM(sl)}, {vOnes}, {QO(sl)}, 0' for sl in sls] + [f'{MFMA} {OO(t, sl)}, {vV[4 * t:4 * t + 4]}, {QO(sl)}, 0' for (t, sl) in PVL if sl in sls]
ch = softmax([0, 3])
E(ch[:12]); E(W(lg='vp')); E(spread(ch[12:], pv([1, 2])))
vOst = vt
def onorm(t, o, rc): return [f'v_mul_f32 {o[i]}, {o[i]}, {rc}' for i in range(4)] + cvt2(vOst[2 * t:2 * t + 2], o) + [f'v_min_u32 {vOst[2 * t + i]}, -2, {vOst[2 * t + i]}' for i in range(2)]
E(spread(pv([0, 3]), [f'v_rcp_f32 {SM(sl)[0]}, {SM(sl)[0]}' for sl in (1, 2)] + onorm(0, OO(0, 1), SM(1)[0])) + onorm(3, OO(3, 2), SM(2)[0]) + [f'v_rcp_f32 {SM(sl)[0]}, {SM(sl)[0]}' for sl in (0, 3)])
for t in (1, 2):
    d = OO(t, t); rc = SM(t)[2]
    E([f'v_cndmask_b32 {rc}, {SM(t)[0]}, {SM(0)[0]}, {sM[(0, t)]}', f'v_cndmask_b32 {rc}, {rc}, {SM(3)[0]}, {sM[(3, t)]}'])
    for sl in (0, 3): E([f'v_cndmask_b32 {d[r]}, {d[r]}, {OO(t, sl)[r]}, {sM[(sl, t)]}' for r in range(4)])
    E(onorm(t, d, rc) + [f'buffer_store_dwordx4 {vOst[4 * (t - 1):4 * t]}, {vL16}, {sWS}, {sOst} offen offset:{(t - 1) * 1024} sc1'])
E(stamp())
PK = AALL[0:16]
vFl = B3[0]
fl_load = (f'buffer_load_dword {vFl}, {vL4}, {sWS}, {sFl} offen sc1', 'fl')
E(['s_setprio 0', fl_load] + gate_calc(vXb, acc[0:16], acc[16:32]) + [f'v_accvgpr_write_b32 {PK[i]}, {acc[17 + 2 * i]}' for i in range(8)] + [f'v_accvgpr_write_b32 {PK[8 + i]}, {vXb[i]}' for i in range(8)])
E([f'v_and_b32 {vt[2]}, 3, {vLane}', f'v_lshl_add_u32 {vt[2]}, {vt[2]}, 3, {vPhi}', f'v_add_u32 {vWr[0]}, {vt[2]}, {vrow}'] +
  [f'v_xor_b32 {vWr[t]}, {32 * t}, {vWr[0]}' for t in (1, 2, 3)] + [f'v_add_u32 {vWr[4 + t]}, {OWIN[1]}, {vWr[t]}' for t in range(4)])
FR = [AALL[16 * i:16 * i + 16] for i in range(1, 8)]; NF = 7
def wo_reads(k):
    loc = KLOC[k]; w_ = 1 if loc >= OWIN[1] else 0
    return [x for t in range(4) for x in trs(FR[k % NF][4 * t:4 * t + 4], vWr[4 * w_ + t], loc - OWIN[w_], ('o', k))]
OFG = [acc[4 * i:4 * i + 4] for i in range(8)] + [B[4 * i:4 * i + 4] for B in (B1, B2, B3) for i in range(4)]
accO = [vXb[0:4], vXb[4:8], vPM, vOnes]
sJ = S.alloc('j')
NPRE = opt('npre', 0)
info_read = (f'ds_read_b64 {vt[4:6]}, {vt[6]}', 'info')
E([f'v_mov_b32 {vt[6]}, {L_INFO}', info_read])
E([W('fl'), ('L', 'Lfl_chk'), f'v_cmp_eq_u32 vcc, {sTag}, {vFl}', f's_mov_b32 {sJ}, 0', f's_and_b32 {sT[0]}, vcc_lo, 0x3ff', f's_cmp_lg_u32 {sT[0]}, 0x3ff', 's_cbranch_scc1 Lfl_re'] + stamp())
E.vm = []
for k in range(20):
    if k % 2 == 0: A.label(f'Lld_{k // 2}')
    E((f'buffer_load_dwordx4 {OFG[k]}, {vL16}, {sWS}, {sOb[k // 4]} offen offset:{(k % 4) * 1024} sc1', ('of', k // 2)))
E([f's_cmp_lg_u32 {sJ}, 0', 's_cbranch_scc1 Ldisp'])
E([W(lg='info'), ('L', 'Linfo'), f'v_readfirstlane_b32 {sT[3]}, {vt[4]}', f's_cmp_eq_u32 {sT[3]}, {SENT}', 's_cbranch_scc1 Linfo_re'])
for k in range(NF): E(wo_reads(k))
def chk(j):
    a, b = OFG[2 * j], OFG[2 * j + 1]
    return [('L', f'Lchk_{j}'), W(('of', j)), f'v_max3_u32 {vt[0]}, {a[0]}, {a[1]}, {a[2]}', f'v_max3_u32 {vt[1]}, {b[0]}, {b[1]}, {b[2]}', f'v_max3_u32 {vt[0]}, {vt[0]}, {a[3]}, {b[3]}',
            f'v_max_u32 {vt[0]}, {vt[0]}, {vt[1]}', f'v_cmp_eq_u32 vcc, -1, {vt[0]}', f's_cbranch_vccnz Lre_{j}']
vXf = acc[0:16]; vGt = acc[16:32]; vOa = B1[0:2]; vRow = B1[2]; vTa = B1[4:8]; vTr = B1[3]; vOst = B1[8:16]
tail = []
for i in range(8):
    tail += [f'v_accvgpr_read_b32 {vGt[2 * i + 1]}, {PK[i]}', f'v_accvgpr_read_b32 {vXf[2 * i + 1]}, {PK[8 + i]}']
for x in (vGt, vXf):
    for i in range(8): tail += [f'v_lshlrev_b32 {x[2 * i]}, 16, {x[2 * i + 1]}', f'v_and_b32 {x[2 * i + 1]}, 0xffff0000, {x[2 * i + 1]}']
oadr = [f's_mul_i32 {sT[0]}, {sRB}, 96', f's_lshl_b32 {sT[1]}, {sTau}, 4', f's_add_u32 {sT[0]}, {sT[0]}, {sT[1]}', f's_sub_u32 {sT[0]}, {sT[0]}, 32',
        f'v_add_u32 {vRow}, {sT[0]}, {vTt}', f'v_lshrrev_b32 {vt[2]}, 3, {vLane}', f'v_add_u32 {vt[2]}, {sT[0]}, {vt[2]}', f'v_mul_u32_u24 {vt[2]}, 1280, {vt[2]}',
        f'v_and_b32 {vt[3]}, 7, {vLane}', f'v_xor_b32 {vt[3]}, {vt[3]}, {vG}', f'v_lshl_add_u32 {vOa[0]}, {vt[3]}, 4, {vt[2]}', f'v_xor_b32 {vOa[1]}, 64, {vOa[0]}',
        f'v_add_u32 {vOa[1]}, {8 * 1280}, {vOa[1]}',
        f's_lshl_b32 {sT[0]}, {sTau}, 11', f's_add_u32 {sT[0]}, {sT[0]}, {EXB}', f'v_add_u32 {vTa[0]}, {sT[0]}, {vXe}', f'v_xor_b32 {vTa[1]}, 32, {vTa[0]}',
        f'v_xor_b32 {vTa[2]}, 64, {vTa[0]}', f'v_xor_b32 {vTa[3]}, 0x60, {vTa[0]}', f'v_add_u32 {vTr}, {sT[0]}, {vL16}', f's_lshl_b32 {sFl}, {sC}, 7']
fills = {6: tail[:16], 7: tail[16:40], 8: tail[40:48] + oadr}
for j in range(10):
    E(chk(j))
    if j == 0: E(stamp())
    for k in (2 * j, 2 * j + 1):
        m = [f'{MFMA} {accO[n]}, {FR[k % NF][4 * n:4 * n + 4]}, {OFG[k]}, {0 if k == 0 else accO[n]}' for n in range(4)]
        f = fills.get(j, []); f = f[:len(f) // 2] if k % 2 == 0 else f[len(f) // 2:]
        E([W(lg=('o', k))] + spread(m, f) + (wo_reads(k + NF) if k + NF < 20 else []))
E(stamp())
E([f'v_and_b32 {vt[2]}, {vt[4]}, {vt[5]}', f'v_readfirstlane_b32 {sT[3]}, {vt[2]}', f's_cmp_eq_u32 {sT[3]}, -1', 's_cbranch_scc0 Lfix', ('L', 'Lnofix')])
for n in range(4):
    a = accO[n]
    E([f'v_fma_f32 {a[i]}, {a[i]}, {vGt[4 * n + i]}, {vXf[4 * n + i]}' for i in range(4)] + cvt2(vOst[2 * n:2 * n + 2], a) + [f'ds_write_b64 {vTa[n]}, {vOst[2 * n:2 * n + 2]}'])
E([(f'ds_read_b128 {B2[4 * i:4 * i + 4]}, {vTr} offset:{1024 * i}', ('fin', i)) for i in range(2)])
for i in range(2): E([W(lg=('fin', i)), f'buffer_store_dwordx4 {B2[4 * i:4 * i + 4]}, {vOa[i]}, {sOUT}, {sFl} offen{NT["S"]}'])
write_stamps(STAMPW, 'main')
E('s_endpgm')
E([('L', 'Lqf_re')] + spin_guard() + cs_reads + [W(lg='all'), 's_branch Lqf'])
E([('L', 'Lcsv_re')] + spin_guard() + csv_reads + [W(lg='all'), 's_branch Lcsv'])
E([('L', 'Lrx_re')] + spin_guard() + rx_loads() + [W('all'), 's_branch Lrx_chk'])
E([('L', 'Linfo_re')] + spin_guard() + [info_read, W(lg='all'), 's_branch Linfo'])
E([('L', 'Lfl_re')] + spin_guard() + [fl_load, W('all'), 's_branch Lfl_chk'])
for j in range(10): E([('L', f'Lre_{j}'), f's_mov_b32 {sJ}, {j + 1}', 's_branch Lprobe'])
E([('L', 'Lprobe'), f'v_min_u32 {vt[1]}, 19, {vLane}', f'v_lshlrev_b32 {vt[1]}, 10, {vt[1]}', ('L', 'Lprobe2')] + spin_guard() +
  [f'buffer_load_dword {vt[0]}, {vt[1]}, {sWS}, {sOb[0]} offen offset:1020 sc1', W('all'), f'v_cmp_eq_u32 vcc, -1, {vt[0]}', 's_cbranch_vccnz Lprobe2'])
for j in range(9): E([f's_cmp_eq_u32 {sJ}, {j + 1}', f's_cbranch_scc1 Lld_{j}'])
E('s_branch Lld_9')
A.label('Ldisp')
for j in range(9): E([f's_cmp_eq_u32 {sJ}, {j + 1}', f's_cbranch_scc1 Lchk_{j}'])
E('s_branch Lchk_9')
E([('L', 'Lfix'), f'v_mov_b32 {vt[6]}, {L_UF}', ('L', 'Lfix_w')] + spin_guard() + [f'ds_read_b32 {vt[2]}, {vt[6]}', W(lg='all'), f'v_readfirstlane_b32 {sT[3]}, {vt[2]}',
   f's_cmp_eq_u32 {sT[3]}, 0', 's_cbranch_scc1 Lfix_w',
   f'v_mov_b32 {vt[2]}, {L_UPD + 512}', f'v_mov_b32 {vt[3]}, {L_UPD}', f'v_cmp_eq_u32 vcc, {vt[4]}, {vRow}', f'v_cndmask_b32 {vt[2]}, {vt[2]}, {vt[3]}, vcc',
   f'v_mov_b32 {vt[3]}, {L_UPD + 256}', f'v_cmp_eq_u32 vcc, {vt[5]}, {vRow}', f'v_cndmask_b32 {vt[2]}, {vt[2]}, {vt[3]}, vcc', f'v_lshl_add_u32 {vt[2]}, {vG}, 4, {vt[2]}'] +
  [f'ds_read_b128 {B3[4 * n:4 * n + 4]}, {vt[2]} offset:{64 * n}' for n in range(4)] + [f'v_accvgpr_read_b32 {vOst[i]}, {PK[8 + i]}' for i in range(8)] +
  gate_calc(vOst, B2, vGt, B3) + round_pairs(vGt, 16)[8:] + ['s_branch Lnofix'])

load_state(st_halo)
A.label('Lhalo')
HF = [Reg('a', 0, 48), Reg('a', 48, 48)]; HXK = Reg('a', 96, 32); HXT = vXb
vSg = B3[0:4]; vSo = B3[4:6]
E(['s_mov_b32 vcc_lo, 0x00010001', 's_mov_b32 vcc_hi, 0x00010001', f'v_mov_b32 {vt[7]}, {ONES_OFF}', f'v_cndmask_b32 {vXr[0]}, {vXr[0]}, {vt[7]}, vcc', f'v_xor_b32 {vXr[1]}, 64, {vXr[0]}',
   f'v_add_u32 {vXr[4]}, {2 * SLOT}, {vXr[0]}', f'v_add_u32 {vXr[5]}, {2 * SLOT}, {vXr[1]}'] + set_ones +
  [f'v_and_b32 {vt[0]}, 7, {vLane}', f'v_lshlrev_b32 {vt[0]}, 4, {vt[0]}', f'v_mul_u32_u24 {vt[1]}, {SLOT}, {vG}', f'v_add_u32 {vt[0]}, {vt[0]}, {vt[1]}', f'ds_write_b128 {vt[0]}, {vOnes} offset:{ONES_OFF}',
   f'v_mov_b32 {vt[0]}, {L_CSF}', f'v_mov_b32 {vt[4]}, 0', f'v_mov_b32 {vt[5]}, 0', f'v_mov_b32 {vt[6]}, {SENT}', f'v_mov_b32 {vt[7]}, {SENT}', f'ds_write_b128 {vt[0]}, {vt[4:8]}',
   f'ds_write_b64 {vt[0]}, {vt[4:6]} offset:16', f'ds_write_b64 {vt[0]}, {vt[4:6]} offset:24',
   f's_mul_i32 {sT[0]}, {sRB}, 96', f's_sub_u32 {sT[0]}, {sT[0]}, 16', f'v_add_u32 {vSo[0]}, {sT[0]}, {vLane}', f'v_min_u32 {vt[1]}, 47, {vLane}', f'v_add3_u32 {vSo[1]}, {sT[0]}, {vt[1]}, 64',
   f'v_mov_b32 {vt[2]}, 2047', f'v_med3_i32 {vSo[0]}, {vSo[0]}, 0, {vt[2]}', f'v_med3_i32 {vSo[1]}, {vSo[1]}, 0, {vt[2]}', f'v_lshlrev_b32 {vSo[0]}, 3, {vSo[0]}', f'v_lshlrev_b32 {vSo[1]}, 3, {vSo[1]}'])
sSt = S.alloc('sst'); E(f's_mov_b32 {sSt}, {WS_STAT}')
def HX(s, kk): return HXT[4 * kk:4 * kk + 4] if s < NI else HXK[(s - NI) * 8 + 4 * kk:(s - NI) * 8 + 4 * kk + 4]
def h_reads(s, kk):
    tag = ('r', s, kk)
    L = [(f'ds_read_b128 {HX(s, kk)}, {vXr[4 * sw(s) + kk]} offset:{so(s)}', tag)]
    for sec in range(3 if s < NI else 2):
        for t in range(4): L += trs(HF[kk][16 * sec + 4 * t:16 * sec + 4 * t + 4], vWr[4 * sw(s) + t], so(s) + sec * 8192 + kk * 4096, tag)
    return L
def h_mfmas(s, kk):
    z = (s == 0 and kk == 0); L = []
    for sec in range(2):
        for t in range(4):
            a = acc[16 * sec + 4 * t:16 * sec + 4 * t + 4]; L.append(f'{MFMA} {a}, {HF[kk][16 * sec + 4 * t:16 * sec + 4 * t + 4]}, {HX(s, kk)}, {0 if z else a}')
    if s < NI:
        for t in range(4): a = accV[4 * t:4 * t + 4]; L.append(f'{MFMA} {a}, {HX(s, kk)}, {HF[kk][32 + 4 * t:36 + 4 * t]}, {0 if z else a}')
    return L
st_loads = [(f'buffer_load_dwordx2 {vSg[2 * i:2 * i + 2]}, {vSo[i]}, {sWS}, {sSt} offen sc1', 'st') for i in range(2)]
for s in range(10):
    A.comment(f'halo unit {s}')
    E(['s_waitcnt lgkmcnt(0)', 's_barrier']); E.lg = []
    if s == 0: E(fin_tag())
    r0, r1 = h_reads(s, 0), h_reads(s, 1)
    E([r0[0], r1[0]])
    grp_ = [[(t_, ('g', i)) for t_, _ in (r0[1:] + r1[1:])[2 * i:2 * i + 2]] for i in range(len(r0) - 1)]
    mm = h_mfmas(s, 0) + h_mfmas(s, 1); LA = 6
    for i in range(len(mm) + LA):
        if i < len(mm): E(grp_[i])
        if i >= LA: E([W(lg=('g', i - LA)), mm[i - LA]])
    if s == 1: E(signal())
    if s == opt('stl', 6): E(st_loads)
    if s == 8:
        E([W('st'), ('L', 'Lst_chk'), f'v_cmp_ne_u32 vcc, {sTag}, {vSg[1]}', f'v_cmp_ne_u32 {sT[0:2]}, {sTag}, {vSg[3]}', f's_or_b64 {sT[0:2]}, {sT[0:2]}, vcc', 's_cbranch_scc1 Lst_re',
           f'v_add_u32 {vt[0]}, {L_M + 64}, {vL4}', f'v_min_u32 {vt[1]}, 47, {vLane}', f'v_lshlrev_b32 {vt[1]}, 2, {vt[1]}', f'v_add_u32 {vt[1]}, {L_M + 64 + 256}, {vt[1]}'])
        for i in range(2):
            E([f'v_lshlrev_b32 {vSg[2 * i + 1]}, 16, {vSg[2 * i]}', f'v_and_b32 {vSg[2 * i]}, 0xffff0000, {vSg[2 * i]}', f'v_rcp_f32 {vSg[2 * i + 1]}, {vSg[2 * i + 1]}',
               f'ds_write_b32 {vt[i]}, {vSg[2 * i]}', f'ds_write_b32 {vt[i]}, {vSg[2 * i + 1]} offset:512'])
        E([f'v_lshlrev_b32 {vt[2]}, 4, {vG}', f'v_add_u32 {vt[2]}, {L_CS}, {vt[2]}', f'v_mov_b32 {vt[3]}, {L_QF}', f'v_lshlrev_b32 {vt[4]}, 2, {vTt}', f'v_add_u32 {vt[4]}, {L_M + 64}, {vt[4]}',
           f'ds_read_b32 {vSt[0]}, {vt[4]}'])
E(['s_mov_b32 exec_lo, 0x00010001', 's_mov_b32 exec_hi, 0x00010001'] + [f'ds_write_b128 {vt[2]}, {acc[4 * j:4 * j + 4]} offset:{64 * j}' for j in range(8)] +
  [f'ds_write_b32 {vt[3]}, {vt[3]}', 's_mov_b64 exec, -1'] + [f'ds_read_b128 {vCS[4 * t:4 * t + 4]}, {vt[2]} offset:{256 + 64 * t}' for t in range(4)] + [W(lg='all')] +
  fix_qk(acc[16:24], acc[16:32], vSt[0]) + [f'ds_write_b128 {vEx}, {acc[16 + 4 * i:20 + 4 * i]} offset:{4096 + i * 1024}' for i in range(2)] + cnt_arrive(L_C2, vt[1], vt[2]) +
  [f'v_mov_b32 {vt[1]}, {L_WF}'] + cnt_wait(1, vt[1], vt[2]))
HV = Reg('a', 0, 96)
def ht_reads(k): return [x for t in range(4) for x in trs(HV[16 * (k % 6) + 4 * t:16 * (k % 6) + 4 * t + 4], vWr[4 * sw(NI + k // 2) + t], so(NI + k // 2) + VOFF + (k % 2) * 4096, ('v', k))]
for k in range(6): E(ht_reads(k))
for k in range(NK):
    E([W(lg=('v', k))] + [f'{MFMA} {accV[4 * t:4 * t + 4]}, {HX(NI + k // 2, k % 2)}, {HV[16 * (k % 6) + 4 * t:16 * (k % 6) + 4 * t + 4]}, {accV[4 * t:4 * t + 4]}' for t in range(4)])
    if k + 6 < NK: E(ht_reads(k + 6))
E([f'v_lshlrev_b32 {vt[1]}, 4, {vTt}', f'v_add_u32 {vt[1]}, {L_CSV}, {vt[1]}', f'v_mov_b32 {vt[2]}, {L_CSF}', f'v_lshlrev_b32 {vt[0]}, 4, {vG}', f'v_add_u32 {vt[0]}, {L_M + 64}, {vt[0]}',
   f'v_lshl_add_u32 {vEx}, {vLane}, 3, {sVx}', 's_mov_b64 exec, 0xffff'] + [f'ds_write_b32 {vt[1]}, {accV[4 * t]} offset:{4 * t}' for t in range(4)] +
  [f'ds_write_b32 {vt[2]}, {vt[2]}', 's_mov_b64 exec, -1', f'ds_read_b128 {acc[8:12]}, {vt[1]}', f'ds_read_b128 {acc[0:4]}, {vt[0]}', f'ds_read_b128 {acc[4:8]}, {vt[0]} offset:512', W(lg='all')])
for t in range(4): E(vfix(accV[4 * t:4 * t + 4], acc[0:8], acc[8 + t], vEx, 512 * t))
E(cnt_arrive(L_C3, vt[4], vt[5]) + ['s_endpgm'])
E([('L', 'Lst_re')] + spin_guard() + st_loads + [W('all'), 's_branch Lst_chk'])

load_state(st_main)
A.label('Lloader')
BIAS = 4096
sX = S.alloc('srdx', 4); sWQ = S.alloc('srdq', 4); sWK = S.alloc('srdk', 4); sWV = S.alloc('srdv', 4); sWO = S.alloc('srdwo', 4)
vW = V.alloc('vw', 8); vX = V.alloc('vx', 14); sWk = S.alloc('wk', 10, 1); sXk = S.alloc('xk'); sRho = S.alloc('rho'); sStr = S.alloc('stride')
l3 = vt[1]; l7 = vt[2]; vch = V.alloc('chunkw')
E(['s_setprio 3', f'v_lshrrev_b32 {l3}, 3, {vLane}', f'v_and_b32 {l7}, 7, {vLane}',
   f'v_and_b32 {vt[4]}, 1, {vG}', f'v_lshlrev_b32 {vt[4]}, 1, {vt[4]}', f'v_xor_b32 {vt[4]}, {vt[4]}, {l7}', f's_lshl_b32 {sT[3]}, {sC}, 7', f'v_lshl_add_u32 {vch}, {vt[4]}, 4, {sT[3]}',
   f'v_mov_b32 {vt[3]}, 3840', f'v_mad_u32_u24 {vW[0]}, {l3}, {vt[3]}, {vch}', f'v_xor_b32 {vW[1]}, 64, {vW[0]}', f'v_add_u32 {vW[1]}, {8 * 3840 - 1024}, {vW[1]}'] +
  [f'v_add_u32 {vW[j]}, {(j - j % 2) * 8 * 3840 - ((j % 4) - (j % 2)) * 1024}, {vW[j % 2]}' for j in range(2, 8)] +
  [f's_mul_i32 {sT[2]}, {sRB}, 96', f's_sub_u32 {sT[2]}, {sT[2]}, 16', f'v_add_u32 {vt[3]}, {sT[2]}, {l3}',
   f'v_xor_b32 {vt[5]}, {l7}, {vG}', f'v_lshlrev_b32 {vt[5]}, 4, {vt[5]}', f'v_xor_b32 {vt[6]}, 64, {vt[5]}', f'v_mov_b32 {vt[7]}, 2047', f'v_mov_b32 {vt[4]}, 1280'])
for j in range(14):
    E([f'v_add_u32 {vX[j]}, {8 * j}, {vt[3]}', f'v_med3_i32 {vX[j]}, {vX[j]}, 0, {vt[7]}', f'v_mad_u32_u24 {vX[j]}, {vX[j]}, {vt[4]}, {vt[5 + j % 2]}',
       f'v_add_u32 {vX[j]}, {BIAS - (j % 4) * 1024}, {vX[j]}'])
WSZ = 640 * 3840
E([f's_and_b32 {sStr}, {sRB}, 3', f's_lshl_b32 {sStr}, {sStr}, 2', f's_lshr_b32 {sStr}, 0x9731, {sStr}', f's_and_b32 {sStr}, {sStr}, 15', f's_mov_b32 {sRho}, {sC}',
   's_waitcnt lgkmcnt(0)'] + mk_srd(sX, pX, 2048 * 1280, -BIAS) + mk_srd(sWQ, pW, WSZ) + mk_srd(sWK, pW, WSZ, 1280) + mk_srd(sWV, pW, WSZ, 2560))
def grp(m0, items):
    L = [f's_mov_b32 m0, {m0}']
    for j, (vo, srd, sof, nt, tag) in enumerate(items):
        L.append((f'buffer_load_dwordx4 {vo}, {srd}, {sof} offen' + (f' offset:{1024 * j}' if j else '') + f'{nt} lds', tag))
    return L
def wgrp(s, sec, q, tag): return grp((s % NSL) * SLOT + sec * 8192 + q * 4096, [(vW[j], (sWQ, sWK, sWV)[sec], sWk[s], NT['W'], tag) for j in range(4 * q, 4 * q + 4)])
def unit_loads(s):
    sb = (s % NSL) * SLOT; tag = ('u', s)
    L = [f's_mul_i32 {sWk[s]}, {sRho}, {64 * 3840}', f's_lshl_b32 {sXk}, {sRho}, 7']
    xs = [grp(sb + XOFF + q * 4096, [(vX[j], sX, sXk, NT['X'], tag) for j in range(4 * q, min(4 * q + 4, 14))]) for q in range(4)]
    ws = [wgrp(s, sec, q, tag) for q in range(2) for sec in range(3 if s < NI else 2)]
    for i in range(max(len(xs), len(ws))):
        if i < len(xs): L += xs[i]
        if i < len(ws): L += ws[i]
    return L + [[f's_add_u32 {sRho}, {sRho}, {sStr}', f's_sub_u32 {sT[2]}, {sRho}, 10', f's_cmp_ge_u32 {sRho}, 10', f's_cselect_b32 {sRho}, {sT[2]}, {sRho}']]
E(unit_loads(0) + stamp() + get_tag() + mk_srd(sWO, pWO, 640 * 1280, -BIAS - 3 * 20480) + unit_loads(1))
S.free('ka', 'kb')
vOt = V.alloc('ot', 14); sOk = S.alloc('ok')
oset = [f'v_lshrrev_b32 {vt[4]}, 5, {vLane}', f'v_mul_u32_u24 {vt[4]}, 20480, {vt[4]}', f'v_and_b32 {vt[3]}, 3, {l3}', f'v_mul_u32_u24 {vt[3]}, 1280, {vt[3]}',
        f'v_add_u32 {vt[3]}, {3 * 20480}, {vt[3]}', f'v_add_u32 {vOt[3]}, {vt[3]}, {vch}', f'v_xor_b32 {vOt[10]}, 64, {vOt[3]}']
for p in range(2):
    for d in range(1, 4): oset += [f'v_add_u32 {vOt[7 * p + 3 + d]}, {vOt[7 * p + 2 + d]}, {vt[4]}', f'v_sub_u32 {vOt[7 * p + 3 - d]}, {vOt[7 * p + 4 - d]}, {vt[4]}']
def o_loads(j):
    L = []
    for i in range(8):
        sh = 16 * (i >> 2) + 2 * (i & 3); u0 = (UT[j % 5] >> sh) & 3; u1 = (UT[j % 5] >> (sh + 8)) & 3
        if i % 4 == 0: L += [f's_mov_b32 m0, {KLOC[2 * j + i // 4]}']
        L += [f's_mov_b32 {sOk}, {j * 64 * 1280 + u0 * 20480 + BIAS + 4 * (i & 3) * 1280 - (i % 4) * 1024}',
              (f'buffer_load_dwordx4 {vOt[7 * (i % 2) + 3 + u1 - u0]}, {sWO}, {sOk} offen' + (f' offset:{1024 * (i % 4)}' if i % 4 else '') + f'{NT["O"]} lds', ('o', j))]
    return L
for s in range(10):
    A.comment(f'loader unit {s}')
    E([W(('u', s), 'all')] + (stamp() if s in (0, 5, 9) else []) + ['s_barrier'])
    if s == 0: E(fin_tag())
    if s <= 7: E(unit_loads(s + 2))
    elif s == 8:
        for u in range(NI, 10): E(wgrp(u, 2, 0, 'v') + wgrp(u, 2, 1, 'v'))
        E(oset)
S.free('srdx', 'srdq', 'srdk')
sKy0 = S.alloc('key0'); sKy1 = S.alloc('key1'); sI0 = S.alloc('i0'); sI1 = S.alloc('i1')
vBc = V.alloc('bc', 4); vBa = V.alloc('bca')
bc_load = f'buffer_load_dwordx4 {vBc}, {vBa}, {sWS}, 0 offen sc1'
E(o_loads(0) + o_loads(1) + [W('v')] + cnt_arrive(L_WF, vt[1], vt[2]) + cnt_arrive(L_C2, vt[1], vt[2]) + stamp() + o_loads(2) + o_loads(3) + o_loads(4) + cnt_wait(8, vt[1], vt[2]) +
  [f's_lshl_b32 {sT[0]}, s2, 7', f's_add_u32 {sT[0]}, {sT[0]}, {WS_BC}', f'v_mov_b32 {vBa}, {sT[0]}', bc_load])
for j in range(5, 10): E(o_loads(j))
E([W('all'), ('L', 'Lbc'), f'v_readfirstlane_b32 {sKy0}, {vBc[0]}', f'v_readfirstlane_b32 {sT[0]}, {vBc[1]}',
   f'v_readfirstlane_b32 {sKy1}, {vBc[2]}', f'v_readfirstlane_b32 {sT[1]}, {vBc[3]}', f's_cmp_eq_u32 {sT[0]}, {sTag}', f's_cselect_b32 {sT[1]}, {sT[1]}, {sT[0]}', f's_cmp_eq_u32 {sT[1]}, {sTag}',
   's_cbranch_scc1 Lbc_ok'] + spin_guard() + [bc_load, W('all'), 's_branch Lbc', ('L', 'Lbc_ok'), f's_mul_i32 {sT[0]}, {sRB}, 96'])
for k, i in ((sKy0, sI0), (sKy1, sI1)):
    E([f's_and_b32 {i}, {k}, 0x7ff', f's_sub_u32 {i}, 2047, {i}', f's_sub_u32 {sT[1]}, {i}, {sT[0]}', f's_cmp_lt_u32 {sT[1]}, 96', f's_cselect_b32 {i}, {i}, -1'])
E([f'v_mov_b32 {vt[0]}, {sI0}', f'v_mov_b32 {vt[1]}, {sI1}', f'v_mov_b32 {vt[2]}, {L_INFO}'] + stamp() +
  [f'ds_write_b64 {vt[2]}, {vt[0:2]}', f's_and_b32 {sT[1]}, {sI0}, {sI1}', f's_cmp_eq_u32 {sT[1]}, -1', 's_cbranch_scc1 Lw0_done'])
vY = Reg('v', 16, 108)
E([('L', 'Ly_poll')] + spin_guard() + [f's_lshl_b32 {sT[0]}, {sC}, 10', f's_add_u32 {sT[0]}, {sT[0]}, {WS_Y}'])
for j in range(27): E([f'buffer_load_dwordx4 {vY[4 * j:4 * j + 4]}, {vL16}, {sWS}, {sT[0]} offen sc1', f's_add_u32 {sT[0]}, {sT[0]}, 10240'])
E([W('all'), f'v_xor_b32 {vt[0]}, {sTag}, {vY[1]}'])
for j in range(27):
    for q in (1, 3):
        if j or q == 3: E([f'v_xor_b32 {vt[1]}, {sTag}, {vY[4 * j + q]}', f'v_or_b32 {vt[0]}, {vt[0]}, {vt[1]}'])
E([f'v_cmp_ne_u32 vcc, 0, {vt[0]}', 's_cmp_lg_u64 vcc, 0', 's_cbranch_scc1 Ly_poll'])
for j in range(1, 27): E([f'v_add_f32 {vY[0]}, {vY[0]}, {vY[4 * j]}', f'v_add_f32 {vY[2]}, {vY[2]}, {vY[4 * j + 2]}'])
for k, y, off in ((sKy0, vY[0], 0), (sKy1, vY[2], 256)):
    E([f's_lshr_b32 {sT[0]}, {k}, 16', f's_cmp_ge_u32 {sT[0]}, 0x8000', f's_cselect_b32 {sT[1]}, 0x8000, -1', f's_xor_b32 {sT[0]}, {sT[0]}, {sT[1]}', f's_lshl_b32 {sT[0]}, {sT[0]}, 16',
       f'v_mov_b32 {vt[0]}, {sT[0]}', f'v_mul_f32 {vt[0]}, {f32(-L2E)}, {vt[0]}', f'v_exp_f32 {vt[0]}, {vt[0]}', f'v_add_f32 {vt[0]}, 1.0, {vt[0]}', f'v_rcp_f32 {vt[0]}, {vt[0]}'] +
      bf16r(vt[0], vt[0]) + bf16r(y, y) + [f'v_mul_f32 {y}, {y}, {vt[0]}'] + bf16r(y, y) + [f'v_add_u32 {vt[1]}, {L_UPD}, {vL4}', f'ds_write_b32 {vt[1]}, {y} offset:{off}'])
E([f'v_mov_b32 {vt[0]}, 0', f'ds_write_b32 {vt[1]}, {vt[0]} offset:512', f'v_mov_b32 {vt[0]}, {L_UF}', f'ds_write_b32 {vt[0]}, {vt[0]}', ('L', 'Lw0_done'), 's_waitcnt lgkmcnt(0)'])
if STAMPW == 0: write_stamps(0, 'loader')
E('s_endpgm')

load_state(st_common)
A.label('Laux')
sA = sRB
E([f's_mul_i32 {sA}, {sT[0]}, 9', f's_lshl_b32 {sT[2]}, {sT[2]}, 2', f's_add_u32 {sA}, {sA}, {sT[2]}', f's_add_u32 {sA}, {sA}, {sT[1]}',
   f's_cmp_lt_u32 {sA}, 32', 's_cbranch_scc1 Laux2', f's_cmp_lg_u32 {sWv}, 0', 's_cbranch_scc1 Lend',
   's_waitcnt lgkmcnt(0)'] + get_tag() + ['s_waitcnt lgkmcnt(0)'] + fin_tag() + signal() + [f's_cmp_lg_u32 {sA}, 32', 's_cbranch_scc1 Lend'])
sKy0 = S.alloc('key0'); sKy1 = S.alloc('key1')
E(poll_top2(vt, sKy0, sKy1, sT) + [f'v_mov_b32 {vt[4]}, {sKy0}', f'v_mov_b32 {vt[5]}, {sTag}', f'v_mov_b32 {vt[6]}, {sKy1}', f'v_mov_b32 {vt[7]}, {sTag}',
   f'v_lshlrev_b32 {vt[0]}, 7, {vLane}', f's_mov_b32 {sT[0]}, {WS_BC}'])
for i in range(4): E([f'buffer_store_dwordx4 {vt[4:8]}, {vt[0]}, {sWS}, {sT[0]} offen sc1', f's_add_u32 {sT[0]}, {sT[0]}, 8192'])
E([f's_mov_b32 {sT[0]}, {WS_SIG}', ('L', 'Lmaster')] + spin_guard() +
  ['s_sleep 16', f'buffer_load_dwordx4 {vt[0:4]}, {vL16}, {sWS}, {sT[0]} offen sc1', W('all')] + [f'v_xor_b32 {vt[i]}, {sTag}, {vt[i]}' for i in range(4)] +
  [f'v_or3_b32 {vt[0]}, {vt[0]}, {vt[1]}, {vt[2]}', f'v_or_b32 {vt[0]}, {vt[0]}, {vt[3]}', f'v_cmp_ne_u32 vcc, 0, {vt[0]}', 's_cbranch_vccnz Lmaster',
   's_mov_b64 exec, 1', f'buffer_store_dword {vt[5]}, {vt[0]}, {sWS}, 0 offen sc1', 's_endpgm', ('L', 'Laux2')])
S.free('key0', 'key1')
AX_SCR = 19 * 8192
L_WR = AX_SCR; L_KEY = AX_SCR + 2048; L_XS = AX_SCR + 2560; L_H = AX_SCR + 6144; L_U = AX_SCR + 6400
XS_STRIDE = 1344
l3 = vt[1]; l7 = vt[2]
sMW = S.alloc('mw'); sSo = S.alloc('so'); vB0 = V.alloc('b0'); vTw = V.alloc('tw', 3); wf = AG.alloc('wf', 80)
E([f'v_lshrrev_b32 {l3}, 3, {vLane}', f'v_and_b32 {l7}, 7, {vLane}', f's_lshl_b32 {sMW}, {sW}, 11', f's_lshl_b32 {sT[0]}, {sA}, 6', f's_lshl_b32 {sT[1]}, {sW}, 4',
   f's_add_u32 {sT[0]}, {sT[0]}, {sT[1]}', f'v_add_u32 {vt[3]}, {sT[0]}, {l3}', f'v_mul_u32_u24 {vt[3]}, 1280, {vt[3]}', f's_cmp_eq_u32 {sH}, 0', 's_cbranch_scc0 Laux_ld'])
st_aux = save_state()
def adma(sub, voff, srd, soff, nt, tag):
    return [f's_add_u32 m0, {sMW}, {sub * 8192}', f's_mov_b32 {sSo}, {soff}', (f'buffer_load_dwordx4 {voff[0]}, {srd}, {sSo} offen{nt} lds', tag),
            (f'buffer_load_dwordx4 {voff[1]}, {srd}, {sSo} offen offset:1024{nt} lds', tag)]
calc_tw = tr_parts(vB0, vt[5], vt[4], vt[6]) + [f'v_add_u32 {vB0}, {vB0}, {vt[5]}', f'v_lshl_add_u32 {vB0}, {vt[4]}, 3, {vB0}', f's_lshl_b32 {sT[0]}, {sW}, 5',
          f'v_xor_b32 {vTw[0]}, {sT[0]}, {vB0}', f'v_add_u32 {vTw[1]}, {7 * 8192}, {vTw[0]}', f'v_add_u32 {vTw[2]}, {14 * 8192}, {vTw[0]}']
def areads(subs):
    return [f'ds_read_b64_tr_b16 {wf[4 * k + 2 * h:4 * k + 2 * h + 2]}, {vTw[subs[k // 2] // 7]} offset:{(subs[k // 2] % 7) * 8192 + (k % 2) * 4096 + h * 512}' for k in range(20) for h in range(2)]
sX = S.alloc('srdx', 4); sWR_ = S.alloc('srdwr', 4); aXo = V.alloc('axo', 2)
E([f'v_xor_b32 {vt[4]}, {l7}, {vG}', f'v_lshl_add_u32 {aXo[0]}, {vt[4]}, 4, {vt[3]}', f'v_xor_b32 {aXo[1]}, 64, {aXo[0]}', f'v_add_u32 {aXo[1]}, {8 * 1280 - 1024}, {aXo[1]}',
   's_waitcnt lgkmcnt(0)'] + mk_srd(sX, pX, 2048 * 1280) + mk_srd(sWR_, pWR, 1280) +
  [f's_mov_b32 m0, {L_WR}', 's_nop 0', f'buffer_load_dwordx4 {vL16}, {sWR_}, 0 offen lds', 's_mov_b64 exec, 0xffff', f'buffer_load_dwordx4 {vL16}, {sWR_}, 0 offen offset:1024 lds', 's_mov_b64 exec, -1'])
for u in range(10): E(adma(u, aXo, sX, u * 128, NT['R'], ('x', u)))
vOnes = V.alloc('ones', 4); vRa = V.alloc('ra'); vXr = V.alloc('xr', 4)
sK1 = S.alloc('k1', 2); sK2 = S.alloc('k2', 2); vDiag = V.alloc('diag'); vSt = V.alloc('st', 2)
E(get_tag() + [f'v_mov_b32 {vOnes[i]}, 0x3f803f80' for i in range(4)] +
  [f'v_lshlrev_b32 {vRa}, 4, {vG}', f'v_add_u32 {vRa}, {L_WR}, {vRa}', f'v_lshrrev_b32 {vt[6]}, 1, {vTt}', f'v_xor_b32 {vt[6]}, {vt[6]}, {vG}', f'v_lshlrev_b32 {vt[6]}, 4, {vt[6]}',
   f'v_lshl_add_u32 {vt[6]}, {vTt}, 7, {vt[6]}', f'v_add_u32 {vXr[0]}, {sMW}, {vt[6]}', f'v_xor_b32 {vXr[1]}, 64, {vXr[0]}', f'v_add_u32 {vXr[2]}, {5 * 8192}, {vXr[0]}',
   f'v_add_u32 {vXr[3]}, {5 * 8192}, {vXr[1]}', f's_mov_b32 {sK1[0]}, 0xaaaaaaaa', f's_mov_b32 {sK1[1]}, 0xaaaaaaaa', f's_mov_b32 {sK2[0]}, 0xcccccccc', f's_mov_b32 {sK2[1]}, 0xcccccccc',
   f'v_lshrrev_b32 {vDiag}, 2, {vTt}', f'v_lshl_add_u32 {vDiag}, {vDiag}, 4, {vTt}', f'v_lshlrev_b32 {vDiag}, 2, {vDiag}'] + calc_tw + ['s_waitcnt lgkmcnt(0)'] + fin_tag())
rb_ = AG.alloc('rb', 32)
a4 = V.alloc('a4', 16); aSum, aSq, aDot, aSw = a4[0:4], a4[4:8], a4[8:12], a4[12:16]
def r_reads(u):
    b = (u % 2) * 16; L = [W(('x', u))]
    for kk in range(2):
        L += [(f'ds_read_b128 {rb_[b + 8 * kk:b + 8 * kk + 4]}, {vXr[(u // 5) * 2 + kk]} offset:{(u % 5) * 8192}', ('rr', u)),
              (f'ds_read_b128 {rb_[b + 8 * kk + 4:b + 8 * kk + 8]}, {vRa} offset:{(2 * u + kk) * 64}', ('rr', u))]
    return L
E(r_reads(0))
for u in range(10):
    if u < 9: E(r_reads(u + 1))
    E(W(lg=('rr', u)))
    for kk in range(2):
        b = (u % 2) * 16 + 8 * kk; x = rb_[b:b + 4]; r = rb_[b + 4:b + 8]
        E([f'{MFMA} {ac}, {a}, {bb}, {0 if (u == 0 and kk == 0) else ac}' for ac, a, bb in ((aSq, x, x), (aSum, vOnes, x), (aDot, r, x), (aSw, r, vOnes))])
E(stamp() + stats(aSum[0], aSq, vSt, vt, vDiag, sK1, sK2) +
  [f'v_lshrrev_b32 {vt[4]}, 16, {vt[0]}', f'v_or_b32 {vt[4]}, {vt[4]}, {vSt[0]}', f'v_mov_b32 {vt[5]}, {sTag}', f's_lshl_b32 {sT[0]}, {sA}, 9', f's_lshl_b32 {sT[1]}, {sW}, 7',
   f's_add_u32 {sT[0]}, {sT[0]}, {sT[1]}', f's_add_u32 {sT[0]}, {sT[0]}, {WS_STAT}', f'v_lshlrev_b32 {vt[6]}, 3, {vLane}', 's_mov_b64 exec, 0xffff',
   f'buffer_store_dwordx2 {vt[4:6]}, {vt[6]}, {sWS}, {sT[0]} offen sc1', 's_mov_b64 exec, -1'] +
  [f'v_fma_f32 {vt[0]}, {vSt[0]}, {aSw[0]}, {aDot[0]}', f'v_mul_f32 {vt[0]}, {vt[0]}, {vSt[1]}', f'v_cvt_pk_bf16_f32 {vt[0]}, {vt[0]}, {vt[0]}',
   f'v_ashrrev_i32 {vt[1]}, 31, {vt[0]}', f'v_or_b32 {vt[1]}, 0x80000000, {vt[1]}', f'v_xor_b32 {vt[0]}, {vt[0]}, {vt[1]}', f'v_and_b32 {vt[0]}, 0xffff0000, {vt[0]}',
   f'v_max_u32 {vt[0]}, 0x10000, {vt[0]}', f's_lshl_b32 {sT[0]}, {sW}, 4', f'v_add_u32 {vt[1]}, {sT[0]}, {vTt}', f'v_sub_u32 {vt[2]}, 63, {vt[1]}', f'v_or_b32 {vt[0]}, {vt[0]}, {vt[2]}',
   f'v_lshlrev_b32 {vt[1]}, 2, {vt[1]}', f'v_add_u32 {vt[1]}, {L_KEY}, {vt[1]}', f'ds_write_b32 {vt[1]}, {vt[0]}', W(lg='all'), 's_barrier'])
sKy0 = S.alloc('key0'); sKy1 = S.alloc('key1')
E([f's_cmp_lg_u32 {sW}, 0', 's_cbranch_scc1 Lpub_done', f'v_add_u32 {vt[1]}, {L_KEY}, {vL4}', f'ds_read_b32 {vt[2]}, {vt[1]}', W(lg='all'), f'v_mov_b32 {vt[0]}, {vt[2]}'] +
  wave_max_u32(vt[0], sKy0, sT) + [f'v_cmp_eq_u32 vcc, {sKy0}, {vt[2]}', f'v_cndmask_b32 {vt[0]}, {vt[2]}, 0, vcc'] + wave_max_u32(vt[0], sKy1, sT) +
  [f's_and_b32 {sT[0]}, {sKy0}, 0xffff0000', f's_lshr_b32 {sT[1]}, {sKy1}, 16', f's_or_b32 {sT[0]}, {sT[0]}, {sT[1]}', f's_and_b32 {sT[1]}, {sKy0}, 63', f's_and_b32 {sT[2]}, {sKy1}, 63',
   f's_lshl_b32 {sT[2]}, {sT[2]}, 6', f's_or_b32 {sT[1]}, {sT[1]}, {sT[2]}', f's_xor_b32 {sT[1]}, {sT[1]}, 0x8fff', f's_lshl_b32 {sT[2]}, {sA}, 2', f's_lshl_b32 {sT[3]}, {sA}, 1',
   f'v_mov_b32 {vt[0]}, {sT[0]}', f'v_mov_b32 {vt[1]}, {sT[1]}', f'v_mov_b32 {vt[2]}, {sT[2]}', f'v_mov_b32 {vt[3]}, {sT[3]}', 's_mov_b64 exec, 1',
   f'buffer_store_dword {vt[0]}, {vt[2]}, {sDBG}, 0 offen offset:{DBG_VAL} sc1', f'buffer_store_short {vt[1]}, {vt[3]}, {sDBG}, 0 offen offset:{DBG_IDX} sc1', 's_mov_b64 exec, -1'] + signal() + [
   ('L', 'Lpub_done')] + stamp() + [f's_cmp_ge_u32 {sA}, 27', 's_cbranch_scc1 Lend', 's_barrier'])
E(areads([10 + u for u in range(9)] + [9]) + [W(lg='all'), 's_barrier'] + stamp())
xr = V.alloc('xraw', 10); xv = V.alloc('xv', 20)
def half_sum(r, tmp):
    return [f'v_add_f32_dpp {r}, {r}, {r} row_ror:{sh} row_mask:0xf bank_mask:0xf' for sh in (8, 4, 2, 1)] + [f'v_mov_b32 {tmp}, {r}', f'v_permlane16_swap_b32 {r}, {tmp}', f'v_add_f32 {r}, {r}, {tmp}']
E([f's_cmp_lg_u32 {sW}, 0', 's_cbranch_scc1 Lsel_done'] + poll_top2(vt, sKy0, sKy1, sT) +
  [f's_and_b32 {sT[0]}, {sKy0}, 0x7ff', f's_sub_u32 {sT[0]}, 2047, {sT[0]}', f's_mul_i32 {sT[0]}, {sT[0]}, 1280', f's_and_b32 {sT[1]}, {sKy1}, 0x7ff', f's_sub_u32 {sT[1]}, 2047, {sT[1]}',
   f's_mul_i32 {sT[1]}, {sT[1]}, 1280', f'v_mov_b32 {vt[0]}, {sT[0]}', f'v_mov_b32 {vt[1]}, {sT[1]}', f'v_cmp_gt_u32 vcc, 32, {vLane}', f'v_cndmask_b32 {vt[0]}, {vt[1]}, {vt[0]}, vcc',
   f'v_and_b32 {vt[6]}, 31, {vLane}', f'v_lshl_add_u32 {vt[0]}, {vt[6]}, 3, {vt[0]}'] +
  [(f'buffer_load_dwordx2 {xr[2 * i:2 * i + 2]}, {vt[0]}, {sX}, 0 offen offset:{256 * i}', 'xs') for i in range(5)] + [W('xs')])
for i in range(10): E([f'v_lshlrev_b32 {xv[2 * i]}, 16, {xr[i]}', f'v_and_b32 {xv[2 * i + 1]}, 0xffff0000, {xr[i]}'])
E([f'v_add_f32 {vt[2]}, {xv[0]}, {xv[1]}'] + [f'v_add_f32 {vt[2]}, {vt[2]}, {xv[i]}' for i in range(2, 20)] + half_sum(vt[2], vt[3]) +
  [f'v_mul_f32 {vt[2]}, {f32(1 / 640)}, {vt[2]}', f'v_mov_b32 {vt[4]}, 0'])
for i in range(20): E([f'v_sub_f32 {vt[5]}, {xv[i]}, {vt[2]}', f'v_fmac_f32 {vt[4]}, {vt[5]}, {vt[5]}'])
E(half_sum(vt[4], vt[3]) + [f'v_mul_f32 {vt[4]}, {f32(1 / 640)}, {vt[4]}'] + bf16r(vt[4], vt[4]) + [f'v_add_f32 {vt[4]}, {f32(1e-5)}, {vt[4]}'] + bf16r(vt[4], vt[4]) +
  [f'v_sqrt_f32 {vt[4]}, {vt[4]}'] + bf16r(vt[4], vt[4]) + [f'v_rcp_f32 {vt[4]}, {vt[4]}'] + bf16r(vt[2], vt[2]) + [f'v_sub_f32 {xv[i]}, {xv[i]}, {vt[2]}' for i in range(20)] +
  round_pairs(xv, 20) + [f'v_mul_f32 {xv[i]}, {xv[i]}, {vt[4]}' for i in range(20)] + [f'v_cvt_pk_bf16_f32 {xr[i]}, {xv[2 * i]}, {xv[2 * i + 1]}' for i in range(10)] +
  [f'v_lshrrev_b32 {vt[0]}, 5, {vLane}', f'v_mul_u32_u24 {vt[0]}, {XS_STRIDE}, {vt[0]}', f'v_lshl_add_u32 {vt[0]}, {vt[6]}, 3, {vt[0]}', f'v_add_u32 {vt[0]}, {L_XS}, {vt[0]}'] +
  [f'ds_write_b64 {vt[0]}, {xr[2 * i:2 * i + 2]} offset:{256 * i}' for i in range(5)] + [W(lg='all'), ('L', 'Lsel_done')] + stamp() + ['s_barrier', 's_branch Laux_mm'])
aux_stamps = list(sST); aux_S = (dict(S.used), set(S.taken))
load_state(st_aux)
S.used, S.taken = dict(aux_S[0]), set(aux_S[1]); sST[:] = aux_stamps
A.label('Laux_ld')
sWG_ = S.alloc('srdg', 4); sWU_ = S.alloc('srdu', 4); sWD_ = S.alloc('srdd', 4); aGo = V.alloc('ago', 2); aDo = V.alloc('ado', 2)
E([f's_cmp_ge_u32 {sA}, 27', 's_cbranch_scc1 Lend',
   f'v_and_b32 {vt[4]}, 1, {vG}', f'v_lshlrev_b32 {vt[4]}, 1, {vt[4]}', f'v_xor_b32 {vt[4]}, {vt[4]}, {l7}', f'v_lshlrev_b32 {vt[4]}, 4, {vt[4]}',
   f'v_add_u32 {aDo[0]}, {vt[3]}, {vt[4]}', f'v_xor_b32 {aDo[1]}, 64, {aDo[0]}', f'v_add_u32 {aDo[1]}, {8 * 1280 - 1024}, {aDo[1]}',
   f'v_add_u32 {vt[5]}, {sT[1]}, {l3}', f'v_mul_u32_u24 {vt[5]}, 3456, {vt[5]}', f's_lshl_b32 {sT[2]}, {sA}, 7', f'v_add3_u32 {aGo[0]}, {vt[5]}, {vt[4]}, {sT[2]}',
   f'v_xor_b32 {aGo[1]}, 64, {aGo[0]}', f'v_add_u32 {aGo[1]}, {8 * 3456 - 1024}, {aGo[1]}'] + calc_tw + ['s_waitcnt lgkmcnt(0)'] + get_tag() +
  mk_srd(sWG_, pWG, 640 * 3456) + mk_srd(sWU_, pWU, 640 * 3456) + mk_srd(sWD_, pWD, 1728 * 1280))
if opt('gdelay', 0): E(f's_sleep {opt("gdelay", 0)}')
for u in range(9): E(adma(10 + u, aGo, sWG_, u * 64 * 3456, NT['F'], 'g'))
E(['s_waitcnt lgkmcnt(0)'] + fin_tag() + ['s_barrier'])
E(adma(9, aGo, sWG_, 9 * 64 * 3456, NT['F'], 'g'))
for u in range(9): E(adma(u, aGo, sWU_, u * 64 * 3456, NT['F'], 'u'))
E([W('g'), 's_barrier', 's_barrier'])
E(adma(9, aGo, sWU_, 9 * 64 * 3456, NT['F'], 'u'))
for u in range(9): E(adma(10 + u, aDo, sWD_, u * 128, NT['F'], 'd'))
E([W('u'), 's_barrier'] + areads(list(range(10))))
A.label('Laux_mm')
xf = Reg('v', 40, 80); aG = Reg('v', 120, 4); aU = Reg('v', 124, 4); tq = Reg('v', 36, 4)
E([f'v_and_b32 {vt[0]}, 1, {vLane}', f'v_mul_u32_u24 {vt[1]}, {XS_STRIDE}, {vt[0]}', f'v_lshl_add_u32 {vt[1]}, {vG}, 4, {vt[1]}', f'v_add_u32 {vt[1]}, {L_XS}, {vt[1]}'] +
  [f'ds_read_b128 {xf[4 * k:4 * k + 4]}, {vt[1]} offset:{64 * k}' for k in range(20)] + ['s_waitcnt lgkmcnt(0)', 's_barrier'])
E([f's_cmp_eq_u32 {sH}, 0', 's_cbranch_scc1 Lno_d9'] + adma(0, aDo, sWD_, 9 * 128, NT['F'], 'd') + [('L', 'Lno_d9')])
E([f'{MFMA} {aG if k % 2 == 0 else aU}, {wf[4 * k:4 * k + 4]}, {xf[4 * k:4 * k + 4]}, {0 if k < 2 else (aG if k % 2 == 0 else aU)}' for k in range(20)])
E([f's_lshl_b32 {sT[0]}, {sW}, 7', f's_add_u32 {sT[0]}, {sT[0]}, {L_U}', f'v_lshl_add_u32 {vt[2]}, {vG}, 1, {vt[0]}', f'v_lshl_add_u32 {vt[2]}, {vt[2]}, 4, {sT[0]}'] +
  [f'v_add_f32 {aG[i]}, {aG[i]}, {aU[i]}' for i in range(4)] + round_pairs(aG, 4) +
  [f's_cmp_eq_u32 {sH}, 0', 's_cbranch_scc1 Lgw', f'ds_write_b128 {vt[2]}, {aG}', 's_waitcnt lgkmcnt(0)', 's_barrier', 's_waitcnt vmcnt(0)', 's_branch Lhd', ('L', 'Lgw')] +
  silu_into(tq, aG, 4) + ['s_barrier', f'ds_read_b128 {aU}, {vt[2]}', f's_lshl_b32 {sT[0]}, {sW}, 5', f's_add_u32 {sT[0]}, {sT[0]}, {L_H}', f'v_lshlrev_b32 {vt[4]}, 7, {vt[0]}',
   f'v_lshl_add_u32 {vt[5]}, {vG}, 3, {vt[4]}', f'v_add_u32 {vt[5]}, {sT[0]}, {vt[5]}', 's_waitcnt lgkmcnt(0)'] + [f'v_mul_f32 {tq[i]}, {tq[i]}, {aU[i]}' for i in range(4)] +
  cvt2(vt[2:4], tq) + [f'ds_write_b64 {vt[5]}, {vt[2:4]}', 's_waitcnt lgkmcnt(0)', ('L', 'Lhd'), 's_barrier'] + stamp())
hA = xf[0:8]; aY = xf[8:24]; vOut = xf[24:28]; vDa = xf[28:32]
sG = [S.alloc(f'gm{i}', 2) for i in range(3)]
E([f'v_lshlrev_b32 {vt[4]}, 7, {vt[0]}', f'v_lshl_add_u32 {vt[5]}, {vG}, 4, {vt[4]}', f'v_add_u32 {vt[5]}, {L_H}, {vt[5]}'] +
  [f'ds_read_b128 {hA[4 * kk:4 * kk + 4]}, {vt[5]} offset:{64 * kk}' for kk in range(2)] + [f'v_cmp_eq_u32 {sG[i]}, {i + 1}, {vG}' for i in range(3)] +
  [f's_mov_b32 {sC}, {sWv}', ('L', 'Ldown'),
   f's_add_u32 {sT[1]}, {sC}, 10', f's_cmp_eq_u32 {sC}, 9', f's_cselect_b32 {sT[1]}, 0, {sT[1]}', f's_lshl_b32 {sT[1]}, {sT[1]}, 13', f'v_add_u32 {vDa[0]}, {sT[1]}, {vB0}'] +
  [f'v_xor_b32 {vDa[t]}, {32 * t}, {vDa[0]}' for t in (1, 2, 3)] +
  [f'ds_read_b64_tr_b16 {wf[(kk * 4 + t) * 4 + 2 * h:(kk * 4 + t) * 4 + 2 * h + 2]}, {vDa[t]} offset:{kk * 4096 + h * 512}' for kk in range(2) for t in range(4) for h in range(2)] +
  [f's_mul_i32 {sT[1]}, {sA}, 10', f's_add_u32 {sT[1]}, {sT[1]}, {sC}', f's_lshl_b32 {sT[1]}, {sT[1]}, 10', f's_add_u32 {sT[1]}, {sT[1]}, {WS_Y}',
   f'v_mov_b32 {vOut[1]}, {sTag}', f'v_mov_b32 {vOut[3]}, {sTag}', 's_waitcnt lgkmcnt(0)'] +
  [f'{MFMA} {aY[4 * t:4 * t + 4]}, {hA[4 * kk:4 * kk + 4]}, {wf[(kk * 4 + t) * 4:(kk * 4 + t) * 4 + 4]}, {0 if kk == 0 else aY[4 * t:4 * t + 4]}' for kk in range(2) for t in range(4)])
for q, r in ((0, 0), (2, 1)):
    E([f'v_cndmask_b32 {vOut[q]}, {aY[r]}, {aY[4 + r]}, {sG[0]}', f'v_cndmask_b32 {vOut[q]}, {vOut[q]}, {aY[8 + r]}, {sG[1]}', f'v_cndmask_b32 {vOut[q]}, {vOut[q]}, {aY[12 + r]}, {sG[2]}'])
E([f'buffer_store_dwordx4 {vOut}, {vL16}, {sWS}, {sT[1]} offen sc1', f's_add_u32 {sC}, {sC}, 8', f's_cmp_lt_u32 {sC}, 10', 's_cbranch_scc1 Ldown'])
write_stamps(0, 'aux')
A.label('Lend')
A('s_endpgm')
A.raw(f'''.section .rodata,"a"
.p2align 6
.amdhsa_kernel {NAME}_kernel
  .amdhsa_next_free_vgpr 256
  .amdhsa_next_free_sgpr 102
  .amdhsa_accum_offset 128
  .amdhsa_group_segment_fixed_size 0
  .amdhsa_kernarg_size 88
  .amdhsa_user_sgpr_count 2
  .amdhsa_user_sgpr_kernarg_segment_ptr 1
  .amdhsa_system_sgpr_workgroup_id_x 1
  .amdhsa_float_denorm_mode_32 3
.end_amdhsa_kernel''')
txt = A.render()
open(sys.argv[1], 'w').write(txt)
print('lines', txt.count('\n'), 'nops added', A.nops_added, 'vmax', V.maxused, 'amax', AG.maxused, 'smax', S.maxused, file=sys.stderr)
```

```python
import sys, math, struct
from asmlib import Asm, RegAlloc, Reg
NAME = "recurrent_scan__sliding_local_dilated__moe_arch_mod__prompt"
OPTS = set(sys.argv[2:])
STAMPS = 'stamps' in OPTS
def opt(name, default):
    for o in OPTS:
        if o.startswith(name + '='): return type(default)(o[len(name) + 1:])
    return default
DUMP = opt('dump', '')
NT = {k: (' nt' if k in opt('nt', 'F') else '') for k in 'WXOFRS'}
STAMPW = opt('sw', 2)

def f32(x): return '0x%08x' % struct.unpack('<I', struct.pack('<f', x))[0]
L2E = math.log2(math.e)

def tables():
    U = []; SL = []
    for cc in range(5):
        h0 = (16 * cc) // 5
        slot = [((16 * cc + q) // 5) - h0 for q in range(16)]
        s1 = [q for q in range(16) if slot[q] == 1]; s2 = [q for q in range(16) if slot[q] == 2]
        t0 = s1[:4]; e1 = s1[4]; t3 = s2[1:]; e2 = s2[0]
        rest = [q for q in range(16) if q not in t0 and q not in t3]
        t1 = []; t2 = []
        for res in range(4):
            pair = [q for q in rest if q % 4 == res]
            if e1 in pair: a = e1; b = pair[0] if pair[1] == e1 else pair[1]
            elif e2 in pair: b = e2; a = pair[0] if pair[1] == e2 else pair[1]
            else: a, b = pair
            t1.append(a); t2.append(b)
        tl = [sorted(t0, key=lambda q: q % 4), t1, t2, sorted(t3, key=lambda q: q % 4)]
        u = 0; sl = 0
        for t in range(4):
            for g in range(4):
                q = tl[t][g]
                u |= (q // 4) << (2 * (4 * t + g)); sl |= slot[q] << (2 * (4 * t + g))
        U.append(u); SL.append(sl)
    return U, SL
UT, SLT = tables()

SLOT = 39040; VOFF = 16384; XOFF = 24576; ONES_OFF = 38912; NSL = 4; ND = 4; NI = 10 - ND
SCR = 4 * SLOT
L_M = SCR; L_R = SCR + 512; L_CS = SCR + 1024
L_CSV = SCR + 1536
L_CSF = SCR + 1792; L_UF = SCR + 1796; L_INFO = SCR + 1800; L_QF = SCR + 1808; L_C2 = SCR + 1812; L_C3 = SCR + 1816; L_WF = SCR + 1820; L_UPD = SCR + 2048; SENT = -2
EXB = 2 * SLOT + XOFF; VXB = 3 * SLOT + XOFF
OWIN = [0, SLOT + XOFF]
OLOC = [0, 8192, XOFF, EXB + 20480, SLOT + XOFF + 16384, XOFF + 8192, XOFF + 16384, SLOT + XOFF, SLOT + XOFF + 8192]
KLOC = [b + 4096 * kk for b in OLOC for kk in range(2)] + [XOFF + 24576, SLOT + XOFF + 24576]
LDS_BYTES = 163840
WS_SX = 0x100000; WS_O = 0x400000; WS_FL = 0x700000; WS_Y = 0x710000; WS_ST = 0x800000; WS_STAT = 0x7d0000; WS_SIG = 0x7f0000; WS_BC = 0x7e0000; WS_DUMP = 0x1000000
DBG_VAL = 64; DBG_IDX = 192
NSIG = 220 + 27
NEG_INF = '0xff800000'
SCALE_L2E = (20 ** -0.5) * L2E
MFMA = 'v_mfma_f32_16x16x32_bf16'

A = Asm()
V = RegAlloc('v', 1, 128); AG = RegAlloc('a', 0, 128); S = RegAlloc('s', 3, 102)

class Em:
    def __init__(self): self.vm = []; self.lg = []
    def reset(self): self.vm = []; self.lg = []
    def cnt(self, q, tag, mx):
        if tag == 'all': n = 0
        elif tag not in q: return None
        else: n = len(q) - 1 - max(i for i, t in enumerate(q) if t == tag)
        n = min(n, mx)
        del q[:len(q) - n]
        return n
    def __call__(self, it):
        if isinstance(it, list):
            for x in it: self(x)
            return
        if isinstance(it, tuple) and it[0] == 'W':
            parts = []
            if it[1] is not None:
                n = self.cnt(self.vm, it[1], 63)
                if n is not None: parts.append(f'vmcnt({n})')
            if it[2] is not None:
                n = self.cnt(self.lg, it[2], 15)
                if n is not None: parts.append(f'lgkmcnt({n})')
            if parts: A('s_waitcnt ' + ' '.join(parts))
            return
        if isinstance(it, tuple) and it[0] == 'L': A.label(it[1]); return
        text, tag = (it, None) if isinstance(it, str) else it
        if text.startswith('ds_'):
            if 'lgthr' in OPTS and len(self.lg) >= 15: A('s_waitcnt lgkmcnt(14)'); del self.lg[:len(self.lg) - 14]
            self.lg.append(tag)
        elif text.startswith('buffer_'):
            if len(self.vm) >= 63: A('s_waitcnt vmcnt(55)'); del self.vm[:len(self.vm) - 55]
            self.vm.append(tag)
        A(text)
E = Em()
def W(vm=None, lg=None): return ('W', vm, lg)

def merge(a, b, na=1, nb=1):
    out = []; i = j = 0
    while i < len(a) or j < len(b):
        out += a[i:i + na]; i += na
        out += b[j:j + nb]; j += nb
    return out
def spread(a, b):
    out = []; j = 0
    for i, x in enumerate(a):
        out.append(x)
        while j < len(b) and j * len(a) < (i + 1) * len(b): out.append(b[j]); j += 1
    return out + b[j:]

sST = []
FINE = opt('fine', '')
def fstamp(grp):
    return stamp(True) if grp == FINE else []
def stamp(force=False):
    if not STAMPS: return []
    if FINE and not force and len(sST) > 0: return []
    r = S.alloc(f'stamp{len(sST)}', 2); sST.append(r)
    return [f's_memtime {r}' if 'clk' in OPTS else f's_memrealtime {r}']
def bf16r(dst, src): return [f'v_cvt_pk_bf16_f32 {dst}, {src}, {src}', f'v_lshlrev_b32 {dst}, 16, {dst}']
def mk_srd(dst, ptr, nbytes, add=0):
    if add > 0: L = [f's_add_u32 {dst[0]}, {ptr[0]}, {add}', f's_addc_u32 {dst[1]}, {ptr[1]}, 0']
    elif add < 0: L = [f's_sub_u32 {dst[0]}, {ptr[0]}, {-add}', f's_subb_u32 {dst[1]}, {ptr[1]}, 0']
    else: L = [f's_mov_b64 {dst[0:2]}, {ptr}']
    return L + [f's_mov_b32 {dst[2]}, {nbytes - add}', f's_mov_b32 {dst[3]}, 0x20000']
def spin_guard(): return [f's_sub_u32 {sSpin}, {sSpin}, 1', 's_cbranch_scc1 Lend']
def stats(sumreg, sq4, st, tmp, vdiag, mk1, mk2):
    return [f'v_cndmask_b32 {tmp[0]}, {sq4[0]}, {sq4[1]}, {mk1}', f'v_cndmask_b32 {tmp[1]}, {sq4[2]}, {sq4[3]}, {mk1}',
            f'v_cndmask_b32 {tmp[0]}, {tmp[0]}, {tmp[1]}, {mk2}', (f'ds_bpermute_b32 {tmp[0]}, {vdiag}, {tmp[0]}', 'bp'),
            f'v_mul_f32 {tmp[1]}, {f32(-1 / 640)}, {sumreg}'] + bf16r(st[0], tmp[1]) + [f'v_mul_f32 {tmp[1]}, {tmp[1]}, {tmp[1]}',
            f'v_mov_b32 {tmp[2]}, {f32(1 / 640)}', W(lg='bp'),
            f'v_fma_f32 {tmp[0]}, {tmp[0]}, {tmp[2]}, -{tmp[1]}', f'v_max_f32 {tmp[0]}, 0, {tmp[0]}'] + bf16r(tmp[0], tmp[0]) + \
           [f'v_add_f32 {tmp[0]}, {f32(1e-5)}, {tmp[0]}'] + bf16r(tmp[0], tmp[0]) + [f'v_sqrt_f32 {tmp[0]}, {tmp[0]}'] + bf16r(tmp[0], tmp[0]) + \
           [f'v_rcp_f32 {st[1]}, {tmp[0]}']
def wave_max_u32(r, sdst, st):
    return [f'v_max_u32_dpp {r}, {r}, {r} row_ror:{sh} row_mask:0xf bank_mask:0xf' for sh in (8, 4, 2, 1)] + \
           [f'v_readlane_b32 {sdst}, {r}, 0', f'v_readlane_b32 {st[0]}, {r}, 16', f'v_readlane_b32 {st[1]}, {r}, 32', f'v_readlane_b32 {st[2]}, {r}, 48',
            f's_max_u32 {sdst}, {sdst}, {st[0]}', f's_max_u32 {st[1]}, {st[1]}, {st[2]}', f's_max_u32 {sdst}, {sdst}, {st[1]}']
def poll_top2(t, sK0, sK1, st):
    L = A.newlabel('Lpt'); Ld = A.newlabel('Lptd')
    return [('L', L)] + spin_guard() + [
        f'buffer_load_dword {t[0]}, {vL4}, {sDBG}, 0 offen offset:{DBG_VAL} sc1',
        f'v_lshrrev_b32 {t[1]}, 1, {vL4}', f'v_and_b32 {t[1]}, 0x3c, {t[1]}', f'v_add_u32 {t[1]}, 128, {t[1]}', W('all'),
        f'ds_bpermute_b32 {t[1]}, {t[1]}, {t[0]}', f'v_and_b32 {t[2]}, 4, {vL4}', f'v_lshlrev_b32 {t[2]}, 2, {t[2]}', W(lg='all'),
        f'v_bfe_u32 {t[1]}, {t[1]}, {t[2]}, 16', f'v_cmp_ne_u32 vcc, 0, {t[0]}', f'v_cmp_ne_u32 {st[0:2]}, 0, {t[1]}',
        f's_and_b32 {st[0]}, {st[0]}, vcc_lo', f's_cmp_eq_u32 {st[0]}, -1', f's_cbranch_scc1 {Ld}', 's_sleep 2', f's_branch {L}', ('L', Ld),
        f'v_lshlrev_b32 {t[2]}, 4, {vL4}', f'v_and_b32 {t[3]}, 63, {t[1]}', f'v_add_u32 {t[3]}, {t[3]}, {t[2]}', f'v_sub_u32 {t[3]}, 2047, {t[3]}',
        f'v_bfe_u32 {t[1]}, {t[1]}, 6, 6', f'v_add_u32 {t[1]}, {t[1]}, {t[2]}', f'v_sub_u32 {t[1]}, 2047, {t[1]}',
        f'v_and_b32 {t[2]}, 0xffff0000, {t[0]}', f'v_or_b32 {t[3]}, {t[3]}, {t[2]}', f'v_lshl_or_b32 {t[1]}, {t[0]}, 16, {t[1]}',
        f'v_cmp_gt_u32 vcc, 128, {vL4}', f'v_cndmask_b32 {t[3]}, 0, {t[3]}, vcc', f'v_cndmask_b32 {t[1]}, 0, {t[1]}, vcc', f'v_mov_b32 {t[0]}, {t[3]}'] + \
        wave_max_u32(t[0], sK0, st) + [f'v_cmp_eq_u32 vcc, {sK0}, {t[3]}', f'v_cndmask_b32 {t[0]}, {t[3]}, {t[1]}, vcc'] + wave_max_u32(t[0], sK1, st)
def round_pairs(x, n):
    L = [f'v_cvt_pk_bf16_f32 {x[i + 1]}, {x[i]}, {x[i + 1]}' for i in range(0, n, 2)]
    for i in range(0, n, 2): L += [f'v_lshlrev_b32 {x[i]}, 16, {x[i + 1]}', f'v_and_b32 {x[i + 1]}, 0xffff0000, {x[i + 1]}']
    return L
def silu_into(g, z, n):
    return [f'v_mul_f32 {g[i]}, {f32(-L2E)}, {z[i]}' for i in range(n)] + [f'v_exp_f32 {g[i]}, {g[i]}' for i in range(n)] + \
           [f'v_add_f32 {g[i]}, 1.0, {g[i]}' for i in range(n)] + [f'v_rcp_f32 {g[i]}, {g[i]}' for i in range(n)] + \
           [f'v_mul_f32 {g[i]}, {g[i]}, {z[i]}' for i in range(n)] + round_pairs(g, n)
def cvt2(dst, acc): return [f'v_cvt_pk_bf16_f32 {dst[0]}, {acc[0]}, {acc[1]}', f'v_cvt_pk_bf16_f32 {dst[1]}, {acc[2]}, {acc[3]}']
def tr_parts(vrow, vphi32, vc, tmp):
    return [f'v_bfe_u32 {tmp}, {vLane}, 2, 2', f'v_and_b32 {vc}, 3, {vLane}', f'v_lshl_add_u32 {vrow}, {vG}, 3, {tmp}', f'v_lshlrev_b32 {vrow}, 7, {vrow}',
            f'v_lshlrev_b32 {vphi32}, 2, {vLane}', f'v_and_b32 {vphi32}, 0x60, {vphi32}']
def save_state(): return (dict(V.used), set(V.taken), dict(S.used), set(S.taken), dict(AG.used), set(AG.taken), list(sST))
def load_state(st):
    V.used, V.taken, S.used, S.taken, AG.used, AG.taken = [x.copy() for x in st[:6]]; sST[:] = st[6]; E.reset()
def write_stamps(who, kind):
    if not STAMPS: return
    E([W('all')] + stamp(True) + ['s_waitcnt lgkmcnt(0)', f's_cmp_lg_u32 {sWv}, {who}', 's_cbranch_scc1 Lend',
       f's_mul_i32 {sT[0]}, s2, 128', f's_add_u32 {sT[0]}, {sT[0]}, {WS_ST}', 's_mov_b64 exec, 1', f'v_mov_b32 {vt[2]}, 0'])
    print(kind, 'stamps', len(sST), file=sys.stderr)
    lk = opt('leak', -1)
    if lk >= 0 and kind == opt('leakk', 'main'):
        Lp = A.newlabel('Lpad')
        E([f's_sub_u32 {sT[1]}, {sST[lk][0]}, {sST[0][0]}', f's_mul_i32 {sT[1]}, {sT[1]}, 5', f's_add_u32 {sT[1]}, {sT[1]}, 3000', ('L', Lp), f's_memrealtime {sT[2:4]}', 's_waitcnt lgkmcnt(0)',
           f's_sub_u32 {sT[2]}, {sT[2]}, {sST[0][0]}', f's_cmp_lt_u32 {sT[2]}, {sT[1]}', f's_cbranch_scc1 {Lp}'])
    for i in range(16):
        j = min(i, len(sST) - 1)
        E([f'v_mov_b32 {vt[0]}, {sST[j][0]}', f'v_mov_b32 {vt[1]}, {sST[j][1]}', f'buffer_store_dwordx2 {vt[0:2]}, {vt[2]}, {sWS}, {sT[0]} offen offset:{8 * i}', 's_nop 1'])
def signal():
    return ['s_mov_b64 exec, 1', f's_lshl_b32 {sT[0]}, s2, 2', f's_add_u32 {sT[0]}, {sT[0]}, {WS_SIG}', f'v_mov_b32 {vt[0]}, {sTag}', f'v_mov_b32 {vt[1]}, {sT[0]}',
            f'buffer_store_dword {vt[0]}, {vt[1]}, {sWS}, 0 offen sc1', 's_mov_b64 exec, -1']

sKA = S.alloc('ka', 16); sKB = S.alloc('kb', 6, 4)
sWS = S.alloc('srdws', 4); sDBG = S.alloc('srddbg', 4)
sWv = S.alloc('wv'); sW = S.alloc('w'); sH = S.alloc('h'); sRB = S.alloc('rb'); sC = S.alloc('c')
sT = S.alloc('t', 4); sTag = S.alloc('tag'); sSpin = S.alloc('spin')
A.raw(f'''; @launch grid=(256,1,1) block=(512,1,1) lds={LDS_BYTES}
.amdgcn_target "amdgcn-amd-amdhsa--gfx950"
.text
.globl {NAME}_kernel
.p2align 8
.type {NAME}_kernel,@function
{NAME}_kernel:''')
vLane = V.alloc('lane'); vG = V.alloc('g'); vTt = V.alloc('t16'); vt = V.alloc('vt', 8); vL4 = V.alloc('lane4'); vL16 = V.alloc('lane16')
pX, pW, pWO, pWR, pWG, pWU, pWD = sKA[0:2], sKA[2:4], sKA[4:6], sKA[8:10], sKA[10:12], sKA[12:14], sKA[14:16]
pOUT, pDBG, pWS = sKB[0:2], sKB[2:4], sKB[4:6]
E([f's_load_dwordx16 {sKA}, s[0:1], 0', f's_load_dwordx4 {sKB[0:4]}, s[0:1], 64', f's_load_dwordx2 {sKB[4:6]}, s[0:1], 80'] + stamp() +
  [f'v_lshrrev_b32 {vt[0]}, 6, v0', f'v_and_b32 {vLane}, 63, v0', 's_cmp_ge_u32 s2, 256', 's_cbranch_scc1 Lend',
   f'v_readfirstlane_b32 {sWv}, {vt[0]}'] + ([] if 'nopf' in OPTS else [
   f's_getpc_b64 {sT[0:2]}', ('L', 'Lpc'), f's_and_b32 {sT[2]}, s2, 0xf8', f'v_add_u32 {vt[1]}, {sT[2]}, {vt[0]}', f'v_and_b32 {vt[2]}, 1, v0', f'v_lshl_add_u32 {vt[1]}, {vt[1]}, 1, {vt[2]}',
   f'v_lshlrev_b32 {vt[1]}, 7, {vt[1]}', f'v_min_u32 {vt[1]}, Lend-Lpc, {vt[1]}', f'v_mov_b32 {vt[3]}, {sT[1]}', f'v_add_co_u32 {vt[2]}, vcc, {sT[0]}, {vt[1]}',
   f'v_addc_co_u32 {vt[3]}, vcc, 0, {vt[3]}, vcc', f'global_load_dword v0, {vt[2:4]}, off']) + [f'v_lshrrev_b32 {vG}, 4, {vLane}', f'v_and_b32 {vTt}, 15, {vLane}',
   f'v_lshlrev_b32 {vL4}, 2, {vLane}', f'v_lshlrev_b32 {vL16}, 4, {vLane}', f's_mov_b32 {sSpin}, 200000',
   f's_and_b32 {sT[0]}, s2, 7', f's_lshr_b32 {sT[1]}, s2, 3', f's_and_b32 {sT[2]}, {sT[0]}, 1', f's_lshr_b32 {sT[0]}, {sT[0]}, 1', f's_add_u32 {sT[3]}, {sT[2]}, 4',
   f's_and_b32 {sW}, {sWv}, 3', f's_lshr_b32 {sH}, {sWv}, 2',
   f's_cmp_lt_u32 {sT[1]}, {sT[3]}', 's_cbranch_scc1 Laux'])
st_common = save_state()
def get_tag():
    return mk_srd(sWS, pWS, 0x10000000, opt('wsoff', 0) << 20) + mk_srd(sDBG, pDBG, 256) + [f's_load_dword {sTag}, {sWS[0:2]}, 0']
def fin_tag(): return [f's_add_u32 {sTag}, {sTag}, 0x9e3779b8', f's_or_b32 {sTag}, {sTag}, 1']
if opt('map', 1) == 0:
    E([f's_mul_i32 {sT[0]}, {sT[0]}, 55', f's_mul_i32 {sT[2]}, {sT[2]}, 28', f's_add_u32 {sT[0]}, {sT[0]}, {sT[2]}', f's_add_u32 {sT[0]}, {sT[0]}, {sT[1]}',
       f's_sub_u32 {sT[0]}, {sT[0]}, {sT[3]}', f's_mul_i32 {sRB}, {sT[0]}, 6554', f's_lshr_b32 {sRB}, {sRB}, 16', f's_mul_i32 {sT[1]}, {sRB}, 10', f's_sub_u32 {sC}, {sT[0]}, {sT[1]}'])
else:
    E([f's_lshr_b32 {sC}, {sT[0]}, 1', f's_and_b32 {sT[0]}, {sT[0]}, 1',
       f's_mul_i32 {sT[0]}, {sT[0]}, 55', f's_mul_i32 {sT[2]}, {sT[2]}, 28', f's_add_u32 {sT[0]}, {sT[0]}, {sT[2]}', f's_add_u32 {sT[0]}, {sT[0]}, {sT[1]}',
       f's_sub_u32 {sT[0]}, {sT[0]}, {sT[3]}', f's_mul_i32 {sRB}, {sT[0]}, 13108', f's_lshr_b32 {sRB}, {sRB}, 16', f's_mul_i32 {sT[1]}, {sRB}, 5', f's_sub_u32 {sT[0]}, {sT[0]}, {sT[1]}',
       f's_mul_i32 {sC}, {sC}, 5', f's_add_u32 {sC}, {sC}, {sT[0]}'])
sCC = S.alloc('cc'); sU = S.alloc('U')
def sel_cc(dst, tab):
    L = [f's_mov_b32 {dst}, {tab[0]:#x}']
    for cc in range(1, 5): L += [f's_cmp_eq_u32 {sCC}, {cc}', f's_cselect_b32 {dst}, {tab[cc]:#x}, {dst}']
    return L
calc_cc = [f's_sub_u32 {sT[0]}, {sC}, 5', f's_cmp_ge_u32 {sC}, 5', f's_cselect_b32 {sCC}, {sT[0]}, {sC}'] + sel_cc(sU, UT)
vOnes = V.alloc('ones', 4); vrow = V.alloc('trrow'); vPhi = V.alloc('phi32'); vWr = V.alloc('wr', 8)
def calc_wr(secoff):
    vc = vt[4]
    L = tr_parts(vrow, vPhi, vc, vt[3]) + [f'v_lshlrev_b32 {vt[6]}, 1, {vc}', f'v_add_u32 {vt[5]}, {secoff}, {vrow}']
    for t in range(4):
        L += [f'v_add_u32 {vt[7]}, {8 * t}, {vt[6]}', f'v_bfe_u32 {vt[7]}, {sU}, {vt[7]}, 2', f'v_lshl_add_u32 {vt[7]}, {vt[7]}, 2, {vc}', f'v_lshlrev_b32 {vt[7]}, 3, {vt[7]}',
              f'v_xad_u32 {vWr[t]}, {vt[7]}, {vPhi}, {vt[5]}']
    return L + [f'v_add_u32 {vWr[4 + t]}, {2 * SLOT}, {vWr[t]}' for t in range(4)]
def trs(dst, areg, off, tag): return [(f'ds_read_b64_tr_b16 {dst[2 * h:2 * h + 2]}, {areg} offset:{off + h * 512}', tag) for h in range(2)]
def cnt_arrive(addr, va, vb): return [f'v_mov_b32 {va}, {addr}', f'v_mov_b32 {vb}, 1', 's_mov_b64 exec, 1', f'ds_add_u32 {va}, {vb}', 's_mov_b64 exec, -1']
def cnt_wait(n, va, vb):
    L = A.newlabel('Lcw')
    return [('L', L)] + spin_guard() + [f'ds_read_b32 {vb}, {va}', W(lg='all'), f'v_readfirstlane_b32 {sT[2]}, {vb}', f's_cmp_lt_u32 {sT[2]}, {n}', f's_cbranch_scc1 {L}']
set_ones = [f'v_mov_b32 {vOnes[i]}, 0x3f803f80' for i in range(4)]
E([f's_cmp_lg_u32 {sWv}, 0', 's_cbranch_scc1 Lcomp'])
st_main = save_state()
pos_comp = len(A.lines)
A.label('Lcomp')

sTau = S.alloc('tau'); sOUT = S.alloc('srdout', 4)
acc = V.alloc('acc', 32); B1 = V.alloc('B1', 16); B2 = V.alloc('B2', 16); B3 = V.alloc('B3', 16)
vXb = V.alloc('xb', 8); vPM = V.alloc('pm', 4); vSt = V.alloc('st', 4); vVr = B2[8:12]
vXe = V.alloc('xea'); vEx = V.alloc('exa'); vScB = V.alloc('scb'); vSc = [vSt[3], vScB]
vXr = B2[0:8]; accV = B1
sVx = S.alloc('vx')
E([f's_lshl_b32 {sTau}, {sW}, 1', f's_add_u32 {sTau}, {sTau}, {sH}'] + calc_cc + [f's_lshl_b32 {sT[1]}, {sH}, 13', f's_cmp_eq_u32 {sTau}, 1', f's_cselect_b32 {sT[1]}, 0, {sT[1]}'] + calc_wr(sT[1]))
E([f'v_lshrrev_b32 {vt[6]}, 1, {vTt}', f'v_xor_b32 {vt[5]}, {vt[6]}, {vG}', f'v_lshlrev_b32 {vt[5]}, 4, {vt[5]}', f'v_lshl_add_u32 {vt[5]}, {vTt}, 7, {vt[5]}',
   f's_lshl_b32 {sT[0]}, {sTau}, 11', f's_xor_b32 {sT[2]}, {sT[0]}, 2048', f's_add_u32 {sT[0]}, {sT[0]}, {XOFF - 2048}', f's_add_u32 {sT[2]}, {sT[2]}, {XOFF - 2048}',
   f'v_add_u32 {vXr[0]}, {sT[0]}, {vt[5]}', f'v_add_u32 {vXr[2]}, {sT[2]}, {vt[5]}',
   f's_mul_i32 {sT[3]}, {sW}, 6144', f's_add_u32 {sT[3]}, {sT[3]}, {EXB - 4096}', f'v_add_u32 {vEx}, {sT[3]}, {vL16}',
   f's_lshl_b32 {sVx}, {sTau}, 11', f's_add_u32 {sVx}, {sVx}, {VXB - 2048}',
   's_waitcnt lgkmcnt(0)'] + get_tag() + [f's_cmp_eq_u32 {sTau}, 1', 's_cbranch_scc1 Lhalo'])
st_halo = save_state()
E([f'v_xor_b32 {vXr[1]}, 64, {vXr[0]}', f'v_xor_b32 {vXr[3]}, 64, {vXr[2]}'] + [f'v_add_u32 {vXr[4 + j]}, {2 * SLOT}, {vXr[j]}' for j in range(4)] +
  [f's_cmp_eq_u32 {sH}, 0', 's_cselect_b64 vcc, 0, -1', f's_sub_u32 {sT[1]}, {VOFF}, {sT[1]}', f'v_cndmask_b32 {vVr[0]}, {vWr[0]}, {vWr[2]}, vcc', f'v_cndmask_b32 {vVr[1]}, {vWr[1]}, {vWr[3]}, vcc',
   f'v_add_u32 {vVr[0]}, {sT[1]}, {vVr[0]}', f'v_add_u32 {vVr[1]}, {sT[1]}, {vVr[1]}', f'v_add_u32 {vVr[2]}, {2 * SLOT}, {vVr[0]}', f'v_add_u32 {vVr[3]}, {2 * SLOT}, {vVr[1]}',
   f'v_lshrrev_b32 {vt[4]}, 1, {vG}', f'v_xor_b32 {vt[4]}, {vt[4]}, {vt[6]}', f'v_lshlrev_b32 {vt[4]}, 4, {vt[4]}', f'v_lshl_add_u32 {vt[4]}, {vTt}, 7, {vt[4]}',
   f'v_and_b32 {vt[3]}, 1, {vG}', f'v_lshl_add_u32 {vXe}, {vt[3]}, 3, {vt[4]}', f'v_add_u32 {vt[0]}, {sT[0]}, {vXe}',
   f'v_xor_b32 {vt[1]}, 32, {vt[0]}', f'v_xor_b32 {vt[2]}, 64, {vt[0]}', f'v_xor_b32 {vt[3]}, 0x60, {vt[0]}'] + mk_srd(sOUT, pOUT, 2048 * 1280) + set_ones)
S.free('ka', 'kb')
sSL = S.alloc('SL'); sM = {}
E(sel_cc(sSL, SLT))
for t in (1, 2):
    E([f'v_lshlrev_b32 {vt[6]}, 1, {vG}', f'v_add_u32 {vt[6]}, {8 * t}, {vt[6]}', f'v_bfe_u32 {vt[6]}, {sSL}, {vt[6]}, 2'])
    for sl in (0, 3, t):
        sM[(sl, t)] = S.alloc(f'm{sl}{t}', 2); E(f'v_cmp_eq_u32 {sM[(sl, t)]}, {sl}, {vt[6]}')
S.free('SL', 'U')
def lmask(f): return sum(1 << l for l in range(64) if f(l >> 4, l & 15))
MCA = lmask(lambda g, t: t - 4 * g - (t & 1) >= 0); MCB = lmask(lambda g, t: t - 4 * g - 2 - (t & 1) >= 0)
sK1 = S.alloc('k1', 2); sCA = S.alloc('ca', 2); sCB = S.alloc('cb', 2); sFirst = S.alloc('first')
sOb = S.alloc('ob', 5, 1); sOst = S.alloc('ost'); sFl = S.alloc('fl'); sSx = S.alloc('ssx', 3, 1); sNb = S.alloc('nb', 2, 1); sCs = S.alloc('cscale')
vRka = B3[0:2]; vSa = B3[2]; vCa = B3[3]; vQf = B3[4]
E([f's_mov_b32 {sK1[0]}, 0xaaaaaaaa', f's_mov_b32 {sK1[1]}, 0xaaaaaaaa',
   f's_mov_b32 {sCA[0]}, {MCA & 0xffffffff:#x}', f's_mov_b32 {sCA[1]}, {MCA >> 32:#x}', f's_mov_b32 {sCB[0]}, {MCB & 0xffffffff:#x}', f's_mov_b32 {sCB[1]}, {MCB >> 32:#x}',
   f'v_mov_b32 {vt[4]}, 0xffff', f'v_not_b32 {vt[5]}, {vt[4]}', f'v_cndmask_b32 {vt[4]}, {vt[4]}, {vt[5]}, {sK1}',
   f'v_cndmask_b32 {vPM[2]}, 0, {vt[4]}, {sCA}', f'v_cndmask_b32 {vPM[3]}, 0, {vt[4]}, {sCB}', f'v_xor_b32 {vPM[0]}, {vPM[2]}, {vt[4]}', f'v_xor_b32 {vPM[1]}, {vPM[3]}, {vt[4]}',
   f's_cmp_eq_u32 {sRB}, 0', f's_cselect_b32 {sT[0]}, {sTau}, 0', f's_cmp_eq_u32 {sT[0]}, 2', f's_cselect_b32 {sFirst}, {NEG_INF}, 0',
   f's_mul_i32 {sT[0]}, {sRB}, 6', f's_add_u32 {sT[0]}, {sT[0]}, {sTau}', f's_sub_u32 {sT[0]}, {sT[0]}, 2', f's_lshl_b32 {sFl}, {sT[0]}, 7', f's_add_u32 {sFl}, {sFl}, {WS_FL}',
   f's_mul_i32 {sOb[0]}, {sT[0]}, 20480', f's_add_u32 {sOb[0]}, {sOb[0]}, {WS_O}', f's_lshl_b32 {sT[0]}, {sC}, 11', f's_add_u32 {sOst}, {sT[0]}, {sOb[0]}'] +
  [f's_add_u32 {sOb[i]}, {sOb[0]}, {4096 * i}' for i in range(1, 5)] +
  [f's_mul_i32 {sT[0]}, {sRB}, 10', f's_add_u32 {sT[0]}, {sT[0]}, {sC}', f's_mul_i32 {sSx[0]}, {sT[0]}, 6144', f's_lshl_b32 {sT[0]}, {sTau}, 10', f's_add_u32 {sSx[0]}, {sSx[0]}, {sT[0]}',
   f's_add_u32 {sSx[0]}, {sSx[0]}, {WS_SX - 2048}', f's_sub_u32 {sSx[1]}, {sSx[0]}, 6144', f's_add_u32 {sSx[2]}, {sSx[0]}, 6144',
   f's_cmp_eq_u32 {sCC}, 0', f's_cselect_b32 {sNb[0]}, 0, -1', f's_cmp_eq_u32 {sCC}, 4', f's_cselect_b32 {sNb[1]}, 0, -1', f's_lshl_b32 {sT[0]}, {sC}, 2', f'v_mov_b32 {B3[5]}, {sT[0]}',
   f's_mov_b32 {sCs}, {f32(SCALE_L2E)}',
   f's_lshl_b32 {sT[0]}, {sTau}, 6', f's_add_u32 {sT[0]}, {sT[0]}, {L_M}', f'v_lshl_add_u32 {vSa}, {vTt}, 2, {sT[0]}',
   f'v_and_b32 {vt[4]}, 1, {vLane}', f'v_lshl_add_u32 {vt[4]}, {vG}, 2, {vt[4]}', f'v_lshl_add_u32 {vt[4]}, {vt[4]}, 2, {sT[0]}', f'v_subrev_u32 {vt[5]}, 64, {vt[4]}',
   f'v_cndmask_b32 {vRka[0]}, {vt[5]}, {vt[4]}, {sCA}', f'v_cndmask_b32 {vRka[1]}, {vt[5]}, {vt[4]}, {sCB}',
   f'v_lshlrev_b32 {vCa}, 4, {vG}', f's_lshl_b32 {sT[0]}, {sH}, 8', f's_add_u32 {sT[0]}, {sT[0]}, {L_CS}', f'v_add_u32 {vCa}, {sT[0]}, {vCa}', f'v_mov_b32 {vQf}, {L_QF}'] +
  [f'v_mov_b32 {B3[8 + i]}, -1' for i in range(4)])
XK = AG.alloc('XK', 16 * ND); XT = AG.alloc('XT', 16); F = [AG.alloc('F0', 24), AG.alloc('F1', 24)]
AALL = Reg('a', 0, 128)
def XF(s, kk, pos):
    if s < NI: return XT[8 * kk + 4 * pos:8 * kk + 4 * pos + 4]
    b = (s - NI) * 16 + 8 * kk + 4 * pos; return XK[b:b + 4]
def sw(s): return (s % NSL) // 2
def so(s): return (s % 2) * SLOT
def v_reads(s, kk, fb, tag): return [x for i in range(2) for x in trs(fb[4 * i:4 * i + 4], vVr[2 * sw(s) + i], so(s) + kk * 4096, tag)]
def p1_reads(s, kk):
    tag = ('r', s, kk)
    L = [(f'ds_read_b128 {XF(s, kk, pos)}, {vXr[4 * sw(s) + 2 * pos + kk]} offset:{so(s)}', tag) for pos in range(2)]
    for t in range(4): L += trs(F[kk][4 * t:4 * t + 4], vWr[4 * sw(s) + t], so(s) + kk * 4096, tag)
    if s < NI: L += v_reads(s, kk, F[kk][16:24], tag)
    return L
def v_mfmas(s, kk, fb):
    z = (s == 0 and kk == 0)
    return [f'{MFMA} {accV[8 * pos + 4 * i:8 * pos + 4 * i + 4]}, {XF(s, kk, pos)}, {fb[4 * i:4 * i + 4]}, {0 if z else accV[8 * pos + 4 * i:8 * pos + 4 * i + 4]}' for i in range(2) for pos in range(2)]
def p1_mfmas(s, kk, order=(0, 1)):
    z = (s == 0 and kk == 0); L = []
    for t in range(4):
        for pos in range(2):
            a = acc[pos * 16 + 4 * t:pos * 16 + 4 * t + 4]
            L.append(f'{MFMA} {a}, {F[kk][4 * t:4 * t + 4]}, {XF(s, kk, pos)}, {0 if z else a}')
    if s < NI: L += v_mfmas(s, kk, F[kk][16:24])
    return L
E(stamp())
CLR = opt('clr', 4)
for s in range(10):
    A.comment(f'pass1 unit {s}')
    E(['s_waitcnt lgkmcnt(0)', 's_barrier']); E.lg = []
    if s == 0:
        E(stamp() + p1_reads(0, 0) + [f'ds_read_b64 {vXb[2 * n:2 * n + 2]}, {vt[n]}' for n in range(4)] + fin_tag())
    else:
        E(merge(p1_mfmas(s - 1, 1), p1_reads(s, 0), 1, 2))
    if s == CLR: E([(f'buffer_store_dwordx4 {B3[8:12]}, {vL16}, {sWS}, {sOst} offen offset:{1024 * i} sc1', 'clr') for i in range(2)] + [(f'buffer_store_dwordx4 {B3[8:12]}, {vL16}, {sWS}, {sSx[0]} offen sc1', 'clr')])
    if s == opt('flg', 8): E([f'v_mov_b32 {B3[6]}, {sTag}', W('clr'), 's_mov_b64 exec, 1', f'buffer_store_dword {B3[6]}, {B3[5]}, {sWS}, {sFl} offen sc1', 's_mov_b64 exec, -1'])
    E(W(lg=('r', s, 0)))
    rd = p1_reads(s, 1)
    if s == 9:
        rd += [f'ds_read_b32 {vSt[0]}, {vSa}', f'ds_read_b32 {vSt[1]}, {vSa} offset:512', f'v_xor_b32 {vSa}, 64, {vSa}', f'ds_read_b32 {vSt[2]}, {vSa}',
               f'ds_read_b32 {vSc[0]}, {vRka[0]} offset:512', f'ds_read_b32 {vSc[1]}, {vRka[1]} offset:520'] + [f'v_mov_b32 {vWr[4 + i]}, {vVr[i]}' for i in range(4)]
    E(merge(p1_mfmas(s, 0), rd, 1, 2))
vVr = vWr[4:8]
vCS = B2; vQ8 = acc[0:8]; vK16 = acc[16:32]
lastm = p1_mfmas(9, 1)
cs_reads = [f'ds_read_b32 {vt[3]}, {vQf}'] + [f'ds_read_b128 {vCS[4 * t:4 * t + 4]}, {vCa} offset:{64 * t}' for t in range(4)]
E([W(lg=('r', 9, 1))] + lastm[1::2] + lastm[0::2][:2] + cs_reads + lastm[0::2][2:] + stamp())
E([W(lg='all'), ('L', 'Lqf'), f'v_readfirstlane_b32 {sT[2]}, {vt[3]}', f's_cmp_eq_u32 {sT[2]}, 0', 's_cbranch_scc1 Lqf_re'] + stamp())
def fix_qk(dst, a16, negm):
    L = []
    for t in range(4):
        L += [f'v_fmac_f32 {a16[4 * t + i]}, {vCS[4 * t + i]}, {negm}' for i in range(4)] + cvt2(dst[2 * t:2 * t + 2], a16[4 * t:4 * t + 4])
    return L
E([f's_cmp_eq_u32 {sH}, 0'] + fix_qk(vK16[0:8], acc[16:32], vSt[2]) + ['s_cbranch_scc0 Lh1'])
for h in range(2):
    if h: A.label('Lh1')
    E.lg = []
    E([f'ds_write_b128 {vEx}, {vK16[4 * i:4 * i + 4]} offset:{h * 2048 + i * 1024}' for i in range(2)])
    if h == 1: E(fix_qk(vK16[8:16], acc[0:16], vSt[0]) + [f'ds_write_b128 {vEx}, {vK16[8 + 4 * i:12 + 4 * i]} offset:{4096 + i * 1024}' for i in range(2)])
    E(cnt_arrive(L_C2, vt[1], vt[2]))
    if h == 0: E(fix_qk(vQ8, acc[0:16], vSt[0]) + [f'v_subrev_u32 {vt[0]}, 6144, {vEx}'])
    E([f'v_mov_b32 {vt[4 + i]}, {sFirst}' for i in range(4)] + cnt_wait(8, vt[1], vt[2]))
    if h == 0:
        E([f'ds_read_b128 {vK16[8 + 4 * i:12 + 4 * i]}, {vEx} offset:{2048 + i * 1024}' for i in range(2)] +
          [f'ds_read_b128 {vK16[4 * i:4 * i + 4]}, {vt[0]} offset:{4096 + i * 1024}' for i in range(2)] + ['s_branch Lh_join'])
    else:
        E([f'ds_read_b128 {vQ8[4 * i:4 * i + 4]}, {vEx} offset:{i * 1024}' for i in range(2)])
A.label('Lh_join')
E.lg = ['ex']
VF = Reg('a', XT.base, 64)
def tail_reads(k): return v_reads(NI + k // 2, k % 2, VF[8 * k:8 * k + 8], ('v', k))
E([(f'buffer_load_dword {vWr[0]}, {vL4}, {sWS}, {sFl} offen sc1', 'fl')] + tail_reads(0) + tail_reads(1) + [W(lg='ex')] + stamp())
vQ = B3
def QO(sl): return vQ[sl * 4:sl * 4 + 4]
KO = {1: 0, 0: 2, 3: 2, 2: 4}
def SA(sl, pc): return {0: vCS[0:8], 3: vCS[8:16], 1: acc[8:16], 2: vCS[0:8]}[sl][pc * 4:pc * 4 + 4]
def s_mfma(sl): return [f'{MFMA} {SA(sl, pc)}, {vK16[8 * pc + KO[sl]:8 * pc + KO[sl] + 4]}, {QO(sl)}, {0 if pc else vt[4:8]}' for pc in range(2)]
def mrg(sl):
    p = SA(sl, 0); c = SA(sl, 1); d = QO(sl)
    return [f'v_cndmask_b32 {p[0]}, {p[0]}, {p[1]}, {sK1}', f'v_cndmask_b32 {c[0]}, {c[0]}, {c[1]}, {sK1}', f'v_cndmask_b32 {p[2]}, {p[2]}, {p[3]}, {sK1}',
            f'v_cndmask_b32 {c[2]}, {c[2]}, {c[3]}, {sK1}', f'v_cndmask_b32 {d[0]}, {p[0]}, {c[0]}, {sCA}', f'v_cndmask_b32 {d[2]}, {p[2]}, {c[2]}, {sCB}']
def qmask(sl): return [f'v_cndmask_b32 {QO(sl)[i]}, 0, {vQ8[2 + i]}, {sM[(sl, 1 + i // 2)]}' for i in range(4)]
q1 = [f'v_mov_b32 {QO(1)[0]}, {vQ8[0]}', f'v_mov_b32 {QO(1)[1]}, {vQ8[1]}'] + [f'v_cndmask_b32 {QO(1)[2 + i]}, 0, {vQ8[2 + i]}, {sM[(1, 1)]}' for i in range(2)]
q2 = [f'v_cndmask_b32 {QO(2)[i]}, 0, {vQ8[4 + i]}, {sM[(2, 2)]}' for i in range(2)] + [f'v_mov_b32 {QO(2)[2]}, {vQ8[6]}', f'v_mov_b32 {QO(2)[3]}, {vQ8[7]}']
def pub(sl, d): return mrg(sl) + [f'v_min_u32 {vt[2 * d + j]}, -2, {QO(sl)[2 * j]}' for j in range(2)]
vFl = vWr[0]
fl_load = (f'buffer_load_dword {vFl}, {vL4}, {sWS}, {sFl} offen sc1', 'fl')
E(['s_setprio 2'] + qmask(0) + qmask(3)[:2] + s_mfma(0) + qmask(3)[2:] + q1[:2] + s_mfma(3) + q1[2:] + q2[:2] + s_mfma(1) + pub(0, 0) + pub(3, 1) + [f'buffer_store_dwordx4 {vt[0:4]}, {vL16}, {sWS}, {sSx[0]} offen sc1', 's_setprio 0'])
E(stamp())
def softmax(sls):
    n = len(sls); mx = [vt[i] for i in range(n)]; tp = [vt[2 + i] for i in range(n)]
    L = []
    for sl in sls: L += [f'v_mul_f32 {QO(sl)[2 * j]}, {QO(sl)[2 * j]}, {vSc[j]}' for j in range(2)]
    L += [f'v_max_f32 {mx[i]}, {QO(sl)[0]}, {QO(sl)[2]}' for i, sl in enumerate(sls)]
    for sw_ in ('v_permlane32_swap_b32', 'v_permlane16_swap_b32'):
        L += [f'v_mov_b32 {tp[i]}, {mx[i]}' for i in range(n)] + [f'{sw_} {mx[i]}, {tp[i]}' for i in range(n)] + [f'v_max_f32 {mx[i]}, {mx[i]}, {tp[i]}' for i in range(n)]
    for i, sl in enumerate(sls): L += [f'v_sub_f32 {QO(sl)[j]}, {QO(sl)[j]}, {mx[i]}' for j in (0, 2)]
    for sl in sls: L += [f'v_exp_f32 {QO(sl)[j]}, {QO(sl)[j]}' for j in (0, 2)]
    for sl in sls: d = QO(sl); L += [f'v_cvt_pk_bf16_f32 {d[0]}, {d[0]}, {d[0]}', f'v_cvt_pk_bf16_f32 {d[1]}, {d[2]}, {d[2]}']
    for sl in sls: d = QO(sl); L += [f'v_and_b32 {d[2]}, {d[0]}, {vPM[2]}', f'v_and_b32 {d[3]}, {d[1]}, {vPM[3]}', f'v_and_b32 {d[0]}, {d[0]}, {vPM[0]}', f'v_and_b32 {d[1]}, {d[1]}, {vPM[1]}']
    return L
def gate_calc(xb, xn, g, upd=None):
    n = 2 * xb.n; L = []
    for i in range(n // 2): L += [f'v_lshlrev_b32 {xn[2 * i]}, 16, {xb[i]}', f'v_and_b32 {xn[2 * i + 1]}, 0xffff0000, {xb[i]}']
    L += [f'v_add_f32 {xn[i]}, {xn[i]}, {vSt[0]}' for i in range(n)] + round_pairs(xn, n) + [f'v_mul_f32 {xn[i]}, {xn[i]}, {vSt[1]}' for i in range(n)] + round_pairs(xn, n)
    if upd is not None: L += [W(lg='all')] + [f'v_add_f32 {xn[i]}, {xn[i]}, {upd[i]}' for i in range(n)] + round_pairs(xn, n)
    return L + silu_into(g, xn, n)[:-n]
fill = q2[2:] + [f'v_mul_f32 {vt[0]}, {sCs}, {vSt[1]}'] + s_mfma(2) + [f'v_mul_f32 {vSc[j]}, {vSc[j]}, {vt[0]}' for j in range(2)] + mrg(1) + mrg(2) + softmax([1, 2])
vRx = acc[24:32]; vNm = acc[0:16]; vCv = acc[16:18]; vCf = acc[18]; vAd = acc[20:24]
def rx_loads(): return [(f'buffer_load_dwordx2 {vRx[2 * d:2 * d + 2]}, {vL16}, {sWS}, {sSx[1 + d]} offen offset:{8 - 8 * d} sc1', 'rx') for d in range(2)]
vprep = [f's_lshl_b32 {sT[0]}, {sTau}, 6', f's_add_u32 {sT[0]}, {sT[0]}, {L_M}', f'v_lshl_add_u32 {vAd[0]}, {vG}, 4, {sT[0]}', f'v_xor_b32 {vAd[1]}, 64, {vAd[0]}'] + \
        [f'ds_read_b128 {vNm[8 * pos + 4 * q:8 * pos + 4 * q + 4]}, {vAd[pos]} offset:{512 * q}' for pos in range(2) for q in range(2)] + \
        [f's_lshl_b32 {sT[0]}, {sH}, 3', f's_add_u32 {sT[0]}, {sT[0]}, {L_CSV}', f'v_lshl_add_u32 {vAd[0]}, {vTt}, 4, {sT[0]}', f'v_mov_b32 {vAd[1]}, {L_CSF}',
         f'v_lshl_add_u32 {vEx}, {vLane}, 3, {sVx}', f's_lshl_b32 {sT[0]}, {sH}, 10', f'v_add_u32 {vAd[2]}, {sT[0]}, {vEx}',
         f's_lshl_b32 {sT[1]}, {sH}, 12', f's_sub_u32 {sT[1]}, 2048, {sT[1]}', f'v_add_u32 {vAd[3]}, {sT[1]}, {vAd[2]}', f'v_subrev_u32 {vEx}, 2048, {vEx}']
NK = 2 * ND; KF = opt('kf', 6); KR = opt('kr', 6)
for k in range(2, NK): E(tail_reads(k))
for k in range(NK):
    cnt = -(-len(fill) // (KF - k)) if k < KF else 0
    f = fill[:cnt]; fill = fill[cnt:]
    if k == KF: f = vprep
    if k == KR: E([W('fl'), ('L', 'Lfl_chk'), f'v_cmp_eq_u32 vcc, {sTag}, {vFl}', f's_and_b32 {sT[0]}, vcc_lo, 0x3ff', f's_cmp_lg_u32 {sT[0]}, 0x3ff', 's_cbranch_scc1 Lfl_re'] + rx_loads())
    E([W(lg=('v', k))] + spread(v_mfmas(NI + k // 2, k % 2, VF[8 * k:8 * k + 8]), f))
csv_reads = [f'ds_read_b32 {vCf}, {vAd[1]}', f'ds_read_b64 {vCv}, {vAd[0]}']
E(stamp() + csv_reads + [W(lg='all'), ('L', 'Lcsv'), f'v_readfirstlane_b32 {sT[2]}, {vCf}', f's_cmp_eq_u32 {sT[2]}, 0', 's_cbranch_scc1 Lcsv_re'])
def vfix(a, nm, cv, areg, off):
    return [f'v_fmac_f32 {a[i]}, {nm[i]}, {cv}' for i in range(4)] + [f'v_mul_f32 {a[i]}, {a[i]}, {nm[4 + i]}' for i in range(4)] + cvt2(a[0:2], a) + [f'ds_write_b64 {areg}, {a[0:2]} offset:{off}']
for pos in range(2):
    for i in range(2): E(vfix(accV[8 * pos + 4 * i:8 * pos + 4 * i + 4], vNm[8 * pos:8 * pos + 8], vCv[i], vAd[2 + pos], 512 * i))
E(cnt_arrive(L_C3, vt[4], vt[5]) + [W('rx'), ('L', 'Lrx_chk')])
E([f'v_and_b32 {vRx[i]}, {sNb[i // 2]}, {vRx[i]}' for i in range(4)] + [f'v_max3_u32 {vt[0]}, {vRx[0]}, {vRx[1]}, {vRx[2]}', f'v_max_u32 {vt[0]}, {vt[0]}, {vRx[3]}',
   f'v_cmp_eq_u32 vcc, -1, {vt[0]}', 's_cbranch_vccnz Lrx_re'] + stamp())
E([f'v_add_f32 {QO(sl)[2 * j]}, {QO(sl)[2 * j]}, {vRx[2 * d + j]}' for d, sl in ((0, 0), (1, 3)) for j in range(2)])
E(['s_setprio 2'] + cnt_wait(7, vt[4], vt[5]) + stamp())
vV = accV
E([(f'ds_read2st64_b64 {vV[4 * t:4 * t + 4]}, {vEx} offset0:{t} offset1:{t + 4}', 'vp') for t in range(4)])
vO = acc; vSum = vCS
PVL = [(0, 1), (1, 1), (2, 2), (3, 2), (1, 0), (2, 0), (1, 3), (2, 3)]
def OO(t, sl): b = PVL.index((t, sl)) * 4; return vO[b:b + 4]
def SM(sl): return vSum[4 * sl:4 * sl + 4]
def pv(sls): return [f'{MFMA} {SM(sl)}, {vOnes}, {QO(sl)}, 0' for sl in sls] + [f'{MFMA} {OO(t, sl)}, {vV[4 * t:4 * t + 4]}, {QO(sl)}, 0' for (t, sl) in PVL if sl in sls]
ch = softmax([0, 3])
E(ch[:12]); E(W(lg='vp')); E(spread(ch[12:], pv([1, 2])))
vOst = vt
def onorm(t, o, rc): return [f'v_mul_f32 {o[i]}, {o[i]}, {rc}' for i in range(4)] + cvt2(vOst[2 * t:2 * t + 2], o) + [f'v_min_u32 {vOst[2 * t + i]}, -2, {vOst[2 * t + i]}' for i in range(2)]
E(spread(pv([0, 3]), [f'v_rcp_f32 {SM(sl)[0]}, {SM(sl)[0]}' for sl in (1, 2)] + onorm(0, OO(0, 1), SM(1)[0])) + onorm(3, OO(3, 2), SM(2)[0]) + [f'v_rcp_f32 {SM(sl)[0]}, {SM(sl)[0]}' for sl in (0, 3)])
for t in (1, 2):
    d = OO(t, t); rc = SM(t)[2]
    E([f'v_cndmask_b32 {rc}, {SM(t)[0]}, {SM(0)[0]}, {sM[(0, t)]}', f'v_cndmask_b32 {rc}, {rc}, {SM(3)[0]}, {sM[(3, t)]}'])
    for sl in (0, 3): E([f'v_cndmask_b32 {d[r]}, {d[r]}, {OO(t, sl)[r]}, {sM[(sl, t)]}' for r in range(4)])
    E(onorm(t, d, rc) + [f'buffer_store_dwordx4 {vOst[4 * (t - 1):4 * t]}, {vL16}, {sWS}, {sOst} offen offset:{(t - 1) * 1024} sc1'])
E(stamp())
PK = AALL[0:16]
E(['s_setprio 0'] + gate_calc(vXb, acc[0:16], acc[16:32]) + [f'v_accvgpr_write_b32 {PK[i]}, {acc[17 + 2 * i]}' for i in range(8)] + [f'v_accvgpr_write_b32 {PK[8 + i]}, {vXb[i]}' for i in range(8)])
E([f'v_and_b32 {vt[2]}, 3, {vLane}', f'v_lshl_add_u32 {vt[2]}, {vt[2]}, 3, {vPhi}', f'v_add_u32 {vWr[0]}, {vt[2]}, {vrow}'] +
  [f'v_xor_b32 {vWr[t]}, {32 * t}, {vWr[0]}' for t in (1, 2, 3)] + [f'v_add_u32 {vWr[4 + t]}, {OWIN[1]}, {vWr[t]}' for t in range(4)])
FR = [AALL[16 * i:16 * i + 16] for i in range(1, 8)]; NF = 7
def wo_reads(k):
    loc = KLOC[k]; w_ = 1 if loc >= OWIN[1] else 0
    return [x for t in range(4) for x in trs(FR[k % NF][4 * t:4 * t + 4], vWr[4 * w_ + t], loc - OWIN[w_], ('o', k))]
OFG = [acc[4 * i:4 * i + 4] for i in range(8)] + [B[4 * i:4 * i + 4] for B in (B1, B2, B3) for i in range(4)]
accO = [vXb[0:4], vXb[4:8], vPM, vOnes]
sJ = S.alloc('j')
NPRE = opt('npre', 0)
info_read = (f'ds_read_b64 {vt[4:6]}, {vt[6]}', 'info')
E([f'v_mov_b32 {vt[6]}, {L_INFO}', info_read])
E([f's_mov_b32 {sJ}, 0'] + stamp())
E.vm = []
for k in range(20):
    if k % 2 == 0: A.label(f'Lld_{k // 2}')
    E((f'buffer_load_dwordx4 {OFG[k]}, {vL16}, {sWS}, {sOb[k // 4]} offen offset:{(k % 4) * 1024} sc1', ('of', k // 2)))
E([f's_cmp_lg_u32 {sJ}, 0', 's_cbranch_scc1 Ldisp'])
E([W(lg='info'), ('L', 'Linfo'), f'v_readfirstlane_b32 {sT[3]}, {vt[4]}', f's_cmp_eq_u32 {sT[3]}, {SENT}', 's_cbranch_scc1 Linfo_re'])
for k in range(NF): E(wo_reads(k))
def chk(j):
    a, b = OFG[2 * j], OFG[2 * j + 1]
    return [('L', f'Lchk_{j}'), W(('of', j)), f'v_max3_u32 {vt[0]}, {a[0]}, {a[1]}, {a[2]}', f'v_max3_u32 {vt[1]}, {b[0]}, {b[1]}, {b[2]}', f'v_max3_u32 {vt[0]}, {vt[0]}, {a[3]}, {b[3]}',
            f'v_max_u32 {vt[0]}, {vt[0]}, {vt[1]}', f'v_cmp_eq_u32 vcc, -1, {vt[0]}', f's_cbranch_vccnz Lre_{j}']
vXf = acc[0:16]; vGt = acc[16:32]; vOa = B1[0:2]; vRow = B1[2]; vTa = B1[4:8]; vTr = B1[3]; vOst = B1[8:16]
tail = []
for i in range(8):
    tail += [f'v_accvgpr_read_b32 {vGt[2 * i + 1]}, {PK[i]}', f'v_accvgpr_read_b32 {vXf[2 * i + 1]}, {PK[8 + i]}']
for x in (vGt, vXf):
    for i in range(8): tail += [f'v_lshlrev_b32 {x[2 * i]}, 16, {x[2 * i + 1]}', f'v_and_b32 {x[2 * i + 1]}, 0xffff0000, {x[2 * i + 1]}']
oadr = [f's_mul_i32 {sT[0]}, {sRB}, 96', f's_lshl_b32 {sT[1]}, {sTau}, 4', f's_add_u32 {sT[0]}, {sT[0]}, {sT[1]}', f's_sub_u32 {sT[0]}, {sT[0]}, 32',
        f'v_add_u32 {vRow}, {sT[0]}, {vTt}', f'v_lshrrev_b32 {vt[2]}, 3, {vLane}', f'v_add_u32 {vt[2]}, {sT[0]}, {vt[2]}', f'v_mul_u32_u24 {vt[2]}, 1280, {vt[2]}',
        f'v_and_b32 {vt[3]}, 7, {vLane}', f'v_xor_b32 {vt[3]}, {vt[3]}, {vG}', f'v_lshl_add_u32 {vOa[0]}, {vt[3]}, 4, {vt[2]}', f'v_xor_b32 {vOa[1]}, 64, {vOa[0]}',
        f'v_add_u32 {vOa[1]}, {8 * 1280}, {vOa[1]}',
        f's_lshl_b32 {sT[0]}, {sTau}, 11', f's_add_u32 {sT[0]}, {sT[0]}, {EXB}', f'v_add_u32 {vTa[0]}, {sT[0]}, {vXe}', f'v_xor_b32 {vTa[1]}, 32, {vTa[0]}',
        f'v_xor_b32 {vTa[2]}, 64, {vTa[0]}', f'v_xor_b32 {vTa[3]}, 0x60, {vTa[0]}', f'v_add_u32 {vTr}, {sT[0]}, {vL16}', f's_lshl_b32 {sFl}, {sC}, 7']
fills = {6: tail[:16], 7: tail[16:40], 8: tail[40:48] + oadr}
for j in range(10):
    E(chk(j))
    if j == 0: E(stamp())
    for k in (2 * j, 2 * j + 1):
        m = [f'{MFMA} {accO[n]}, {FR[k % NF][4 * n:4 * n + 4]}, {OFG[k]}, {0 if k == 0 else accO[n]}' for n in range(4)]
        f = fills.get(j, []); f = f[:len(f) // 2] if k % 2 == 0 else f[len(f) // 2:]
        E([W(lg=('o', k))] + spread(m, f) + (wo_reads(k + NF) if k + NF < 20 else []))
E(stamp())
E([f'v_and_b32 {vt[2]}, {vt[4]}, {vt[5]}', f'v_readfirstlane_b32 {sT[3]}, {vt[2]}', f's_cmp_eq_u32 {sT[3]}, -1', 's_cbranch_scc0 Lfix', ('L', 'Lnofix')])
for n in range(4):
    a = accO[n]
    E([f'v_fma_f32 {a[i]}, {a[i]}, {vGt[4 * n + i]}, {vXf[4 * n + i]}' for i in range(4)] + cvt2(vOst[2 * n:2 * n + 2], a) + [f'ds_write_b64 {vTa[n]}, {vOst[2 * n:2 * n + 2]}'])
E([(f'ds_read_b128 {B2[4 * i:4 * i + 4]}, {vTr} offset:{1024 * i}', ('fin', i)) for i in range(2)])
for i in range(2): E([W(lg=('fin', i)), f'buffer_store_dwordx4 {B2[4 * i:4 * i + 4]}, {vOa[i]}, {sOUT}, {sFl} offen{NT["S"]}'])
write_stamps(STAMPW, 'main')
E('s_endpgm')
E([('L', 'Lqf_re')] + spin_guard() + cs_reads + [W(lg='all'), 's_branch Lqf'])
E([('L', 'Lcsv_re')] + spin_guard() + csv_reads + [W(lg='all'), 's_branch Lcsv'])
E([('L', 'Lrx_re')] + spin_guard() + rx_loads() + [W('all'), 's_branch Lrx_chk'])
E([('L', 'Linfo_re')] + spin_guard() + [info_read, W(lg='all'), 's_branch Linfo'])
E([('L', 'Lfl_re')] + spin_guard() + [fl_load, W('all'), 's_branch Lfl_chk'])
for j in range(10): E([('L', f'Lre_{j}'), f's_mov_b32 {sJ}, {j + 1}', 's_branch Lprobe'])
E([('L', 'Lprobe'), f'v_min_u32 {vt[1]}, 19, {vLane}', f'v_lshlrev_b32 {vt[1]}, 10, {vt[1]}', ('L', 'Lprobe2')] + spin_guard() +
  [f'buffer_load_dword {vt[0]}, {vt[1]}, {sWS}, {sOb[0]} offen offset:1020 sc1', W('all'), f'v_cmp_eq_u32 vcc, -1, {vt[0]}', 's_cbranch_vccnz Lprobe2'])
for j in range(9): E([f's_cmp_eq_u32 {sJ}, {j + 1}', f's_cbranch_scc1 Lld_{j}'])
E('s_branch Lld_9')
A.label('Ldisp')
for j in range(9): E([f's_cmp_eq_u32 {sJ}, {j + 1}', f's_cbranch_scc1 Lchk_{j}'])
E('s_branch Lchk_9')
E([('L', 'Lfix'), f'v_mov_b32 {vt[6]}, {L_UF}', ('L', 'Lfix_w')] + spin_guard() + [f'ds_read_b32 {vt[2]}, {vt[6]}', W(lg='all'), f'v_readfirstlane_b32 {sT[3]}, {vt[2]}',
   f's_cmp_eq_u32 {sT[3]}, 0', 's_cbranch_scc1 Lfix_w',
   f'v_mov_b32 {vt[2]}, {L_UPD + 512}', f'v_mov_b32 {vt[3]}, {L_UPD}', f'v_cmp_eq_u32 vcc, {vt[4]}, {vRow}', f'v_cndmask_b32 {vt[2]}, {vt[2]}, {vt[3]}, vcc',
   f'v_mov_b32 {vt[3]}, {L_UPD + 256}', f'v_cmp_eq_u32 vcc, {vt[5]}, {vRow}', f'v_cndmask_b32 {vt[2]}, {vt[2]}, {vt[3]}, vcc', f'v_lshl_add_u32 {vt[2]}, {vG}, 4, {vt[2]}'] +
  [f'ds_read_b128 {B3[4 * n:4 * n + 4]}, {vt[2]} offset:{64 * n}' for n in range(4)] + [f'v_accvgpr_read_b32 {vOst[i]}, {PK[8 + i]}' for i in range(8)] +
  gate_calc(vOst, B2, vGt, B3) + round_pairs(vGt, 16)[8:] + ['s_branch Lnofix'])

load_state(st_halo)
A.label('Lhalo')
HF = [Reg('a', 0, 48), Reg('a', 48, 48)]; HXK = Reg('a', 96, 32); HXT = vXb
vSg = B3[0:4]; vSo = B3[4:6]
E(['s_mov_b32 vcc_lo, 0x00010001', 's_mov_b32 vcc_hi, 0x00010001', f'v_mov_b32 {vt[7]}, {ONES_OFF}', f'v_cndmask_b32 {vXr[0]}, {vXr[0]}, {vt[7]}, vcc', f'v_xor_b32 {vXr[1]}, 64, {vXr[0]}',
   f'v_add_u32 {vXr[4]}, {2 * SLOT}, {vXr[0]}', f'v_add_u32 {vXr[5]}, {2 * SLOT}, {vXr[1]}'] + set_ones +
  [f'v_and_b32 {vt[0]}, 7, {vLane}', f'v_lshlrev_b32 {vt[0]}, 4, {vt[0]}', f'v_mul_u32_u24 {vt[1]}, {SLOT}, {vG}', f'v_add_u32 {vt[0]}, {vt[0]}, {vt[1]}', f'ds_write_b128 {vt[0]}, {vOnes} offset:{ONES_OFF}',
   f'v_mov_b32 {vt[0]}, {L_CSF}', f'v_mov_b32 {vt[4]}, 0', f'v_mov_b32 {vt[5]}, 0', f'v_mov_b32 {vt[6]}, {SENT}', f'v_mov_b32 {vt[7]}, {SENT}', f'ds_write_b128 {vt[0]}, {vt[4:8]}',
   f'ds_write_b64 {vt[0]}, {vt[4:6]} offset:16', f'ds_write_b64 {vt[0]}, {vt[4:6]} offset:24',
   f's_mul_i32 {sT[0]}, {sRB}, 96', f's_sub_u32 {sT[0]}, {sT[0]}, 16', f'v_add_u32 {vSo[0]}, {sT[0]}, {vLane}', f'v_min_u32 {vt[1]}, 47, {vLane}', f'v_add3_u32 {vSo[1]}, {sT[0]}, {vt[1]}, 64',
   f'v_mov_b32 {vt[2]}, 2047', f'v_med3_i32 {vSo[0]}, {vSo[0]}, 0, {vt[2]}', f'v_med3_i32 {vSo[1]}, {vSo[1]}, 0, {vt[2]}', f'v_lshlrev_b32 {vSo[0]}, 3, {vSo[0]}', f'v_lshlrev_b32 {vSo[1]}, 3, {vSo[1]}'])
sSt = S.alloc('sst'); E(f's_mov_b32 {sSt}, {WS_STAT}')
def HX(s, kk): return HXT[4 * kk:4 * kk + 4] if s < NI else HXK[(s - NI) * 8 + 4 * kk:(s - NI) * 8 + 4 * kk + 4]
def h_reads(s, kk):
    tag = ('r', s, kk)
    L = [(f'ds_read_b128 {HX(s, kk)}, {vXr[4 * sw(s) + kk]} offset:{so(s)}', tag)]
    for sec in range(3 if s < NI else 2):
        for t in range(4): L += trs(HF[kk][16 * sec + 4 * t:16 * sec + 4 * t + 4], vWr[4 * sw(s) + t], so(s) + sec * 8192 + kk * 4096, tag)
    return L
def h_mfmas(s, kk):
    z = (s == 0 and kk == 0); L = []
    for sec in range(2):
        for t in range(4):
            a = acc[16 * sec + 4 * t:16 * sec + 4 * t + 4]; L.append(f'{MFMA} {a}, {HF[kk][16 * sec + 4 * t:16 * sec + 4 * t + 4]}, {HX(s, kk)}, {0 if z else a}')
    if s < NI:
        for t in range(4): a = accV[4 * t:4 * t + 4]; L.append(f'{MFMA} {a}, {HX(s, kk)}, {HF[kk][32 + 4 * t:36 + 4 * t]}, {0 if z else a}')
    return L
st_loads = [(f'buffer_load_dwordx2 {vSg[2 * i:2 * i + 2]}, {vSo[i]}, {sWS}, {sSt} offen sc1', 'st') for i in range(2)]
for s in range(10):
    A.comment(f'halo unit {s}')
    E(['s_waitcnt lgkmcnt(0)', 's_barrier']); E.lg = []
    if s == 0: E(fin_tag())
    r0, r1 = h_reads(s, 0), h_reads(s, 1)
    E([r0[0], r1[0]])
    grp_ = [[(t_, ('g', i)) for t_, _ in (r0[1:] + r1[1:])[2 * i:2 * i + 2]] for i in range(len(r0) - 1)]
    mm = h_mfmas(s, 0) + h_mfmas(s, 1); LA = 6
    for i in range(len(mm) + LA):
        if i < len(mm): E(grp_[i])
        if i >= LA: E([W(lg=('g', i - LA)), mm[i - LA]])
    if s == 1: E(signal())
    if s == opt('stl', 6): E(st_loads)
    if s == 8:
        E([W('st'), ('L', 'Lst_chk'), f'v_cmp_ne_u32 vcc, {sTag}, {vSg[1]}', f'v_cmp_ne_u32 {sT[0:2]}, {sTag}, {vSg[3]}', f's_or_b64 {sT[0:2]}, {sT[0:2]}, vcc', 's_cbranch_scc1 Lst_re',
           f'v_add_u32 {vt[0]}, {L_M + 64}, {vL4}', f'v_min_u32 {vt[1]}, 47, {vLane}', f'v_lshlrev_b32 {vt[1]}, 2, {vt[1]}', f'v_add_u32 {vt[1]}, {L_M + 64 + 256}, {vt[1]}'])
        for i in range(2):
            E([f'v_lshlrev_b32 {vSg[2 * i + 1]}, 16, {vSg[2 * i]}', f'v_and_b32 {vSg[2 * i]}, 0xffff0000, {vSg[2 * i]}', f'v_rcp_f32 {vSg[2 * i + 1]}, {vSg[2 * i + 1]}',
               f'ds_write_b32 {vt[i]}, {vSg[2 * i]}', f'ds_write_b32 {vt[i]}, {vSg[2 * i + 1]} offset:512'])
        E([f'v_lshlrev_b32 {vt[2]}, 4, {vG}', f'v_add_u32 {vt[2]}, {L_CS}, {vt[2]}', f'v_mov_b32 {vt[3]}, {L_QF}', f'v_lshlrev_b32 {vt[4]}, 2, {vTt}', f'v_add_u32 {vt[4]}, {L_M + 64}, {vt[4]}',
           f'ds_read_b32 {vSt[0]}, {vt[4]}'])
E(['s_mov_b32 exec_lo, 0x00010001', 's_mov_b32 exec_hi, 0x00010001'] + [f'ds_write_b128 {vt[2]}, {acc[4 * j:4 * j + 4]} offset:{64 * j}' for j in range(8)] +
  [f'ds_write_b32 {vt[3]}, {vt[3]}', 's_mov_b64 exec, -1'] + [f'ds_read_b128 {vCS[4 * t:4 * t + 4]}, {vt[2]} offset:{256 + 64 * t}' for t in range(4)] + [W(lg='all')] +
  fix_qk(acc[16:24], acc[16:32], vSt[0]) + [f'ds_write_b128 {vEx}, {acc[16 + 4 * i:20 + 4 * i]} offset:{4096 + i * 1024}' for i in range(2)] + cnt_arrive(L_C2, vt[1], vt[2]) +
  [f'v_mov_b32 {vt[1]}, {L_WF}'] + cnt_wait(1, vt[1], vt[2]))
HV = Reg('a', 0, 96)
def ht_reads(k): return [x for t in range(4) for x in trs(HV[16 * (k % 6) + 4 * t:16 * (k % 6) + 4 * t + 4], vWr[4 * sw(NI + k // 2) + t], so(NI + k // 2) + VOFF + (k % 2) * 4096, ('v', k))]
for k in range(6): E(ht_reads(k))
for k in range(NK):
    E([W(lg=('v', k))] + [f'{MFMA} {accV[4 * t:4 * t + 4]}, {HX(NI + k // 2, k % 2)}, {HV[16 * (k % 6) + 4 * t:16 * (k % 6) + 4 * t + 4]}, {accV[4 * t:4 * t + 4]}' for t in range(4)])
    if k + 6 < NK: E(ht_reads(k + 6))
E([f'v_lshlrev_b32 {vt[1]}, 4, {vTt}', f'v_add_u32 {vt[1]}, {L_CSV}, {vt[1]}', f'v_mov_b32 {vt[2]}, {L_CSF}', f'v_lshlrev_b32 {vt[0]}, 4, {vG}', f'v_add_u32 {vt[0]}, {L_M + 64}, {vt[0]}',
   f'v_lshl_add_u32 {vEx}, {vLane}, 3, {sVx}', 's_mov_b64 exec, 0xffff'] + [f'ds_write_b32 {vt[1]}, {accV[4 * t]} offset:{4 * t}' for t in range(4)] +
  [f'ds_write_b32 {vt[2]}, {vt[2]}', 's_mov_b64 exec, -1', f'ds_read_b128 {acc[8:12]}, {vt[1]}', f'ds_read_b128 {acc[0:4]}, {vt[0]}', f'ds_read_b128 {acc[4:8]}, {vt[0]} offset:512', W(lg='all')])
for t in range(4): E(vfix(accV[4 * t:4 * t + 4], acc[0:8], acc[8 + t], vEx, 512 * t))
E(cnt_arrive(L_C3, vt[4], vt[5]) + ['s_endpgm'])
E([('L', 'Lst_re')] + spin_guard() + st_loads + [W('all'), 's_branch Lst_chk'])

load_state(st_main)
pos_load = len(A.lines)
A.label('Lloader')
BIAS = 4096
sX = S.alloc('srdx', 4); sWQ = S.alloc('srdq', 4); sWK = S.alloc('srdk', 4); sWV = S.alloc('srdv', 4); sWO = S.alloc('srdwo', 4)
vW = V.alloc('vw', 8); vX = V.alloc('vx', 14); sWk = S.alloc('wk', 10, 1); sXk = S.alloc('xk'); sRho = S.alloc('rho'); sStr = S.alloc('stride')
l3 = vt[1]; l7 = vt[2]; vch = V.alloc('chunkw')
E(['s_setprio 3', f'v_lshrrev_b32 {l3}, 3, {vLane}', f'v_and_b32 {l7}, 7, {vLane}',
   f'v_and_b32 {vt[4]}, 1, {vG}', f'v_lshlrev_b32 {vt[4]}, 1, {vt[4]}', f'v_xor_b32 {vt[4]}, {vt[4]}, {l7}', f's_lshl_b32 {sT[3]}, {sC}, 7', f'v_lshl_add_u32 {vch}, {vt[4]}, 4, {sT[3]}',
   f'v_mov_b32 {vt[3]}, 3840', f'v_mad_u32_u24 {vW[0]}, {l3}, {vt[3]}, {vch}', f'v_xor_b32 {vW[1]}, 64, {vW[0]}', f'v_add_u32 {vW[1]}, {8 * 3840 - 1024}, {vW[1]}'] +
  [f'v_add_u32 {vW[j]}, {(j - j % 2) * 8 * 3840 - ((j % 4) - (j % 2)) * 1024}, {vW[j % 2]}' for j in range(2, 8)] +
  [f's_mul_i32 {sT[2]}, {sRB}, 96', f's_sub_u32 {sT[2]}, {sT[2]}, 16', f'v_add_u32 {vt[3]}, {sT[2]}, {l3}',
   f'v_xor_b32 {vt[5]}, {l7}, {vG}', f'v_lshlrev_b32 {vt[5]}, 4, {vt[5]}', f'v_xor_b32 {vt[6]}, 64, {vt[5]}', f'v_mov_b32 {vt[7]}, 2047', f'v_mov_b32 {vt[4]}, 1280'])
for j in range(14):
    E([f'v_add_u32 {vX[j]}, {8 * j}, {vt[3]}', f'v_med3_i32 {vX[j]}, {vX[j]}, 0, {vt[7]}', f'v_mad_u32_u24 {vX[j]}, {vX[j]}, {vt[4]}, {vt[5 + j % 2]}',
       f'v_add_u32 {vX[j]}, {BIAS - (j % 4) * 1024}, {vX[j]}'])
WSZ = 640 * 3840
E([f's_and_b32 {sStr}, {sRB}, 3', f's_lshl_b32 {sStr}, {sStr}, 2', f's_lshr_b32 {sStr}, 0x9731, {sStr}', f's_and_b32 {sStr}, {sStr}, 15', f's_mov_b32 {sRho}, {sC}',
   's_waitcnt lgkmcnt(0)'] + mk_srd(sX, pX, 2048 * 1280, -BIAS) + mk_srd(sWQ, pW, WSZ) + mk_srd(sWK, pW, WSZ, 1280) + mk_srd(sWV, pW, WSZ, 2560))
def grp(m0, items):
    L = [f's_mov_b32 m0, {m0}']
    for j, (vo, srd, sof, nt, tag) in enumerate(items):
        L.append((f'buffer_load_dwordx4 {vo}, {srd}, {sof} offen' + (f' offset:{1024 * j}' if j else '') + f'{nt} lds', tag))
    return L
def wgrp(s, sec, q, tag): return grp((s % NSL) * SLOT + sec * 8192 + q * 4096, [(vW[j], (sWQ, sWK, sWV)[sec], sWk[s], NT['W'], tag) for j in range(4 * q, 4 * q + 4)])
def unit_loads(s):
    sb = (s % NSL) * SLOT; tag = ('u', s)
    L = [f's_mul_i32 {sWk[s]}, {sRho}, {64 * 3840}', f's_lshl_b32 {sXk}, {sRho}, 7']
    xs = [grp(sb + XOFF + q * 4096, [(vX[j], sX, sXk, NT['X'], tag) for j in range(4 * q, min(4 * q + 4, 14))]) for q in range(4)]
    ws = [wgrp(s, sec, q, tag) for q in range(2) for sec in range(3 if s < NI else 2)]
    for i in range(max(len(xs), len(ws))):
        if i < len(xs): L += xs[i]
        if i < len(ws): L += ws[i]
    return L + [[f's_add_u32 {sRho}, {sRho}, {sStr}', f's_sub_u32 {sT[2]}, {sRho}, 10', f's_cmp_ge_u32 {sRho}, 10', f's_cselect_b32 {sRho}, {sT[2]}, {sRho}']]
E(unit_loads(0) + stamp() + get_tag() + mk_srd(sWO, pWO, 640 * 1280, -BIAS - 3 * 20480) + unit_loads(1))
S.free('ka', 'kb')
vOt = V.alloc('ot', 14); sOk = S.alloc('ok')
oset = [f'v_lshrrev_b32 {vt[4]}, 5, {vLane}', f'v_mul_u32_u24 {vt[4]}, 20480, {vt[4]}', f'v_and_b32 {vt[3]}, 3, {l3}', f'v_mul_u32_u24 {vt[3]}, 1280, {vt[3]}',
        f'v_add_u32 {vt[3]}, {3 * 20480}, {vt[3]}', f'v_add_u32 {vOt[3]}, {vt[3]}, {vch}', f'v_xor_b32 {vOt[10]}, 64, {vOt[3]}']
for p in range(2):
    for d in range(1, 4): oset += [f'v_add_u32 {vOt[7 * p + 3 + d]}, {vOt[7 * p + 2 + d]}, {vt[4]}', f'v_sub_u32 {vOt[7 * p + 3 - d]}, {vOt[7 * p + 4 - d]}, {vt[4]}']
def o_loads(j):
    L = []
    for i in range(8):
        sh = 16 * (i >> 2) + 2 * (i & 3); u0 = (UT[j % 5] >> sh) & 3; u1 = (UT[j % 5] >> (sh + 8)) & 3
        if i % 4 == 0: L += [f's_mov_b32 m0, {KLOC[2 * j + i // 4]}']
        L += [f's_mov_b32 {sOk}, {j * 64 * 1280 + u0 * 20480 + BIAS + 4 * (i & 3) * 1280 - (i % 4) * 1024}',
              (f'buffer_load_dwordx4 {vOt[7 * (i % 2) + 3 + u1 - u0]}, {sWO}, {sOk} offen' + (f' offset:{1024 * (i % 4)}' if i % 4 else '') + f'{NT["O"]} lds', ('o', j))]
    return L
for s in range(10):
    A.comment(f'loader unit {s}')
    E([W(('u', s), 'all')] + (stamp() if s in (0, 5, 9) else []) + ['s_barrier'])
    if s == 0: E(fin_tag())
    if s <= 7: E(unit_loads(s + 2))
    elif s == 8:
        for u in range(NI, 10): E(wgrp(u, 2, 0, 'v') + wgrp(u, 2, 1, 'v'))
        E(oset)
S.free('srdx', 'srdq', 'srdk')
sKy0 = S.alloc('key0'); sKy1 = S.alloc('key1'); sI0 = S.alloc('i0'); sI1 = S.alloc('i1')
vBc = V.alloc('bc', 4); vBa = V.alloc('bca')
bc_load = f'buffer_load_dwordx4 {vBc}, {vBa}, {sWS}, 0 offen sc1'
E(o_loads(0) + o_loads(1) + [W('v')] + cnt_arrive(L_WF, vt[1], vt[2]) + cnt_arrive(L_C2, vt[1], vt[2]) + stamp() + o_loads(2) + o_loads(3) + o_loads(4) + cnt_wait(8, vt[1], vt[2]) +
  [f's_lshl_b32 {sT[0]}, s2, 7', f's_add_u32 {sT[0]}, {sT[0]}, {WS_BC}', f'v_mov_b32 {vBa}, {sT[0]}', bc_load])
for j in range(5, 10): E(o_loads(j))
E([W('all'), ('L', 'Lbc'), f'v_readfirstlane_b32 {sKy0}, {vBc[0]}', f'v_readfirstlane_b32 {sT[0]}, {vBc[1]}',
   f'v_readfirstlane_b32 {sKy1}, {vBc[2]}', f'v_readfirstlane_b32 {sT[1]}, {vBc[3]}', f's_cmp_eq_u32 {sT[0]}, {sTag}', f's_cselect_b32 {sT[1]}, {sT[1]}, {sT[0]}', f's_cmp_eq_u32 {sT[1]}, {sTag}',
   's_cbranch_scc1 Lbc_ok'] + spin_guard() + [bc_load, W('all'), 's_branch Lbc', ('L', 'Lbc_ok'), f's_mul_i32 {sT[0]}, {sRB}, 96'])
for k, i in ((sKy0, sI0), (sKy1, sI1)):
    E([f's_and_b32 {i}, {k}, 0x7ff', f's_sub_u32 {i}, 2047, {i}', f's_sub_u32 {sT[1]}, {i}, {sT[0]}', f's_cmp_lt_u32 {sT[1]}, 96', f's_cselect_b32 {i}, {i}, -1'])
E([f'v_mov_b32 {vt[0]}, {sI0}', f'v_mov_b32 {vt[1]}, {sI1}', f'v_mov_b32 {vt[2]}, {L_INFO}'] + stamp() +
  [f'ds_write_b64 {vt[2]}, {vt[0:2]}', f's_and_b32 {sT[1]}, {sI0}, {sI1}', f's_cmp_eq_u32 {sT[1]}, -1', 's_cbranch_scc1 Lw0_done'])
vY = Reg('v', 16, 108)
E([('L', 'Ly_poll')] + spin_guard() + [f's_lshl_b32 {sT[0]}, {sC}, 10', f's_add_u32 {sT[0]}, {sT[0]}, {WS_Y}'])
for j in range(27): E([f'buffer_load_dwordx4 {vY[4 * j:4 * j + 4]}, {vL16}, {sWS}, {sT[0]} offen sc1', f's_add_u32 {sT[0]}, {sT[0]}, 10240'])
E([W('all'), f'v_xor_b32 {vt[0]}, {sTag}, {vY[1]}'])
for j in range(27):
    for q in (1, 3):
        if j or q == 3: E([f'v_xor_b32 {vt[1]}, {sTag}, {vY[4 * j + q]}', f'v_or_b32 {vt[0]}, {vt[0]}, {vt[1]}'])
E([f'v_cmp_ne_u32 vcc, 0, {vt[0]}', 's_cmp_lg_u64 vcc, 0', 's_cbranch_scc1 Ly_poll'])
for j in range(1, 27): E([f'v_add_f32 {vY[0]}, {vY[0]}, {vY[4 * j]}', f'v_add_f32 {vY[2]}, {vY[2]}, {vY[4 * j + 2]}'])
for k, y, off in ((sKy0, vY[0], 0), (sKy1, vY[2], 256)):
    E([f's_lshr_b32 {sT[0]}, {k}, 16', f's_cmp_ge_u32 {sT[0]}, 0x8000', f's_cselect_b32 {sT[1]}, 0x8000, -1', f's_xor_b32 {sT[0]}, {sT[0]}, {sT[1]}', f's_lshl_b32 {sT[0]}, {sT[0]}, 16',
       f'v_mov_b32 {vt[0]}, {sT[0]}', f'v_mul_f32 {vt[0]}, {f32(-L2E)}, {vt[0]}', f'v_exp_f32 {vt[0]}, {vt[0]}', f'v_add_f32 {vt[0]}, 1.0, {vt[0]}', f'v_rcp_f32 {vt[0]}, {vt[0]}'] +
      bf16r(vt[0], vt[0]) + bf16r(y, y) + [f'v_mul_f32 {y}, {y}, {vt[0]}'] + bf16r(y, y) + [f'v_add_u32 {vt[1]}, {L_UPD}, {vL4}', f'ds_write_b32 {vt[1]}, {y} offset:{off}'])
E([f'v_mov_b32 {vt[0]}, 0', f'ds_write_b32 {vt[1]}, {vt[0]} offset:512', f'v_mov_b32 {vt[0]}, {L_UF}', f'ds_write_b32 {vt[0]}, {vt[0]}', ('L', 'Lw0_done'), 's_waitcnt lgkmcnt(0)'])
if STAMPW == 0: write_stamps(0, 'loader')
E('s_endpgm')

pos_aux = len(A.lines)
A.lines[pos_comp:pos_aux] = A.lines[pos_load:pos_aux] + A.lines[pos_comp:pos_load]
load_state(st_common)
A.label('Laux')
sA = sRB
E([f's_mul_i32 {sA}, {sT[0]}, 9', f's_lshl_b32 {sT[2]}, {sT[2]}, 2', f's_add_u32 {sA}, {sA}, {sT[2]}', f's_add_u32 {sA}, {sA}, {sT[1]}',
   f's_cmp_lt_u32 {sA}, 32', 's_cbranch_scc1 Laux2', f's_cmp_lg_u32 {sWv}, 0', 's_cbranch_scc1 Lend',
   's_waitcnt lgkmcnt(0)'] + get_tag() + ['s_waitcnt lgkmcnt(0)'] + fin_tag() + signal() + [f's_cmp_lg_u32 {sA}, 32', 's_cbranch_scc1 Lend'])
sKy0 = S.alloc('key0'); sKy1 = S.alloc('key1')
E(poll_top2(vt, sKy0, sKy1, sT) + [f'v_mov_b32 {vt[4]}, {sKy0}', f'v_mov_b32 {vt[5]}, {sTag}', f'v_mov_b32 {vt[6]}, {sKy1}', f'v_mov_b32 {vt[7]}, {sTag}',
   f'v_lshlrev_b32 {vt[0]}, 7, {vLane}', f's_mov_b32 {sT[0]}, {WS_BC}'])
for i in range(4): E([f'buffer_store_dwordx4 {vt[4:8]}, {vt[0]}, {sWS}, {sT[0]} offen sc1', f's_add_u32 {sT[0]}, {sT[0]}, 8192'])
E([f's_mov_b32 {sT[0]}, {WS_SIG}', ('L', 'Lmaster')] + spin_guard() +
  ['s_sleep 16', f'buffer_load_dwordx4 {vt[0:4]}, {vL16}, {sWS}, {sT[0]} offen sc1', W('all')] + [f'v_xor_b32 {vt[i]}, {sTag}, {vt[i]}' for i in range(4)] +
  [f'v_or3_b32 {vt[0]}, {vt[0]}, {vt[1]}, {vt[2]}', f'v_or_b32 {vt[0]}, {vt[0]}, {vt[3]}', f'v_cmp_ne_u32 vcc, 0, {vt[0]}', 's_cbranch_vccnz Lmaster',
   's_mov_b64 exec, 1', f'buffer_store_dword {vt[5]}, {vt[0]}, {sWS}, 0 offen sc1', 's_endpgm', ('L', 'Laux2')])
S.free('key0', 'key1')
AX_SCR = 19 * 8192
L_WR = AX_SCR; L_KEY = AX_SCR + 2048; L_XS = AX_SCR + 2560; L_H = AX_SCR + 6144; L_U = AX_SCR + 6400
XS_STRIDE = 1344
l3 = vt[1]; l7 = vt[2]
sMW = S.alloc('mw'); sSo = S.alloc('so'); vB0 = V.alloc('b0'); vTw = V.alloc('tw', 3); wf = AG.alloc('wf', 80)
E([f'v_lshrrev_b32 {l3}, 3, {vLane}', f'v_and_b32 {l7}, 7, {vLane}', f's_lshl_b32 {sMW}, {sW}, 11', f's_lshl_b32 {sT[0]}, {sA}, 6', f's_lshl_b32 {sT[1]}, {sW}, 4',
   f's_add_u32 {sT[0]}, {sT[0]}, {sT[1]}', f'v_add_u32 {vt[3]}, {sT[0]}, {l3}', f'v_mul_u32_u24 {vt[3]}, 1280, {vt[3]}', f's_cmp_eq_u32 {sH}, 0', 's_cbranch_scc0 Laux_ld'])
st_aux = save_state()
def adma(sub, voff, srd, soff, nt, tag):
    return [f's_add_u32 m0, {sMW}, {sub * 8192}', f's_mov_b32 {sSo}, {soff}', (f'buffer_load_dwordx4 {voff[0]}, {srd}, {sSo} offen{nt} lds', tag),
            (f'buffer_load_dwordx4 {voff[1]}, {srd}, {sSo} offen offset:1024{nt} lds', tag)]
calc_tw = tr_parts(vB0, vt[5], vt[4], vt[6]) + [f'v_add_u32 {vB0}, {vB0}, {vt[5]}', f'v_lshl_add_u32 {vB0}, {vt[4]}, 3, {vB0}', f's_lshl_b32 {sT[0]}, {sW}, 5',
          f'v_xor_b32 {vTw[0]}, {sT[0]}, {vB0}', f'v_add_u32 {vTw[1]}, {7 * 8192}, {vTw[0]}', f'v_add_u32 {vTw[2]}, {14 * 8192}, {vTw[0]}']
def areads(subs):
    return [f'ds_read_b64_tr_b16 {wf[4 * k + 2 * h:4 * k + 2 * h + 2]}, {vTw[subs[k // 2] // 7]} offset:{(subs[k // 2] % 7) * 8192 + (k % 2) * 4096 + h * 512}' for k in range(20) for h in range(2)]
sX = S.alloc('srdx', 4); sWR_ = S.alloc('srdwr', 4); aXo = V.alloc('axo', 2)
E([f'v_xor_b32 {vt[4]}, {l7}, {vG}', f'v_lshl_add_u32 {aXo[0]}, {vt[4]}, 4, {vt[3]}', f'v_xor_b32 {aXo[1]}, 64, {aXo[0]}', f'v_add_u32 {aXo[1]}, {8 * 1280 - 1024}, {aXo[1]}',
   's_waitcnt lgkmcnt(0)'] + mk_srd(sX, pX, 2048 * 1280) + mk_srd(sWR_, pWR, 1280) +
  [f's_mov_b32 m0, {L_WR}', 's_nop 0', f'buffer_load_dwordx4 {vL16}, {sWR_}, 0 offen lds', 's_mov_b64 exec, 0xffff', f'buffer_load_dwordx4 {vL16}, {sWR_}, 0 offen offset:1024 lds', 's_mov_b64 exec, -1'])
for u in range(10): E(adma(u, aXo, sX, u * 128, NT['R'], ('x', u)))
vOnes = V.alloc('ones', 4); vRa = V.alloc('ra'); vXr = V.alloc('xr', 4)
sK1 = S.alloc('k1', 2); sK2 = S.alloc('k2', 2); vDiag = V.alloc('diag'); vSt = V.alloc('st', 2)
E(get_tag() + [f'v_mov_b32 {vOnes[i]}, 0x3f803f80' for i in range(4)] +
  [f'v_lshlrev_b32 {vRa}, 4, {vG}', f'v_add_u32 {vRa}, {L_WR}, {vRa}', f'v_lshrrev_b32 {vt[6]}, 1, {vTt}', f'v_xor_b32 {vt[6]}, {vt[6]}, {vG}', f'v_lshlrev_b32 {vt[6]}, 4, {vt[6]}',
   f'v_lshl_add_u32 {vt[6]}, {vTt}, 7, {vt[6]}', f'v_add_u32 {vXr[0]}, {sMW}, {vt[6]}', f'v_xor_b32 {vXr[1]}, 64, {vXr[0]}', f'v_add_u32 {vXr[2]}, {5 * 8192}, {vXr[0]}',
   f'v_add_u32 {vXr[3]}, {5 * 8192}, {vXr[1]}', f's_mov_b32 {sK1[0]}, 0xaaaaaaaa', f's_mov_b32 {sK1[1]}, 0xaaaaaaaa', f's_mov_b32 {sK2[0]}, 0xcccccccc', f's_mov_b32 {sK2[1]}, 0xcccccccc',
   f'v_lshrrev_b32 {vDiag}, 2, {vTt}', f'v_lshl_add_u32 {vDiag}, {vDiag}, 4, {vTt}', f'v_lshlrev_b32 {vDiag}, 2, {vDiag}'] + calc_tw + ['s_waitcnt lgkmcnt(0)'] + fin_tag())
rb_ = AG.alloc('rb', 32)
a4 = V.alloc('a4', 16); aSum, aSq, aDot, aSw = a4[0:4], a4[4:8], a4[8:12], a4[12:16]
def r_reads(u):
    b = (u % 2) * 16; L = [W(('x', u))]
    for kk in range(2):
        L += [(f'ds_read_b128 {rb_[b + 8 * kk:b + 8 * kk + 4]}, {vXr[(u // 5) * 2 + kk]} offset:{(u % 5) * 8192}', ('rr', u)),
              (f'ds_read_b128 {rb_[b + 8 * kk + 4:b + 8 * kk + 8]}, {vRa} offset:{(2 * u + kk) * 64}', ('rr', u))]
    return L
E(r_reads(0))
for u in range(10):
    if u < 9: E(r_reads(u + 1))
    E(W(lg=('rr', u)))
    for kk in range(2):
        b = (u % 2) * 16 + 8 * kk; x = rb_[b:b + 4]; r = rb_[b + 4:b + 8]
        E([f'{MFMA} {ac}, {a}, {bb}, {0 if (u == 0 and kk == 0) else ac}' for ac, a, bb in ((aSq, x, x), (aSum, vOnes, x), (aDot, r, x), (aSw, r, vOnes))])
E(stamp() + stats(aSum[0], aSq, vSt, vt, vDiag, sK1, sK2) +
  [f'v_lshrrev_b32 {vt[4]}, 16, {vt[0]}', f'v_or_b32 {vt[4]}, {vt[4]}, {vSt[0]}', f'v_mov_b32 {vt[5]}, {sTag}', f's_lshl_b32 {sT[0]}, {sA}, 9', f's_lshl_b32 {sT[1]}, {sW}, 7',
   f's_add_u32 {sT[0]}, {sT[0]}, {sT[1]}', f's_add_u32 {sT[0]}, {sT[0]}, {WS_STAT}', f'v_lshlrev_b32 {vt[6]}, 3, {vLane}', 's_mov_b64 exec, 0xffff',
   f'buffer_store_dwordx2 {vt[4:6]}, {vt[6]}, {sWS}, {sT[0]} offen sc1', 's_mov_b64 exec, -1'] +
  [f'v_fma_f32 {vt[0]}, {vSt[0]}, {aSw[0]}, {aDot[0]}', f'v_mul_f32 {vt[0]}, {vt[0]}, {vSt[1]}', f'v_cvt_pk_bf16_f32 {vt[0]}, {vt[0]}, {vt[0]}',
   f'v_ashrrev_i32 {vt[1]}, 31, {vt[0]}', f'v_or_b32 {vt[1]}, 0x80000000, {vt[1]}', f'v_xor_b32 {vt[0]}, {vt[0]}, {vt[1]}', f'v_and_b32 {vt[0]}, 0xffff0000, {vt[0]}',
   f'v_max_u32 {vt[0]}, 0x10000, {vt[0]}', f's_lshl_b32 {sT[0]}, {sW}, 4', f'v_add_u32 {vt[1]}, {sT[0]}, {vTt}', f'v_sub_u32 {vt[2]}, 63, {vt[1]}', f'v_or_b32 {vt[0]}, {vt[0]}, {vt[2]}',
   f'v_lshlrev_b32 {vt[1]}, 2, {vt[1]}', f'v_add_u32 {vt[1]}, {L_KEY}, {vt[1]}', f'ds_write_b32 {vt[1]}, {vt[0]}', W(lg='all'), 's_barrier'])
sKy0 = S.alloc('key0'); sKy1 = S.alloc('key1')
E([f's_cmp_lg_u32 {sW}, 0', 's_cbranch_scc1 Lpub_done', f'v_add_u32 {vt[1]}, {L_KEY}, {vL4}', f'ds_read_b32 {vt[2]}, {vt[1]}', W(lg='all'), f'v_mov_b32 {vt[0]}, {vt[2]}'] +
  wave_max_u32(vt[0], sKy0, sT) + [f'v_cmp_eq_u32 vcc, {sKy0}, {vt[2]}', f'v_cndmask_b32 {vt[0]}, {vt[2]}, 0, vcc'] + wave_max_u32(vt[0], sKy1, sT) +
  [f's_and_b32 {sT[0]}, {sKy0}, 0xffff0000', f's_lshr_b32 {sT[1]}, {sKy1}, 16', f's_or_b32 {sT[0]}, {sT[0]}, {sT[1]}', f's_and_b32 {sT[1]}, {sKy0}, 63', f's_and_b32 {sT[2]}, {sKy1}, 63',
   f's_lshl_b32 {sT[2]}, {sT[2]}, 6', f's_or_b32 {sT[1]}, {sT[1]}, {sT[2]}', f's_xor_b32 {sT[1]}, {sT[1]}, 0x8fff', f's_lshl_b32 {sT[2]}, {sA}, 2', f's_lshl_b32 {sT[3]}, {sA}, 1',
   f'v_mov_b32 {vt[0]}, {sT[0]}', f'v_mov_b32 {vt[1]}, {sT[1]}', f'v_mov_b32 {vt[2]}, {sT[2]}', f'v_mov_b32 {vt[3]}, {sT[3]}', 's_mov_b64 exec, 1',
   f'buffer_store_dword {vt[0]}, {vt[2]}, {sDBG}, 0 offen offset:{DBG_VAL} sc1', f'buffer_store_short {vt[1]}, {vt[3]}, {sDBG}, 0 offen offset:{DBG_IDX} sc1', 's_mov_b64 exec, -1'] + signal() + [
   ('L', 'Lpub_done')] + stamp() + [f's_cmp_ge_u32 {sA}, 27', 's_cbranch_scc1 Lend', 's_barrier'])
E(areads([10 + u for u in range(9)] + [9]) + [W(lg='all'), 's_barrier'] + stamp())
xr = V.alloc('xraw', 10); xv = V.alloc('xv', 20)
def half_sum(r, tmp):
    return [f'v_add_f32_dpp {r}, {r}, {r} row_ror:{sh} row_mask:0xf bank_mask:0xf' for sh in (8, 4, 2, 1)] + [f'v_mov_b32 {tmp}, {r}', f'v_permlane16_swap_b32 {r}, {tmp}', f'v_add_f32 {r}, {r}, {tmp}']
E([f's_cmp_lg_u32 {sW}, 0', 's_cbranch_scc1 Lsel_done'] + poll_top2(vt, sKy0, sKy1, sT) +
  [f's_and_b32 {sT[0]}, {sKy0}, 0x7ff', f's_sub_u32 {sT[0]}, 2047, {sT[0]}', f's_mul_i32 {sT[0]}, {sT[0]}, 1280', f's_and_b32 {sT[1]}, {sKy1}, 0x7ff', f's_sub_u32 {sT[1]}, 2047, {sT[1]}',
   f's_mul_i32 {sT[1]}, {sT[1]}, 1280', f'v_mov_b32 {vt[0]}, {sT[0]}', f'v_mov_b32 {vt[1]}, {sT[1]}', f'v_cmp_gt_u32 vcc, 32, {vLane}', f'v_cndmask_b32 {vt[0]}, {vt[1]}, {vt[0]}, vcc',
   f'v_and_b32 {vt[6]}, 31, {vLane}', f'v_lshl_add_u32 {vt[0]}, {vt[6]}, 3, {vt[0]}'] +
  [(f'buffer_load_dwordx2 {xr[2 * i:2 * i + 2]}, {vt[0]}, {sX}, 0 offen offset:{256 * i}', 'xs') for i in range(5)] + [W('xs')])
for i in range(10): E([f'v_lshlrev_b32 {xv[2 * i]}, 16, {xr[i]}', f'v_and_b32 {xv[2 * i + 1]}, 0xffff0000, {xr[i]}'])
E([f'v_add_f32 {vt[2]}, {xv[0]}, {xv[1]}'] + [f'v_add_f32 {vt[2]}, {vt[2]}, {xv[i]}' for i in range(2, 20)] + half_sum(vt[2], vt[3]) +
  [f'v_mul_f32 {vt[2]}, {f32(1 / 640)}, {vt[2]}', f'v_mov_b32 {vt[4]}, 0'])
for i in range(20): E([f'v_sub_f32 {vt[5]}, {xv[i]}, {vt[2]}', f'v_fmac_f32 {vt[4]}, {vt[5]}, {vt[5]}'])
E(half_sum(vt[4], vt[3]) + [f'v_mul_f32 {vt[4]}, {f32(1 / 640)}, {vt[4]}'] + bf16r(vt[4], vt[4]) + [f'v_add_f32 {vt[4]}, {f32(1e-5)}, {vt[4]}'] + bf16r(vt[4], vt[4]) +
  [f'v_sqrt_f32 {vt[4]}, {vt[4]}'] + bf16r(vt[4], vt[4]) + [f'v_rcp_f32 {vt[4]}, {vt[4]}'] + bf16r(vt[2], vt[2]) + [f'v_sub_f32 {xv[i]}, {xv[i]}, {vt[2]}' for i in range(20)] +
  round_pairs(xv, 20) + [f'v_mul_f32 {xv[i]}, {xv[i]}, {vt[4]}' for i in range(20)] + [f'v_cvt_pk_bf16_f32 {xr[i]}, {xv[2 * i]}, {xv[2 * i + 1]}' for i in range(10)] +
  [f'v_lshrrev_b32 {vt[0]}, 5, {vLane}', f'v_mul_u32_u24 {vt[0]}, {XS_STRIDE}, {vt[0]}', f'v_lshl_add_u32 {vt[0]}, {vt[6]}, 3, {vt[0]}', f'v_add_u32 {vt[0]}, {L_XS}, {vt[0]}'] +
  [f'ds_write_b64 {vt[0]}, {xr[2 * i:2 * i + 2]} offset:{256 * i}' for i in range(5)] + [W(lg='all'), ('L', 'Lsel_done')] + stamp() + ['s_barrier', 's_branch Laux_mm'])
aux_stamps = list(sST); aux_S = (dict(S.used), set(S.taken))
load_state(st_aux)
S.used, S.taken = dict(aux_S[0]), set(aux_S[1]); sST[:] = aux_stamps
A.label('Laux_ld')
sWG_ = S.alloc('srdg', 4); sWU_ = S.alloc('srdu', 4); sWD_ = S.alloc('srdd', 4); aGo = V.alloc('ago', 2); aDo = V.alloc('ado', 2)
E([f's_cmp_ge_u32 {sA}, 27', 's_cbranch_scc1 Lend',
   f'v_and_b32 {vt[4]}, 1, {vG}', f'v_lshlrev_b32 {vt[4]}, 1, {vt[4]}', f'v_xor_b32 {vt[4]}, {vt[4]}, {l7}', f'v_lshlrev_b32 {vt[4]}, 4, {vt[4]}',
   f'v_add_u32 {aDo[0]}, {vt[3]}, {vt[4]}', f'v_xor_b32 {aDo[1]}, 64, {aDo[0]}', f'v_add_u32 {aDo[1]}, {8 * 1280 - 1024}, {aDo[1]}',
   f'v_add_u32 {vt[5]}, {sT[1]}, {l3}', f'v_mul_u32_u24 {vt[5]}, 3456, {vt[5]}', f's_lshl_b32 {sT[2]}, {sA}, 7', f'v_add3_u32 {aGo[0]}, {vt[5]}, {vt[4]}, {sT[2]}',
   f'v_xor_b32 {aGo[1]}, 64, {aGo[0]}', f'v_add_u32 {aGo[1]}, {8 * 3456 - 1024}, {aGo[1]}'] + calc_tw + ['s_waitcnt lgkmcnt(0)'] + get_tag() +
  mk_srd(sWG_, pWG, 640 * 3456) + mk_srd(sWU_, pWU, 640 * 3456) + mk_srd(sWD_, pWD, 1728 * 1280))
if opt('gdelay', 0): E(f's_sleep {opt("gdelay", 0)}')
for u in range(9): E(adma(10 + u, aGo, sWG_, u * 64 * 3456, NT['F'], 'g'))
E(['s_waitcnt lgkmcnt(0)'] + fin_tag() + ['s_barrier'])
E(adma(9, aGo, sWG_, 9 * 64 * 3456, NT['F'], 'g'))
for u in range(9): E(adma(u, aGo, sWU_, u * 64 * 3456, NT['F'], 'u'))
E([W('g'), 's_barrier', 's_barrier'])
E(adma(9, aGo, sWU_, 9 * 64 * 3456, NT['F'], 'u'))
for u in range(9): E(adma(10 + u, aDo, sWD_, u * 128, NT['F'], 'd'))
E([W('u'), 's_barrier'] + areads(list(range(10))))
A.label('Laux_mm')
xf = Reg('v', 40, 80); aG = Reg('v', 120, 4); aU = Reg('v', 124, 4); tq = Reg('v', 36, 4)
E([f'v_and_b32 {vt[0]}, 1, {vLane}', f'v_mul_u32_u24 {vt[1]}, {XS_STRIDE}, {vt[0]}', f'v_lshl_add_u32 {vt[1]}, {vG}, 4, {vt[1]}', f'v_add_u32 {vt[1]}, {L_XS}, {vt[1]}'] +
  [f'ds_read_b128 {xf[4 * k:4 * k + 4]}, {vt[1]} offset:{64 * k}' for k in range(20)] + ['s_waitcnt lgkmcnt(0)', 's_barrier'])
E([f's_cmp_eq_u32 {sH}, 0', 's_cbranch_scc1 Lno_d9'] + adma(0, aDo, sWD_, 9 * 128, NT['F'], 'd') + [('L', 'Lno_d9')])
E([f'{MFMA} {aG if k % 2 == 0 else aU}, {wf[4 * k:4 * k + 4]}, {xf[4 * k:4 * k + 4]}, {0 if k < 2 else (aG if k % 2 == 0 else aU)}' for k in range(20)])
E([f's_lshl_b32 {sT[0]}, {sW}, 7', f's_add_u32 {sT[0]}, {sT[0]}, {L_U}', f'v_lshl_add_u32 {vt[2]}, {vG}, 1, {vt[0]}', f'v_lshl_add_u32 {vt[2]}, {vt[2]}, 4, {sT[0]}'] +
  [f'v_add_f32 {aG[i]}, {aG[i]}, {aU[i]}' for i in range(4)] + round_pairs(aG, 4) +
  [f's_cmp_eq_u32 {sH}, 0', 's_cbranch_scc1 Lgw', f'ds_write_b128 {vt[2]}, {aG}', 's_waitcnt lgkmcnt(0)', 's_barrier', 's_waitcnt vmcnt(0)', 's_branch Lhd', ('L', 'Lgw')] +
  silu_into(tq, aG, 4) + ['s_barrier', f'ds_read_b128 {aU}, {vt[2]}', f's_lshl_b32 {sT[0]}, {sW}, 5', f's_add_u32 {sT[0]}, {sT[0]}, {L_H}', f'v_lshlrev_b32 {vt[4]}, 7, {vt[0]}',
   f'v_lshl_add_u32 {vt[5]}, {vG}, 3, {vt[4]}', f'v_add_u32 {vt[5]}, {sT[0]}, {vt[5]}', 's_waitcnt lgkmcnt(0)'] + [f'v_mul_f32 {tq[i]}, {tq[i]}, {aU[i]}' for i in range(4)] +
  cvt2(vt[2:4], tq) + [f'ds_write_b64 {vt[5]}, {vt[2:4]}', 's_waitcnt lgkmcnt(0)', ('L', 'Lhd'), 's_barrier'] + stamp())
hA = xf[0:8]; aY = xf[8:24]; vOut = xf[24:28]; vDa = xf[28:32]
sG = [S.alloc(f'gm{i}', 2) for i in range(3)]
E([f'v_lshlrev_b32 {vt[4]}, 7, {vt[0]}', f'v_lshl_add_u32 {vt[5]}, {vG}, 4, {vt[4]}', f'v_add_u32 {vt[5]}, {L_H}, {vt[5]}'] +
  [f'ds_read_b128 {hA[4 * kk:4 * kk + 4]}, {vt[5]} offset:{64 * kk}' for kk in range(2)] + [f'v_cmp_eq_u32 {sG[i]}, {i + 1}, {vG}' for i in range(3)] +
  [f's_mov_b32 {sC}, {sWv}', ('L', 'Ldown'),
   f's_add_u32 {sT[1]}, {sC}, 10', f's_cmp_eq_u32 {sC}, 9', f's_cselect_b32 {sT[1]}, 0, {sT[1]}', f's_lshl_b32 {sT[1]}, {sT[1]}, 13', f'v_add_u32 {vDa[0]}, {sT[1]}, {vB0}'] +
  [f'v_xor_b32 {vDa[t]}, {32 * t}, {vDa[0]}' for t in (1, 2, 3)] +
  [f'ds_read_b64_tr_b16 {wf[(kk * 4 + t) * 4 + 2 * h:(kk * 4 + t) * 4 + 2 * h + 2]}, {vDa[t]} offset:{kk * 4096 + h * 512}' for kk in range(2) for t in range(4) for h in range(2)] +
  [f's_mul_i32 {sT[1]}, {sA}, 10', f's_add_u32 {sT[1]}, {sT[1]}, {sC}', f's_lshl_b32 {sT[1]}, {sT[1]}, 10', f's_add_u32 {sT[1]}, {sT[1]}, {WS_Y}',
   f'v_mov_b32 {vOut[1]}, {sTag}', f'v_mov_b32 {vOut[3]}, {sTag}', 's_waitcnt lgkmcnt(0)'] +
  [f'{MFMA} {aY[4 * t:4 * t + 4]}, {hA[4 * kk:4 * kk + 4]}, {wf[(kk * 4 + t) * 4:(kk * 4 + t) * 4 + 4]}, {0 if kk == 0 else aY[4 * t:4 * t + 4]}' for kk in range(2) for t in range(4)])
for q, r in ((0, 0), (2, 1)):
    E([f'v_cndmask_b32 {vOut[q]}, {aY[r]}, {aY[4 + r]}, {sG[0]}', f'v_cndmask_b32 {vOut[q]}, {vOut[q]}, {aY[8 + r]}, {sG[1]}', f'v_cndmask_b32 {vOut[q]}, {vOut[q]}, {aY[12 + r]}, {sG[2]}'])
E([f'buffer_store_dwordx4 {vOut}, {vL16}, {sWS}, {sT[1]} offen sc1', f's_add_u32 {sC}, {sC}, 8', f's_cmp_lt_u32 {sC}, 10', 's_cbranch_scc1 Ldown'])
write_stamps(0, 'aux')
A.label('Lend')
A('s_endpgm')
A.raw(f'''.section .rodata,"a"
.p2align 6
.amdhsa_kernel {NAME}_kernel
  .amdhsa_next_free_vgpr 256
  .amdhsa_next_free_sgpr 102
  .amdhsa_accum_offset 128
  .amdhsa_group_segment_fixed_size 0
  .amdhsa_kernarg_size 88
  .amdhsa_user_sgpr_count 2
  .amdhsa_user_sgpr_kernarg_segment_ptr 1
  .amdhsa_system_sgpr_workgroup_id_x 1
  .amdhsa_float_denorm_mode_32 3
.end_amdhsa_kernel''')
txt = A.render()
open(sys.argv[1], 'w').write(txt)
print('lines', txt.count('\n'), 'nops added', A.nops_added, 'vmax', V.maxused, 'amax', AG.maxused, 'smax', S.maxused, file=sys.stderr)
```

```python
import re

REG_RE = re.compile(r'^(-|abs\()?([vas])(\d+)\)?$')
RNG_RE = re.compile(r'^(-)?([vas])\[(\d+):(\d+)\]$')
TRANS = ('v_exp_f32', 'v_log_f32', 'v_rcp_f32', 'v_rsq_f32', 'v_sqrt_f32', 'v_sin_f32', 'v_cos_f32', 'v_rcp_iflag_f32')

def regs_of(tok):
    tok = tok.strip()
    if tok == 'vcc': return {('s', 106), ('s', 107)}
    if tok == 'vcc_lo': return {('s', 106)}
    if tok == 'vcc_hi': return {('s', 107)}
    if tok == 'exec': return {('s', 126), ('s', 127)}
    if tok == 'm0': return {('s', 124)}
    m = REG_RE.match(tok)
    if m: return {(m.group(2), int(m.group(3)))}
    m = RNG_RE.match(tok)
    if m: return {(m.group(2), i) for i in range(int(m.group(3)), int(m.group(4)) + 1)}
    return set()

def split_ops(rest):
    ops = []; depth = 0; cur = ''
    for ch in rest:
        if ch in '[(': depth += 1
        if ch in '])': depth -= 1
        if ch == ',' and depth == 0: ops.append(cur.strip()); cur = ''
        else: cur += ch
    if cur.strip(): ops.append(cur.strip())
    mods = ''
    if ops:
        parts = ops[-1].split(None, 1)
        ops[-1] = parts[0]
        if len(parts) > 1: mods = parts[1]
    return ops, mods

class Ins:
    def __init__(self, text):
        self.text = text
        t = text.split(';')[0].strip()
        p = t.split(None, 1)
        self.op = p[0]
        self.ops, self.mods = split_ops(p[1]) if len(p) > 1 else ([], '')
        op = self.op; ops = self.ops
        self.w = set(); self.r = set(); self.kind = 'other'
        self.states = 1
        R = [regs_of(o) for o in ops]
        def U(l):
            s = set()
            for x in l: s |= x
            return s
        if op == 's_nop':
            self.kind = 'nop'; self.states = int(ops[0], 0) + 1
        elif op.startswith('v_mfma'):
            self.kind = 'mfma'; self.w = R[0]; self.ab = R[1] | R[2]; self.c = R[3]; self.r = self.ab | self.c
            self.passes = 8 if '32x32' in op else 4
        elif op.startswith('v_'):
            self.kind = 'valu'
            base = re.sub(r'_(e32|e64|dpp|sdwa)$', '', op)
            self.base = base
            self.trans = base in TRANS
            self.dpp = op.endswith('_dpp') or 'row_' in self.mods or 'quad_perm' in self.mods
            self.dot = base.startswith('v_dot')
            if base.startswith('v_cmpx'): raise Exception('avoid v_cmpx')
            if base.startswith('v_permlane') and 'swap' in base:
                self.w = R[0] | R[1]; self.r = R[0] | R[1]
            elif base in ('v_add_co_u32', 'v_sub_co_u32', 'v_subrev_co_u32', 'v_addc_co_u32', 'v_subb_co_u32', 'v_div_scale_f32', 'v_mad_u64_u32'):
                self.w = R[0] | R[1]; self.r = U(R[2:])
            else:
                self.w = R[0]; self.r = U(R[1:])
                if base in ('v_fmac_f32', 'v_dot2c_f32_bf16', 'v_writelane_b32', 'v_pk_fmac_f16') or self.dpp or 'dst_sel' in self.mods: self.r |= R[0]
            self.opsel_dst = ('dst_sel' in self.mods and 'DWORD' not in self.mods.split('dst_sel:')[1].split()[0])
        elif op.startswith('ds_'):
            self.kind = 'ds'
            if op.startswith('ds_read') or op.startswith('ds_bpermute') or op.startswith('ds_permute') or op.startswith('ds_swizzle') or '_rtn' in op:
                self.w = R[0]; self.r = U(R[1:])
            else: self.r = U(R)
        elif op.startswith('buffer_') or op.startswith('global_'):
            self.kind = 'vmem'
            self.lds = ' lds' in (' ' + self.mods) or '_lds_' in op
            self.wide_store = False
            if op.startswith('buffer_inv') or op.startswith('buffer_wbl2'): pass
            elif self.lds: self.r = U(R) | {('s', 124)}
            elif '_load' in op: self.w = R[0]; self.r = U(R[1:])
            elif '_atomic' in op:
                self.r = U(R)
                if 'sc0' in self.mods: self.w = R[0]
            else:
                self.r = U(R)
                if 'x3' in op or 'x4' in op:
                    self.wide_store = True
                    self.data = R[0] if op.startswith('buffer_') else R[1]
        elif op.startswith('s_'):
            self.kind = 'salu'
            if op.startswith('s_cbranch') or op in ('s_branch', 's_endpgm', 's_setpc_b64'): self.kind = 'branch'
            elif op in ('s_waitcnt', 's_barrier', 's_sleep', 's_setprio') or op.startswith('s_cmp') or op.startswith('s_bitcmp'): self.r = U(R)
            else:
                self.w = R[0] if R else set(); self.r = U(R[1:])
                if 'saveexec' in op: self.w |= regs_of('exec')

def need(p, c):
    n = 0
    vw = {x for x in p.w if x[0] != 's'}; sw = {x for x in p.w if x[0] == 's'}
    if p.kind == 'valu':
        if c.kind == 'mfma' and vw & c.r: n = max(n, 3 if p.dot else 2)
        if c.kind == 'mfma' and p.base.startswith('v_pk_'): n = max(n, 1)
        if c.kind == 'valu':
            if p.trans and not c.trans and vw & c.r: n = max(n, 1)
            if p.trans and c.trans and vw & c.r: n = max(n, 1)
            if sw & c.r: n = max(n, 4 if c.base in ('v_readlane_b32', 'v_writelane_b32') else 2)
            if c.base in ('v_readlane_b32', 'v_readfirstlane_b32') and vw & c.r: n = max(n, 1)
            if c.base.startswith('v_permlane') and vw & c.r: n = max(n, 2)
            if c.dpp and vw & c.r: n = max(n, 2)
            if p.opsel_dst and vw & (c.r | c.w): n = max(n, 1)
            if p.dot and vw & (c.r | c.w):
                same_c = (c.base == p.base and vw == c.w and not (vw & (regs_of(c.ops[1]) | regs_of(c.ops[2]))))
                if not same_c: n = max(n, 3)
        if c.kind in ('vmem', 'ds') and p.dot and vw & c.r: n = max(n, 3)
        if c.kind in ('vmem', 'ds') and p.trans and vw & c.r: n = max(n, 1)
        if c.kind == 'vmem' and sw & c.r: n = max(n, 5)
        if c.kind == 'salu' and sw & c.r: n = max(n, 1)
    if p.kind == 'mfma':
        big = 12 if p.passes == 8 else 8
        if c.kind == 'mfma':
            if p.w & c.ab: n = max(n, big)
            if p.w & c.c and not (p.w == c.c and p.passes == c.passes): n = max(n, big - 2)
            if p.w & c.w and p.w != c.c: n = max(n, big)
            if p.c & c.w and p.c != p.w: n = max(n, 0)
        elif c.kind in ('valu', 'vmem', 'ds'):
            if p.w & (c.r | c.w): n = max(n, big)
            if c.kind == 'valu' and p.c & c.w: n = max(n, 7 if p.passes == 8 else 3)
    if p.kind == 'vmem' and getattr(p, 'wide_store', False):
        if p.data & c.w: n = max(n, 2 if c.kind == 'valu' else 1)
    if p.kind == 'salu' and ('s', 124) in p.w:
        if c.kind == 'vmem' and c.lds: n = max(n, 1)
    if p.kind in ('ds', 'vmem', 'salu') and c.kind == 'valu' and c.dpp and False: pass
    return n

class Asm:
    def __init__(self):
        self.lines = []
        self.nlabel = 0
    def __call__(self, text):
        for t in text.split('\n'):
            t = t.strip()
            if t: self.lines.append(('i', t))
    def label(self, name): self.lines.append(('l', name))
    def raw(self, text): self.lines.append(('r', text))
    def comment(self, text): self.lines.append(('r', '    ; ' + text))
    def newlabel(self, base='L'):
        self.nlabel += 1
        return f'{base}_{self.nlabel}'
    def render(self):
        out = []; win = []
        self.nops_added = 0
        MAXD = 13
        parsed = [(k, Ins(t) if k == 'i' else t) for k, t in self.lines]
        labpos = {t: i for i, (k, t) in enumerate(parsed) if k == 'l'}
        def worst_case(p):
            if p.kind == 'mfma': return 12 if p.passes == 8 else 8
            if p.kind == 'valu': return 5 if any(x[0] == 's' for x in p.w) else (3 if p.dot else 2)
            if p.kind == 'vmem' and getattr(p, 'wide_store', False): return 2
            if p.kind == 'salu' and ('s', 124) in p.w: return 1
            return 0
        def target_need(pos, dist, depth=0):
            pad = 0
            while dist < MAXD and pos < len(parsed):
                k, c = parsed[pos]; pos += 1
                if k != 'i': continue
                if c.kind == 'branch':
                    if c.op == 's_endpgm': return pad
                    if c.ops and c.ops[0] in labpos and depth < 4: pad = max(pad, target_need(labpos[c.ops[0]], dist + 1, depth + 1))
                    else: pad = max([pad] + [worst_case(p) - d - dist - 1 for p, d in win])
                    if c.op == 's_branch': return pad
                    dist += 1; continue
                for p, d in win: pad = max(pad, need(p, c) - d - dist)
                dist += c.states
            return pad
        def emit_pad(pad):
            if pad > 0:
                out.append(f'    s_nop {pad - 1}'); self.nops_added += 1
                for e in win: e[1] += pad
        for kind, ins in parsed:
            if kind == 'r': out.append(ins); continue
            if kind == 'l': out.append(ins + ':'); continue
            if ins.kind == 'branch':
                pad = 0
                if 'vcc' in ins.op:
                    for p, d in win:
                        if p.kind == 'valu' and ('s', 106) in p.w: pad = max(pad, 1 - d)
                if ins.op != 's_endpgm': pad = max(pad, target_need(labpos[ins.ops[0]], 1))
                emit_pad(pad)
                out.append('    ' + ins.text)
                for e in win: e[1] += 1
                if ins.op in ('s_branch', 's_endpgm'): win.clear()
                continue
            emit_pad(max([0] + [need(p, ins) - d for p, d in win]))
            out.append('    ' + ins.text)
            for e in win: e[1] += ins.states
            win[:] = [e for e in win if e[1] < MAXD]
            if ins.kind != 'nop': win.append([ins, 0])
        return '\n'.join(out) + '\n'

class RegAlloc:
    def __init__(self, kind, lo, hi):
        self.kind = kind; self.lo = lo; self.hi = hi; self.used = {}; self.taken = set(); self.maxused = lo
    def alloc(self, name, n=1, align=None):
        if align is None: align = 1 if n == 1 else (4 if (self.kind == 's' and n >= 4) else 2)
        i = self.lo
        while True:
            i = (i + align - 1) // align * align
            if i + n > self.hi: raise Exception(f'out of {self.kind} regs for {name} x{n}')
            if all((j not in self.taken) for j in range(i, i + n)): break
            i += 1
        for j in range(i, i + n): self.taken.add(j)
        assert name not in self.used, name
        self.used[name] = (i, n); self.maxused = max(self.maxused, i + n)
        return Reg(self.kind, i, n)
    def free(self, *names):
        for name in names:
            i, n = self.used.pop(name)
            for j in range(i, i + n): self.taken.discard(j)

class Reg:
    def __init__(self, kind, base, n): self.kind = kind; self.base = base; self.n = n
    def __getitem__(self, idx):
        if isinstance(idx, slice):
            a = idx.start or 0; b = idx.stop if idx.stop is not None else self.n
            assert 0 <= a < b <= self.n, (a, b, self.n)
            return Reg(self.kind, self.base + a, b - a)
        assert 0 <= idx < self.n, (idx, self.n)
        return Reg(self.kind, self.base + idx, 1)
    def __str__(self):
        return f'{self.kind}{self.base}' if self.n == 1 else f'{self.kind}[{self.base}:{self.base + self.n - 1}]'
    __repr__ = __str__
    def __format__(self, spec): return str(self)
```

```python
import sys, math, struct
from asmlib import Asm, RegAlloc, Reg
NAME = "recurrent_scan__sliding_local_dilated__moe_arch_mod__prompt"
OPTS = set(sys.argv[2:])
STAMPS = 'stamps' in OPTS
def opt(name, default):
    for o in OPTS:
        if o.startswith(name + '='): return type(default)(o[len(name) + 1:])
    return default
DUMP = opt('dump', '')
NT = {k: (' nt' if k in opt('nt', 'F') else '') for k in 'WXOFRS'}
STAMPW = opt('sw', 2)

def f32(x): return '0x%08x' % struct.unpack('<I', struct.pack('<f', x))[0]
L2E = math.log2(math.e)

def tables():
    U = []; SL = []
    for cc in range(5):
        h0 = (16 * cc) // 5
        slot = [((16 * cc + q) // 5) - h0 for q in range(16)]
        s1 = [q for q in range(16) if slot[q] == 1]; s2 = [q for q in range(16) if slot[q] == 2]
        t0 = s1[:4]; e1 = s1[4]; t3 = s2[1:]; e2 = s2[0]
        rest = [q for q in range(16) if q not in t0 and q not in t3]
        t1 = []; t2 = []
        for res in range(4):
            pair = [q for q in rest if q % 4 == res]
            if e1 in pair: a = e1; b = pair[0] if pair[1] == e1 else pair[1]
            elif e2 in pair: b = e2; a = pair[0] if pair[1] == e2 else pair[1]
            else: a, b = pair
            t1.append(a); t2.append(b)
        tl = [sorted(t0, key=lambda q: q % 4), t1, t2, sorted(t3, key=lambda q: q % 4)]
        u = 0; sl = 0
        for t in range(4):
            for g in range(4):
                q = tl[t][g]
                u |= (q // 4) << (2 * (4 * t + g)); sl |= slot[q] << (2 * (4 * t + g))
        U.append(u); SL.append(sl)
    return U, SL
UT, SLT = tables()

SLOT = 39040; VOFF = 16384; XOFF = 24576; ONES_OFF = 38912; NSL = 4; ND = 4; NI = 10 - ND
SCR = 4 * SLOT
L_M = SCR; L_R = SCR + 512; L_CS = SCR + 1024
L_CSV = SCR + 1536
L_CSF = SCR + 1792; L_UF = SCR + 1796; L_INFO = SCR + 1800; L_QF = SCR + 1808; L_C2 = SCR + 1812; L_C3 = SCR + 1816; L_WF = SCR + 1820; L_UPD = SCR + 2048; SENT = -2
EXB = 2 * SLOT + XOFF; VXB = 3 * SLOT + XOFF
OWIN = [0, SLOT + XOFF]
OLOC = [0, 8192, XOFF, EXB + 20480, SLOT + XOFF + 16384, XOFF + 8192, XOFF + 16384, SLOT + XOFF, SLOT + XOFF + 8192]
KLOC = [b + 4096 * kk for b in OLOC for kk in range(2)] + [XOFF + 24576, SLOT + XOFF + 24576]
LDS_BYTES = 163840
WS_SX = 0x100000; WS_O = 0x400000; WS_FL = 0x700000; WS_Y = 0x710000; WS_ST = 0x800000; WS_STAT = 0x7d0000; WS_XS = 0x7a0000; WS_XF = 0x7c0000; WS_SIG = 0x7f0000; WS_BC = 0x7e0000; WS_DUMP = 0x1000000
DBG_VAL = 64; DBG_IDX = 192
NSIG = 220 + 27
NEG_INF = '0xff800000'
SCALE_L2E = (20 ** -0.5) * L2E
MFMA = 'v_mfma_f32_16x16x32_bf16'

A = Asm()
V = RegAlloc('v', 1, 128); AG = RegAlloc('a', 0, 128); S = RegAlloc('s', 3, 102)

class Em:
    def __init__(self): self.vm = []; self.lg = []
    def reset(self): self.vm = []; self.lg = []
    def cnt(self, q, tag, mx):
        if tag == 'all': n = 0
        elif tag not in q: return None
        else: n = len(q) - 1 - max(i for i, t in enumerate(q) if t == tag)
        n = min(n, mx)
        del q[:len(q) - n]
        return n
    def __call__(self, it):
        if isinstance(it, list):
            for x in it: self(x)
            return
        if isinstance(it, tuple) and it[0] == 'W':
            parts = []
            if it[1] is not None:
                n = self.cnt(self.vm, it[1], 63)
                if n is not None: parts.append(f'vmcnt({n})')
            if it[2] is not None:
                n = self.cnt(self.lg, it[2], 15)
                if n is not None: parts.append(f'lgkmcnt({n})')
            if parts: A('s_waitcnt ' + ' '.join(parts))
            return
        if isinstance(it, tuple) and it[0] == 'L': A.label(it[1]); return
        if isinstance(it, tuple) and it[0] == 'R': A(it[1]); return
        text, tag = (it, None) if isinstance(it, str) else it
        if text.startswith('ds_'):
            if 'lgthr' in OPTS and len(self.lg) >= 15: A('s_waitcnt lgkmcnt(14)'); del self.lg[:len(self.lg) - 14]
            self.lg.append(tag)
        elif text.startswith('buffer_'):
            if len(self.vm) >= 63: A('s_waitcnt vmcnt(55)'); del self.vm[:len(self.vm) - 55]
            self.vm.append(tag)
        A(text)
E = Em()
def W(vm=None, lg=None): return ('W', vm, lg)

def merge(a, b, na=1, nb=1):
    out = []; i = j = 0
    while i < len(a) or j < len(b):
        out += a[i:i + na]; i += na
        out += b[j:j + nb]; j += nb
    return out
def spread(a, b):
    out = []; j = 0
    for i, x in enumerate(a):
        out.append(x)
        while j < len(b) and j * len(a) < (i + 1) * len(b): out.append(b[j]); j += 1
    return out + b[j:]

sST = []
FINE = opt('fine', '')
def fstamp(grp):
    return stamp(True) if grp == FINE else []
def stamp(force=False):
    if not STAMPS: return []
    if FINE and not force and len(sST) > 0: return []
    r = S.alloc(f'stamp{len(sST)}', 2); sST.append(r)
    return [f's_memtime {r}' if 'clk' in OPTS else f's_memrealtime {r}']
def bf16r(dst, src): return [f'v_cvt_pk_bf16_f32 {dst}, {src}, {src}', f'v_lshlrev_b32 {dst}, 16, {dst}']
def mk_srd(dst, ptr, nbytes, add=0):
    if add > 0: L = [f's_add_u32 {dst[0]}, {ptr[0]}, {add}', f's_addc_u32 {dst[1]}, {ptr[1]}, 0']
    elif add < 0: L = [f's_sub_u32 {dst[0]}, {ptr[0]}, {-add}', f's_subb_u32 {dst[1]}, {ptr[1]}, 0']
    else: L = [f's_mov_b64 {dst[0:2]}, {ptr}']
    return L + [f's_mov_b32 {dst[2]}, {nbytes - add}', f's_mov_b32 {dst[3]}, 0x20000']
def spin_guard(): return [f's_sub_u32 {sSpin}, {sSpin}, 1', 's_cbranch_scc1 Lend']
def stats(sumreg, sq4, st, tmp, vdiag, mk1, mk2):
    return [f'v_cndmask_b32 {tmp[0]}, {sq4[0]}, {sq4[1]}, {mk1}', f'v_cndmask_b32 {tmp[1]}, {sq4[2]}, {sq4[3]}, {mk1}',
            f'v_cndmask_b32 {tmp[0]}, {tmp[0]}, {tmp[1]}, {mk2}', (f'ds_bpermute_b32 {tmp[0]}, {vdiag}, {tmp[0]}', 'bp'),
            f'v_mul_f32 {tmp[1]}, {f32(-1 / 640)}, {sumreg}'] + bf16r(st[0], tmp[1]) + [f'v_mul_f32 {tmp[1]}, {tmp[1]}, {tmp[1]}',
            f'v_mov_b32 {tmp[2]}, {f32(1 / 640)}', W(lg='bp'),
            f'v_fma_f32 {tmp[0]}, {tmp[0]}, {tmp[2]}, -{tmp[1]}', f'v_max_f32 {tmp[0]}, 0, {tmp[0]}'] + bf16r(tmp[0], tmp[0]) + \
           [f'v_add_f32 {tmp[0]}, {f32(1e-5)}, {tmp[0]}'] + bf16r(tmp[0], tmp[0]) + [f'v_sqrt_f32 {tmp[0]}, {tmp[0]}'] + bf16r(tmp[0], tmp[0]) + \
           [f'v_rcp_f32 {st[1]}, {tmp[0]}']
def wave_max_u32(r, sdst, st):
    return [f'v_max_u32_dpp {r}, {r}, {r} row_ror:{sh} row_mask:0xf bank_mask:0xf' for sh in (8, 4, 2, 1)] + \
           [f'v_readlane_b32 {sdst}, {r}, 0', f'v_readlane_b32 {st[0]}, {r}, 16', f'v_readlane_b32 {st[1]}, {r}, 32', f'v_readlane_b32 {st[2]}, {r}, 48',
            f's_max_u32 {sdst}, {sdst}, {st[0]}', f's_max_u32 {st[1]}, {st[1]}, {st[2]}', f's_max_u32 {sdst}, {sdst}, {st[1]}']
def poll_top2(t, sK0, sK1, st):
    L = A.newlabel('Lpt'); Ld = A.newlabel('Lptd')
    return [('L', L)] + spin_guard() + [
        f'buffer_load_dword {t[0]}, {vL4}, {sDBG}, 0 offen offset:{DBG_VAL} sc1',
        f'v_lshrrev_b32 {t[1]}, 1, {vL4}', f'v_and_b32 {t[1]}, 0x3c, {t[1]}', f'v_add_u32 {t[1]}, 128, {t[1]}', W('all'),
        f'ds_bpermute_b32 {t[1]}, {t[1]}, {t[0]}', f'v_and_b32 {t[2]}, 4, {vL4}', f'v_lshlrev_b32 {t[2]}, 2, {t[2]}', W(lg='all'),
        f'v_bfe_u32 {t[1]}, {t[1]}, {t[2]}, 16', f'v_cmp_ne_u32 vcc, 0, {t[0]}', f'v_cmp_ne_u32 {st[0:2]}, 0, {t[1]}',
        f's_and_b32 {st[0]}, {st[0]}, vcc_lo', f's_cmp_eq_u32 {st[0]}, -1', f's_cbranch_scc1 {Ld}', 's_sleep 2', f's_branch {L}', ('L', Ld),
        f'v_lshlrev_b32 {t[2]}, 4, {vL4}', f'v_and_b32 {t[3]}, 63, {t[1]}', f'v_add_u32 {t[3]}, {t[3]}, {t[2]}', f'v_sub_u32 {t[3]}, 2047, {t[3]}',
        f'v_bfe_u32 {t[1]}, {t[1]}, 6, 6', f'v_add_u32 {t[1]}, {t[1]}, {t[2]}', f'v_sub_u32 {t[1]}, 2047, {t[1]}',
        f'v_and_b32 {t[2]}, 0xffff0000, {t[0]}', f'v_or_b32 {t[3]}, {t[3]}, {t[2]}', f'v_lshl_or_b32 {t[1]}, {t[0]}, 16, {t[1]}',
        f'v_cmp_gt_u32 vcc, 128, {vL4}', f'v_cndmask_b32 {t[3]}, 0, {t[3]}, vcc', f'v_cndmask_b32 {t[1]}, 0, {t[1]}, vcc', f'v_mov_b32 {t[0]}, {t[3]}'] + \
        wave_max_u32(t[0], sK0, st) + [f'v_cmp_eq_u32 vcc, {sK0}, {t[3]}', f'v_cndmask_b32 {t[0]}, {t[3]}, {t[1]}, vcc'] + wave_max_u32(t[0], sK1, st)
def round_pairs(x, n):
    L = [f'v_cvt_pk_bf16_f32 {x[i + 1]}, {x[i]}, {x[i + 1]}' for i in range(0, n, 2)]
    for i in range(0, n, 2): L += [f'v_lshlrev_b32 {x[i]}, 16, {x[i + 1]}', f'v_and_b32 {x[i + 1]}, 0xffff0000, {x[i + 1]}']
    return L
def silu_into(g, z, n):
    return [f'v_mul_f32 {g[i]}, {f32(-L2E)}, {z[i]}' for i in range(n)] + [f'v_exp_f32 {g[i]}, {g[i]}' for i in range(n)] + \
           [f'v_add_f32 {g[i]}, 1.0, {g[i]}' for i in range(n)] + [f'v_rcp_f32 {g[i]}, {g[i]}' for i in range(n)] + \
           [f'v_mul_f32 {g[i]}, {g[i]}, {z[i]}' for i in range(n)] + round_pairs(g, n)
def cvt2(dst, acc): return [f'v_cvt_pk_bf16_f32 {dst[0]}, {acc[0]}, {acc[1]}', f'v_cvt_pk_bf16_f32 {dst[1]}, {acc[2]}, {acc[3]}']
def tr_parts(vrow, vphi32, vc, tmp):
    return [f'v_bfe_u32 {tmp}, {vLane}, 2, 2', f'v_and_b32 {vc}, 3, {vLane}', f'v_lshl_add_u32 {vrow}, {vG}, 3, {tmp}', f'v_lshlrev_b32 {vrow}, 7, {vrow}',
            f'v_lshlrev_b32 {vphi32}, 2, {vLane}', f'v_and_b32 {vphi32}, 0x60, {vphi32}']
def save_state(): return (dict(V.used), set(V.taken), dict(S.used), set(S.taken), dict(AG.used), set(AG.taken), list(sST))
def load_state(st):
    V.used, V.taken, S.used, S.taken, AG.used, AG.taken = [x.copy() for x in st[:6]]; sST[:] = st[6]; E.reset()
def write_stamps(who, kind):
    if not STAMPS: return
    E([W('all')] + stamp(True) + ['s_waitcnt lgkmcnt(0)', f's_cmp_lg_u32 {sWv}, {who}', 's_cbranch_scc1 Lend',
       f's_mul_i32 {sT[0]}, s2, 128', f's_add_u32 {sT[0]}, {sT[0]}, {WS_ST}', 's_mov_b64 exec, 1', f'v_mov_b32 {vt[2]}, 0'])
    print(kind, 'stamps', len(sST), file=sys.stderr)
    lk = opt('leak', -1)
    if lk >= 0 and kind == opt('leakk', 'main'):
        Lp = A.newlabel('Lpad')
        E([f's_sub_u32 {sT[1]}, {sST[lk][0]}, {sST[0][0]}', f's_mul_i32 {sT[1]}, {sT[1]}, 5', f's_add_u32 {sT[1]}, {sT[1]}, 3000', ('L', Lp), f's_memrealtime {sT[2:4]}', 's_waitcnt lgkmcnt(0)',
           f's_sub_u32 {sT[2]}, {sT[2]}, {sST[0][0]}', f's_cmp_lt_u32 {sT[2]}, {sT[1]}', f's_cbranch_scc1 {Lp}'])
    for i in range(16):
        j = min(i, len(sST) - 1)
        E([f'v_mov_b32 {vt[0]}, {sST[j][0]}', f'v_mov_b32 {vt[1]}, {sST[j][1]}', f'buffer_store_dwordx2 {vt[0:2]}, {vt[2]}, {sWS}, {sT[0]} offen offset:{8 * i}', 's_nop 1'])
def signal():
    return ['s_mov_b64 exec, 1', f's_lshl_b32 {sT[0]}, s2, 2', f's_add_u32 {sT[0]}, {sT[0]}, {WS_SIG}', f'v_mov_b32 {vt[0]}, {sTag}', f'v_mov_b32 {vt[1]}, {sT[0]}',
            f'buffer_store_dword {vt[0]}, {vt[1]}, {sWS}, 0 offen sc1', 's_mov_b64 exec, -1']

sKA = S.alloc('ka', 16); sKB = S.alloc('kb', 6, 4)
sWS = S.alloc('srdws', 4); sDBG = S.alloc('srddbg', 4)
sWv = S.alloc('wv'); sW = S.alloc('w'); sH = S.alloc('h'); sRB = S.alloc('rb'); sC = S.alloc('c')
sT = S.alloc('t', 4); sTag = S.alloc('tag'); sSpin = S.alloc('spin')
A.raw(f'''; @launch grid=(256,1,1) block=(512,1,1) lds={LDS_BYTES}
.amdgcn_target "amdgcn-amd-amdhsa--gfx950"
.text
.globl {NAME}_kernel
.p2align 8
.type {NAME}_kernel,@function
{NAME}_kernel:''')
vLane = V.alloc('lane'); vG = V.alloc('g'); vTt = V.alloc('t16'); vt = V.alloc('vt', 8); vL4 = V.alloc('lane4'); vL16 = V.alloc('lane16')
pX, pW, pWO, pWR, pWG, pWU, pWD = sKA[0:2], sKA[2:4], sKA[4:6], sKA[8:10], sKA[10:12], sKA[12:14], sKA[14:16]
pOUT, pDBG, pWS = sKB[0:2], sKB[2:4], sKB[4:6]
E([f's_load_dwordx16 {sKA}, s[0:1], 0', f's_load_dwordx4 {sKB[0:4]}, s[0:1], 64', f's_load_dwordx2 {sKB[4:6]}, s[0:1], 80'] + stamp() +
  [f'v_lshrrev_b32 {vt[0]}, 6, v0', f'v_and_b32 {vLane}, 63, v0', 's_cmp_ge_u32 s2, 256', 's_cbranch_scc1 Lend',
   f'v_readfirstlane_b32 {sWv}, {vt[0]}'] + ([] if 'nopf' in OPTS else [
   f's_getpc_b64 {sT[0:2]}', ('L', 'Lpc'), f's_and_b32 {sT[2]}, s2, 0xf8', f'v_add_u32 {vt[1]}, {sT[2]}, {vt[0]}', f'v_and_b32 {vt[2]}, 1, v0', f'v_lshl_add_u32 {vt[1]}, {vt[1]}, 1, {vt[2]}',
   f'v_lshlrev_b32 {vt[1]}, 7, {vt[1]}', f'v_min_u32 {vt[1]}, Lend-Lpc, {vt[1]}', f'v_mov_b32 {vt[3]}, {sT[1]}', f'v_add_co_u32 {vt[2]}, vcc, {sT[0]}, {vt[1]}',
   f'v_addc_co_u32 {vt[3]}, vcc, 0, {vt[3]}, vcc', f'global_load_dword v0, {vt[2:4]}, off']) + [f'v_lshrrev_b32 {vG}, 4, {vLane}', f'v_and_b32 {vTt}, 15, {vLane}',
   f'v_lshlrev_b32 {vL4}, 2, {vLane}', f'v_lshlrev_b32 {vL16}, 4, {vLane}', f's_mov_b32 {sSpin}, 200000',
   f's_and_b32 {sT[0]}, s2, 7', f's_lshr_b32 {sT[1]}, s2, 3', f's_and_b32 {sT[2]}, {sT[0]}, 1', f's_lshr_b32 {sT[0]}, {sT[0]}, 1', f's_add_u32 {sT[3]}, {sT[2]}, 4',
   f's_and_b32 {sW}, {sWv}, 3', f's_lshr_b32 {sH}, {sWv}, 2',
   f's_cmp_lt_u32 {sT[1]}, {sT[3]}', 's_cbranch_scc1 Laux'])
st_common = save_state()
def get_tag():
    return mk_srd(sWS, pWS, 0x10000000, opt('wsoff', 0) << 20) + mk_srd(sDBG, pDBG, 256) + [f's_load_dword {sTag}, {sWS[0:2]}, 0']
def fin_tag(): return [f's_add_u32 {sTag}, {sTag}, 0x9e3779b8', f's_or_b32 {sTag}, {sTag}, 1']
if opt('map', 1) == 0:
    E([f's_mul_i32 {sT[0]}, {sT[0]}, 55', f's_mul_i32 {sT[2]}, {sT[2]}, 28', f's_add_u32 {sT[0]}, {sT[0]}, {sT[2]}', f's_add_u32 {sT[0]}, {sT[0]}, {sT[1]}',
       f's_sub_u32 {sT[0]}, {sT[0]}, {sT[3]}', f's_mul_i32 {sRB}, {sT[0]}, 6554', f's_lshr_b32 {sRB}, {sRB}, 16', f's_mul_i32 {sT[1]}, {sRB}, 10', f's_sub_u32 {sC}, {sT[0]}, {sT[1]}'])
else:
    E([f's_lshr_b32 {sC}, {sT[0]}, 1', f's_and_b32 {sT[0]}, {sT[0]}, 1',
       f's_mul_i32 {sT[0]}, {sT[0]}, 55', f's_mul_i32 {sT[2]}, {sT[2]}, 28', f's_add_u32 {sT[0]}, {sT[0]}, {sT[2]}', f's_add_u32 {sT[0]}, {sT[0]}, {sT[1]}',
       f's_sub_u32 {sT[0]}, {sT[0]}, {sT[3]}', f's_mul_i32 {sRB}, {sT[0]}, 13108', f's_lshr_b32 {sRB}, {sRB}, 16', f's_mul_i32 {sT[1]}, {sRB}, 5', f's_sub_u32 {sT[0]}, {sT[0]}, {sT[1]}',
       f's_mul_i32 {sC}, {sC}, 5', f's_add_u32 {sC}, {sC}, {sT[0]}'])
sCC = S.alloc('cc'); sU = S.alloc('U'); sS0 = S.alloc('s0')
RA, RB_, RC = opt('ra', 2), opt('rb', 2), opt('rc', 0)
E([f's_mul_i32 {sS0}, {sC}, {RA}', f's_mul_i32 {sT[0]}, {sRB}, {RB_}', f's_add_u32 {sS0}, {sS0}, {sT[0]}', f's_mul_i32 {sT[0]}, {sRB}, {RC}', f's_lshr_b32 {sT[0]}, {sT[0]}, 16', f's_add_u32 {sS0}, {sS0}, {sT[0]}',
   f's_mul_i32 {sT[0]}, {sS0}, 6554', f's_lshr_b32 {sT[0]}, {sT[0]}, 16', f's_mul_i32 {sT[0]}, {sT[0]}, 10', f's_sub_u32 {sS0}, {sS0}, {sT[0]}'])
def sel_cc(dst, tab):
    L = [f's_mov_b32 {dst}, {tab[0]:#x}']
    for cc in range(1, 5): L += [f's_cmp_eq_u32 {sCC}, {cc}', f's_cselect_b32 {dst}, {tab[cc]:#x}, {dst}']
    return L
calc_cc = [f's_sub_u32 {sT[0]}, {sC}, 5', f's_cmp_ge_u32 {sC}, 5', f's_cselect_b32 {sCC}, {sT[0]}, {sC}'] + sel_cc(sU, UT)
vOnes = V.alloc('ones', 4); vrow = V.alloc('trrow'); vPhi = V.alloc('phi32'); vWr = V.alloc('wr', 8)
def calc_wr(secoff):
    vc = vt[4]
    L = tr_parts(vrow, vPhi, vc, vt[3]) + [f'v_lshlrev_b32 {vt[6]}, 1, {vc}', f'v_add_u32 {vt[5]}, {secoff}, {vrow}']
    for t in range(4):
        L += [f'v_add_u32 {vt[7]}, {8 * t}, {vt[6]}', f'v_bfe_u32 {vt[7]}, {sU}, {vt[7]}, 2', f'v_lshl_add_u32 {vt[7]}, {vt[7]}, 2, {vc}', f'v_lshlrev_b32 {vt[7]}, 3, {vt[7]}',
              f'v_xad_u32 {vWr[t]}, {vt[7]}, {vPhi}, {vt[5]}']
    return L + [f'v_add_u32 {vWr[4 + t]}, {2 * SLOT}, {vWr[t]}' for t in range(4)]
def trs(dst, areg, off, tag): return [(f'ds_read_b64_tr_b16 {dst[2 * h:2 * h + 2]}, {areg} offset:{off + h * 512}', tag) for h in range(2)]
def cnt_arrive(addr, va, vb): return [f'v_mov_b32 {va}, {addr}', f'v_mov_b32 {vb}, 1', 's_mov_b64 exec, 1', f'ds_add_u32 {va}, {vb}', 's_mov_b64 exec, -1']
def cnt_wait(n, va, vb):
    L = A.newlabel('Lcw')
    return [('L', L)] + spin_guard() + [f'ds_read_b32 {vb}, {va}', W(lg='all'), f'v_readfirstlane_b32 {sT[2]}, {vb}', f's_cmp_lt_u32 {sT[2]}, {n}', f's_cbranch_scc1 {L}']
set_ones = [f'v_mov_b32 {vOnes[i]}, 0x3f803f80' for i in range(4)]
E([f's_cmp_lg_u32 {sWv}, 0', 's_cbranch_scc1 Lcomp'])
st_main = save_state()
pos_comp = len(A.lines)
A.label('Lcomp')

sTau = S.alloc('tau'); sOUT = S.alloc('srdout', 4)
acc = V.alloc('acc', 32); B1 = V.alloc('B1', 16); B2 = V.alloc('B2', 16); B3 = V.alloc('B3', 16)
vXb = V.alloc('xb', 8); vPM = V.alloc('pm', 4); vSt = V.alloc('st', 4); vVr = B2[8:12]
vXe = V.alloc('xea'); vEx = V.alloc('exa'); vScB = V.alloc('scb'); vSc = [vSt[3], vScB]
vXr = B2[0:8]; accV = B1
sVx = S.alloc('vx')
E([f's_lshl_b32 {sTau}, {sW}, 1', f's_add_u32 {sTau}, {sTau}, {sH}'] + calc_cc + [f's_lshl_b32 {sT[1]}, {sH}, 13', f's_cmp_eq_u32 {sTau}, 1', f's_cselect_b32 {sT[1]}, 0, {sT[1]}'] + calc_wr(sT[1]))
E([f'v_lshrrev_b32 {vt[6]}, 1, {vTt}', f'v_xor_b32 {vt[5]}, {vt[6]}, {vG}', f'v_lshlrev_b32 {vt[5]}, 4, {vt[5]}', f'v_lshl_add_u32 {vt[5]}, {vTt}, 7, {vt[5]}',
   f's_lshl_b32 {sT[0]}, {sTau}, 11', f's_xor_b32 {sT[2]}, {sT[0]}, 2048', f's_add_u32 {sT[0]}, {sT[0]}, {XOFF - 2048}', f's_add_u32 {sT[2]}, {sT[2]}, {XOFF - 2048}',
   f'v_add_u32 {vXr[0]}, {sT[0]}, {vt[5]}', f'v_add_u32 {vXr[2]}, {sT[2]}, {vt[5]}',
   f's_mul_i32 {sT[3]}, {sW}, 6144', f's_add_u32 {sT[3]}, {sT[3]}, {EXB - 4096}', f'v_add_u32 {vEx}, {sT[3]}, {vL16}',
   f's_lshl_b32 {sVx}, {sTau}, 11', f's_add_u32 {sVx}, {sVx}, {VXB - 2048}',
   's_waitcnt lgkmcnt(0)'] + get_tag() + [f's_cmp_eq_u32 {sTau}, 1', 's_cbranch_scc1 Lhalo'])
st_halo = save_state()
E([f'v_xor_b32 {vXr[1]}, 64, {vXr[0]}', f'v_xor_b32 {vXr[3]}, 64, {vXr[2]}'] + [f'v_add_u32 {vXr[4 + j]}, {2 * SLOT}, {vXr[j]}' for j in range(4)] +
  [f's_cmp_eq_u32 {sH}, 0', 's_cselect_b64 vcc, 0, -1', f's_sub_u32 {sT[1]}, {VOFF}, {sT[1]}', f'v_cndmask_b32 {vVr[0]}, {vWr[0]}, {vWr[2]}, vcc', f'v_cndmask_b32 {vVr[1]}, {vWr[1]}, {vWr[3]}, vcc',
   f'v_add_u32 {vVr[0]}, {sT[1]}, {vVr[0]}', f'v_add_u32 {vVr[1]}, {sT[1]}, {vVr[1]}', f'v_add_u32 {vVr[2]}, {2 * SLOT}, {vVr[0]}', f'v_add_u32 {vVr[3]}, {2 * SLOT}, {vVr[1]}',
   f'v_lshrrev_b32 {vt[4]}, 1, {vG}', f'v_xor_b32 {vt[4]}, {vt[4]}, {vt[6]}', f'v_lshlrev_b32 {vt[4]}, 4, {vt[4]}', f'v_lshl_add_u32 {vt[4]}, {vTt}, 7, {vt[4]}',
   f'v_and_b32 {vt[3]}, 1, {vG}', f'v_lshl_add_u32 {vXe}, {vt[3]}, 3, {vt[4]}', f's_sub_u32 {sS0}, {sC}, {sS0}', f's_add_u32 {sT[2]}, {sS0}, 10', f's_cmp_lt_i32 {sS0}, 0', f's_cselect_b32 {sS0}, {sT[2]}, {sS0}',
   f's_and_b32 {sT[2]}, {sS0}, 3', f's_mul_i32 {sT[2]}, {sT[2]}, {SLOT}', f's_add_u32 {sT[2]}, {sT[2]}, {sT[0]}', f'v_add_u32 {vt[0]}, {sT[2]}, {vXe}',
   f'v_xor_b32 {vt[1]}, 32, {vt[0]}', f'v_xor_b32 {vt[2]}, 64, {vt[0]}', f'v_xor_b32 {vt[3]}, 0x60, {vt[0]}'] + mk_srd(sOUT, pOUT, 2048 * 1280) + set_ones)
S.free('ka', 'kb')
sSL = S.alloc('SL'); sM = {}
E(sel_cc(sSL, SLT))
for t in (1, 2):
    E([f'v_lshlrev_b32 {vt[6]}, 1, {vG}', f'v_add_u32 {vt[6]}, {8 * t}, {vt[6]}', f'v_bfe_u32 {vt[6]}, {sSL}, {vt[6]}, 2'])
    for sl in (0, 3, t):
        sM[(sl, t)] = S.alloc(f'm{sl}{t}', 2); E(f'v_cmp_eq_u32 {sM[(sl, t)]}, {sl}, {vt[6]}')
S.free('SL', 'U')
def lmask(f): return sum(1 << l for l in range(64) if f(l >> 4, l & 15))
MCA = lmask(lambda g, t: t - 4 * g - (t & 1) >= 0); MCB = lmask(lambda g, t: t - 4 * g - 2 - (t & 1) >= 0)
sK1 = S.alloc('k1', 2); sCA = S.alloc('ca', 2); sCB = S.alloc('cb', 2); sFirst = S.alloc('first')
sOb = S.alloc('ob', 5, 1); sOst = S.alloc('ost'); sFl = S.alloc('fl'); sSx = S.alloc('ssx', 3, 1); sNb = S.alloc('nb', 2, 1); sCs = S.alloc('cscale')
vRka = B3[0:2]; vSa = B3[2]; vCa = B3[3]; vQf = B3[4]
E([f's_mov_b32 {sK1[0]}, 0xaaaaaaaa', f's_mov_b32 {sK1[1]}, 0xaaaaaaaa',
   f's_mov_b32 {sCA[0]}, {MCA & 0xffffffff:#x}', f's_mov_b32 {sCA[1]}, {MCA >> 32:#x}', f's_mov_b32 {sCB[0]}, {MCB & 0xffffffff:#x}', f's_mov_b32 {sCB[1]}, {MCB >> 32:#x}',
   f'v_mov_b32 {vt[4]}, 0xffff', f'v_not_b32 {vt[5]}, {vt[4]}', f'v_cndmask_b32 {vt[4]}, {vt[4]}, {vt[5]}, {sK1}',
   f'v_cndmask_b32 {vPM[2]}, 0, {vt[4]}, {sCA}', f'v_cndmask_b32 {vPM[3]}, 0, {vt[4]}, {sCB}', f'v_xor_b32 {vPM[0]}, {vPM[2]}, {vt[4]}', f'v_xor_b32 {vPM[1]}, {vPM[3]}, {vt[4]}',
   f's_cmp_eq_u32 {sRB}, 0', f's_cselect_b32 {sT[0]}, {sTau}, 0', f's_cmp_eq_u32 {sT[0]}, 2', f's_cselect_b32 {sFirst}, {NEG_INF}, 0',
   f's_mul_i32 {sT[0]}, {sRB}, 6', f's_add_u32 {sT[0]}, {sT[0]}, {sTau}', f's_sub_u32 {sT[0]}, {sT[0]}, 2', f's_lshl_b32 {sFl}, {sT[0]}, 7', f's_add_u32 {sFl}, {sFl}, {WS_FL}',
   f's_mul_i32 {sOb[0]}, {sT[0]}, 20480', f's_add_u32 {sOb[0]}, {sOb[0]}, {WS_O}', f's_lshl_b32 {sT[0]}, {sC}, 11', f's_add_u32 {sOst}, {sT[0]}, {sOb[0]}'] +
  [f's_add_u32 {sOb[i]}, {sOb[0]}, {4096 * i}' for i in range(1, 5)] +
  [f's_mul_i32 {sT[0]}, {sRB}, 10', f's_add_u32 {sT[0]}, {sT[0]}, {sC}', f's_mul_i32 {sSx[0]}, {sT[0]}, 6144', f's_lshl_b32 {sT[0]}, {sTau}, 10', f's_add_u32 {sSx[0]}, {sSx[0]}, {sT[0]}',
   f's_add_u32 {sSx[0]}, {sSx[0]}, {WS_SX - 2048}', f's_sub_u32 {sSx[1]}, {sSx[0]}, 6144', f's_add_u32 {sSx[2]}, {sSx[0]}, 6144',
   f's_cmp_eq_u32 {sCC}, 0', f's_cselect_b32 {sNb[0]}, 0, -1', f's_cmp_eq_u32 {sCC}, 4', f's_cselect_b32 {sNb[1]}, 0, -1', f's_lshl_b32 {sT[0]}, {sC}, 2', f'v_mov_b32 {B3[5]}, {sT[0]}',
   f's_mov_b32 {sCs}, {f32(SCALE_L2E)}',
   f's_lshl_b32 {sT[0]}, {sTau}, 6', f's_add_u32 {sT[0]}, {sT[0]}, {L_M}', f'v_lshl_add_u32 {vSa}, {vTt}, 2, {sT[0]}',
   f'v_and_b32 {vt[4]}, 1, {vLane}', f'v_lshl_add_u32 {vt[4]}, {vG}, 2, {vt[4]}', f'v_lshl_add_u32 {vt[4]}, {vt[4]}, 2, {sT[0]}', f'v_subrev_u32 {vt[5]}, 64, {vt[4]}',
   f'v_cndmask_b32 {vRka[0]}, {vt[5]}, {vt[4]}, {sCA}', f'v_cndmask_b32 {vRka[1]}, {vt[5]}, {vt[4]}, {sCB}',
   f'v_lshlrev_b32 {vCa}, 4, {vG}', f's_lshl_b32 {sT[0]}, {sH}, 8', f's_add_u32 {sT[0]}, {sT[0]}, {L_CS}', f'v_add_u32 {vCa}, {sT[0]}, {vCa}', f'v_mov_b32 {vQf}, {L_QF}'] +
  [f'v_mov_b32 {B3[8 + i]}, -1' for i in range(4)])
XK = AG.alloc('XK', 16 * ND); XT = AG.alloc('XT', 16); F = [AG.alloc('F0', 24), AG.alloc('F1', 24)]
AALL = Reg('a', 0, 128)
def XF(s, kk, pos):
    if s < NI: return XT[8 * kk + 4 * pos:8 * kk + 4 * pos + 4]
    b = (s - NI) * 16 + 8 * kk + 4 * pos; return XK[b:b + 4]
def sw(s): return (s % NSL) // 2
def so(s): return (s % 2) * SLOT
def v_reads(s, kk, fb, tag): return [x for i in range(2) for x in trs(fb[4 * i:4 * i + 4], vVr[2 * sw(s) + i], so(s) + kk * 4096, tag)]
def p1_reads(s, kk):
    L = [(f'ds_read_b128 {XF(s, kk, pos)}, {vXr[4 * sw(s) + 2 * pos + kk]} offset:{so(s)}', ('r', s, kk, 0)) for pos in range(2)]
    for t in range(4): L += trs(F[kk][4 * t:4 * t + 4], vWr[4 * sw(s) + t], so(s) + kk * 4096, ('r', s, kk, t))
    if s < NI:
        for i in range(2): L += trs(F[kk][16 + 4 * i:20 + 4 * i], vVr[2 * sw(s) + i], so(s) + kk * 4096, ('r', s, kk, 4 + i))
    return L
def v_mfmas(s, kk, fb):
    z = (s == 0 and kk == 0)
    return [f'{MFMA} {accV[8 * pos + 4 * i:8 * pos + 4 * i + 4]}, {XF(s, kk, pos)}, {fb[4 * i:4 * i + 4]}, {0 if z else accV[8 * pos + 4 * i:8 * pos + 4 * i + 4]}' for i in range(2) for pos in range(2)]
def p1_mfmas(s, kk, waits=True):
    z = (s == 0 and kk == 0); L = []
    for t in range(4):
        for pos in range(2):
            a = acc[pos * 16 + 4 * t:pos * 16 + 4 * t + 4]
            L.append(f'{MFMA} {a}, {F[kk][4 * t:4 * t + 4]}, {XF(s, kk, pos)}, {0 if z else a}')
    if s < NI: L += v_mfmas(s, kk, F[kk][16:24])
    if waits: L = [[W(lg=('r', s, kk, i // 2)), m] if i % 2 == 0 else m for i, m in enumerate(L)]
    return L
def mix(m, r):
    if opt('mix', 1) == 0: return merge(m, r, 1, 2)
    k = len(m) - opt('mixt', 2)
    return spread(m[:k], r) + m[k:]
E(stamp())
p1_start = len(A.lines)
CLR = [int(x) for x in opt('clr', '2,4,6').split(',')]
clr_st = [(f'buffer_store_dwordx4 {B3[8:12]}, {vL16}, {sWS}, {sSx[0]} offen sc1', 'clr')] + [(f'buffer_store_dwordx4 {B3[8:12]}, {vL16}, {sWS}, {sOst} offen offset:{1024 * i} sc1', 'clr') for i in range(2)]
for s in range(10):
    A.comment(f'pass1 unit {s}')
    if s in (0, 9): E(W(lg='all'))
    E('s_barrier')
    if s == 0:
        E(stamp() + p1_reads(0, 0) + fin_tag())
    else:
        E(mix(p1_mfmas(s - 1, 1), p1_reads(s, 0)))
    for i in range(3):
        if s == CLR[i]: E(clr_st[i])
    if s == opt('flg', 9): E([f'v_mov_b32 {B3[6]}, {sTag}', W('clr'), 's_mov_b64 exec, 1', f'buffer_store_dword {B3[6]}, {B3[5]}, {sWS}, {sFl} offen sc1', 's_mov_b64 exec, -1'])
    E([f's_cmp_lg_u32 {sS0}, {s}', f's_cbranch_scc1 Lxe{s}'] + [('R', f'ds_read_b64 {vXb[2 * n:2 * n + 2]}, {vt[n]}') for n in range(4)] + [('L', f'Lxe{s}')])
    rd = p1_reads(s, 1)
    if s == 9:
        rd += [f'ds_read_b32 {vSt[0]}, {vSa}', f'ds_read_b32 {vSt[1]}, {vSa} offset:512', f'v_xor_b32 {vSa}, 64, {vSa}', f'ds_read_b32 {vSt[2]}, {vSa}',
               f'ds_read_b32 {vSc[0]}, {vRka[0]} offset:512', f'ds_read_b32 {vSc[1]}, {vRka[1]} offset:520'] + [f'v_mov_b32 {vWr[4 + i]}, {vVr[i]}' for i in range(4)]
    E(mix(p1_mfmas(s, 0), rd))
vVr = vWr[4:8]
def drop(pred): A.lines[p1_start:] = [l for l in A.lines[p1_start:] if not (l[0] == 'i' and pred(l[1]))]
if 'nomfma' in OPTS: drop(lambda t: t.startswith('v_mfma'))
if 'nords' in OPTS: drop(lambda t: t.startswith('ds_read'))
vCS = B2; vQ8 = acc[0:8]; vK16 = acc[16:32]
lastm = p1_mfmas(9, 1, False)
cs_reads = [f'ds_read_b32 {vt[3]}, {vQf}'] + [f'ds_read_b128 {vCS[4 * t:4 * t + 4]}, {vCa} offset:{64 * t}' for t in range(4)]
E([W(lg=('r', 9, 1, 3))] + lastm[1::2] + lastm[0::2][:2] + cs_reads + lastm[0::2][2:] + stamp())
E([W(lg='all'), ('L', 'Lqf'), f'v_readfirstlane_b32 {sT[2]}, {vt[3]}', f's_cmp_eq_u32 {sT[2]}, 0', 's_cbranch_scc1 Lqf_re'] + stamp())
def fix_qk(dst, a16, negm):
    L = []
    for t in range(4):
        L += [f'v_fmac_f32 {a16[4 * t + i]}, {vCS[4 * t + i]}, {negm}' for i in range(4)] + cvt2(dst[2 * t:2 * t + 2], a16[4 * t:4 * t + 4])
    return L
E([f's_cmp_eq_u32 {sH}, 0'] + fix_qk(vK16[0:8], acc[16:32], vSt[2]) + ['s_cbranch_scc0 Lh1'])
for h in range(2):
    if h: A.label('Lh1')
    E.lg = []
    E([f'ds_write_b128 {vEx}, {vK16[4 * i:4 * i + 4]} offset:{h * 2048 + i * 1024}' for i in range(2)])
    if h == 1: E(fix_qk(vK16[8:16], acc[0:16], vSt[0]) + [f'ds_write_b128 {vEx}, {vK16[8 + 4 * i:12 + 4 * i]} offset:{4096 + i * 1024}' for i in range(2)])
    E(cnt_arrive(L_C2, vt[1], vt[2]))
    if h == 0: E(fix_qk(vQ8, acc[0:16], vSt[0]) + [f'v_subrev_u32 {vt[0]}, 6144, {vEx}'])
    E([f'v_mov_b32 {vt[4 + i]}, {sFirst}' for i in range(4)] + cnt_wait(8, vt[1], vt[2]))
    if h == 0:
        E([f'ds_read_b128 {vK16[8 + 4 * i:12 + 4 * i]}, {vEx} offset:{2048 + i * 1024}' for i in range(2)] +
          [f'ds_read_b128 {vK16[4 * i:4 * i + 4]}, {vt[0]} offset:{4096 + i * 1024}' for i in range(2)] + ['s_branch Lh_join'])
    else:
        E([f'ds_read_b128 {vQ8[4 * i:4 * i + 4]}, {vEx} offset:{i * 1024}' for i in range(2)])
A.label('Lh_join')
E.lg = ['ex']
VF = Reg('a', XT.base, 64)
def tail_reads(k): return v_reads(NI + k // 2, k % 2, VF[8 * k:8 * k + 8], ('v', k))
E([(f'buffer_load_dword {vWr[0]}, {vL4}, {sWS}, {sFl} offen sc1', 'fl')] + tail_reads(0) + tail_reads(1) + [W(lg='ex')] + stamp())
vQ = B3
def QO(sl): return vQ[sl * 4:sl * 4 + 4]
KO = {1: 0, 0: 2, 3: 2, 2: 4}
def SA(sl, pc): return {0: vCS[0:8], 3: vCS[8:16], 1: acc[8:16], 2: vCS[0:8]}[sl][pc * 4:pc * 4 + 4]
def s_mfma(sl): return [f'{MFMA} {SA(sl, pc)}, {vK16[8 * pc + KO[sl]:8 * pc + KO[sl] + 4]}, {QO(sl)}, {0 if pc else vt[4:8]}' for pc in range(2)]
def mrg(sl):
    p = SA(sl, 0); c = SA(sl, 1); d = QO(sl)
    return [f'v_cndmask_b32 {p[0]}, {p[0]}, {p[1]}, {sK1}', f'v_cndmask_b32 {c[0]}, {c[0]}, {c[1]}, {sK1}', f'v_cndmask_b32 {p[2]}, {p[2]}, {p[3]}, {sK1}',
            f'v_cndmask_b32 {c[2]}, {c[2]}, {c[3]}, {sK1}', f'v_cndmask_b32 {d[0]}, {p[0]}, {c[0]}, {sCA}', f'v_cndmask_b32 {d[2]}, {p[2]}, {c[2]}, {sCB}']
def qmask(sl): return [f'v_cndmask_b32 {QO(sl)[i]}, 0, {vQ8[2 + i]}, {sM[(sl, 1 + i // 2)]}' for i in range(4)]
q1 = [f'v_mov_b32 {QO(1)[0]}, {vQ8[0]}', f'v_mov_b32 {QO(1)[1]}, {vQ8[1]}'] + [f'v_cndmask_b32 {QO(1)[2 + i]}, 0, {vQ8[2 + i]}, {sM[(1, 1)]}' for i in range(2)]
q2 = [f'v_cndmask_b32 {QO(2)[i]}, 0, {vQ8[4 + i]}, {sM[(2, 2)]}' for i in range(2)] + [f'v_mov_b32 {QO(2)[2]}, {vQ8[6]}', f'v_mov_b32 {QO(2)[3]}, {vQ8[7]}']
def pub(sl, d): return mrg(sl) + [f'v_min_u32 {vt[2 * d + j]}, -2, {QO(sl)[2 * j]}' for j in range(2)]
vFl = vWr[0]
fl_load = (f'buffer_load_dword {vFl}, {vL4}, {sWS}, {sFl} offen sc1', 'fl')
E(['s_setprio 2'] + qmask(0) + qmask(3)[:2] + s_mfma(0) + qmask(3)[2:] + q1[:2] + s_mfma(3) + q1[2:] + q2[:2] + s_mfma(1) + pub(0, 0) + pub(3, 1) + [f'buffer_store_dwordx4 {vt[0:4]}, {vL16}, {sWS}, {sSx[0]} offen sc1', 's_setprio 0'])
E(stamp())
def softmax(sls):
    n = len(sls); mx = [vt[i] for i in range(n)]; tp = [vt[2 + i] for i in range(n)]
    L = []
    for sl in sls: L += [f'v_mul_f32 {QO(sl)[2 * j]}, {QO(sl)[2 * j]}, {vSc[j]}' for j in range(2)]
    L += [f'v_max_f32 {mx[i]}, {QO(sl)[0]}, {QO(sl)[2]}' for i, sl in enumerate(sls)]
    for sw_ in ('v_permlane32_swap_b32', 'v_permlane16_swap_b32'):
        L += [f'v_mov_b32 {tp[i]}, {mx[i]}' for i in range(n)] + [f'{sw_} {mx[i]}, {tp[i]}' for i in range(n)] + [f'v_max_f32 {mx[i]}, {mx[i]}, {tp[i]}' for i in range(n)]
    for i, sl in enumerate(sls): L += [f'v_sub_f32 {QO(sl)[j]}, {QO(sl)[j]}, {mx[i]}' for j in (0, 2)]
    for sl in sls: L += [f'v_exp_f32 {QO(sl)[j]}, {QO(sl)[j]}' for j in (0, 2)]
    for sl in sls: d = QO(sl); L += [f'v_cvt_pk_bf16_f32 {d[0]}, {d[0]}, {d[0]}', f'v_cvt_pk_bf16_f32 {d[1]}, {d[2]}, {d[2]}']
    for sl in sls: d = QO(sl); L += [f'v_and_b32 {d[2]}, {d[0]}, {vPM[2]}', f'v_and_b32 {d[3]}, {d[1]}, {vPM[3]}', f'v_and_b32 {d[0]}, {d[0]}, {vPM[0]}', f'v_and_b32 {d[1]}, {d[1]}, {vPM[1]}']
    return L
def gate_calc(xb, xn, g, upd=None):
    n = 2 * xb.n; L = []
    for i in range(n // 2): L += [f'v_lshlrev_b32 {xn[2 * i]}, 16, {xb[i]}', f'v_and_b32 {xn[2 * i + 1]}, 0xffff0000, {xb[i]}']
    L += [f'v_add_f32 {xn[i]}, {xn[i]}, {vSt[0]}' for i in range(n)] + round_pairs(xn, n) + [f'v_mul_f32 {xn[i]}, {xn[i]}, {vSt[1]}' for i in range(n)] + round_pairs(xn, n)
    if upd is not None: L += [W(lg='all')] + [f'v_add_f32 {xn[i]}, {xn[i]}, {upd[i]}' for i in range(n)] + round_pairs(xn, n)
    return L + silu_into(g, xn, n)[:-n]
fill = q2[2:] + [f'v_mul_f32 {vt[0]}, {sCs}, {vSt[1]}'] + s_mfma(2) + [f'v_mul_f32 {vSc[j]}, {vSc[j]}, {vt[0]}' for j in range(2)] + mrg(1) + mrg(2) + softmax([1, 2])
vRx = acc[24:32]; vNm = acc[0:16]; vCv = acc[16:18]; vCf = acc[18]; vAd = acc[20:24]
def rx_loads(): return [(f'buffer_load_dwordx2 {vRx[2 * d:2 * d + 2]}, {vL16}, {sWS}, {sSx[1 + d]} offen offset:{8 - 8 * d} sc1', 'rx') for d in range(2)]
vprep = [f's_lshl_b32 {sT[0]}, {sTau}, 6', f's_add_u32 {sT[0]}, {sT[0]}, {L_M}', f'v_lshl_add_u32 {vAd[0]}, {vG}, 4, {sT[0]}', f'v_xor_b32 {vAd[1]}, 64, {vAd[0]}'] + \
        [f'ds_read_b128 {vNm[8 * pos + 4 * q:8 * pos + 4 * q + 4]}, {vAd[pos]} offset:{512 * q}' for pos in range(2) for q in range(2)] + \
        [f's_lshl_b32 {sT[0]}, {sH}, 3', f's_add_u32 {sT[0]}, {sT[0]}, {L_CSV}', f'v_lshl_add_u32 {vAd[0]}, {vTt}, 4, {sT[0]}', f'v_mov_b32 {vAd[1]}, {L_CSF}',
         f'v_lshl_add_u32 {vEx}, {vLane}, 3, {sVx}', f's_lshl_b32 {sT[0]}, {sH}, 10', f'v_add_u32 {vAd[2]}, {sT[0]}, {vEx}',
         f's_lshl_b32 {sT[1]}, {sH}, 12', f's_sub_u32 {sT[1]}, 2048, {sT[1]}', f'v_add_u32 {vAd[3]}, {sT[1]}, {vAd[2]}', f'v_subrev_u32 {vEx}, 2048, {vEx}']
NK = 2 * ND; KF = opt('kf', 6); KR = opt('kr', 7)
for k in range(2, NK): E(tail_reads(k))
for k in range(NK):
    cnt = -(-len(fill) // (KF - k)) if k < KF else 0
    f = fill[:cnt]; fill = fill[cnt:]
    if k == KF: f = vprep
    if k == KR: E([W('fl'), ('L', 'Lfl_chk'), f'v_cmp_eq_u32 vcc, {sTag}, {vFl}', f's_and_b32 {sT[0]}, vcc_lo, 0x3ff', f's_cmp_lg_u32 {sT[0]}, 0x3ff', 's_cbranch_scc1 Lfl_re'] + rx_loads())
    E([W(lg=('v', k))] + spread(v_mfmas(NI + k // 2, k % 2, VF[8 * k:8 * k + 8]), f))
csv_reads = [f'ds_read_b32 {vCf}, {vAd[1]}', f'ds_read_b64 {vCv}, {vAd[0]}']
E(stamp() + csv_reads + [W(lg='all'), ('L', 'Lcsv'), f'v_readfirstlane_b32 {sT[2]}, {vCf}', f's_cmp_eq_u32 {sT[2]}, 0', 's_cbranch_scc1 Lcsv_re'])
def vfix(a, nm, cv, areg, off):
    return [f'v_fmac_f32 {a[i]}, {nm[i]}, {cv}' for i in range(4)] + [f'v_mul_f32 {a[i]}, {a[i]}, {nm[4 + i]}' for i in range(4)] + cvt2(a[0:2], a) + [f'ds_write_b64 {areg}, {a[0:2]} offset:{off}']
for pos in range(2):
    for i in range(2): E(vfix(accV[8 * pos + 4 * i:8 * pos + 4 * i + 4], vNm[8 * pos:8 * pos + 8], vCv[i], vAd[2 + pos], 512 * i))
E(cnt_arrive(L_C3, vt[4], vt[5]) + [W('rx'), ('L', 'Lrx_chk')])
E([f'v_and_b32 {vRx[i]}, {sNb[i // 2]}, {vRx[i]}' for i in range(4)] + [f'v_max3_u32 {vt[0]}, {vRx[0]}, {vRx[1]}, {vRx[2]}', f'v_max_u32 {vt[0]}, {vt[0]}, {vRx[3]}',
   f'v_cmp_eq_u32 vcc, -1, {vt[0]}', 's_cbranch_vccnz Lrx_re'] + stamp())
E([f'v_add_f32 {QO(sl)[2 * j]}, {QO(sl)[2 * j]}, {vRx[2 * d + j]}' for d, sl in ((0, 0), (1, 3)) for j in range(2)])
E(['s_setprio 2'] + cnt_wait(7, vt[4], vt[5]) + stamp())
vV = accV
E([(f'ds_read2st64_b64 {vV[4 * t:4 * t + 4]}, {vEx} offset0:{t} offset1:{t + 4}', 'vp') for t in range(4)])
vO = acc; vSum = vCS
PVL = [(0, 1), (1, 1), (2, 2), (3, 2), (1, 0), (2, 0), (1, 3), (2, 3)]
def OO(t, sl): b = PVL.index((t, sl)) * 4; return vO[b:b + 4]
def SM(sl): return vSum[4 * sl:4 * sl + 4]
def pv(sls): return [f'{MFMA} {SM(sl)}, {vOnes}, {QO(sl)}, 0' for sl in sls] + [f'{MFMA} {OO(t, sl)}, {vV[4 * t:4 * t + 4]}, {QO(sl)}, 0' for (t, sl) in PVL if sl in sls]
ch = softmax([0, 3])
E(ch[:12]); E(W(lg='vp')); E(spread(ch[12:], pv([1, 2])))
vOst = vt
def onorm(t, o, rc): return [f'v_mul_f32 {o[i]}, {o[i]}, {rc}' for i in range(4)] + cvt2(vOst[2 * t:2 * t + 2], o) + [f'v_min_u32 {vOst[2 * t + i]}, -2, {vOst[2 * t + i]}' for i in range(2)]
E(spread(pv([0, 3]), [f'v_rcp_f32 {SM(sl)[0]}, {SM(sl)[0]}' for sl in (1, 2)] + onorm(0, OO(0, 1), SM(1)[0])) + onorm(3, OO(3, 2), SM(2)[0]) + [f'v_rcp_f32 {SM(sl)[0]}, {SM(sl)[0]}' for sl in (0, 3)])
for t in (1, 2):
    d = OO(t, t); rc = SM(t)[2]
    E([f'v_cndmask_b32 {rc}, {SM(t)[0]}, {SM(0)[0]}, {sM[(0, t)]}', f'v_cndmask_b32 {rc}, {rc}, {SM(3)[0]}, {sM[(3, t)]}'])
    for sl in (0, 3): E([f'v_cndmask_b32 {d[r]}, {d[r]}, {OO(t, sl)[r]}, {sM[(sl, t)]}' for r in range(4)])
    E(onorm(t, d, rc) + [f'buffer_store_dwordx4 {vOst[4 * (t - 1):4 * t]}, {vL16}, {sWS}, {sOst} offen offset:{(t - 1) * 1024} sc1'])
E(stamp())
PK = AALL[0:16]
E(['s_setprio 0'] + gate_calc(vXb, acc[0:16], acc[16:32]) + [f'v_accvgpr_write_b32 {PK[i]}, {acc[17 + 2 * i]}' for i in range(8)] + [f'v_accvgpr_write_b32 {PK[8 + i]}, {vXb[i]}' for i in range(8)])
E([f'v_and_b32 {vt[2]}, 3, {vLane}', f'v_lshl_add_u32 {vt[2]}, {vt[2]}, 3, {vPhi}', f'v_add_u32 {vWr[0]}, {vt[2]}, {vrow}'] +
  [f'v_xor_b32 {vWr[t]}, {32 * t}, {vWr[0]}' for t in (1, 2, 3)] + [f'v_add_u32 {vWr[4 + t]}, {OWIN[1]}, {vWr[t]}' for t in range(4)])
FR = [AALL[16 * i:16 * i + 16] for i in range(1, 8)]; NF = 7
def wo_reads(k):
    loc = KLOC[k]; w_ = 1 if loc >= OWIN[1] else 0
    return [x for t in range(4) for x in trs(FR[k % NF][4 * t:4 * t + 4], vWr[4 * w_ + t], loc - OWIN[w_], ('o', k))]
OFG = [acc[4 * i:4 * i + 4] for i in range(8)] + [B[4 * i:4 * i + 4] for B in (B1, B2, B3) for i in range(4)]
accO = [vXb[0:4], vXb[4:8], vPM, vOnes]
sJ = S.alloc('j')
NPRE = opt('npre', 0)
info_read = (f'ds_read_b64 {vt[4:6]}, {vt[6]}', 'info')
E([f'v_mov_b32 {vt[6]}, {L_INFO}', info_read])
E([f's_mov_b32 {sJ}, 0'] + stamp())
E.vm = []
for k in range(20):
    if k % 2 == 0: A.label(f'Lld_{k // 2}')
    E((f'buffer_load_dwordx4 {OFG[k]}, {vL16}, {sWS}, {sOb[k // 4]} offen offset:{(k % 4) * 1024} sc1', ('of', k // 2)))
E([f's_cmp_lg_u32 {sJ}, 0', 's_cbranch_scc1 Ldisp'])
E([W(lg='info'), ('L', 'Linfo'), f'v_readfirstlane_b32 {sT[3]}, {vt[4]}', f's_cmp_eq_u32 {sT[3]}, {SENT}', 's_cbranch_scc1 Linfo_re'])
for k in range(NF): E(wo_reads(k))
def chk(j):
    a, b = OFG[2 * j], OFG[2 * j + 1]
    return [('L', f'Lchk_{j}'), W(('of', j)), f'v_max3_u32 {vt[0]}, {a[0]}, {a[1]}, {a[2]}', f'v_max3_u32 {vt[1]}, {b[0]}, {b[1]}, {b[2]}', f'v_max3_u32 {vt[0]}, {vt[0]}, {a[3]}, {b[3]}',
            f'v_max_u32 {vt[0]}, {vt[0]}, {vt[1]}', f'v_cmp_eq_u32 vcc, -1, {vt[0]}', f's_cbranch_vccnz Lre_{j}']
vXf = acc[0:16]; vGt = acc[16:32]; vOa = B1[0:2]; vRow = B1[2]; vTa = B1[4:8]; vTr = B1[3]; vOst = B1[8:16]
tail = []
for i in range(8):
    tail += [f'v_accvgpr_read_b32 {vGt[2 * i + 1]}, {PK[i]}', f'v_accvgpr_read_b32 {vXf[2 * i + 1]}, {PK[8 + i]}']
for x in (vGt, vXf):
    for i in range(8): tail += [f'v_lshlrev_b32 {x[2 * i]}, 16, {x[2 * i + 1]}', f'v_and_b32 {x[2 * i + 1]}, 0xffff0000, {x[2 * i + 1]}']
oadr = [f's_mul_i32 {sT[0]}, {sRB}, 96', f's_lshl_b32 {sT[1]}, {sTau}, 4', f's_add_u32 {sT[0]}, {sT[0]}, {sT[1]}', f's_sub_u32 {sT[0]}, {sT[0]}, 32',
        f'v_add_u32 {vRow}, {sT[0]}, {vTt}', f'v_lshrrev_b32 {vt[2]}, 3, {vLane}', f'v_add_u32 {vt[2]}, {sT[0]}, {vt[2]}', f'v_mul_u32_u24 {vt[2]}, 1280, {vt[2]}',
        f'v_and_b32 {vt[3]}, 7, {vLane}', f'v_xor_b32 {vt[3]}, {vt[3]}, {vG}', f'v_lshl_add_u32 {vOa[0]}, {vt[3]}, 4, {vt[2]}', f'v_xor_b32 {vOa[1]}, 64, {vOa[0]}',
        f'v_add_u32 {vOa[1]}, {8 * 1280}, {vOa[1]}',
        f's_lshl_b32 {sT[0]}, {sTau}, 11', f's_add_u32 {sT[0]}, {sT[0]}, {EXB}', f'v_add_u32 {vTa[0]}, {sT[0]}, {vXe}', f'v_xor_b32 {vTa[1]}, 32, {vTa[0]}',
        f'v_xor_b32 {vTa[2]}, 64, {vTa[0]}', f'v_xor_b32 {vTa[3]}, 0x60, {vTa[0]}', f'v_add_u32 {vTr}, {sT[0]}, {vL16}', f's_lshl_b32 {sFl}, {sC}, 7']
fills = {6: tail[:16], 7: tail[16:40], 8: tail[40:48] + oadr}
for j in range(10):
    E(chk(j))
    if j == 0: E(stamp())
    for k in (2 * j, 2 * j + 1):
        m = [f'{MFMA} {accO[n]}, {FR[k % NF][4 * n:4 * n + 4]}, {OFG[k]}, {0 if k == 0 else accO[n]}' for n in range(4)]
        f = fills.get(j, []); f = f[:len(f) // 2] if k % 2 == 0 else f[len(f) // 2:]
        E([W(lg=('o', k))] + spread(m, f) + (wo_reads(k + NF) if k + NF < 20 else []))
E(stamp())
E([f'v_and_b32 {vt[2]}, {vt[4]}, {vt[5]}', f'v_readfirstlane_b32 {sT[3]}, {vt[2]}', f's_cmp_eq_u32 {sT[3]}, -1', 's_cbranch_scc0 Lfix', ('L', 'Lnofix')])
for n in range(4):
    a = accO[n]
    E([f'v_fma_f32 {a[i]}, {a[i]}, {vGt[4 * n + i]}, {vXf[4 * n + i]}' for i in range(4)] + cvt2(vOst[2 * n:2 * n + 2], a) + [f'ds_write_b64 {vTa[n]}, {vOst[2 * n:2 * n + 2]}'])
E([(f'ds_read_b128 {B2[4 * i:4 * i + 4]}, {vTr} offset:{1024 * i}', ('fin', i)) for i in range(2)])
for i in range(2): E([W(lg=('fin', i)), f'buffer_store_dwordx4 {B2[4 * i:4 * i + 4]}, {vOa[i]}, {sOUT}, {sFl} offen{NT["S"]}'])
write_stamps(STAMPW, 'main')
E('s_endpgm')
E([('L', 'Lqf_re')] + spin_guard() + cs_reads + [W(lg='all'), 's_branch Lqf'])
E([('L', 'Lcsv_re')] + spin_guard() + csv_reads + [W(lg='all'), 's_branch Lcsv'])
E([('L', 'Lrx_re')] + spin_guard() + rx_loads() + [W('all'), 's_branch Lrx_chk'])
E([('L', 'Linfo_re')] + spin_guard() + [info_read, W(lg='all'), 's_branch Linfo'])
E([('L', 'Lfl_re')] + spin_guard() + [fl_load, W('all'), 's_branch Lfl_chk'])
for j in range(10): E([('L', f'Lre_{j}'), f's_mov_b32 {sJ}, {j + 1}', 's_branch Lprobe'])
E([('L', 'Lprobe'), f'v_min_u32 {vt[1]}, 19, {vLane}', f'v_lshlrev_b32 {vt[1]}, 10, {vt[1]}', ('L', 'Lprobe2')] + spin_guard() +
  [f'buffer_load_dword {vt[0]}, {vt[1]}, {sWS}, {sOb[0]} offen offset:1020 sc1', W('all'), f'v_cmp_eq_u32 vcc, -1, {vt[0]}', 's_cbranch_vccnz Lprobe2'])
for j in range(9): E([f's_cmp_eq_u32 {sJ}, {j + 1}', f's_cbranch_scc1 Lld_{j}'])
E('s_branch Lld_9')
A.label('Ldisp')
for j in range(9): E([f's_cmp_eq_u32 {sJ}, {j + 1}', f's_cbranch_scc1 Lchk_{j}'])
E('s_branch Lchk_9')
E([('L', 'Lfix'), f'v_mov_b32 {vt[6]}, {L_UF}', ('L', 'Lfix_w')] + spin_guard() + [f'ds_read_b32 {vt[2]}, {vt[6]}', W(lg='all'), f'v_readfirstlane_b32 {sT[3]}, {vt[2]}',
   f's_cmp_eq_u32 {sT[3]}, 0', 's_cbranch_scc1 Lfix_w',
   f'v_mov_b32 {vt[2]}, {L_UPD + 512}', f'v_mov_b32 {vt[3]}, {L_UPD}', f'v_cmp_eq_u32 vcc, {vt[4]}, {vRow}', f'v_cndmask_b32 {vt[2]}, {vt[2]}, {vt[3]}, vcc',
   f'v_mov_b32 {vt[3]}, {L_UPD + 256}', f'v_cmp_eq_u32 vcc, {vt[5]}, {vRow}', f'v_cndmask_b32 {vt[2]}, {vt[2]}, {vt[3]}, vcc', f'v_lshl_add_u32 {vt[2]}, {vG}, 4, {vt[2]}'] +
  [f'ds_read_b128 {B3[4 * n:4 * n + 4]}, {vt[2]} offset:{64 * n}' for n in range(4)] + [f'v_accvgpr_read_b32 {vOst[i]}, {PK[8 + i]}' for i in range(8)] +
  gate_calc(vOst, B2, vGt, B3) + round_pairs(vGt, 16)[8:] + ['s_branch Lnofix'])

load_state(st_halo)
A.label('Lhalo')
HF = [Reg('a', 0, 48), Reg('a', 48, 48)]; HXK = Reg('a', 96, 32); HXT = vXb
vSg = B3[0:4]; vSo = B3[4:6]
E(['s_mov_b32 vcc_lo, 0x00010001', 's_mov_b32 vcc_hi, 0x00010001', f'v_mov_b32 {vt[7]}, {ONES_OFF}', f'v_cndmask_b32 {vXr[0]}, {vXr[0]}, {vt[7]}, vcc', f'v_xor_b32 {vXr[1]}, 64, {vXr[0]}',
   f'v_add_u32 {vXr[4]}, {2 * SLOT}, {vXr[0]}', f'v_add_u32 {vXr[5]}, {2 * SLOT}, {vXr[1]}'] + set_ones +
  [f'v_and_b32 {vt[0]}, 7, {vLane}', f'v_lshlrev_b32 {vt[0]}, 4, {vt[0]}', f'v_mul_u32_u24 {vt[1]}, {SLOT}, {vG}', f'v_add_u32 {vt[0]}, {vt[0]}, {vt[1]}', f'ds_write_b128 {vt[0]}, {vOnes} offset:{ONES_OFF}',
   f'v_mov_b32 {vt[0]}, {L_CSF}', f'v_mov_b32 {vt[4]}, 0', f'v_mov_b32 {vt[5]}, 0', f'v_mov_b32 {vt[6]}, {SENT}', f'v_mov_b32 {vt[7]}, {SENT}', f'ds_write_b128 {vt[0]}, {vt[4:8]}',
   f'ds_write_b64 {vt[0]}, {vt[4:6]} offset:16', f'ds_write_b64 {vt[0]}, {vt[4:6]} offset:24',
   f's_mul_i32 {sT[0]}, {sRB}, 96', f's_sub_u32 {sT[0]}, {sT[0]}, 16', f'v_add_u32 {vSo[0]}, {sT[0]}, {vLane}', f'v_min_u32 {vt[1]}, 47, {vLane}', f'v_add3_u32 {vSo[1]}, {sT[0]}, {vt[1]}, 64',
   f'v_mov_b32 {vt[2]}, 2047', f'v_med3_i32 {vSo[0]}, {vSo[0]}, 0, {vt[2]}', f'v_med3_i32 {vSo[1]}, {vSo[1]}, 0, {vt[2]}', f'v_lshlrev_b32 {vSo[0]}, 3, {vSo[0]}', f'v_lshlrev_b32 {vSo[1]}, 3, {vSo[1]}'])
sSt = S.alloc('sst'); E(f's_mov_b32 {sSt}, {WS_STAT}')
def HX(s, kk): return HXT[4 * kk:4 * kk + 4] if s < NI else HXK[(s - NI) * 8 + 4 * kk:(s - NI) * 8 + 4 * kk + 4]
def h_reads(s, kk):
    tag = ('r', s, kk)
    L = [(f'ds_read_b128 {HX(s, kk)}, {vXr[4 * sw(s) + kk]} offset:{so(s)}', tag)]
    for sec in range(3 if s < NI else 2):
        for t in range(4): L += trs(HF[kk][16 * sec + 4 * t:16 * sec + 4 * t + 4], vWr[4 * sw(s) + t], so(s) + sec * 8192 + kk * 4096, tag)
    return L
def h_mfmas(s, kk):
    z = (s == 0 and kk == 0); L = []
    for sec in range(2):
        for t in range(4):
            a = acc[16 * sec + 4 * t:16 * sec + 4 * t + 4]; L.append(f'{MFMA} {a}, {HF[kk][16 * sec + 4 * t:16 * sec + 4 * t + 4]}, {HX(s, kk)}, {0 if z else a}')
    if s < NI:
        for t in range(4): a = accV[4 * t:4 * t + 4]; L.append(f'{MFMA} {a}, {HX(s, kk)}, {HF[kk][32 + 4 * t:36 + 4 * t]}, {0 if z else a}')
    return L
p1_start = len(A.lines)
st_loads = [(f'buffer_load_dwordx2 {vSg[2 * i:2 * i + 2]}, {vSo[i]}, {sWS}, {sSt} offen sc1', 'st') for i in range(2)]
for s in range(10):
    A.comment(f'halo unit {s}')
    E(['s_waitcnt lgkmcnt(0)', 's_barrier']); E.lg = []
    if s == 0: E(fin_tag())
    r0, r1 = h_reads(s, 0), h_reads(s, 1)
    E([r0[0], r1[0]])
    grp_ = [[(t_, ('g', i)) for t_, _ in (r0[1:] + r1[1:])[2 * i:2 * i + 2]] for i in range(len(r0) - 1)]
    mm = h_mfmas(s, 0) + h_mfmas(s, 1); LA = 6
    for i in range(len(mm) + LA):
        if i < len(mm): E(grp_[i])
        if i >= LA: E([W(lg=('g', i - LA)), mm[i - LA]])
    if s == 1: E(signal())
    if s == opt('stl', 6): E(st_loads)
    if s == 8:
        E([W('st'), ('L', 'Lst_chk'), f'v_cmp_ne_u32 vcc, {sTag}, {vSg[1]}', f'v_cmp_ne_u32 {sT[0:2]}, {sTag}, {vSg[3]}', f's_or_b64 {sT[0:2]}, {sT[0:2]}, vcc', 's_cbranch_scc1 Lst_re',
           f'v_add_u32 {vt[0]}, {L_M + 64}, {vL4}', f'v_min_u32 {vt[1]}, 47, {vLane}', f'v_lshlrev_b32 {vt[1]}, 2, {vt[1]}', f'v_add_u32 {vt[1]}, {L_M + 64 + 256}, {vt[1]}'])
        for i in range(2):
            E([f'v_lshlrev_b32 {vSg[2 * i + 1]}, 16, {vSg[2 * i]}', f'v_and_b32 {vSg[2 * i]}, 0xffff0000, {vSg[2 * i]}', f'v_rcp_f32 {vSg[2 * i + 1]}, {vSg[2 * i + 1]}',
               f'ds_write_b32 {vt[i]}, {vSg[2 * i]}', f'ds_write_b32 {vt[i]}, {vSg[2 * i + 1]} offset:512'])
        E([f'v_lshlrev_b32 {vt[2]}, 4, {vG}', f'v_add_u32 {vt[2]}, {L_CS}, {vt[2]}', f'v_mov_b32 {vt[3]}, {L_QF}', f'v_lshlrev_b32 {vt[4]}, 2, {vTt}', f'v_add_u32 {vt[4]}, {L_M + 64}, {vt[4]}',
           f'ds_read_b32 {vSt[0]}, {vt[4]}'])
if 'nohalo' in OPTS: drop(lambda t: t.startswith('v_mfma') or t.startswith('ds_read_b64_tr'))
E(['s_mov_b32 exec_lo, 0x00010001', 's_mov_b32 exec_hi, 0x00010001'] + [f'ds_write_b128 {vt[2]}, {acc[4 * j:4 * j + 4]} offset:{64 * j}' for j in range(8)] +
  [f'ds_write_b32 {vt[3]}, {vt[3]}', 's_mov_b64 exec, -1'] + [f'ds_read_b128 {vCS[4 * t:4 * t + 4]}, {vt[2]} offset:{256 + 64 * t}' for t in range(4)] + [W(lg='all')] +
  fix_qk(acc[16:24], acc[16:32], vSt[0]) + [f'ds_write_b128 {vEx}, {acc[16 + 4 * i:20 + 4 * i]} offset:{4096 + i * 1024}' for i in range(2)] + cnt_arrive(L_C2, vt[1], vt[2]) +
  [f'v_mov_b32 {vt[1]}, {L_WF}'] + cnt_wait(1, vt[1], vt[2]))
HV = Reg('a', 0, 96)
def ht_reads(k): return [x for t in range(4) for x in trs(HV[16 * (k % 6) + 4 * t:16 * (k % 6) + 4 * t + 4], vWr[4 * sw(NI + k // 2) + t], so(NI + k // 2) + VOFF + (k % 2) * 4096, ('v', k))]
for k in range(6): E(ht_reads(k))
for k in range(NK):
    E([W(lg=('v', k))] + [f'{MFMA} {accV[4 * t:4 * t + 4]}, {HX(NI + k // 2, k % 2)}, {HV[16 * (k % 6) + 4 * t:16 * (k % 6) + 4 * t + 4]}, {accV[4 * t:4 * t + 4]}' for t in range(4)])
    if k + 6 < NK: E(ht_reads(k + 6))
E([f'v_lshlrev_b32 {vt[1]}, 4, {vTt}', f'v_add_u32 {vt[1]}, {L_CSV}, {vt[1]}', f'v_mov_b32 {vt[2]}, {L_CSF}', f'v_lshlrev_b32 {vt[0]}, 4, {vG}', f'v_add_u32 {vt[0]}, {L_M + 64}, {vt[0]}',
   f'v_lshl_add_u32 {vEx}, {vLane}, 3, {sVx}', 's_mov_b64 exec, 0xffff'] + [f'ds_write_b32 {vt[1]}, {accV[4 * t]} offset:{4 * t}' for t in range(4)] +
  [f'ds_write_b32 {vt[2]}, {vt[2]}', 's_mov_b64 exec, -1', f'ds_read_b128 {acc[8:12]}, {vt[1]}', f'ds_read_b128 {acc[0:4]}, {vt[0]}', f'ds_read_b128 {acc[4:8]}, {vt[0]} offset:512', W(lg='all')])
for t in range(4): E(vfix(accV[4 * t:4 * t + 4], acc[0:8], acc[8 + t], vEx, 512 * t))
E(cnt_arrive(L_C3, vt[4], vt[5]) + ['s_endpgm'])
E([('L', 'Lst_re')] + spin_guard() + st_loads + [W('all'), 's_branch Lst_chk'])

load_state(st_main)
pos_load = len(A.lines)
A.label('Lloader')
BIAS = 4096
sX = S.alloc('srdx', 4); sWQ = S.alloc('srdq', 4); sWK = S.alloc('srdk', 4); sWV = S.alloc('srdv', 4); sWO = S.alloc('srdwo', 4)
vW = V.alloc('vw', 8); vX = V.alloc('vx', 14); sWk = S.alloc('wk', 10, 1); sXk = S.alloc('xk'); sRho = S.alloc('rho'); sStr = S.alloc('stride')
l3 = vt[1]; l7 = vt[2]; vch = V.alloc('chunkw')
E(['s_setprio 3', f'v_lshrrev_b32 {l3}, 3, {vLane}', f'v_and_b32 {l7}, 7, {vLane}',
   f'v_and_b32 {vt[4]}, 1, {vG}', f'v_lshlrev_b32 {vt[4]}, 1, {vt[4]}', f'v_xor_b32 {vt[4]}, {vt[4]}, {l7}', f's_lshl_b32 {sT[3]}, {sC}, 7', f'v_lshl_add_u32 {vch}, {vt[4]}, 4, {sT[3]}',
   f'v_mov_b32 {vt[3]}, 3840', f'v_mad_u32_u24 {vW[0]}, {l3}, {vt[3]}, {vch}', f'v_xor_b32 {vW[1]}, 64, {vW[0]}', f'v_add_u32 {vW[1]}, {8 * 3840 - 1024}, {vW[1]}'] +
  [f'v_add_u32 {vW[j]}, {(j - j % 2) * 8 * 3840 - ((j % 4) - (j % 2)) * 1024}, {vW[j % 2]}' for j in range(2, 8)] +
  [f's_mul_i32 {sT[2]}, {sRB}, 96', f's_sub_u32 {sT[2]}, {sT[2]}, 16', f'v_add_u32 {vt[3]}, {sT[2]}, {l3}',
   f'v_xor_b32 {vt[5]}, {l7}, {vG}', f'v_lshlrev_b32 {vt[5]}, 4, {vt[5]}', f'v_xor_b32 {vt[6]}, 64, {vt[5]}', f'v_mov_b32 {vt[7]}, 2047', f'v_mov_b32 {vt[4]}, 1280'])
for j in range(14):
    E([f'v_add_u32 {vX[j]}, {8 * j}, {vt[3]}', f'v_med3_i32 {vX[j]}, {vX[j]}, 0, {vt[7]}', f'v_mad_u32_u24 {vX[j]}, {vX[j]}, {vt[4]}, {vt[5 + j % 2]}',
       f'v_add_u32 {vX[j]}, {BIAS - (j % 4) * 1024}, {vX[j]}'])
WSZ = 640 * 3840
E([f's_mov_b32 {sRho}, {sS0}',
   's_waitcnt lgkmcnt(0)'] + mk_srd(sX, pX, 2048 * 1280, -BIAS) + mk_srd(sWQ, pW, WSZ) + mk_srd(sWK, pW, WSZ, 1280) + mk_srd(sWV, pW, WSZ, 2560))
def grp(m0, items):
    L = [f's_mov_b32 m0, {m0}']
    for j, (vo, srd, sof, nt, tag) in enumerate(items):
        L.append((f'buffer_load_dwordx4 {vo}, {srd}, {sof} offen' + (f' offset:{1024 * j}' if j else '') + f'{nt} lds', tag))
    return L
def wgrp(s, sec, q, tag): return grp((s % NSL) * SLOT + sec * 8192 + q * 4096, [(vW[j], (sWQ, sWK, sWV)[sec], sWk[s], NT['W'], tag) for j in range(4 * q, 4 * q + 4)])
def unit_loads(s):
    sb = (s % NSL) * SLOT; tag = ('u', s)
    L = [f's_mul_i32 {sWk[s]}, {sRho}, {64 * 3840}', f's_lshl_b32 {sXk}, {sRho}, 7']
    xs = [grp(sb + XOFF + q * 4096, [(vX[j], sX, sXk, NT['X'], tag) for j in range(4 * q, min(4 * q + 4, 14))]) for q in range(4)]
    ws = [wgrp(s, sec, q, tag) for q in range(2) for sec in range(3 if s < NI else 2)]
    for i in range(max(len(xs), len(ws))):
        if i < len(xs): L += xs[i]
        if i < len(ws): L += ws[i]
    return L + [[f's_add_u32 {sRho}, {sRho}, 1', f's_cmp_eq_u32 {sRho}, 10', f's_cselect_b32 {sRho}, 0, {sRho}']]
E(unit_loads(0) + stamp() + get_tag() + mk_srd(sWO, pWO, 640 * 1280, -BIAS - 3 * 20480) + unit_loads(1))
S.free('ka', 'kb')
vOt = V.alloc('ot', 14); sOk = S.alloc('ok')
oset = [f'v_lshrrev_b32 {vt[4]}, 5, {vLane}', f'v_mul_u32_u24 {vt[4]}, 20480, {vt[4]}', f'v_and_b32 {vt[3]}, 3, {l3}', f'v_mul_u32_u24 {vt[3]}, 1280, {vt[3]}',
        f'v_add_u32 {vt[3]}, {3 * 20480}, {vt[3]}', f'v_add_u32 {vOt[3]}, {vt[3]}, {vch}', f'v_xor_b32 {vOt[10]}, 64, {vOt[3]}']
for p in range(2):
    for d in range(1, 4): oset += [f'v_add_u32 {vOt[7 * p + 3 + d]}, {vOt[7 * p + 2 + d]}, {vt[4]}', f'v_sub_u32 {vOt[7 * p + 3 - d]}, {vOt[7 * p + 4 - d]}, {vt[4]}']
def o_loads(j):
    L = []
    for i in range(8):
        sh = 16 * (i >> 2) + 2 * (i & 3); u0 = (UT[j % 5] >> sh) & 3; u1 = (UT[j % 5] >> (sh + 8)) & 3
        if i % 4 == 0: L += [f's_mov_b32 m0, {KLOC[2 * j + i // 4]}']
        L += [f's_mov_b32 {sOk}, {j * 64 * 1280 + u0 * 20480 + BIAS + 4 * (i & 3) * 1280 - (i % 4) * 1024}',
              (f'buffer_load_dwordx4 {vOt[7 * (i % 2) + 3 + u1 - u0]}, {sWO}, {sOk} offen' + (f' offset:{1024 * (i % 4)}' if i % 4 else '') + f'{NT["O"]} lds', ('o', j))]
    return L
for s in range(10):
    A.comment(f'loader unit {s}')
    E([W(('u', s), 'all')] + (stamp() if s in (0, 5, 9) else []) + fstamp('ldw') + ['s_barrier'] + fstamp('ld'))
    if s == 0: E(fin_tag())
    if s <= 7: E(unit_loads(s + 2))
    elif s == 8:
        for u in range(NI, 10): E(wgrp(u, 2, 0, 'v') + wgrp(u, 2, 1, 'v'))
        E(oset)
S.free('srdx', 'srdq', 'srdk')
sKy0 = S.alloc('key0'); sKy1 = S.alloc('key1'); sI0 = S.alloc('i0'); sI1 = S.alloc('i1')
vBc = V.alloc('bc', 4); vBa = V.alloc('bca')
bc_load = f'buffer_load_dwordx4 {vBc}, {vBa}, {sWS}, 0 offen sc1'
E(o_loads(0) + o_loads(1) + [W('v')] + cnt_arrive(L_WF, vt[1], vt[2]) + cnt_arrive(L_C2, vt[1], vt[2]) + stamp() + o_loads(2) + o_loads(3) + o_loads(4) + cnt_wait(8, vt[1], vt[2]) +
  [f's_lshl_b32 {sT[0]}, s2, 7', f's_add_u32 {sT[0]}, {sT[0]}, {WS_BC}', f'v_mov_b32 {vBa}, {sT[0]}', bc_load])
for j in range(5, 10): E(o_loads(j))
E([W('all'), ('L', 'Lbc'), f'v_readfirstlane_b32 {sKy0}, {vBc[0]}', f'v_readfirstlane_b32 {sT[0]}, {vBc[1]}',
   f'v_readfirstlane_b32 {sKy1}, {vBc[2]}', f'v_readfirstlane_b32 {sT[1]}, {vBc[3]}', f's_cmp_eq_u32 {sT[0]}, {sTag}', f's_cselect_b32 {sT[1]}, {sT[1]}, {sT[0]}', f's_cmp_eq_u32 {sT[1]}, {sTag}',
   's_cbranch_scc1 Lbc_ok'] + spin_guard() + [bc_load, W('all'), 's_branch Lbc', ('L', 'Lbc_ok'), f's_mul_i32 {sT[0]}, {sRB}, 96'])
for k, i in ((sKy0, sI0), (sKy1, sI1)):
    E([f's_and_b32 {i}, {k}, 0x7ff', f's_sub_u32 {i}, 2047, {i}', f's_sub_u32 {sT[1]}, {i}, {sT[0]}', f's_cmp_lt_u32 {sT[1]}, 96', f's_cselect_b32 {i}, {i}, -1'])
E([f'v_mov_b32 {vt[0]}, {sI0}', f'v_mov_b32 {vt[1]}, {sI1}', f'v_mov_b32 {vt[2]}, {L_INFO}'] + stamp() +
  [f'ds_write_b64 {vt[2]}, {vt[0:2]}', f's_and_b32 {sT[1]}, {sI0}, {sI1}', f's_cmp_eq_u32 {sT[1]}, -1', 's_cbranch_scc1 Lw0_done'])
vY = Reg('v', 16, 108)
E([f'v_min_u32 {vt[3]}, 26, {vLane}', f'v_mul_u32_u24 {vt[3]}, 10240, {vt[3]}', ('L', 'Ly_poll')] + spin_guard() + [f's_lshl_b32 {sT[0]}, {sC}, 10', f's_add_u32 {sT[0]}, {sT[0]}, {WS_Y}',
   f'buffer_load_dword {vt[0]}, {vt[3]}, {sWS}, {sT[0]} offen offset:1020 sc1', W('all'), f'v_cmp_ne_u32 vcc, {sTag}, {vt[0]}', 's_cbranch_vccnz Ly_poll'])
for j in range(27): E([f'buffer_load_dwordx4 {vY[4 * j:4 * j + 4]}, {vL16}, {sWS}, {sT[0]} offen sc1', f's_add_u32 {sT[0]}, {sT[0]}, 10240'])
E([W('all'), f'v_xor_b32 {vt[0]}, {sTag}, {vY[1]}'])
for j in range(27):
    for q in (1, 3):
        if j or q == 3: E([f'v_xor_b32 {vt[1]}, {sTag}, {vY[4 * j + q]}', f'v_or_b32 {vt[0]}, {vt[0]}, {vt[1]}'])
E([f'v_cmp_ne_u32 vcc, 0, {vt[0]}', 's_cmp_lg_u64 vcc, 0', 's_cbranch_scc1 Ly_poll'])
for j in range(1, 27): E([f'v_add_f32 {vY[0]}, {vY[0]}, {vY[4 * j]}', f'v_add_f32 {vY[2]}, {vY[2]}, {vY[4 * j + 2]}'])
for k, y, off in ((sKy0, vY[0], 0), (sKy1, vY[2], 256)):
    E([f's_lshr_b32 {sT[0]}, {k}, 16', f's_cmp_ge_u32 {sT[0]}, 0x8000', f's_cselect_b32 {sT[1]}, 0x8000, -1', f's_xor_b32 {sT[0]}, {sT[0]}, {sT[1]}', f's_lshl_b32 {sT[0]}, {sT[0]}, 16',
       f'v_mov_b32 {vt[0]}, {sT[0]}', f'v_mul_f32 {vt[0]}, {f32(-L2E)}, {vt[0]}', f'v_exp_f32 {vt[0]}, {vt[0]}', f'v_add_f32 {vt[0]}, 1.0, {vt[0]}', f'v_rcp_f32 {vt[0]}, {vt[0]}'] +
      bf16r(vt[0], vt[0]) + bf16r(y, y) + [f'v_mul_f32 {y}, {y}, {vt[0]}'] + bf16r(y, y) + [f'v_add_u32 {vt[1]}, {L_UPD}, {vL4}', f'ds_write_b32 {vt[1]}, {y} offset:{off}'])
E([f'v_mov_b32 {vt[0]}, 0', f'ds_write_b32 {vt[1]}, {vt[0]} offset:512', f'v_mov_b32 {vt[0]}, {L_UF}', f'ds_write_b32 {vt[0]}, {vt[0]}', ('L', 'Lw0_done'), 's_waitcnt lgkmcnt(0)'])
if STAMPW == 0: write_stamps(0, 'loader')
E('s_endpgm')

pos_aux = len(A.lines)
A.lines[pos_comp:pos_aux] = A.lines[pos_load:pos_aux] + A.lines[pos_comp:pos_load]
load_state(st_common)
A.label('Laux')
sA = sRB; BIAS = 4096
E([f's_mul_i32 {sA}, {sT[0]}, 9', f's_lshl_b32 {sT[2]}, {sT[2]}, 2', f's_add_u32 {sA}, {sA}, {sT[2]}', f's_add_u32 {sA}, {sA}, {sT[1]}', f's_cmp_ge_u32 {sA}, 32', 's_cbranch_scc1 Lmst'])
st_aux0 = save_state()
AX = 131072
L_WR = AX; L_KEY = AX + 1536; L_P = AX + 2048; L_H = AX + 8192
l3 = vt[1]; l7 = vt[2]
sRg = S.alloc('ring'); sSo = S.alloc('so'); sWm = S.alloc('srdm', 4); sWD_ = S.alloc('srdd', 4); sKb = S.alloc('kb0')
vTw = V.alloc('tw', 4); aGo = V.alloc('ago', 4); aDo = V.alloc('ado', 4); vXa = V.alloc('xsa'); sX = S.alloc('srdx', 4); sNm = S.alloc('nm', 2, 1)
wf = AG.alloc('wf', 80); df = V.alloc('df', 64); xs = V.alloc('xs', 20); a16 = V.alloc('a16', 16)
def item(slot, voff, srd, sbase, soff, nt, tag):
    L = [f's_add_u32 m0, {sRg}, {slot * 4096}', f's_add_u32 {sSo}, {sbase}, {soff}' if sbase is not None else f's_mov_b32 {sSo}, {soff}']
    return L + [(f'buffer_load_dwordx4 {voff[j]}, {srd}, {sSo} offen' + (f' offset:{1024 * j}' if j else '') + f'{nt} lds', tag) for j in range(4)]
def offs4(dst, stride): return [f'v_xor_b32 {dst[1]}, 64, {dst[0]}', f'v_add_u32 {dst[1]}, {8 * stride - 1024}, {dst[1]}', f'v_add_u32 {dst[2]}, {16 * stride - 2048}, {dst[0]}',
                                f'v_add_u32 {dst[3]}, {16 * stride - 2048}, {dst[1]}']
sDb = S.alloc('db')
wsetup = [f'v_and_b32 {vt[4]}, 1, {vG}', f'v_lshlrev_b32 {vt[4]}, 1, {vt[4]}', f'v_xor_b32 {vt[4]}, {vt[4]}, {l7}', f'v_lshlrev_b32 {vt[4]}, 4, {vt[4]}',
          f'v_mul_u32_u24 {vt[5]}, 3456, {l3}', f's_lshl_b32 {sT[2]}, {sA}, 7', f'v_add3_u32 {aGo[0]}, {vt[5]}, {vt[4]}, {sT[2]}'] + offs4(aGo, 3456) + \
         [f's_mul_i32 {sKb}, {sW}, {32 * 3456}', f'v_mul_u32_u24 {vt[5]}, 1280, {l3}', f'v_add_u32 {aDo[0]}, {vt[5]}, {vt[4]}'] + offs4(aDo, 1280) + \
         [f's_mul_i32 {sDb}, {sA}, {64 * 1280}', f's_lshl_b32 {sT[2]}, {sWv}, 7', f's_add_u32 {sDb}, {sDb}, {sT[2]}']
rsetup = tr_parts(vTw[0], vt[5], vt[4], vt[6]) + [f'v_add3_u32 {vTw[0]}, {vTw[0]}, {vt[5]}, {sRg}', f'v_lshl_add_u32 {vTw[0]}, {vt[4]}, 3, {vTw[0]}'] + \
         [f'v_xor_b32 {vTw[t]}, {32 * t}, {vTw[0]}' for t in (1, 2, 3)] + \
         [f's_lshl_b32 {sT[0]}, {sW}, 6', f's_add_u32 {sT[0]}, {sT[0]}, {BIAS}', f'v_lshl_add_u32 {vXa}, {vG}, 4, {sT[0]}']
def W_item(i): return lambda slot: item(slot, aGo, sWm, sKb, i * 128 * 3456, NT['F'], ('w', i))
def D_item(i): return lambda slot: item(slot, aDo, sWD_, sDb, (i % 2) * 32 * 1280 + (i // 2) * 512, NT['F'], ('d', i))
def fr_reads(dst, slot): return [x for t in range(4) for x in trs(dst[4 * t:4 * t + 4], vTw[t], slot * 4096, 'fr')]
sBc = S.alloc('bc')
xaddr = [f's_lshl_b32 {sBc}, s2, 7', f's_add_u32 {sBc}, {sBc}, {WS_BC}']
bcl = f'buffer_load_dwordx4 {a16[0:4]}, off, {sWS}, {sBc} sc1'
stl = f'buffer_load_dwordx2 {a16[4:6]}, {a16[6]}, {sWS}, 0 offen sc1'
def sel_loads(n):
    return [W('bc'), ('L', f'Lbc{n}'), f'v_readfirstlane_b32 {sT[0]}, {a16[0]}', f'v_readfirstlane_b32 {sT[2]}, {a16[1]}', f'v_readfirstlane_b32 {sT[1]}, {a16[2]}', f'v_readfirstlane_b32 {sT[3]}, {a16[3]}',
            f's_cmp_eq_u32 {sT[2]}, {sTag}', f's_cselect_b32 {sT[3]}, {sT[3]}, {sT[2]}', f's_cmp_eq_u32 {sT[3]}, {sTag}', f's_cbranch_scc1 Lbc_ok{n}'] + spin_guard() + \
           [('R', bcl), 's_waitcnt vmcnt(0)', f's_branch Lbc{n}', ('L', f'Lbc_ok{n}'),
            f's_and_b32 {sT[0]}, {sT[0]}, 0x7ff', f's_sub_u32 {sT[0]}, 2047, {sT[0]}', f's_and_b32 {sT[1]}, {sT[1]}, 0x7ff', f's_sub_u32 {sT[1]}, 2047, {sT[1]}',
            f'v_mov_b32 {vt[0]}, {sT[0]}', f'v_mov_b32 {vt[1]}, {sT[1]}', 's_mov_b32 vcc_lo, 0xaaaaaaaa', 's_mov_b32 vcc_hi, 0xaaaaaaaa', f'v_cndmask_b32 {vt[0]}, {vt[0]}, {vt[1]}, vcc',
            f'v_lshlrev_b32 {a16[6]}, 3, {vt[0]}', f'v_add_u32 {a16[6]}, {WS_STAT}, {a16[6]}', f'v_mul_u32_u24 {vt[0]}, 1280, {vt[0]}', f'v_add_u32 {vt[0]}, {vt[0]}, {vXa}'] + \
           [f'v_mov_b32 {xs[i]}, 0x3f803f80' for i in range(20)] + ['s_mov_b32 exec_lo, 0x00030003', 's_mov_b32 exec_hi, 0x00030003'] + \
           [f'buffer_load_dwordx4 {xs[4 * i:4 * i + 4]}, {vt[0]}, {sX}, 0 offen offset:{256 * i}' for i in range(5)] + [stl, 's_mov_b64 exec, -1']
def stream(seq, first, n):
    for i, (tag, dst, issue) in enumerate(seq):
        slot = (first + i) % 4
        E([W(tag)] + fr_reads(dst, slot))
        if i + 4 + opt('bca', 2) == len(seq): E((bcl, 'bc'))
        if i + 4 < len(seq): E([W(lg='fr')] + seq[i + 4][2](slot))
        if i + 1 + opt('bca', 2) == len(seq): E(sel_loads(n))
E([f'v_lshrrev_b32 {l3}, 3, {vLane}', f'v_and_b32 {l7}, 7, {vLane}', f's_lshl_b32 {sRg}, {sWv}, 14', f's_cmp_eq_u32 {sH}, 0', 's_cbranch_scc0 Laux_u'])
st_aux = save_state()
sWR_ = S.alloc('srdwr', 4); aXo = xs[0:4]
E([f's_lshl_b32 {sT[0]}, {sA}, 6', f's_lshl_b32 {sT[1]}, {sW}, 4', f's_add_u32 {sT[0]}, {sT[0]}, {sT[1]}', f'v_add_u32 {vt[3]}, {sT[0]}, {l3}', f'v_mul_u32_u24 {vt[3]}, 1280, {vt[3]}',
   f'v_xor_b32 {vt[4]}, {l7}, {vG}', f'v_lshl_add_u32 {aXo[0]}, {vt[4]}, 4, {vt[3]}', f'v_add_u32 {aXo[0]}, {BIAS}, {aXo[0]}', f'v_xor_b32 {aXo[1]}, 64, {aXo[0]}',
   f'v_add_u32 {aXo[1]}, {8 * 1280 - 1024}, {aXo[1]}', f'v_subrev_u32 {aXo[2]}, {2048 - 128}, {aXo[0]}', f'v_subrev_u32 {aXo[3]}, {2048 - 128}, {aXo[1]}',
   's_waitcnt lgkmcnt(0)'] + mk_srd(sX, pX, 2048 * 1280, -BIAS) + mk_srd(sWR_, pWR, 1280) +
  [f's_mov_b32 m0, {L_WR}', 's_nop 0', f'buffer_load_dwordx4 {vL16}, {sWR_}, 0 offen lds', 's_mov_b64 exec, 0xffff', f'buffer_load_dwordx4 {vL16}, {sWR_}, 0 offen offset:1024 lds', 's_mov_b64 exec, -1'])
def X_item(i): return lambda slot: item(slot, aXo, sX, None, i * 256, NT['R'], ('x', i))
for i in range(4): E(X_item(i)(i))
vOnes = xs[4:8]; vRa = xs[8]; vXr = xs[10:12]; vDiag = xs[9]; vSt = xs[12:14]
sK1 = S.alloc('k1', 2); sK2 = S.alloc('k2', 2)
E(get_tag() + mk_srd(sWm, pWG, 640 * 3456) + mk_srd(sWD_, pWD, 1728 * 1280) + wsetup + xaddr +
  [f'v_mov_b32 {vOnes[i]}, 0x3f803f80' for i in range(4)] +
  [f'v_lshlrev_b32 {vRa}, 4, {vG}', f'v_add_u32 {vRa}, {L_WR}, {vRa}', f'v_lshrrev_b32 {vt[6]}, 1, {vTt}', f'v_xor_b32 {vt[6]}, {vt[6]}, {vG}', f'v_lshlrev_b32 {vt[6]}, 4, {vt[6]}',
   f'v_lshl_add_u32 {vt[6]}, {vTt}, 7, {vt[6]}', f'v_add_u32 {vXr[0]}, {sRg}, {vt[6]}', f'v_xor_b32 {vXr[1]}, 64, {vXr[0]}',
   f's_mov_b32 {sK1[0]}, 0xaaaaaaaa', f's_mov_b32 {sK1[1]}, 0xaaaaaaaa', f's_mov_b32 {sK2[0]}, 0xcccccccc', f's_mov_b32 {sK2[1]}, 0xcccccccc',
   f'v_lshrrev_b32 {vDiag}, 2, {vTt}', f'v_lshl_add_u32 {vDiag}, {vDiag}, 4, {vTt}', f'v_lshlrev_b32 {vDiag}, 2, {vDiag}'] + rsetup + ['s_waitcnt lgkmcnt(0)'] + fin_tag())
rb_ = AG.alloc('rb', 32)
aSum, aSq, aDot, aSw = a16[0:4], a16[4:8], a16[8:12], a16[12:16]
nxt = [lambda slot: X_item(4)(slot) + ['s_barrier']] + [lambda slot: []] * 4
for i in range(5):
    slot = i % 4
    E(W(('x', i)))
    for q in range(4):
        E([f'ds_read_b128 {rb_[8 * q:8 * q + 4]}, {vXr[q % 2]} offset:{slot * 4096 + (q // 2) * 2048}', f'ds_read_b128 {rb_[8 * q + 4:8 * q + 8]}, {vRa} offset:{(4 * i + q) * 64}'])
    E([W(lg='all')] + nxt[i](slot))
    for q in range(4):
        x = rb_[8 * q:8 * q + 4]; r = rb_[8 * q + 4:8 * q + 8]
        E([f'{MFMA} {ac}, {a_}, {bb}, {0 if (i == 0 and q == 0) else ac}' for ac, a_, bb in ((aSq, x, x), (aSum, vOnes, x), (aDot, r, x), (aSw, r, vOnes))])
E(stamp() + stats(aSum[0], aSq, vSt, vt, vDiag, sK1, sK2) +
  [f'v_lshrrev_b32 {vt[4]}, 16, {vt[0]}', f'v_or_b32 {vt[4]}, {vt[4]}, {vSt[0]}', f'v_mov_b32 {vt[5]}, {sTag}', f's_lshl_b32 {sT[0]}, {sA}, 9', f's_lshl_b32 {sT[1]}, {sW}, 7',
   f's_add_u32 {sT[0]}, {sT[0]}, {sT[1]}', f's_add_u32 {sT[0]}, {sT[0]}, {WS_STAT}', f'v_lshlrev_b32 {vt[6]}, 3, {vLane}', 's_mov_b64 exec, 0xffff',
   f'buffer_store_dwordx2 {vt[4:6]}, {vt[6]}, {sWS}, {sT[0]} offen sc1', 's_mov_b64 exec, -1',
   f'v_fma_f32 {vt[0]}, {vSt[0]}, {aSw[0]}, {aDot[0]}', f'v_mul_f32 {vt[0]}, {vt[0]}, {vSt[1]}', f'v_cvt_pk_bf16_f32 {vt[0]}, {vt[0]}, {vt[0]}',
   f'v_ashrrev_i32 {vt[1]}, 31, {vt[0]}', f'v_or_b32 {vt[1]}, 0x80000000, {vt[1]}', f'v_xor_b32 {vt[0]}, {vt[0]}, {vt[1]}', f'v_and_b32 {vt[0]}, 0xffff0000, {vt[0]}',
   f'v_max_u32 {vt[0]}, 0x10000, {vt[0]}', f's_lshl_b32 {sT[0]}, {sW}, 4', f'v_add_u32 {vt[1]}, {sT[0]}, {vTt}', f'v_sub_u32 {vt[2]}, 63, {vt[1]}', f'v_or_b32 {vt[0]}, {vt[0]}, {vt[2]}',
   f'v_lshlrev_b32 {vt[1]}, 2, {vt[1]}', f'v_add_u32 {vt[1]}, {L_KEY}, {vt[1]}', f'ds_write_b32 {vt[1]}, {vt[0]}', W(lg='all'), 's_barrier'])
sKy0 = S.alloc('key0'); sKy1 = S.alloc('key1')
vmq = list(E.vm)
E([f's_cmp_lg_u32 {sW}, 0', 's_cbranch_scc1 Lpub_done', 's_setprio 3', f'v_add_u32 {vt[1]}, {L_KEY}, {vL4}', f'ds_read_b32 {vt[2]}, {vt[1]}', W(lg='all'), f'v_mov_b32 {vt[0]}, {vt[2]}'] +
  wave_max_u32(vt[0], sKy0, sT) + [f'v_cmp_eq_u32 vcc, {sKy0}, {vt[2]}', f'v_cndmask_b32 {vt[0]}, {vt[2]}, 0, vcc'] + wave_max_u32(vt[0], sKy1, sT) +
  [f's_and_b32 {sT[0]}, {sKy0}, 0xffff0000', f's_lshr_b32 {sT[1]}, {sKy1}, 16', f's_or_b32 {sT[0]}, {sT[0]}, {sT[1]}', f's_and_b32 {sT[1]}, {sKy0}, 63', f's_and_b32 {sT[2]}, {sKy1}, 63',
   f's_lshl_b32 {sT[2]}, {sT[2]}, 6', f's_or_b32 {sT[1]}, {sT[1]}, {sT[2]}', f's_xor_b32 {sT[1]}, {sT[1]}, 0x8fff', f's_lshl_b32 {sT[2]}, {sA}, 2', f's_lshl_b32 {sT[3]}, {sA}, 1',
   f'v_mov_b32 {vt[0]}, {sT[0]}', f'v_mov_b32 {vt[1]}, {sT[1]}', f'v_mov_b32 {vt[2]}, {sT[2]}', f'v_mov_b32 {vt[3]}, {sT[3]}', 's_mov_b64 exec, 1',
   f'buffer_store_dword {vt[0]}, {vt[2]}, {sDBG}, 0 offen offset:{DBG_VAL} sc1', f'buffer_store_short {vt[1]}, {vt[3]}, {sDBG}, 0 offen offset:{DBG_IDX} sc1', 's_mov_b64 exec, -1'] + signal() +
  [('L', 'Lpub_done')] + stamp() + [f's_cmp_ge_u32 {sA}, 27', 's_cbranch_scc1 Lend'])
E.vm = vmq
for i in range(4): E(W_item(i)((i + 1) % 4))
stream([(('w', i), wf[16 * i:16 * i + 16], W_item(i)) for i in range(5)] + [(('d', i), df[16 * i:16 * i + 16], D_item(i)) for i in range(2)], 1, 0)
E('s_branch Laux_mm')
aux_stamps = list(sST); aux_S = (dict(S.used), set(S.taken))
load_state(st_aux)
S.used, S.taken = dict(aux_S[0]), set(aux_S[1]); sST[:] = aux_stamps
A.label('Laux_u')
E([f's_cmp_ge_u32 {sA}, 27', 's_cbranch_scc1 Lend'] + wsetup + ['s_waitcnt lgkmcnt(0)'] + mk_srd(sWm, pWU, 640 * 3456))
NB0 = opt('nb0', 4)
sD2 = S.alloc('srdd2', 4)
E(get_tag() + mk_srd(sX, pX, 2048 * 1280, -BIAS) + mk_srd(sWD_, pWD, 1728 * 1280) + mk_srd(sD2, pWD, 1728 * 1280) + [f's_cmp_ge_u32 {sW}, 2', f's_cselect_b32 {sD2[2]}, 0, {sD2[2]}'] + xaddr + rsetup +
  ['s_waitcnt lgkmcnt(0)'] + fin_tag())
def D2_item(i): return lambda slot: item(slot, aDo, sD2, sDb, (i % 2) * 32 * 1280 + 512, NT['F'], ('d', i))
useq = [(('w', i), wf[16 * i:16 * i + 16], W_item(i)) for i in range(5)] + [(('d', i), df[16 * i:16 * i + 16], D_item(i) if i < 2 else D2_item(i)) for i in range(4)]
E('s_barrier')
for i in range(NB0): E(W_item(i)(i))
E('s_barrier')
for i in range(NB0, 4): E(W_item(i)(i))
stream(useq, 0, 1)
A.label('Laux_mm')
E(stamp() + ['s_waitcnt vmcnt(0)', ('L', 'Lxs_chk'), f'v_readlane_b32 {sT[0]}, {a16[5]}, 0', f'v_readlane_b32 {sT[1]}, {a16[5]}, 1', f'v_readlane_b32 {sNm[0]}, {a16[4]}, 0',
   f'v_readlane_b32 {sNm[1]}, {a16[4]}, 1', f's_cmp_eq_u32 {sT[0]}, {sTag}', f's_cselect_b32 {sT[1]}, {sT[1]}, {sT[0]}', f's_cmp_eq_u32 {sT[1]}, {sTag}', 's_cbranch_scc1 Lxs_ok'] + spin_guard() +
  [stl, 's_waitcnt vmcnt(0)', 's_branch Lxs_chk', ('L', 'Lxs_ok'), 's_waitcnt lgkmcnt(0)'] + stamp())
E([f'{MFMA} {a16[4 * t:4 * t + 4]}, {wf[16 * i + 4 * t:16 * i + 4 * t + 4]}, {xs[4 * i:4 * i + 4]}, {0 if i == 0 else a16[4 * t:4 * t + 4]}' for i in range(5) for t in range(4)])
E([f's_mul_i32 {sT[0]}, {sWv}, 768', f's_add_u32 {sT[0]}, {sT[0]}, {L_P}', f'v_lshlrev_b32 {vt[0]}, 8, {vTt}', f'v_lshl_add_u32 {vt[0]}, {vG}, 4, {vt[0]}', f'v_add_u32 {vt[0]}, {sT[0]}, {vt[0]}',
   f'v_add_u32 {vt[1]}, {L_P}, {vL4}', f's_lshl_b32 {sT[1]}, {sWv}, 8', f's_add_u32 {sT[1]}, {sT[1]}, {L_H}', f'v_lshl_add_u32 {vt[2]}, {vLane}, 1, {sT[1]}',
   f'v_and_b32 {vt[3]}, 1, {vLane}', f'v_lshlrev_b32 {vt[3]}, 7, {vt[3]}', f'v_lshl_add_u32 {vt[3]}, {vG}, 4, {vt[3]}', f'v_add_u32 {vt[3]}, {sT[1]}, {vt[3]}',
   f's_lshl_b32 {sT[2]}, {sNm[0]}, 16', f's_lshl_b32 {sT[3]}, {sNm[1]}, 16', f'v_rcp_f32 {vt[4]}, {sT[2]}', f'v_rcp_f32 {vt[5]}, {sT[3]}',
   f's_and_b32 {sNm[0]}, {sNm[0]}, 0xffff0000', f's_and_b32 {sNm[1]}, {sNm[1]}, 0xffff0000',
   's_mov_b32 exec_lo, 0x00070007', 's_mov_b32 exec_hi, 0x00070007'] + [f'ds_write_b128 {vt[0]}, {a16[4 * t:4 * t + 4]} offset:{64 * t}' for t in range(4)] +
  ['s_mov_b64 exec, -1', 's_waitcnt lgkmcnt(0)', 's_barrier'])
sG = [S.alloc(f'gm{i}', 2) for i in range(3)]
pr = [xs[i] for i in range(12)] + [a16[4 + i] for i in range(12)]
E([f'ds_read2st64_b32 {(xs if v < 6 else a16)[2 * v - (0 if v < 6 else 8):2 * v - (0 if v < 6 else 8) + 2]}, {vt[1]} offset0:{2 * v} offset1:{2 * v + 1}' for v in range(12)] +
  [f'v_cmp_eq_u32 {sG[i]}, {i + 1}, {vG}' for i in range(3)] +
  [f's_mul_i32 {sT[1]}, {sA}, 10', f's_add_u32 {sT[1]}, {sT[1]}, {sWv}', f's_lshl_b32 {sT[1]}, {sT[1]}, 10', f's_add_u32 {sT[1]}, {sT[1]}, {WS_Y}', 's_waitcnt lgkmcnt(0)'])
for b_ in (0, 12):
    for q in range(3):
        E([f'v_add_f32 {pr[b_ + q]}, {pr[b_ + q]}, {pr[b_ + 3 + q]}', f'v_add_f32 {pr[b_ + 6 + q]}, {pr[b_ + 6 + q]}, {pr[b_ + 9 + q]}', f'v_add_f32 {pr[b_ + q]}, {pr[b_ + q]}, {pr[b_ + 6 + q]}'])
for b_, d in ((0, a16[0:2]), (12, a16[8:10])):
    for tk in range(2): E([f'v_fmac_f32 {pr[b_ + tk]}, {sNm[tk]}, {pr[b_ + 2]}', f'v_mul_f32 {d[tk]}, {pr[b_ + tk]}, {vt[4 + tk]}'])
hA = xs[0:8]; vOut = xs[8:12]
E(round_pairs(a16[0:2], 2) + round_pairs(a16[8:10], 2) + silu_into(a16[2:4], a16[0:2], 2) + [f'v_mul_f32 {a16[2 + i]}, {a16[2 + i]}, {a16[8 + i]}' for i in range(2)] +
  [f'v_cvt_pk_bf16_f32 {a16[2]}, {a16[2]}, {a16[3]}', f'ds_write_b16 {vt[2]}, {a16[2]}', f'ds_write_b16_d16_hi {vt[2]}, {a16[2]} offset:128'] +
  [f'ds_read_b128 {hA[4 * kk:4 * kk + 4]}, {vt[3]} offset:{64 * kk}' for kk in range(2)] + [f'v_mov_b32 {vOut[1]}, {sTag}', f'v_mov_b32 {vOut[3]}, {sTag}', 's_waitcnt lgkmcnt(0)'] + stamp())
for it in range(2):
    if it: E([f's_sub_u32 {sT[0]}, {sWv}, 4', f's_cmp_ge_u32 {sT[0]}, 2', 's_cbranch_scc1 Laux_end', f's_add_u32 {sT[1]}, {sT[1]}, 4096'])
    E([f'{MFMA} {a16[4 * t:4 * t + 4]}, {hA[4 * kk:4 * kk + 4]}, {df[32 * it + 16 * kk + 4 * t:32 * it + 16 * kk + 4 * t + 4]}, {0 if kk == 0 else a16[4 * t:4 * t + 4]}' for kk in range(2) for t in range(4)])
    for q, r in ((0, 0), (2, 1)):
        E([f'v_cndmask_b32 {vOut[q]}, {a16[r]}, {a16[4 + r]}, {sG[0]}', f'v_cndmask_b32 {vOut[q]}, {vOut[q]}, {a16[8 + r]}, {sG[1]}', f'v_cndmask_b32 {vOut[q]}, {vOut[q]}, {a16[12 + r]}, {sG[2]}'])
    E(f'buffer_store_dwordx4 {vOut}, {vL16}, {sWS}, {sT[1]} offen sc1')
A.label('Laux_end')
write_stamps(0, 'aux')
E('s_endpgm')
load_state(st_aux0)
A.label('Lmst')
sKy0 = S.alloc('key0'); sKy1 = S.alloc('key1')
E([f's_cmp_lg_u32 {sWv}, 0', 's_cbranch_scc1 Lend', 's_waitcnt lgkmcnt(0)'] + get_tag() + ['s_waitcnt lgkmcnt(0)'] + fin_tag() + signal() + [f's_cmp_lg_u32 {sA}, 32', 's_cbranch_scc1 Lend'])
E([('L', 'Lmst_bc')] + poll_top2(vt, sKy0, sKy1, sT) + [f'v_mov_b32 {vt[4]}, {sKy0}', f'v_mov_b32 {vt[5]}, {sTag}', f'v_mov_b32 {vt[6]}, {sKy1}', f'v_mov_b32 {vt[7]}, {sTag}',
   f'v_lshlrev_b32 {vt[0]}, 7, {vLane}', f's_mov_b32 {sT[0]}, {WS_BC}'])
for i in range(4): E([f'buffer_store_dwordx4 {vt[4:8]}, {vt[0]}, {sWS}, {sT[0]} offen sc1', f's_add_u32 {sT[0]}, {sT[0]}, 8192'])
E([f's_mov_b32 {sT[0]}, {WS_SIG}', ('L', 'Lmaster')] + spin_guard() +
  ['s_sleep 16', f'buffer_load_dwordx4 {vt[0:4]}, {vL16}, {sWS}, {sT[0]} offen sc1', W('all')] + [f'v_xor_b32 {vt[i]}, {sTag}, {vt[i]}' for i in range(4)] +
  [f'v_or3_b32 {vt[0]}, {vt[0]}, {vt[1]}, {vt[2]}', f'v_or_b32 {vt[0]}, {vt[0]}, {vt[3]}', f'v_cmp_ne_u32 vcc, 0, {vt[0]}', 's_cbranch_vccnz Lmaster',
   's_mov_b64 exec, 1', f'buffer_store_dword {vt[5]}, {vt[0]}, {sWS}, 0 offen sc1'])
A.label('Lend')
A('s_endpgm')
A.raw(f'''.section .rodata,"a"
.p2align 6
.amdhsa_kernel {NAME}_kernel
  .amdhsa_next_free_vgpr 256
  .amdhsa_next_free_sgpr 102
  .amdhsa_accum_offset 128
  .amdhsa_group_segment_fixed_size 0
  .amdhsa_kernarg_size 88
  .amdhsa_user_sgpr_count 2
  .amdhsa_user_sgpr_kernarg_segment_ptr 1
  .amdhsa_system_sgpr_workgroup_id_x 1
  .amdhsa_float_denorm_mode_32 3
.end_amdhsa_kernel''')
txt = A.render()
open(sys.argv[1], 'w').write(txt)
print('lines', txt.count('\n'), 'nops added', A.nops_added, 'vmax', V.maxused, 'amax', AG.maxused, 'smax', S.maxused, file=sys.stderr)
```

```python
import sys, math, struct
from asmlib import Asm, RegAlloc, Reg
NAME = "recurrent_scan__sliding_local_dilated__moe_arch_mod__prompt"
OPTS = set(sys.argv[2:])
STAMPS = 'stamps' in OPTS
def opt(name, default):
    for o in OPTS:
        if o.startswith(name + '='): return type(default)(o[len(name) + 1:])
    return default
DUMP = opt('dump', '')
NT = {k: (' nt' if k in opt('nt', 'F') else '') for k in 'WXOFRS'}
STAMPW = opt('sw', 2)

def f32(x): return '0x%08x' % struct.unpack('<I', struct.pack('<f', x))[0]
L2E = math.log2(math.e)

def tables():
    U = []; SL = []
    for cc in range(5):
        h0 = (16 * cc) // 5
        slot = [((16 * cc + q) // 5) - h0 for q in range(16)]
        s1 = [q for q in range(16) if slot[q] == 1]; s2 = [q for q in range(16) if slot[q] == 2]
        t0 = s1[:4]; e1 = s1[4]; t3 = s2[1:]; e2 = s2[0]
        rest = [q for q in range(16) if q not in t0 and q not in t3]
        t1 = []; t2 = []
        for res in range(4):
            pair = [q for q in rest if q % 4 == res]
            if e1 in pair: a = e1; b = pair[0] if pair[1] == e1 else pair[1]
            elif e2 in pair: b = e2; a = pair[0] if pair[1] == e2 else pair[1]
            else: a, b = pair
            t1.append(a); t2.append(b)
        tl = [sorted(t0, key=lambda q: q % 4), t1, t2, sorted(t3, key=lambda q: q % 4)]
        u = 0; sl = 0
        for t in range(4):
            for g in range(4):
                q = tl[t][g]
                u |= (q // 4) << (2 * (4 * t + g)); sl |= slot[q] << (2 * (4 * t + g))
        U.append(u); SL.append(sl)
    return U, SL
UT, SLT = tables()

SLOT = 39040; VOFF = 16384; XOFF = 24576; ONES_OFF = 38912; NSL = 4; ND = 4; NI = 10 - ND
SCR = 4 * SLOT
L_M = SCR; L_R = SCR + 512; L_CS = SCR + 1024
L_CSV = SCR + 1536
L_CSF = SCR + 1792; L_UF = SCR + 1796; L_INFO = SCR + 1800; L_QF = SCR + 1808; L_C2 = SCR + 1812; L_C3 = SCR + 1816; L_WF = SCR + 1820; L_LD = SCR + 1824; L_DN = SCR + 1856; L_UPD = SCR + 2048; SENT = -2
EXB = 2 * SLOT + XOFF; VXB = 3 * SLOT + XOFF
OWIN = [0, SLOT + XOFF]
OLOC = [0, 8192, XOFF, EXB + 20480, SLOT + XOFF + 16384, XOFF + 8192, XOFF + 16384, SLOT + XOFF, SLOT + XOFF + 8192]
KLOC = [b + 4096 * kk for b in OLOC for kk in range(2)] + [XOFF + 24576, SLOT + XOFF + 24576]
LDS_BYTES = 163840
WS_SX = 0x100000; WS_O = 0x400000; WS_FL = 0x700000; WS_Y = 0x710000; WS_ST = 0x800000; WS_STAT = 0x7d0000; WS_XS = 0x7a0000; WS_XF = 0x7c0000; WS_SIG = 0x7f0000; WS_BC = 0x7e0000; WS_DUMP = 0x1000000
DBG_VAL = 64; DBG_IDX = 192
NSIG = 220 + 27
NEG_INF = '0xff800000'
SCALE_L2E = (20 ** -0.5) * L2E
MFMA = 'v_mfma_f32_16x16x32_bf16'

A = Asm()
V = RegAlloc('v', 1, 128); AG = RegAlloc('a', 0, 128); S = RegAlloc('s', 3, 102)

class Em:
    def __init__(self): self.vm = []; self.lg = []
    def reset(self): self.vm = []; self.lg = []
    def cnt(self, q, tag, mx):
        if tag == 'all': n = 0
        elif tag not in q: return None
        else: n = len(q) - 1 - max(i for i, t in enumerate(q) if t == tag)
        n = min(n, mx)
        del q[:len(q) - n]
        return n
    def __call__(self, it):
        if isinstance(it, list):
            for x in it: self(x)
            return
        if isinstance(it, tuple) and it[0] == 'W':
            parts = []
            if it[1] is not None:
                n = self.cnt(self.vm, it[1], 63)
                if n is not None: parts.append(f'vmcnt({n})')
            if it[2] is not None:
                n = self.cnt(self.lg, it[2], 15)
                if n is not None: parts.append(f'lgkmcnt({n})')
            if parts: A('s_waitcnt ' + ' '.join(parts))
            return
        if isinstance(it, tuple) and it[0] == 'L': A.label(it[1]); return
        if isinstance(it, tuple) and it[0] == 'R': A(it[1]); return
        text, tag = (it, None) if isinstance(it, str) else it
        if text.startswith('ds_'):
            if 'lgthr' in OPTS and len(self.lg) >= 15: A('s_waitcnt lgkmcnt(14)'); del self.lg[:len(self.lg) - 14]
            self.lg.append(tag)
        elif text.startswith('buffer_'):
            if len(self.vm) >= 63: A('s_waitcnt vmcnt(55)'); del self.vm[:len(self.vm) - 55]
            self.vm.append(tag)
        A(text)
E = Em()
def W(vm=None, lg=None): return ('W', vm, lg)

def merge(a, b, na=1, nb=1):
    out = []; i = j = 0
    while i < len(a) or j < len(b):
        out += a[i:i + na]; i += na
        out += b[j:j + nb]; j += nb
    return out
def spread(a, b):
    out = []; j = 0
    for i, x in enumerate(a):
        out.append(x)
        while j < len(b) and j * len(a) < (i + 1) * len(b): out.append(b[j]); j += 1
    return out + b[j:]

sST = []
FINE = opt('fine', '')
def fstamp(grp):
    return stamp(True) if grp == FINE else []
def stamp(force=False):
    if not STAMPS: return []
    if FINE and not force and len(sST) > 0: return []
    r = S.alloc(f'stamp{len(sST)}', 2); sST.append(r)
    return [f's_memtime {r}' if 'clk' in OPTS else f's_memrealtime {r}']
def bf16r(dst, src): return [f'v_cvt_pk_bf16_f32 {dst}, {src}, {src}', f'v_lshlrev_b32 {dst}, 16, {dst}']
def mk_srd(dst, ptr, nbytes, add=0):
    if add > 0: L = [f's_add_u32 {dst[0]}, {ptr[0]}, {add}', f's_addc_u32 {dst[1]}, {ptr[1]}, 0']
    elif add < 0: L = [f's_sub_u32 {dst[0]}, {ptr[0]}, {-add}', f's_subb_u32 {dst[1]}, {ptr[1]}, 0']
    else: L = [f's_mov_b64 {dst[0:2]}, {ptr}']
    return L + [f's_mov_b32 {dst[2]}, {nbytes - add}', f's_mov_b32 {dst[3]}, 0x20000']
def spin_guard(): return [f's_sub_u32 {sSpin}, {sSpin}, 1', 's_cbranch_scc1 Lend']
def stats(sumreg, sq4, st, tmp, vdiag, mk1, mk2):
    return [f'v_cndmask_b32 {tmp[0]}, {sq4[0]}, {sq4[1]}, {mk1}', f'v_cndmask_b32 {tmp[1]}, {sq4[2]}, {sq4[3]}, {mk1}',
            f'v_cndmask_b32 {tmp[0]}, {tmp[0]}, {tmp[1]}, {mk2}', (f'ds_bpermute_b32 {tmp[0]}, {vdiag}, {tmp[0]}', 'bp'),
            f'v_mul_f32 {tmp[1]}, {f32(-1 / 640)}, {sumreg}'] + bf16r(st[0], tmp[1]) + [f'v_mul_f32 {tmp[1]}, {tmp[1]}, {tmp[1]}',
            f'v_mov_b32 {tmp[2]}, {f32(1 / 640)}', W(lg='bp'),
            f'v_fma_f32 {tmp[0]}, {tmp[0]}, {tmp[2]}, -{tmp[1]}', f'v_max_f32 {tmp[0]}, 0, {tmp[0]}'] + bf16r(tmp[0], tmp[0]) + \
           [f'v_add_f32 {tmp[0]}, {f32(1e-5)}, {tmp[0]}'] + bf16r(tmp[0], tmp[0]) + [f'v_sqrt_f32 {tmp[0]}, {tmp[0]}'] + bf16r(tmp[0], tmp[0]) + \
           [f'v_rcp_f32 {st[1]}, {tmp[0]}']
def wave_max_u32(r, sdst, st):
    return [f'v_max_u32_dpp {r}, {r}, {r} row_ror:{sh} row_mask:0xf bank_mask:0xf' for sh in (8, 4, 2, 1)] + \
           [f'v_readlane_b32 {sdst}, {r}, 0', f'v_readlane_b32 {st[0]}, {r}, 16', f'v_readlane_b32 {st[1]}, {r}, 32', f'v_readlane_b32 {st[2]}, {r}, 48',
            f's_max_u32 {sdst}, {sdst}, {st[0]}', f's_max_u32 {st[1]}, {st[1]}, {st[2]}', f's_max_u32 {sdst}, {sdst}, {st[1]}']
def poll_top2(t, sK0, sK1, st):
    L = A.newlabel('Lpt'); Ld = A.newlabel('Lptd')
    return [('L', L)] + spin_guard() + [
        f'buffer_load_dword {t[0]}, {vL4}, {sDBG}, 0 offen offset:{DBG_VAL} sc1',
        f'v_lshrrev_b32 {t[1]}, 1, {vL4}', f'v_and_b32 {t[1]}, 0x3c, {t[1]}', f'v_add_u32 {t[1]}, 128, {t[1]}', W('all'),
        f'ds_bpermute_b32 {t[1]}, {t[1]}, {t[0]}', f'v_and_b32 {t[2]}, 4, {vL4}', f'v_lshlrev_b32 {t[2]}, 2, {t[2]}', W(lg='all'),
        f'v_bfe_u32 {t[1]}, {t[1]}, {t[2]}, 16', f'v_cmp_ne_u32 vcc, 0, {t[0]}', f'v_cmp_ne_u32 {st[0:2]}, 0, {t[1]}',
        f's_and_b32 {st[0]}, {st[0]}, vcc_lo', f's_cmp_eq_u32 {st[0]}, -1', f's_cbranch_scc1 {Ld}', 's_sleep 2', f's_branch {L}', ('L', Ld),
        f'v_lshlrev_b32 {t[2]}, 4, {vL4}', f'v_and_b32 {t[3]}, 63, {t[1]}', f'v_add_u32 {t[3]}, {t[3]}, {t[2]}', f'v_sub_u32 {t[3]}, 2047, {t[3]}',
        f'v_bfe_u32 {t[1]}, {t[1]}, 6, 6', f'v_add_u32 {t[1]}, {t[1]}, {t[2]}', f'v_sub_u32 {t[1]}, 2047, {t[1]}',
        f'v_and_b32 {t[2]}, 0xffff0000, {t[0]}', f'v_or_b32 {t[3]}, {t[3]}, {t[2]}', f'v_lshl_or_b32 {t[1]}, {t[0]}, 16, {t[1]}',
        f'v_cmp_gt_u32 vcc, 128, {vL4}', f'v_cndmask_b32 {t[3]}, 0, {t[3]}, vcc', f'v_cndmask_b32 {t[1]}, 0, {t[1]}, vcc', f'v_mov_b32 {t[0]}, {t[3]}'] + \
        wave_max_u32(t[0], sK0, st) + [f'v_cmp_eq_u32 vcc, {sK0}, {t[3]}', f'v_cndmask_b32 {t[0]}, {t[3]}, {t[1]}, vcc'] + wave_max_u32(t[0], sK1, st)
def round_pairs(x, n):
    L = [f'v_cvt_pk_bf16_f32 {x[i + 1]}, {x[i]}, {x[i + 1]}' for i in range(0, n, 2)]
    for i in range(0, n, 2): L += [f'v_lshlrev_b32 {x[i]}, 16, {x[i + 1]}', f'v_and_b32 {x[i + 1]}, 0xffff0000, {x[i + 1]}']
    return L
def silu_into(g, z, n):
    return [f'v_mul_f32 {g[i]}, {f32(-L2E)}, {z[i]}' for i in range(n)] + [f'v_exp_f32 {g[i]}, {g[i]}' for i in range(n)] + \
           [f'v_add_f32 {g[i]}, 1.0, {g[i]}' for i in range(n)] + [f'v_rcp_f32 {g[i]}, {g[i]}' for i in range(n)] + \
           [f'v_mul_f32 {g[i]}, {g[i]}, {z[i]}' for i in range(n)] + round_pairs(g, n)
def cvt2(dst, acc): return [f'v_cvt_pk_bf16_f32 {dst[0]}, {acc[0]}, {acc[1]}', f'v_cvt_pk_bf16_f32 {dst[1]}, {acc[2]}, {acc[3]}']
def tr_parts(vrow, vphi32, vc, tmp):
    return [f'v_bfe_u32 {tmp}, {vLane}, 2, 2', f'v_and_b32 {vc}, 3, {vLane}', f'v_lshl_add_u32 {vrow}, {vG}, 3, {tmp}', f'v_lshlrev_b32 {vrow}, 7, {vrow}',
            f'v_lshlrev_b32 {vphi32}, 2, {vLane}', f'v_and_b32 {vphi32}, 0x60, {vphi32}']
def save_state(): return (dict(V.used), set(V.taken), dict(S.used), set(S.taken), dict(AG.used), set(AG.taken), list(sST))
def load_state(st):
    V.used, V.taken, S.used, S.taken, AG.used, AG.taken = [x.copy() for x in st[:6]]; sST[:] = st[6]; E.reset()
def write_stamps(who, kind):
    if not STAMPS: return
    E([W('all')] + stamp(True) + ['s_waitcnt lgkmcnt(0)', f's_cmp_lg_u32 {sWv}, {who}', 's_cbranch_scc1 Lend',
       f's_mul_i32 {sT[0]}, s2, 128', f's_add_u32 {sT[0]}, {sT[0]}, {WS_ST}', 's_mov_b64 exec, 1', f'v_mov_b32 {vt[2]}, 0'])
    print(kind, 'stamps', len(sST), file=sys.stderr)
    lk = opt('leak', -1)
    if lk >= 0 and kind == opt('leakk', 'main'):
        Lp = A.newlabel('Lpad')
        E([f's_sub_u32 {sT[1]}, {sST[lk][0]}, {sST[0][0]}', f's_mul_i32 {sT[1]}, {sT[1]}, 5', f's_add_u32 {sT[1]}, {sT[1]}, 3000', ('L', Lp), f's_memrealtime {sT[2:4]}', 's_waitcnt lgkmcnt(0)',
           f's_sub_u32 {sT[2]}, {sT[2]}, {sST[0][0]}', f's_cmp_lt_u32 {sT[2]}, {sT[1]}', f's_cbranch_scc1 {Lp}'])
    for i in range(16):
        j = min(i, len(sST) - 1)
        E([f'v_mov_b32 {vt[0]}, {sST[j][0]}', f'v_mov_b32 {vt[1]}, {sST[j][1]}', f'buffer_store_dwordx2 {vt[0:2]}, {vt[2]}, {sWS}, {sT[0]} offen offset:{8 * i}', 's_nop 1'])
def signal():
    return ['s_mov_b64 exec, 1', f's_lshl_b32 {sT[0]}, s2, 2', f's_add_u32 {sT[0]}, {sT[0]}, {WS_SIG}', f'v_mov_b32 {vt[0]}, {sTag}', f'v_mov_b32 {vt[1]}, {sT[0]}',
            f'buffer_store_dword {vt[0]}, {vt[1]}, {sWS}, 0 offen sc1', 's_mov_b64 exec, -1']

sKA = S.alloc('ka', 16); sKB = S.alloc('kb', 6, 4)
sWS = S.alloc('srdws', 4); sDBG = S.alloc('srddbg', 4)
sWv = S.alloc('wv'); sW = S.alloc('w'); sH = S.alloc('h'); sRB = S.alloc('rb'); sC = S.alloc('c')
sT = S.alloc('t', 4); sTag = S.alloc('tag'); sSpin = S.alloc('spin')
A.raw(f'''; @launch grid=(256,1,1) block=(512,1,1) lds={LDS_BYTES}
.amdgcn_target "amdgcn-amd-amdhsa--gfx950"
.text
.globl {NAME}_kernel
.p2align 8
.type {NAME}_kernel,@function
{NAME}_kernel:''')
vLane = V.alloc('lane'); vG = V.alloc('g'); vTt = V.alloc('t16'); vt = V.alloc('vt', 8); vL4 = V.alloc('lane4'); vL16 = V.alloc('lane16')
pX, pW, pWO, pWR, pWG, pWU, pWD = sKA[0:2], sKA[2:4], sKA[4:6], sKA[8:10], sKA[10:12], sKA[12:14], sKA[14:16]
pOUT, pDBG, pWS = sKB[0:2], sKB[2:4], sKB[4:6]
E([f's_load_dwordx16 {sKA}, s[0:1], 0', f's_load_dwordx4 {sKB[0:4]}, s[0:1], 64', f's_load_dwordx2 {sKB[4:6]}, s[0:1], 80'] + stamp() +
  [f'v_lshrrev_b32 {vt[0]}, 6, v0', f'v_and_b32 {vLane}, 63, v0', 's_cmp_ge_u32 s2, 256', 's_cbranch_scc1 Lend',
   f'v_readfirstlane_b32 {sWv}, {vt[0]}'] + ([] if 'nopf' in OPTS else [
   f's_getpc_b64 {sT[0:2]}', ('L', 'Lpc'), f's_and_b32 {sT[2]}, s2, 0xf8', f'v_add_u32 {vt[1]}, {sT[2]}, {vt[0]}', f'v_and_b32 {vt[2]}, 1, v0', f'v_lshl_add_u32 {vt[1]}, {vt[1]}, 1, {vt[2]}',
   f'v_lshlrev_b32 {vt[1]}, 7, {vt[1]}', f'v_min_u32 {vt[1]}, Lend-Lpc, {vt[1]}', f'v_mov_b32 {vt[3]}, {sT[1]}', f'v_add_co_u32 {vt[2]}, vcc, {sT[0]}, {vt[1]}',
   f'v_addc_co_u32 {vt[3]}, vcc, 0, {vt[3]}, vcc', f'global_load_dword v0, {vt[2:4]}, off']) + [f'v_lshrrev_b32 {vG}, 4, {vLane}', f'v_and_b32 {vTt}, 15, {vLane}',
   f'v_lshlrev_b32 {vL4}, 2, {vLane}', f'v_lshlrev_b32 {vL16}, 4, {vLane}', f's_mov_b32 {sSpin}, 200000',
   f's_and_b32 {sT[0]}, s2, 7', f's_lshr_b32 {sT[1]}, s2, 3', f's_and_b32 {sT[2]}, {sT[0]}, 1', f's_lshr_b32 {sT[0]}, {sT[0]}, 1', f's_add_u32 {sT[3]}, {sT[2]}, 4',
   f's_and_b32 {sW}, {sWv}, 3', f's_lshr_b32 {sH}, {sWv}, 2',
   f's_cmp_lt_u32 {sT[1]}, {sT[3]}', 's_cbranch_scc1 Laux'])
st_common = save_state()
if 'nomain' in OPTS: E('s_endpgm')
def get_tag():
    return mk_srd(sWS, pWS, 0x10000000, opt('wsoff', 0) << 20) + mk_srd(sDBG, pDBG, 256) + [f's_load_dword {sTag}, {sWS[0:2]}, 0']
def fin_tag(): return [f's_add_u32 {sTag}, {sTag}, 0x9e3779b8', f's_or_b32 {sTag}, {sTag}, 1']
if opt('map', 1) == 0:
    E([f's_mul_i32 {sT[0]}, {sT[0]}, 55', f's_mul_i32 {sT[2]}, {sT[2]}, 28', f's_add_u32 {sT[0]}, {sT[0]}, {sT[2]}', f's_add_u32 {sT[0]}, {sT[0]}, {sT[1]}',
       f's_sub_u32 {sT[0]}, {sT[0]}, {sT[3]}', f's_mul_i32 {sRB}, {sT[0]}, 6554', f's_lshr_b32 {sRB}, {sRB}, 16', f's_mul_i32 {sT[1]}, {sRB}, 10', f's_sub_u32 {sC}, {sT[0]}, {sT[1]}'])
else:
    E([f's_lshr_b32 {sC}, {sT[0]}, 1', f's_and_b32 {sT[0]}, {sT[0]}, 1',
       f's_mul_i32 {sT[0]}, {sT[0]}, 55', f's_mul_i32 {sT[2]}, {sT[2]}, 28', f's_add_u32 {sT[0]}, {sT[0]}, {sT[2]}', f's_add_u32 {sT[0]}, {sT[0]}, {sT[1]}',
       f's_sub_u32 {sT[0]}, {sT[0]}, {sT[3]}', f's_mul_i32 {sRB}, {sT[0]}, 13108', f's_lshr_b32 {sRB}, {sRB}, 16', f's_mul_i32 {sT[1]}, {sRB}, 5', f's_sub_u32 {sT[0]}, {sT[0]}, {sT[1]}',
       f's_mul_i32 {sC}, {sC}, 5', f's_add_u32 {sC}, {sC}, {sT[0]}'])
sCC = S.alloc('cc'); sU = S.alloc('U'); sS0 = S.alloc('s0')
TP = [int(x) for x in opt('tp', '1,2,3,4,5').split(',')]
SEQ = []
for p in range(5):
    ev = [(2 * p + 2 * i) % 10 for i in range(5)]
    od = [2 * q + 1 for q in sorted(range(5), key=lambda q: (TP[q], (q - p) % 5)) if q != p]
    SEQ.append(ev[:TP[p]] + [2 * p + 1] + ev[TP[p]:] + od)
SEQT = [sum(k << (4 * i) for i, k in enumerate(q)) for q in SEQ]; INVT = [sum(q.index(k) << (4 * k) for k in range(10)) for q in SEQ]
E([f's_add_u32 {sS0}, {sC}, {sRB}', f's_mul_i32 {sT[0]}, {sS0}, 13108', f's_lshr_b32 {sT[0]}, {sT[0]}, 16', f's_mul_i32 {sT[0]}, {sT[0]}, 5', f's_sub_u32 {sS0}, {sS0}, {sT[0]}'])
def sel_p(dst, tab):
    L = [f's_mov_b32 {dst[0]}, {tab[0] & 0xffffffff:#x}', f's_mov_b32 {dst[1]}, {tab[0] >> 32:#x}']
    for p in range(1, 5): L += [f's_cmp_eq_u32 {sS0}, {p}', f's_cselect_b32 {dst[0]}, {tab[p] & 0xffffffff:#x}, {dst[0]}', f's_cselect_b32 {dst[1]}, {tab[p] >> 32:#x}, {dst[1]}']
    return L
def sel_cc(dst, tab):
    L = [f's_mov_b32 {dst}, {tab[0]:#x}']
    for cc in range(1, 5): L += [f's_cmp_eq_u32 {sCC}, {cc}', f's_cselect_b32 {dst}, {tab[cc]:#x}, {dst}']
    return L
calc_cc = [f's_sub_u32 {sT[0]}, {sC}, 5', f's_cmp_ge_u32 {sC}, 5', f's_cselect_b32 {sCC}, {sT[0]}, {sC}'] + sel_cc(sU, UT)
vOnes = V.alloc('ones', 4); vrow = V.alloc('trrow'); vPhi = V.alloc('phi32'); vWr = V.alloc('wr', 8)
def calc_wr(secoff):
    vc = vt[4]
    L = tr_parts(vrow, vPhi, vc, vt[3]) + [f'v_lshlrev_b32 {vt[6]}, 1, {vc}', f'v_add_u32 {vt[5]}, {secoff}, {vrow}']
    for t in range(4):
        L += [f'v_add_u32 {vt[7]}, {8 * t}, {vt[6]}', f'v_bfe_u32 {vt[7]}, {sU}, {vt[7]}, 2', f'v_lshl_add_u32 {vt[7]}, {vt[7]}, 2, {vc}', f'v_lshlrev_b32 {vt[7]}, 3, {vt[7]}',
              f'v_xad_u32 {vWr[t]}, {vt[7]}, {vPhi}, {vt[5]}']
    return L + [f'v_add_u32 {vWr[4 + t]}, {2 * SLOT}, {vWr[t]}' for t in range(4)]
def trs(dst, areg, off, tag): return [(f'ds_read_b64_tr_b16 {dst[2 * h:2 * h + 2]}, {areg} offset:{off + h * 512}', tag) for h in range(2)]
def cnt_arrive(addr, va, vb): return [f'v_mov_b32 {va}, {addr}', f'v_mov_b32 {vb}, 1', 's_mov_b64 exec, 1', f'ds_add_u32 {va}, {vb}', 's_mov_b64 exec, -1']
def cnt_wait(n, va, vb, slp=0):
    L = A.newlabel('Lcw')
    return [('L', L)] + spin_guard() + ([f's_sleep {slp}'] if slp else []) + [f'ds_read_b32 {vb}, {va}', W(lg='all'), f'v_readfirstlane_b32 {sT[2]}, {vb}', f's_cmp_lt_u32 {sT[2]}, {n}', f's_cbranch_scc1 {L}']
set_ones = [f'v_mov_b32 {vOnes[i]}, 0x3f803f80' for i in range(4)]
E([f's_cmp_lg_u32 {sWv}, 0', 's_cbranch_scc1 Lcomp'])
st_main = save_state()
pos_comp = len(A.lines)
A.label('Lcomp')

sTau = S.alloc('tau'); sOUT = S.alloc('srdout', 4)
acc = V.alloc('acc', 32); B1 = V.alloc('B1', 16); B2 = V.alloc('B2', 16); B3 = V.alloc('B3', 16)
vXb = V.alloc('xb', 8); vPM = V.alloc('pm', 4); vSt = V.alloc('st', 4); vVr = B2[8:12]
vXe = V.alloc('xea'); vEx = V.alloc('exa'); vScB = V.alloc('scb'); vSc = [vSt[3], vScB]
vXr = B2[0:8]; accV = B1
sVx = S.alloc('vx')
E([f's_lshl_b32 {sTau}, {sW}, 1', f's_add_u32 {sTau}, {sTau}, {sH}'] + calc_cc + [f's_lshl_b32 {sT[1]}, {sH}, 13', f's_cmp_eq_u32 {sTau}, 1', f's_cselect_b32 {sT[1]}, 0, {sT[1]}'] + calc_wr(sT[1]))
E([f'v_lshrrev_b32 {vt[6]}, 1, {vTt}', f'v_xor_b32 {vt[5]}, {vt[6]}, {vG}', f'v_lshlrev_b32 {vt[5]}, 4, {vt[5]}', f'v_lshl_add_u32 {vt[5]}, {vTt}, 7, {vt[5]}',
   f's_lshl_b32 {sT[0]}, {sTau}, 11', f's_xor_b32 {sT[2]}, {sT[0]}, 2048', f's_add_u32 {sT[0]}, {sT[0]}, {XOFF - 2048}', f's_add_u32 {sT[2]}, {sT[2]}, {XOFF - 2048}',
   f'v_add_u32 {vXr[0]}, {sT[0]}, {vt[5]}', f'v_add_u32 {vXr[2]}, {sT[2]}, {vt[5]}',
   f's_mul_i32 {sT[3]}, {sW}, 6144', f's_add_u32 {sT[3]}, {sT[3]}, {EXB - 4096}', f'v_add_u32 {vEx}, {sT[3]}, {vL16}',
   f's_lshl_b32 {sVx}, {sTau}, 11', f's_add_u32 {sVx}, {sVx}, {VXB - 2048}',
   's_waitcnt lgkmcnt(0)'] + get_tag() + [f's_cmp_eq_u32 {sTau}, 1', 's_cbranch_scc1 Lhalo'])
vLa = V.alloc('lda'); vLd = vt[4]; vDv = vt[5]; vDa = vt[6]
stubs = []
def ld_read(): return [] if BAR else (f'ds_read_b32 {vLd}, {vLa}', 'ld')
BAR = opt('sync', 'bar') == 'bar'
def ld_check(s, who):
    if BAR: return ['s_barrier']
    return [W(lg='ld'), ('L', f'Lld{who}{s}'), f'v_cmp_ge_u32 vcc, {s}, {vLd}', f's_cbranch_vccz Lld{who}{s}_ok'] + spin_guard() + \
           ([f's_sleep {opt("slp", 1)}'] if opt("slp", 1) else []) + [('R', f'ds_read_b32 {vLd}, {vLa}'), 's_waitcnt lgkmcnt(0)', f's_branch Lld{who}{s}', ('L', f'Lld{who}{s}_ok')]
def dn_write(s): return [] if BAR else [f'v_mov_b32 {vDv}, {s + 2 + opt("skew", 0)}', f'ds_write_b32 {vDa}, {vDv}']
sync_setup = [f'v_mov_b32 {vLa}, {L_LD}', f's_lshl_b32 {sT[0]}, {sWv}, 2', f's_add_u32 {sT[0]}, {sT[0]}, {L_DN}', f'v_mov_b32 {vDa}, {sT[0]}']
st_halo = save_state()
sP4 = S.alloc('p4')
E([f'v_xor_b32 {vXr[1]}, 64, {vXr[0]}', f'v_xor_b32 {vXr[3]}, 64, {vXr[2]}'] + [f'v_add_u32 {vXr[4 + j]}, {2 * SLOT}, {vXr[j]}' for j in range(4)] +
  [f's_cmp_eq_u32 {sH}, 0', 's_cselect_b64 vcc, 0, -1', f's_sub_u32 {sT[1]}, {VOFF}, {sT[1]}', f'v_cndmask_b32 {vVr[0]}, {vWr[0]}, {vWr[2]}, vcc', f'v_cndmask_b32 {vVr[1]}, {vWr[1]}, {vWr[3]}, vcc',
   f'v_add_u32 {vVr[0]}, {sT[1]}, {vVr[0]}', f'v_add_u32 {vVr[1]}, {sT[1]}, {vVr[1]}', f'v_add_u32 {vVr[2]}, {2 * SLOT}, {vVr[0]}', f'v_add_u32 {vVr[3]}, {2 * SLOT}, {vVr[1]}',
   f'v_lshrrev_b32 {vt[4]}, 1, {vG}', f'v_xor_b32 {vt[4]}, {vt[4]}, {vt[6]}', f'v_lshlrev_b32 {vt[4]}, 4, {vt[4]}', f'v_lshl_add_u32 {vt[4]}, {vTt}, 7, {vt[4]}',
   f'v_and_b32 {vt[3]}, 1, {vG}', f'v_lshl_add_u32 {vXe}, {vt[3]}, 3, {vt[4]}'] + [f's_lshl_b32 {sP4}, {sS0}, 12' if opt('orot', 1) else f's_mov_b32 {sP4}, 0'] + sel_p(sT[2:4], INVT) + [f's_lshl_b32 {sS0}, {sC}, 2', f's_lshr_b64 {sT[2:4]}, {sT[2:4]}, {sS0}', f's_and_b32 {sS0}, {sT[2]}, 15',
   f's_and_b32 {sT[2]}, {sS0}, 3', f's_mul_i32 {sT[2]}, {sT[2]}, {SLOT}', f's_add_u32 {sT[2]}, {sT[2]}, {sT[0]}', f'v_add_u32 {vt[0]}, {sT[2]}, {vXe}',
   f'v_xor_b32 {vt[1]}, 32, {vt[0]}', f'v_xor_b32 {vt[2]}, 64, {vt[0]}', f'v_xor_b32 {vt[3]}, 0x60, {vt[0]}'] + mk_srd(sOUT, pOUT, 2048 * 1280) + set_ones)
S.free('ka', 'kb')
sSL = S.alloc('SL'); sM = {}
E(sel_cc(sSL, SLT))
for t in (1, 2):
    E([f'v_lshlrev_b32 {vt[6]}, 1, {vG}', f'v_add_u32 {vt[6]}, {8 * t}, {vt[6]}', f'v_bfe_u32 {vt[6]}, {sSL}, {vt[6]}, 2'])
    for sl in (0, 3, t):
        sM[(sl, t)] = S.alloc(f'm{sl}{t}', 2); E(f'v_cmp_eq_u32 {sM[(sl, t)]}, {sl}, {vt[6]}')
S.free('SL', 'U')
def lmask(f): return sum(1 << l for l in range(64) if f(l >> 4, l & 15))
MCA = lmask(lambda g, t: t - 4 * g - (t & 1) >= 0); MCB = lmask(lambda g, t: t - 4 * g - 2 - (t & 1) >= 0)
sK1 = S.alloc('k1', 2); sCA = S.alloc('ca', 2); sCB = S.alloc('cb', 2); sFirst = S.alloc('first')
sOb = S.alloc('ob', 6, 1); sOst = S.alloc('ost'); sFl = S.alloc('fl'); sSx = S.alloc('ssx', 3, 1); sNb = S.alloc('nb', 2, 1); sCs = S.alloc('cscale')
vRka = B3[0:2]; vSa = B3[2]; vCa = B3[3]; vQf = B3[4]
E([f's_mov_b32 {sK1[0]}, 0xaaaaaaaa', f's_mov_b32 {sK1[1]}, 0xaaaaaaaa',
   f's_mov_b32 {sCA[0]}, {MCA & 0xffffffff:#x}', f's_mov_b32 {sCA[1]}, {MCA >> 32:#x}', f's_mov_b32 {sCB[0]}, {MCB & 0xffffffff:#x}', f's_mov_b32 {sCB[1]}, {MCB >> 32:#x}',
   f'v_mov_b32 {vt[4]}, 0xffff', f'v_not_b32 {vt[5]}, {vt[4]}', f'v_cndmask_b32 {vt[4]}, {vt[4]}, {vt[5]}, {sK1}',
   f'v_cndmask_b32 {vPM[2]}, 0, {vt[4]}, {sCA}', f'v_cndmask_b32 {vPM[3]}, 0, {vt[4]}, {sCB}', f'v_xor_b32 {vPM[0]}, {vPM[2]}, {vt[4]}', f'v_xor_b32 {vPM[1]}, {vPM[3]}, {vt[4]}',
   f's_cmp_eq_u32 {sRB}, 0', f's_cselect_b32 {sT[0]}, {sTau}, 0', f's_cmp_eq_u32 {sT[0]}, 2', f's_cselect_b32 {sFirst}, {NEG_INF}, 0',
   f's_mul_i32 {sT[0]}, {sRB}, 6', f's_add_u32 {sT[0]}, {sT[0]}, {sTau}', f's_sub_u32 {sT[0]}, {sT[0]}, 2', f's_lshl_b32 {sFl}, {sT[0]}, 7', f's_add_u32 {sFl}, {sFl}, {WS_FL}',
   f's_mul_i32 {sOb[0]}, {sT[0]}, 20480', f's_add_u32 {sOb[0]}, {sOb[0]}, {WS_O}', f's_lshl_b32 {sT[0]}, {sC}, 11', f's_add_u32 {sOst}, {sT[0]}, {sOb[0]}'] +
  [x for i in range(1, 6) for x in (f's_add_u32 {sOb[i]}, {sOb[0]}, {sP4}', f's_add_u32 {sP4}, {sP4}, 4096', f's_cmp_eq_u32 {sP4}, 20480', f's_cselect_b32 {sP4}, 0, {sP4}')] +
  [f's_mul_i32 {sT[0]}, {sRB}, 10', f's_add_u32 {sT[0]}, {sT[0]}, {sC}', f's_mul_i32 {sSx[0]}, {sT[0]}, 6144', f's_lshl_b32 {sT[0]}, {sTau}, 10', f's_add_u32 {sSx[0]}, {sSx[0]}, {sT[0]}',
   f's_add_u32 {sSx[0]}, {sSx[0]}, {WS_SX - 2048}', f's_sub_u32 {sSx[1]}, {sSx[0]}, 6144', f's_add_u32 {sSx[2]}, {sSx[0]}, 6144',
   f's_cmp_eq_u32 {sCC}, 0', f's_cselect_b32 {sNb[0]}, 0, -1', f's_cmp_eq_u32 {sCC}, 4', f's_cselect_b32 {sNb[1]}, 0, -1', f's_lshl_b32 {sT[0]}, {sC}, 2', f'v_mov_b32 {B3[5]}, {sT[0]}',
   f's_mov_b32 {sCs}, {f32(SCALE_L2E)}',
   f's_lshl_b32 {sT[0]}, {sTau}, 6', f's_add_u32 {sT[0]}, {sT[0]}, {L_M}', f'v_lshl_add_u32 {vSa}, {vTt}, 2, {sT[0]}',
   f'v_and_b32 {vt[4]}, 1, {vLane}', f'v_lshl_add_u32 {vt[4]}, {vG}, 2, {vt[4]}', f'v_lshl_add_u32 {vt[4]}, {vt[4]}, 2, {sT[0]}', f'v_subrev_u32 {vt[5]}, 64, {vt[4]}',
   f'v_cndmask_b32 {vRka[0]}, {vt[5]}, {vt[4]}, {sCA}', f'v_cndmask_b32 {vRka[1]}, {vt[5]}, {vt[4]}, {sCB}',
   f'v_lshlrev_b32 {vCa}, 4, {vG}', f's_lshl_b32 {sT[0]}, {sH}, 8', f's_add_u32 {sT[0]}, {sT[0]}, {L_CS}', f'v_add_u32 {vCa}, {sT[0]}, {vCa}', f'v_mov_b32 {vQf}, {L_QF}'] +
  [f'v_mov_b32 {B3[8 + i]}, -1' for i in range(4)])
XK = AG.alloc('XK', 16 * ND); XT = AG.alloc('XT', 16); F = [AG.alloc('F0', 24), AG.alloc('F1', 24)]
AALL = Reg('a', 0, 128)
def XF(s, kk, pos):
    if s < NI: return XT[8 * kk + 4 * pos:8 * kk + 4 * pos + 4]
    b = (s - NI) * 16 + 8 * kk + 4 * pos; return XK[b:b + 4]
def sw(s): return (s % NSL) // 2
def so(s): return (s % 2) * SLOT
def v_reads(s, kk, fb, tag): return [x for i in range(2) for x in trs(fb[4 * i:4 * i + 4], vVr[2 * sw(s) + i], so(s) + kk * 4096, tag)]
def p1_reads(s, kk):
    L = [(f'ds_read_b128 {XF(s, kk, pos)}, {vXr[4 * sw(s) + 2 * pos + kk]} offset:{so(s)}', ('r', s, kk, 0)) for pos in range(2)]
    for t in range(4): L += trs(F[kk][4 * t:4 * t + 4], vWr[4 * sw(s) + t], so(s) + kk * 4096, ('r', s, kk, t))
    if s < NI:
        for i in range(2): L += trs(F[kk][16 + 4 * i:20 + 4 * i], vVr[2 * sw(s) + i], so(s) + kk * 4096, ('r', s, kk, 4 + i))
    return L
def v_mfmas(s, kk, fb):
    z = (s == 0 and kk == 0)
    return [f'{MFMA} {accV[8 * pos + 4 * i:8 * pos + 4 * i + 4]}, {XF(s, kk, pos)}, {fb[4 * i:4 * i + 4]}, {0 if z else accV[8 * pos + 4 * i:8 * pos + 4 * i + 4]}' for i in range(2) for pos in range(2)]
def p1_mfmas(s, kk, waits=True):
    z = (s == 0 and kk == 0); L = []
    for t in range(4):
        for pos in range(2):
            a = acc[pos * 16 + 4 * t:pos * 16 + 4 * t + 4]
            L.append(f'{MFMA} {a}, {F[kk][4 * t:4 * t + 4]}, {XF(s, kk, pos)}, {0 if z else a}')
    if s < NI: L += v_mfmas(s, kk, F[kk][16:24])
    if waits: L = [[W(lg=('r', s, kk, i // 2)), m] if i % 2 == 0 else m for i, m in enumerate(L)]
    return L
def mix(m, r, hi):
    if opt('fair', 1):
        m = list(m); q = len(m) // 2
        m[0] = [f's_setprio {hi}', m[0]]; m[q] = [f's_setprio {hi - 1}', m[q]]
    if opt('mix', 1) == 0: return merge(m, r, 1, 2)
    k = len(m) - opt('mixt', 0)
    return spread(m[:k], r) + m[k:]
E(sync_setup + [f'v_xor_b32 {vt[7]}, 16, {vDa}', f'v_cndmask_b32 {vLa}, {vLa}, {vt[7]}, {sK1}'] + (dn_write(-1) if opt('skew', 0) else []) + stamp())
if 'prioh' in OPTS: E([f's_cmp_eq_u32 {sH}, 0', 's_cbranch_scc1 Lnoprio', 's_setprio 1', ('L', 'Lnoprio')])
p1_start = len(A.lines)
LATE = opt('late', 0)
CLR = [opt('clr', 3), -1, -1] if LATE else [int(x) for x in opt('clrs', '2,4,6').split(',')]
clr_st = [(f'buffer_store_dwordx4 {B3[8:12]}, {vL16}, {sWS}, {sSx[0]} offen sc1', 'clr')] + [(f'buffer_store_dwordx4 {B3[8:12]}, {vL16}, {sWS}, {sOst} offen offset:{1024 * i} sc1', 'clr') for i in range(2)]
E([clr_st[i] for i in range(3) if CLR[i] == -1])
for s in range(10):
    A.comment(f'pass1 unit {s}')
    E(fstamp('cw'))
    if s in (0, 9): E([W(lg='all'), 's_barrier'])
    else: E(ld_check(s, 'c'))
    E(fstamp('cb'))
    if s == 0:
        E(stamp() + p1_reads(0, 0) + fin_tag())
    else:
        E(mix(p1_mfmas(s - 1, 1), p1_reads(s, 0), 3))
    for i in range(3):
        if s == CLR[i]: E(clr_st[i])
    if s == opt('flg', 8 if LATE else 9): E([f'v_mov_b32 {B3[6]}, {sTag}', W('clr'), 's_mov_b64 exec, 1', f'buffer_store_dword {B3[6]}, {B3[5]}, {sWS}, {sFl} offen sc1', 's_mov_b64 exec, -1'])
    E([f's_cmp_lg_u32 {sS0}, {s}', f's_cbranch_scc1 Lxe{s}'] + [('R', f'ds_read_b64 {vXb[2 * n:2 * n + 2]}, {vt[n]}') for n in range(4)] + [('L', f'Lxe{s}')])
    rd = p1_reads(s, 1)
    if s < 8: rd.insert(len(rd) - opt('ldp', 4), ld_read())
    if s < 8: rd += dn_write(s)
    if s == 9:
        rd += [f'ds_read_b32 {vSt[0]}, {vSa}', f'ds_read_b32 {vSt[1]}, {vSa} offset:512', f'v_xor_b32 {vSa}, 64, {vSa}', f'ds_read_b32 {vSt[2]}, {vSa}',
               f'ds_read_b32 {vSc[0]}, {vRka[0]} offset:512', f'ds_read_b32 {vSc[1]}, {vRka[1]} offset:520'] + [f'v_mov_b32 {vWr[4 + i]}, {vVr[i]}' for i in range(4)]
    E(mix(p1_mfmas(s, 0), rd, 1))
vVr = vWr[4:8]
def drop(pred): A.lines[p1_start:] = [l for l in A.lines[p1_start:] if not (l[0] == 'i' and pred(l[1]))]
if 'nomfma' in OPTS: drop(lambda t: t.startswith('v_mfma'))
if 'nords' in OPTS: drop(lambda t: t.startswith('ds_read'))
vCS = B2; vQ8 = acc[0:8]; vK16 = acc[16:32]
lastm = p1_mfmas(9, 1, False)
cs_reads = [f'ds_read_b32 {vt[3]}, {vQf}'] + [f'ds_read_b128 {vCS[4 * t:4 * t + 4]}, {vCa} offset:{64 * t}' for t in range(4)]
E([W(lg=('r', 9, 1, 3))] + lastm[1::2] + lastm[0::2][:2] + cs_reads + lastm[0::2][2:] + stamp())
E([W(lg='all'), ('L', 'Lqf'), f'v_readfirstlane_b32 {sT[2]}, {vt[3]}', f's_cmp_eq_u32 {sT[2]}, 0', 's_cbranch_scc1 Lqf_re'] + stamp())
def fix_qk(dst, a16, negm):
    L = []
    for t in range(4):
        L += [f'v_fmac_f32 {a16[4 * t + i]}, {vCS[4 * t + i]}, {negm}' for i in range(4)] + cvt2(dst[2 * t:2 * t + 2], a16[4 * t:4 * t + 4])
    return L
E([f's_cmp_eq_u32 {sH}, 0'] + fix_qk(vK16[0:8], acc[16:32], vSt[2]) + ['s_cbranch_scc0 Lh1'])
for h in range(2):
    if h: A.label('Lh1')
    E.lg = []
    E([f'ds_write_b128 {vEx}, {vK16[4 * i:4 * i + 4]} offset:{h * 2048 + i * 1024}' for i in range(2)])
    if h == 1: E(fix_qk(vK16[8:16], acc[0:16], vSt[0]) + [f'ds_write_b128 {vEx}, {vK16[8 + 4 * i:12 + 4 * i]} offset:{4096 + i * 1024}' for i in range(2)])
    E(cnt_arrive(L_C2, vt[1], vt[2]))
    if h == 0: E(fix_qk(vQ8, acc[0:16], vSt[0]) + [f'v_subrev_u32 {vt[0]}, 6144, {vEx}'])
    E([f'v_mov_b32 {vt[4 + i]}, {sFirst}' for i in range(4)] + cnt_wait(8, vt[1], vt[2]))
    if h == 0:
        E([f'ds_read_b128 {vK16[8 + 4 * i:12 + 4 * i]}, {vEx} offset:{2048 + i * 1024}' for i in range(2)] +
          [f'ds_read_b128 {vK16[4 * i:4 * i + 4]}, {vt[0]} offset:{4096 + i * 1024}' for i in range(2)] + ['s_branch Lh_join'])
    else:
        E([f'ds_read_b128 {vQ8[4 * i:4 * i + 4]}, {vEx} offset:{i * 1024}' for i in range(2)])
A.label('Lh_join')
E.lg = ['ex']
VF = Reg('a', XT.base, 64)
def tail_reads(k): return v_reads(NI + k // 2, k % 2, VF[8 * k:8 * k + 8], ('v', k))
E([(f'buffer_load_dword {vWr[0]}, {vL4}, {sWS}, {sFl} offen sc1', 'fl')] + tail_reads(0) + tail_reads(1) + [W(lg='ex')] + stamp())
vQ = B3
def QO(sl): return vQ[sl * 4:sl * 4 + 4]
KO = {1: 0, 0: 2, 3: 2, 2: 4}
def SA(sl, pc): return {0: vCS[0:8], 3: vCS[8:16], 1: acc[8:16], 2: vCS[0:8]}[sl][pc * 4:pc * 4 + 4]
def s_mfma(sl): return [f'{MFMA} {SA(sl, pc)}, {vK16[8 * pc + KO[sl]:8 * pc + KO[sl] + 4]}, {QO(sl)}, {0 if pc else vt[4:8]}' for pc in range(2)]
def mrg(sl):
    p = SA(sl, 0); c = SA(sl, 1); d = QO(sl)
    return [f'v_cndmask_b32 {p[0]}, {p[0]}, {p[1]}, {sK1}', f'v_cndmask_b32 {c[0]}, {c[0]}, {c[1]}, {sK1}', f'v_cndmask_b32 {p[2]}, {p[2]}, {p[3]}, {sK1}',
            f'v_cndmask_b32 {c[2]}, {c[2]}, {c[3]}, {sK1}', f'v_cndmask_b32 {d[0]}, {p[0]}, {c[0]}, {sCA}', f'v_cndmask_b32 {d[2]}, {p[2]}, {c[2]}, {sCB}']
def qmask(sl): return [f'v_cndmask_b32 {QO(sl)[i]}, 0, {vQ8[2 + i]}, {sM[(sl, 1 + i // 2)]}' for i in range(4)]
q1 = [f'v_mov_b32 {QO(1)[0]}, {vQ8[0]}', f'v_mov_b32 {QO(1)[1]}, {vQ8[1]}'] + [f'v_cndmask_b32 {QO(1)[2 + i]}, 0, {vQ8[2 + i]}, {sM[(1, 1)]}' for i in range(2)]
q2 = [f'v_cndmask_b32 {QO(2)[i]}, 0, {vQ8[4 + i]}, {sM[(2, 2)]}' for i in range(2)] + [f'v_mov_b32 {QO(2)[2]}, {vQ8[6]}', f'v_mov_b32 {QO(2)[3]}, {vQ8[7]}']
def pub(sl, d): return mrg(sl) + [f'v_min_u32 {vt[2 * d + j]}, -2, {QO(sl)[2 * j]}' for j in range(2)]
vFl = vWr[0]
fl_load = (f'buffer_load_dword {vFl}, {vL4}, {sWS}, {sFl} offen sc1', 'fl')
E(['s_setprio 2'] + qmask(0) + qmask(3)[:2] + s_mfma(0) + qmask(3)[2:] + q1[:2] + s_mfma(3) + q1[2:] + q2[:2] + s_mfma(1) + pub(0, 0) + pub(3, 1) + [f'buffer_store_dwordx4 {vt[0:4]}, {vL16}, {sWS}, {sSx[0]} offen sc1', 's_setprio 0'])
E(stamp())
assert not LATE
if LATE: E([f'v_mov_b32 {vCS[8 + i]}, -1' for i in range(4)] + [(f'buffer_store_dwordx4 {vCS[8:12]}, {vL16}, {sWS}, {sOst} offen offset:{1024 * i} sc1', 'clr2') for i in range(2)])
def softmax(sls):
    n = len(sls); mx = [vt[i] for i in range(n)]; tp = [vt[2 + i] for i in range(n)]
    L = []
    for sl in sls: L += [f'v_mul_f32 {QO(sl)[2 * j]}, {QO(sl)[2 * j]}, {vSc[j]}' for j in range(2)]
    L += [f'v_max_f32 {mx[i]}, {QO(sl)[0]}, {QO(sl)[2]}' for i, sl in enumerate(sls)]
    for sw_ in ('v_permlane32_swap_b32', 'v_permlane16_swap_b32'):
        L += [f'v_mov_b32 {tp[i]}, {mx[i]}' for i in range(n)] + [f'{sw_} {mx[i]}, {tp[i]}' for i in range(n)] + [f'v_max_f32 {mx[i]}, {mx[i]}, {tp[i]}' for i in range(n)]
    for i, sl in enumerate(sls): L += [f'v_sub_f32 {QO(sl)[j]}, {QO(sl)[j]}, {mx[i]}' for j in (0, 2)]
    for sl in sls: L += [f'v_exp_f32 {QO(sl)[j]}, {QO(sl)[j]}' for j in (0, 2)]
    for sl in sls: d = QO(sl); L += [f'v_cvt_pk_bf16_f32 {d[0]}, {d[0]}, {d[0]}', f'v_cvt_pk_bf16_f32 {d[1]}, {d[2]}, {d[2]}']
    for sl in sls: d = QO(sl); L += [f'v_and_b32 {d[2]}, {d[0]}, {vPM[2]}', f'v_and_b32 {d[3]}, {d[1]}, {vPM[3]}', f'v_and_b32 {d[0]}, {d[0]}, {vPM[0]}', f'v_and_b32 {d[1]}, {d[1]}, {vPM[1]}']
    return L
def gate_calc(xb, xn, g, upd=None):
    n = 2 * xb.n; L = []
    for i in range(n // 2): L += [f'v_lshlrev_b32 {xn[2 * i]}, 16, {xb[i]}', f'v_and_b32 {xn[2 * i + 1]}, 0xffff0000, {xb[i]}']
    L += [f'v_add_f32 {xn[i]}, {xn[i]}, {vSt[0]}' for i in range(n)] + round_pairs(xn, n) + [f'v_mul_f32 {xn[i]}, {xn[i]}, {vSt[1]}' for i in range(n)] + round_pairs(xn, n)
    if upd is not None: L += [W(lg='all')] + [f'v_add_f32 {xn[i]}, {xn[i]}, {upd[i]}' for i in range(n)] + round_pairs(xn, n)
    return L + silu_into(g, xn, n)[:-n]
fill = q2[2:] + [f'v_mul_f32 {vt[0]}, {sCs}, {vSt[1]}'] + s_mfma(2) + [f'v_mul_f32 {vSc[j]}, {vSc[j]}, {vt[0]}' for j in range(2)] + mrg(1) + mrg(2) + softmax([1, 2])
vRx = acc[24:32]; vNm = acc[0:16]; vCv = acc[16:18]; vCf = acc[18]; vAd = acc[20:24]
def rx_loads(): return [(f'buffer_load_dwordx2 {vRx[2 * d:2 * d + 2]}, {vL16}, {sWS}, {sSx[1 + d]} offen offset:{8 - 8 * d} sc1', 'rx') for d in range(2)]
vprep = [f's_lshl_b32 {sT[0]}, {sTau}, 6', f's_add_u32 {sT[0]}, {sT[0]}, {L_M}', f'v_lshl_add_u32 {vAd[0]}, {vG}, 4, {sT[0]}', f'v_xor_b32 {vAd[1]}, 64, {vAd[0]}'] + \
        [f'ds_read_b128 {vNm[8 * pos + 4 * q:8 * pos + 4 * q + 4]}, {vAd[pos]} offset:{512 * q}' for pos in range(2) for q in range(2)] + \
        [f's_lshl_b32 {sT[0]}, {sH}, 3', f's_add_u32 {sT[0]}, {sT[0]}, {L_CSV}', f'v_lshl_add_u32 {vAd[0]}, {vTt}, 4, {sT[0]}', f'v_mov_b32 {vAd[1]}, {L_CSF}',
         f'v_lshl_add_u32 {vEx}, {vLane}, 3, {sVx}', f's_lshl_b32 {sT[0]}, {sH}, 10', f'v_add_u32 {vAd[2]}, {sT[0]}, {vEx}',
         f's_lshl_b32 {sT[1]}, {sH}, 12', f's_sub_u32 {sT[1]}, 2048, {sT[1]}', f'v_add_u32 {vAd[3]}, {sT[1]}, {vAd[2]}', f'v_subrev_u32 {vEx}, 2048, {vEx}']
NK = 2 * ND; KF = opt('kf', 6); KR = opt('kr', 7)
for k in range(2, NK): E(tail_reads(k))
for k in range(NK):
    cnt = -(-len(fill) // (KF - k)) if k < KF else 0
    f = fill[:cnt]; fill = fill[cnt:]
    if k == KF: f = vprep
    if k == KR: E([W('fl'), ('L', 'Lfl_chk'), f'v_cmp_eq_u32 vcc, {sTag}, {vFl}', f's_and_b32 {sT[0]}, vcc_lo, 0x3ff', f's_cmp_lg_u32 {sT[0]}, 0x3ff', 's_cbranch_scc1 Lfl_re'] + rx_loads())
    E([W(lg=('v', k))] + spread(v_mfmas(NI + k // 2, k % 2, VF[8 * k:8 * k + 8]), f))
csv_reads = [f'ds_read_b32 {vCf}, {vAd[1]}', f'ds_read_b64 {vCv}, {vAd[0]}']
E(stamp() + csv_reads + [W(lg='all'), ('L', 'Lcsv'), f'v_readfirstlane_b32 {sT[2]}, {vCf}', f's_cmp_eq_u32 {sT[2]}, 0', 's_cbranch_scc1 Lcsv_re'])
def vfix(a, nm, cv, areg, off):
    return [f'v_fmac_f32 {a[i]}, {nm[i]}, {cv}' for i in range(4)] + [f'v_mul_f32 {a[i]}, {a[i]}, {nm[4 + i]}' for i in range(4)] + cvt2(a[0:2], a) + [f'ds_write_b64 {areg}, {a[0:2]} offset:{off}']
for pos in range(2):
    for i in range(2): E(vfix(accV[8 * pos + 4 * i:8 * pos + 4 * i + 4], vNm[8 * pos:8 * pos + 8], vCv[i], vAd[2 + pos], 512 * i))
E(cnt_arrive(L_C3, vt[4], vt[5]))
FR = [AALL[16 * i:16 * i + 16] for i in range(8)]; NF = 8
def wo_reads(k):
    loc = KLOC[k]; w_ = 1 if loc >= OWIN[1] else 0
    return [x for t in range(4) for x in trs(FR[k % NF][4 * t:4 * t + 4], vWr[4 * w_ + t], loc - OWIN[w_], ('o', k))]
wadr = [f'v_mov_b32 {vt[6]}, {L_WF}', f'v_and_b32 {vt[2]}, 3, {vLane}', f'v_lshl_add_u32 {vt[2]}, {vt[2]}, 3, {vPhi}', f'v_add_u32 {vWr[0]}, {vt[2]}, {vrow}'] + \
       [f'v_xor_b32 {vWr[t]}, {32 * t}, {vWr[0]}' for t in (1, 2, 3)] + [f'v_add_u32 {vWr[4 + t]}, {OWIN[1]}, {vWr[t]}' for t in range(4)] + [cnt_wait(2, vt[6], vt[7])]
NPRE = 0
E([W('rx'), ('L', 'Lrx_chk')])
E([f'v_and_b32 {vRx[i]}, {sNb[i // 2]}, {vRx[i]}' for i in range(4)] + [f'v_max3_u32 {vt[0]}, {vRx[0]}, {vRx[1]}, {vRx[2]}', f'v_max_u32 {vt[0]}, {vt[0]}, {vRx[3]}',
   f'v_cmp_eq_u32 vcc, -1, {vt[0]}', 's_cbranch_vccnz Lrx_re'] + stamp())
E([f'v_add_f32 {QO(sl)[2 * j]}, {QO(sl)[2 * j]}, {vRx[2 * d + j]}' for d, sl in ((0, 0), (1, 3)) for j in range(2)])
E(['s_setprio 2'] + cnt_wait(7, vt[4], vt[5]) + stamp())
vV = accV
E([(f'ds_read2st64_b64 {vV[4 * t:4 * t + 4]}, {vEx} offset0:{t} offset1:{t + 4}', 'vp') for t in range(4)])
vO = acc; vSum = vCS
PVL = [(0, 1), (1, 1), (2, 2), (3, 2), (1, 0), (2, 0), (1, 3), (2, 3)]
def OO(t, sl): b = PVL.index((t, sl)) * 4; return vO[b:b + 4]
def SM(sl): return vSum[4 * sl:4 * sl + 4]
def pv(sls): return [f'{MFMA} {SM(sl)}, {vOnes}, {QO(sl)}, 0' for sl in sls] + [f'{MFMA} {OO(t, sl)}, {vV[4 * t:4 * t + 4]}, {QO(sl)}, 0' for (t, sl) in PVL if sl in sls]
ch = softmax([0, 3])
E(ch[:12]); E(W(lg='vp')); E(spread(ch[12:], pv([1, 2])))
vOst = vt
def onorm(t, o, rc): return [f'v_mul_f32 {o[i]}, {o[i]}, {rc}' for i in range(4)] + cvt2(vOst[2 * t:2 * t + 2], o) + [f'v_min_u32 {vOst[2 * t + i]}, -2, {vOst[2 * t + i]}' for i in range(2)]
E(spread(pv([0, 3]), [f'v_rcp_f32 {SM(sl)[0]}, {SM(sl)[0]}' for sl in (1, 2)] + onorm(0, OO(0, 1), SM(1)[0])) + onorm(3, OO(3, 2), SM(2)[0]) + [f'v_rcp_f32 {SM(sl)[0]}, {SM(sl)[0]}' for sl in (0, 3)])
for t in (1, 2):
    d = OO(t, t); rc = SM(t)[2]
    E([f'v_cndmask_b32 {rc}, {SM(t)[0]}, {SM(0)[0]}, {sM[(0, t)]}', f'v_cndmask_b32 {rc}, {rc}, {SM(3)[0]}, {sM[(3, t)]}'])
    for sl in (0, 3): E([f'v_cndmask_b32 {d[r]}, {d[r]}, {OO(t, sl)[r]}, {sM[(sl, t)]}' for r in range(4)])
    E(onorm(t, d, rc) + [f'buffer_store_dwordx4 {vOst[4 * (t - 1):4 * t]}, {vL16}, {sWS}, {sOst} offen offset:{(t - 1) * 1024} sc1'])
E(stamp())
RING = [B[8 * i:8 * i + 8] for B in (B1, B2, B3) for i in range(2)]; NR = 6; DO = opt('do', 5)
def OF(k): return RING[(k // 2) % NR][4 * (k % 2):4 * (k % 2) + 4]
accO = [vXb[0:4], vXb[4:8], vPM, vOnes]
sJ = S.alloc('j'); sNm_ = S.alloc('nanmask')
def o_ld(j): return [(f'buffer_load_dwordx4 {OF(k)}, {vL16}, {sWS}, {sOb[1 + k // 4]} offen offset:{(k % 4) * 1024} sc1', ('of', j)) for k in (2 * j, 2 * j + 1)]
vXf = acc[0:16]; vGt = acc[16:32]; vOa = vSt[2:4]; vRow = vScB; vTr = vEx; vTa = [vXe, B1[0], B1[1], B1[2]]; vOst = B1[8:16]; vPa = vrow; vPr = vPhi
probe = (f'buffer_load_dword {vPr}, {vPa}, {sWS}, {sOb[0]} offen offset:1020 sc1', 'pr')
gl = []
for i in range(8): gl += [f'v_lshlrev_b32 {vXf[2 * i]}, 16, {vXb[i]}', f'v_and_b32 {vXf[2 * i + 1]}, 0xffff0000, {vXb[i]}']
if opt('exactg', 1):
    Z = B3
    gl += [f'v_add_f32 {Z[i]}, {vXf[i]}, {vSt[0]}' for i in range(16)] + round_pairs(Z, 16) + [f'v_mul_f32 {Z[i]}, {Z[i]}, {vSt[1]}' for i in range(16)] + round_pairs(Z, 16) + silu_into(vGt, Z, 16)
else:
    Z = B3
    gl += [f'v_mul_f32 {vt[0]}, {vSt[0]}, {vSt[1]}', f'v_mul_f32 {vt[1]}, {f32(-L2E)}, {vSt[1]}', f'v_mul_f32 {vt[2]}, {f32(-L2E)}, {vt[0]}']
    gl += [f'v_fma_f32 {vGt[i]}, {vXf[i]}, {vt[1]}, {vt[2]}' for i in range(16)] + [f'v_exp_f32 {vGt[i]}, {vGt[i]}' for i in range(16)]
    gl += [f'v_fma_f32 {Z[i]}, {vXf[i]}, {vSt[1]}, {vt[0]}' for i in range(16)] + [f'v_add_f32 {vGt[i]}, 1.0, {vGt[i]}' for i in range(16)]
    gl += [f'v_rcp_f32 {vGt[i]}, {vGt[i]}' for i in range(16)] + [f'v_mul_f32 {vGt[i]}, {vGt[i]}, {Z[i]}' for i in range(16)]
oadr = [f's_mul_i32 {sT[0]}, {sRB}, 96', f's_lshl_b32 {sT[1]}, {sTau}, 4', f's_add_u32 {sT[0]}, {sT[0]}, {sT[1]}', f's_sub_u32 {sT[0]}, {sT[0]}, 32',
        f'v_add_u32 {vRow}, {sT[0]}, {vTt}', f'v_lshrrev_b32 {vt[2]}, 3, {vLane}', f'v_add_u32 {vt[2]}, {sT[0]}, {vt[2]}', f'v_mul_u32_u24 {vt[2]}, 1280, {vt[2]}',
        f'v_and_b32 {vt[3]}, 7, {vLane}', f'v_xor_b32 {vt[3]}, {vt[3]}, {vG}', f'v_lshl_add_u32 {vOa[0]}, {vt[3]}, 4, {vt[2]}', f'v_xor_b32 {vOa[1]}, 64, {vOa[0]}',
        f'v_add_u32 {vOa[1]}, {8 * 1280}, {vOa[1]}',
        f's_lshl_b32 {sT[0]}, {sTau}, 11', f's_add_u32 {sT[0]}, {sT[0]}, {EXB}', f'v_add_u32 {vXe}, {sT[0]}, {vXe}', f'v_add_u32 {vTr}, {sT[0]}, {vL16}', f's_lshl_b32 {sFl}, {sC}, 7',
        f'v_mov_b32 {vt[6]}, {L_INFO}', f's_mov_b32 {sJ}, 0', f's_mov_b32 {sNm_}, 3']
gl = spread(gl, [wo_reads(k) for k in range(NPRE, NF)])
gl = wadr + oadr + gl
gp = len(gl) * opt('gs', 85) // 100
info_read = (f'ds_read_b64 {vt[4:6]}, {vt[6]}', 'info')
E(['s_setprio 1'] + gl[:gp] + stamp() + fstamp('wo') + [x for j in range(4) for x in o_ld(j)] + ['s_setprio 0'] + gl[gp:] + [('L', 'Lwo_go'), 's_setprio 3'] +
  [x for j in range(4, DO) for x in o_ld(j)] + [info_read] + fstamp('wo'))
nanchk = [f'v_cmp_class_f32_e64 vcc, {accO[0][0]}, {sNm_}', 's_cbranch_vccnz Lnan']
for j in range(10):
    if j == 1: E([W(lg='info'), ('L', 'Linfo'), f'v_readfirstlane_b32 {sT[3]}, {vt[4]}', f's_cmp_eq_u32 {sT[3]}, {SENT}', 's_cbranch_scc1 Linfo_re'])
    if opt('fairo', 1) and j in (3, 6, 8): E(f's_setprio {2 - (3, 6, 8).index(j)}')
    m = []
    for k in (2 * j, 2 * j + 1):
        mk = [f'{MFMA} {accO[n]}, {FR[k % NF][4 * n:4 * n + 4]}, {OF(k)}, {0 if k == 0 else accO[n]}' for n in range(4)]
        rk = wo_reads(k + NF) if k + NF < 20 else []
        mk = [[mk[n]] + rk[2 * n:2 * n + 2] for n in range(4)]
        mk[0] = (nanchk if (k % 2 == 0 and 1 <= j <= opt('nanj', 6)) else []) + [W(('of', j) if k % 2 == 0 else None, ('o', k))] + ((stamp() if j == 0 else []) + fstamp('wo') if k % 2 == 0 else []) + mk[0]
        m += mk
    E(spread(m, o_ld(j + DO) if j + DO < 10 else []))
E(stamp() + fstamp('wo'))
E([f'v_xor_b32 {vTa[n]}, {32 * n}, {vXe}' for n in (1, 2, 3)] + [f'v_and_b32 {vt[2]}, {vt[4]}, {vt[5]}', f'v_readfirstlane_b32 {sT[3]}, {vt[2]}',
   ] + nanchk + [f's_cmp_eq_u32 {sT[3]}, -1', 's_cbranch_scc0 Lfix', ('L', 'Lnofix')])
for n in range(4):
    a = accO[n]
    E([f'v_fma_f32 {a[i]}, {a[i]}, {vGt[4 * n + i]}, {vXf[4 * n + i]}' for i in range(4)] + cvt2(vOst[2 * n:2 * n + 2], a) + [f'ds_write_b64 {vTa[n]}, {vOst[2 * n:2 * n + 2]}'])
E([(f'ds_read_b128 {B2[4 * i:4 * i + 4]}, {vTr} offset:{1024 * i}', ('fin', i)) for i in range(2)])
for i in range(2): E([W(lg=('fin', i)), f'buffer_store_dwordx4 {B2[4 * i:4 * i + 4]}, {vOa[i]}, {sOUT}, {sFl} offen{NT["S"]}{opt("osc", "").replace("_", " ")}'])
if 'showj' in OPTS: E([f's_mul_i32 {sST[1][0]}, {sJ}, 100', f's_add_u32 {sST[1][0]}, {sST[1][0]}, {sST[0][0]}', f's_addc_u32 {sST[1][1]}, {sST[0][1]}, 0'])
write_stamps(STAMPW, 'main')
E('s_endpgm')
E([('L', 'Lqf_re')] + spin_guard() + cs_reads + [W(lg='all'), 's_branch Lqf'])
E([('L', 'Lcsv_re')] + spin_guard() + csv_reads + [W(lg='all'), 's_branch Lcsv'])
E([('L', 'Lrx_re')] + spin_guard() + rx_loads() + [W('all'), 's_branch Lrx_chk'])
E([('L', 'Linfo_re')] + spin_guard() + [info_read, W(lg='all'), 's_branch Linfo'])
E([('L', 'Lfl_re')] + spin_guard() + [fl_load, W('all'), 's_branch Lfl_chk'])
E(stubs); stubs.clear()
E([('L', 'Lnan'), f's_add_u32 {sJ}, {sJ}, 1', f's_cmp_eq_u32 {sJ}, 2', 's_cbranch_scc1 Lval0',
   f'v_min_u32 {vPa}, 19, {vLane}', f'v_lshlrev_b32 {vPa}, 10, {vPa}', ('L', 'Lprobe')] + spin_guard() + [probe, W('all'), f'v_cmp_eq_u32 vcc, -1, {vPr}', 's_cbranch_vccnz Lprobe', 's_branch Lredo',
   ('L', 'Lval0'), f's_mov_b32 {sNm_}, 0', f's_mov_b32 {sT[0]}, {sOb[0]}', f's_add_u32 {sT[1]}, {sOb[0]}, 20480', W('all'), ('L', 'Lval')] + spin_guard() +
  [f'buffer_load_dwordx4 {B1[0:4]}, {vL16}, {sWS}, {sT[0]} offen sc1', W('all'), f'v_max3_u32 {B1[0]}, {B1[0]}, {B1[1]}, {B1[2]}', f'v_max_u32 {B1[0]}, {B1[0]}, {B1[3]}',
   f'v_cmp_eq_u32 vcc, -1, {B1[0]}', 's_cbranch_vccnz Lval', f's_add_u32 {sT[0]}, {sT[0]}, 1024', f's_cmp_lt_u32 {sT[0]}, {sT[1]}', 's_cbranch_scc1 Lval', ('L', 'Lredo')] +
  [x for j in range(4) for x in o_ld(j)] + [wo_reads(k) for k in range(NF)] + [W(lg='all'), 's_branch Lwo_go'])
E([('L', 'Lfix'), f'v_lshlrev_b32 {vt[2]}, 4, {vG}', f'v_add_u32 {vt[2]}, {L_UPD}, {vt[2]}', f'v_mov_b32 {vt[6]}, {L_UF}', f'v_mov_b32 {vt[7]}, 1',
   f'v_sub_u32 {vt[0]}, {vRow}, {vTt}', f'v_lshrrev_b32 {vt[1]}, 3, {vLane}', f'v_add_u32 {vt[0]}, {vt[0]}, {vt[1]}', f'v_add_u32 {vt[1]}, 8, {vt[0]}', f'v_mov_b32 {vt[3]}, 0x40000000'])
for i in range(2):
    for q in range(2): E([f'v_cmp_eq_u32 vcc, {vt[4 + i]}, {vt[q]}', f'v_cndmask_b32 {vOa[q]}, {vOa[q]}, {vt[3]}, vcc'])
    E([f'v_cmp_eq_u32 vcc, {vt[4 + i]}, {vRow}', 's_mov_b64 exec, vcc'] + [f'ds_write_b128 {vt[2]}, {accO[n]} offset:{256 * i + 64 * n}' for n in range(4)] +
      [f'ds_add_u32 {vt[6]}, {vt[7]}', 's_mov_b64 exec, -1'])
E('s_branch Lnofix')

load_state(st_halo)
A.label('Lhalo')
HF = [Reg('a', 0, 48), Reg('a', 48, 48)]; HXK = Reg('a', 96, 32); HXT = vXb
vSg = B3[0:4]; vSo = B3[4:6]
E(['s_mov_b32 vcc_lo, 0x00010001', 's_mov_b32 vcc_hi, 0x00010001', f'v_mov_b32 {vt[7]}, {ONES_OFF}', f'v_cndmask_b32 {vXr[0]}, {vXr[0]}, {vt[7]}, vcc', f'v_xor_b32 {vXr[1]}, 64, {vXr[0]}',
   f'v_add_u32 {vXr[4]}, {2 * SLOT}, {vXr[0]}', f'v_add_u32 {vXr[5]}, {2 * SLOT}, {vXr[1]}'] + set_ones +
  [f'v_and_b32 {vt[0]}, 7, {vLane}', f'v_lshlrev_b32 {vt[0]}, 4, {vt[0]}', f'v_mul_u32_u24 {vt[1]}, {SLOT}, {vG}', f'v_add_u32 {vt[0]}, {vt[0]}, {vt[1]}', f'ds_write_b128 {vt[0]}, {vOnes} offset:{ONES_OFF}',
   f'v_mov_b32 {vt[0]}, {L_CSF}', f'v_mov_b32 {vt[4]}, 0', f'v_mov_b32 {vt[5]}, 0', f'v_mov_b32 {vt[6]}, {SENT}', f'v_mov_b32 {vt[7]}, {SENT}', f'ds_write_b128 {vt[0]}, {vt[4:8]}',
   f'v_min_u32 {vt[1]}, 23, {vLane}', f'v_lshl_add_u32 {vt[1]}, {vt[1]}, 2, {vt[0]}', f'ds_write_b32 {vt[1]}, {vt[4]} offset:16',
   f's_mul_i32 {sT[0]}, {sRB}, 96', f's_sub_u32 {sT[0]}, {sT[0]}, 16', f'v_add_u32 {vSo[0]}, {sT[0]}, {vLane}', f'v_min_u32 {vt[1]}, 47, {vLane}', f'v_add3_u32 {vSo[1]}, {sT[0]}, {vt[1]}, 64',
   f'v_mov_b32 {vt[2]}, 2047', f'v_med3_i32 {vSo[0]}, {vSo[0]}, 0, {vt[2]}', f'v_med3_i32 {vSo[1]}, {vSo[1]}, 0, {vt[2]}', f'v_lshlrev_b32 {vSo[0]}, 3, {vSo[0]}', f'v_lshlrev_b32 {vSo[1]}, 3, {vSo[1]}'])
sSt = S.alloc('sst'); E([f's_mov_b32 {sSt}, {WS_STAT}'] + sync_setup)
def HX(s, kk): return HXT[4 * kk:4 * kk + 4] if s < NI else HXK[(s - NI) * 8 + 4 * kk:(s - NI) * 8 + 4 * kk + 4]
def h_reads(s, kk):
    tag = ('r', s, kk)
    L = [(f'ds_read_b128 {HX(s, kk)}, {vXr[4 * sw(s) + kk]} offset:{so(s)}', tag)]
    for sec in range(3 if s < NI else 2):
        for t in range(4): L += trs(HF[kk][16 * sec + 4 * t:16 * sec + 4 * t + 4], vWr[4 * sw(s) + t], so(s) + sec * 8192 + kk * 4096, tag)
    return L
def h_mfmas(s, kk):
    z = (s == 0 and kk == 0); L = []
    for sec in range(2):
        for t in range(4):
            a = acc[16 * sec + 4 * t:16 * sec + 4 * t + 4]; L.append(f'{MFMA} {a}, {HF[kk][16 * sec + 4 * t:16 * sec + 4 * t + 4]}, {HX(s, kk)}, {0 if z else a}')
    if s < NI:
        for t in range(4): a = accV[4 * t:4 * t + 4]; L.append(f'{MFMA} {a}, {HX(s, kk)}, {HF[kk][32 + 4 * t:36 + 4 * t]}, {0 if z else a}')
    return L
p1_start = len(A.lines)
st_loads = [(f'buffer_load_dwordx2 {vSg[2 * i:2 * i + 2]}, {vSo[i]}, {sWS}, {sSt} offen sc1', 'st') for i in range(2)]
hst = [f'v_add_u32 {vt[0]}, {L_M + 64}, {vL4}', f'v_min_u32 {vt[1]}, 47, {vLane}', f'v_lshlrev_b32 {vt[1]}, 2, {vt[1]}', f'v_add_u32 {vt[1]}, {L_M + 64 + 256}, {vt[1]}',
       f'v_lshlrev_b32 {vt[2]}, 4, {vG}', f'v_add_u32 {vt[2]}, {L_CS}, {vt[2]}', f'v_mov_b32 {vt[3]}, {L_QF}', f'v_lshlrev_b32 {vt[7]}, 2, {vTt}', f'v_add_u32 {vt[7]}, {L_M + 64}, {vt[7]}']
hst2 = [[W('st'), ('L', 'Lst_chk'), f'v_cmp_ne_u32 vcc, {sTag}, {vSg[1]}', f'v_cmp_ne_u32 {sT[0:2]}, {sTag}, {vSg[3]}', f's_or_b64 {sT[0:2]}, {sT[0:2]}, vcc', 's_cbranch_scc1 Lst_re']]
for i in range(2): hst2 += [f'v_lshlrev_b32 {vSg[2 * i + 1]}, 16, {vSg[2 * i]}', f'v_and_b32 {vSg[2 * i]}, 0xffff0000, {vSg[2 * i]}', f'v_rcp_f32 {vSg[2 * i + 1]}, {vSg[2 * i + 1]}']
for i in range(2): hst2 += [f'ds_write2st64_b32 {vt[i]}, {vSg[2 * i]}, {vSg[2 * i + 1]} offset0:0 offset1:2']
hst2 += [f'ds_read_b32 {vSt[0]}, {vt[7]}']
for s in range(10):
    A.comment(f'halo unit {s}')
    if s in (0, 9): E([W(lg='all'), 's_barrier'])
    else: E(ld_check(s, 'h'))
    if s == 0: E(fin_tag())
    r0, r1 = h_reads(s, 0), h_reads(s, 1)
    E([r0[0], r1[0]])
    grp_ = [[(t_, ('g', i)) for t_, _ in (r0[1:] + r1[1:])[2 * i:2 * i + 2]] for i in range(len(r0) - 1)]
    mm = h_mfmas(s, 0) + h_mfmas(s, 1); LA = 6
    ex = list(hst2) if s == opt('stc', 8) else []
    for i in range(len(mm) + LA):
        if i < len(mm): E(grp_[i])
        if i == len(mm) - 1:
            if s < 6: E(dn_write(s))
            if s < 8: E(ld_read())
        if i >= LA: E([W(lg=('g', i - LA)), mm[i - LA]])
        if i >= len(mm) and ex: E(ex[:2]); ex = ex[2:]
    if s == 1: E(signal())
    if s == 3: E(hst)
    if s == opt('stl', 6): E(st_loads)
if 'nohalo' in OPTS: drop(lambda t: t.startswith('v_mfma') or t.startswith('ds_read_b64_tr'))
E(['s_mov_b32 exec_lo, 0x00010001', 's_mov_b32 exec_hi, 0x00010001'] + [f'ds_write_b128 {vt[2]}, {acc[4 * j:4 * j + 4]} offset:{64 * j}' for j in range(8)] +
  [f'ds_write_b32 {vt[3]}, {vt[3]}', 's_mov_b64 exec, -1'] + [f'ds_read_b128 {vCS[4 * t:4 * t + 4]}, {vt[2]} offset:{256 + 64 * t}' for t in range(4)] + [W(lg='all')] +
  fix_qk(acc[16:24], acc[16:32], vSt[0]) + [f'ds_write_b128 {vEx}, {acc[16 + 4 * i:20 + 4 * i]} offset:{4096 + i * 1024}' for i in range(2)] + cnt_arrive(L_C2, vt[1], vt[2]) +
  [f'v_mov_b32 {vt[1]}, {L_WF}'] + cnt_wait(1, vt[1], vt[2]))
HV = Reg('a', 0, 96)
def ht_reads(k): return [x for t in range(4) for x in trs(HV[16 * (k % 6) + 4 * t:16 * (k % 6) + 4 * t + 4], vWr[4 * sw(NI + k // 2) + t], so(NI + k // 2) + VOFF + (k % 2) * 4096, ('v', k))]
for k in range(6): E(ht_reads(k))
for k in range(NK):
    E([W(lg=('v', k))] + [f'{MFMA} {accV[4 * t:4 * t + 4]}, {HX(NI + k // 2, k % 2)}, {HV[16 * (k % 6) + 4 * t:16 * (k % 6) + 4 * t + 4]}, {accV[4 * t:4 * t + 4]}' for t in range(4)])
    if k + 6 < NK: E(ht_reads(k + 6))
E([f'v_lshlrev_b32 {vt[1]}, 4, {vTt}', f'v_add_u32 {vt[1]}, {L_CSV}, {vt[1]}', f'v_mov_b32 {vt[2]}, {L_CSF}', f'v_lshlrev_b32 {vt[0]}, 4, {vG}', f'v_add_u32 {vt[0]}, {L_M + 64}, {vt[0]}',
   f'v_lshl_add_u32 {vEx}, {vLane}, 3, {sVx}', 's_mov_b64 exec, 0xffff'] + [f'ds_write_b32 {vt[1]}, {accV[4 * t]} offset:{4 * t}' for t in range(4)] +
  [f'ds_write_b32 {vt[2]}, {vt[2]}', 's_mov_b64 exec, -1', f'ds_read_b128 {acc[8:12]}, {vt[1]}', f'ds_read_b128 {acc[0:4]}, {vt[0]}', f'ds_read_b128 {acc[4:8]}, {vt[0]} offset:512', W(lg='all')])
for t in range(4): E(vfix(accV[4 * t:4 * t + 4], acc[0:8], acc[8 + t], vEx, 512 * t))
E(cnt_arrive(L_C3, vt[4], vt[5]) + ['s_endpgm'])
E([('L', 'Lst_re')] + spin_guard() + st_loads + [W('all'), 's_branch Lst_chk'])
E(stubs); stubs.clear()

load_state(st_main)
pos_load = len(A.lines)
A.label('Lloader')
BIAS = 4096
sX = S.alloc('srdx', 4); sWQ = S.alloc('srdq', 4); sWK = S.alloc('srdk', 4); sWV = S.alloc('srdv', 4); sWO = S.alloc('srdwo', 4); sOUT = S.alloc('srdout', 4)
vW = V.alloc('vw', 8); vX = V.alloc('vx', 14); sWk = S.alloc('wk', 10, 1); sXk = S.alloc('xk'); sRho = S.alloc('rho'); sSq = S.alloc('seq', 2)
l3 = vt[1]; l7 = vt[2]; vch = V.alloc('chunkw')
E(['s_setprio 3', f'v_lshrrev_b32 {l3}, 3, {vLane}', f'v_and_b32 {l7}, 7, {vLane}',
   f'v_and_b32 {vt[4]}, 1, {vG}', f'v_lshlrev_b32 {vt[4]}, 1, {vt[4]}', f'v_xor_b32 {vt[4]}, {vt[4]}, {l7}', f's_lshl_b32 {sT[3]}, {sC}, 7', f'v_lshl_add_u32 {vch}, {vt[4]}, 4, {sT[3]}',
   f'v_mov_b32 {vt[3]}, 3840', f'v_mad_u32_u24 {vW[0]}, {l3}, {vt[3]}, {vch}', f'v_xor_b32 {vW[1]}, 64, {vW[0]}', f'v_add_u32 {vW[1]}, {8 * 3840 - 1024}, {vW[1]}'] +
  [f'v_add_u32 {vW[j]}, {(j - j % 2) * 8 * 3840 - ((j % 4) - (j % 2)) * 1024}, {vW[j % 2]}' for j in range(2, 8)] +
  [f's_lshl_b32 {sRho}, {sS0}, 1', f's_mul_i32 {sWk[0]}, {sRho}, {64 * 3840}', f's_lshl_b32 {sXk}, {sRho}, 7'])
xset = [f's_mul_i32 {sT[2]}, {sRB}, 96', f's_sub_u32 {sT[2]}, {sT[2]}, 16', f'v_add_u32 {vt[3]}, {sT[2]}, {l3}',
        f'v_xor_b32 {vt[5]}, {l7}, {vG}', f'v_lshlrev_b32 {vt[5]}, 4, {vt[5]}', f'v_xor_b32 {vt[6]}, 64, {vt[5]}', f'v_mov_b32 {vt[7]}, 2047', f'v_mov_b32 {vt[4]}, 1280']
for j in range(14):
    xset += [f'v_add_u32 {vX[j]}, {8 * j}, {vt[3]}', f'v_med3_i32 {vX[j]}, {vX[j]}, 0, {vt[7]}', f'v_mad_u32_u24 {vX[j]}, {vX[j]}, {vt[4]}, {vt[5 + j % 2]}',
             f'v_add_u32 {vX[j]}, {BIAS - (j % 4) * 1024}, {vX[j]}']
WSZ = 640 * 3840
XS0 = opt('xs0', 24)
E(xset[:XS0] + ['s_waitcnt lgkmcnt(0)'] + mk_srd(sWQ, pW, WSZ) + mk_srd(sWK, pW, WSZ, 1280) + mk_srd(sWV, pW, WSZ, 2560))
def grp(m0, items):
    L = [f's_mov_b32 m0, {m0}']
    for j, (vo, srd, sof, nt, tag) in enumerate(items):
        L.append((f'buffer_load_dwordx4 {vo}, {srd}, {sof} offen' + (f' offset:{1024 * j}' if j else '') + f'{nt} lds', tag))
    return L
def wgrp(s, sec, q, tag): return grp((s % NSL) * SLOT + sec * 8192 + q * 4096, [(vW[j], (sWQ, sWK, sWV)[sec], sWk[s], NT['W'], tag) for j in range(4 * q, 4 * q + 4)])
def unit_loads(s):
    sb = (s % NSL) * SLOT; tag = ('u', s)
    L = [f's_mul_i32 {sWk[s]}, {sRho}, {64 * 3840}', f's_lshl_b32 {sXk}, {sRho}, 7']
    xs = [grp(sb + XOFF + q * 4096, [(vX[j], sX, sXk, NT['X'], tag) for j in range(4 * q, min(4 * q + 4, 14))]) for q in range(4)]
    ws = [wgrp(s, sec, q, tag) for q in range(2) for sec in range(3 if s < NI else 2)]
    if s == 0:
        L = spread([x for g_ in ws for x in g_], xset[XS0:] + [mk_srd(sX, pX, 2048 * 1280, -BIAS)]) + [x for g_ in xs for x in g_]
    for i in range(max(len(xs), len(ws)) if s else 0):
        if i < len(xs): L += xs[i]
        if i < len(ws): L += ws[i]
    return L + [(sel_p(sSq, SEQT) if s == 0 else []) + [f's_lshr_b64 {sSq}, {sSq}, 4', f's_and_b32 {sRho}, {sSq[0]}, 15']]
E(unit_loads(0) + stamp() + get_tag() + mk_srd(sWO, pWO, 640 * 1280) + mk_srd(sOUT, pOUT, 2048 * 1280))
S.free('ka', 'kb')
vOsh = V.alloc('osh', 8); vOr = V.alloc('orest', 4); vOt = V.alloc('ot', 2); sOk = S.alloc('ok'); sU5 = S.alloc('u5', 5, 1); s20480 = S.alloc('c20480')
oset = [f's_mov_b32 {s20480}, 20480', f'v_lshrrev_b32 {vOsh[0]}, 5, {vLane}', f'v_lshlrev_b32 {vOsh[0]}, 3, {vOsh[0]}'] + \
       [f'v_add_u32 {vOsh[i]}, {16 * (i >> 2) + 2 * (i & 3)}, {vOsh[0]}' for i in range(1, 8)] + \
       [f'v_and_b32 {vt[3]}, 3, {l3}', f'v_mul_u32_u24 {vt[3]}, 1280, {vt[3]}', f'v_add_u32 {vOr[0]}, {vt[3]}, {vch}', f'v_xor_b32 {vOr[1]}, 64, {vOr[0]}',
        f'v_add_u32 {vOr[1]}, 4096, {vOr[1]}', f'v_add_u32 {vOr[2]}, 8192, {vOr[0]}', f'v_add_u32 {vOr[3]}, 8192, {vOr[1]}']
if not opt('orot', 1): oset += [f's_mov_b32 {sS0}, 0']
oset += [f's_mov_b32 {sU5[j]}, {UT[j]:#x}' for j in range(5)]
for p in range(1, 5): oset += [f's_cmp_eq_u32 {sS0}, {p}'] + [f's_cselect_b32 {sU5[j]}, {UT[(2 * p + j) % 5]:#x}, {sU5[j]}' for j in range(5)]
oset += [f's_mul_i32 {sOk}, {sS0}, {2 * 81920}']
def o_loads(j):
    L = []
    for i in range(8):
        d = vOt[i % 2]
        if i % 4 == 0: L += [f's_mov_b32 m0, {KLOC[2 * j + i // 4]}']
        L += [f'v_bfe_u32 {d}, {sU5[j % 5]}, {vOsh[i]}, 2', f'v_mad_u32_u24 {d}, {d}, {s20480}, {vOr[i % 4]}',
              (f'buffer_load_dwordx4 {d}, {sWO}, {sOk} offen' + (f' offset:{1024 * (i % 4)}' if i % 4 else '') + f'{NT["O"]} lds', ('o', j))]
    return L + [f's_add_u32 {sOk}, {sOk}, 81920', f's_cmp_eq_u32 {sOk}, 819200', f's_cselect_b32 {sOk}, 0, {sOk}']
vLa = V.alloc('lda'); vDa = V.alloc('dna'); vPv = V.alloc('pv'); vDn = V.alloc('dn')
E([f'v_mov_b32 {vLa}, {L_LD}', f'v_and_b32 {vDa}, 7, {vLane}', f'v_max_u32 {vDa}, 1, {vDa}', f'v_lshlrev_b32 {vDa}, 2, {vDa}', f'v_add_u32 {vDa}, {L_DN}, {vDa}'])
def publish(u):
    if u in (0, 9) or BAR: return [W(('u', u), 'all')] + (stamp() if u == 0 else []) + fstamp('ld') + ['s_barrier'] + (fin_tag() if u == 0 else [])
    return [f'v_mov_b32 {vPv}, {u + 1}', W(('u', u)), f'ds_write_b32 {vLa}, {vPv}'] + fstamp('ld')
DD = opt('dd', 28)
lstubs = []
for u in range(1, 11):
    A.comment(f'loader unit {u}')
    if u < 10: L = unit_loads(u)
    else: L = [x for q in range(NI, 10) for x in wgrp(q, 2, 0, 'v') + wgrp(q, 2, 1, 'v')]
    if 4 <= u <= 9 and not BAR:
        E([W(lg='dn'), ('L', f'Ldn{u}'), f'v_cmp_gt_u32 vcc, {u - 2 + opt("skew", 0)}, {vDn}', f's_cbranch_vccz Ldn{u}_ok', f'v_mov_b32 {vPv}, {u}', 's_waitcnt vmcnt(0)',
           ('R', f'ds_write_b32 {vLa}, {vPv}')] + spin_guard() + [('R', f'ds_read_b32 {vDn}, {vDa}'), 's_waitcnt lgkmcnt(0)', f's_branch Ldn{u}', ('L', f'Ldn{u}_ok')])
    n = 0
    for x in L:
        E(x)
        if isinstance(x, tuple):
            n += 1
            if n == (DD if not BAR else (opt('d9', 12) if u == 10 else sum(isinstance(y, tuple) for y in L))):
                E(publish(u - 1))
                if 3 <= u <= 8 and not BAR: E((f'ds_read_b32 {vDn}, {vDa}', 'dn'))
E(oset + stamp())
S.free('srdq', 'srdk')
sKy0 = S.alloc('key0'); sKy1 = S.alloc('key1'); sI0 = S.alloc('i0'); sI1 = S.alloc('i1')
vBc = V.alloc('bc', 4); vBa = V.alloc('bca')
bc_load = f'buffer_load_dwordx4 {vBc}, {vBa}, {sWS}, 0 offen sc1'
E(o_loads(0) + o_loads(1) + [W('v')] + cnt_arrive(L_WF, vt[1], vt[2]) + cnt_arrive(L_C2, vt[1], vt[2]) + stamp() + o_loads(2) + o_loads(3) + o_loads(4) + [W('all')] + cnt_arrive(L_WF, vt[3], vt[2]) + cnt_wait(8, vt[1], vt[2]) +
  [f's_lshl_b32 {sT[0]}, s2, 7', f's_add_u32 {sT[0]}, {sT[0]}, {WS_BC}', f'v_mov_b32 {vBa}, {sT[0]}', bc_load])
if opt('wodelay', 1): E([f'v_mov_b32 {vt[1]}, {L_C3}'] + cnt_wait(7, vt[1], vt[2]))
for j in range(5, 10): E(o_loads(j))
E([W('all'), ('L', 'Lbc'), f'v_readfirstlane_b32 {sKy0}, {vBc[0]}', f'v_readfirstlane_b32 {sT[0]}, {vBc[1]}',
   f'v_readfirstlane_b32 {sKy1}, {vBc[2]}', f'v_readfirstlane_b32 {sT[1]}, {vBc[3]}', f's_cmp_eq_u32 {sT[0]}, {sTag}', f's_cselect_b32 {sT[1]}, {sT[1]}, {sT[0]}', f's_cmp_eq_u32 {sT[1]}, {sTag}',
   's_cbranch_scc1 Lbc_ok'] + spin_guard() + [bc_load, W('all'), 's_branch Lbc', ('L', 'Lbc_ok'), f's_mul_i32 {sT[0]}, {sRB}, 96'])
for k, i in ((sKy0, sI0), (sKy1, sI1)):
    E([f's_and_b32 {i}, {k}, 0x7ff', f's_sub_u32 {i}, 2047, {i}', f's_sub_u32 {sT[1]}, {i}, {sT[0]}', f's_cmp_lt_u32 {sT[1]}, 96', f's_cselect_b32 {i}, {i}, -1'])
E([f'v_mov_b32 {vt[0]}, {sI0}', f'v_mov_b32 {vt[1]}, {sI1}', f'v_mov_b32 {vt[2]}, {L_INFO}'] + stamp() +
  [f'ds_write_b64 {vt[2]}, {vt[0:2]}', f's_and_b32 {sT[1]}, {sI0}, {sI1}', f's_cmp_eq_u32 {sT[1]}, -1', 's_cbranch_scc1 Lw0_done'])
vY = Reg('v', 16, 108); vXs = Reg('v', 124, 2); vSs = Reg('v', 126, 2)
for q, i in enumerate((sI0, sI1)):
    E([f's_max_i32 {sT[0]}, {i}, 0', f's_mul_i32 {sT[0]}, {sT[0]}, 1280', f's_lshl_b32 {sT[1]}, {sC}, 7', f's_add_u32 {sT[0]}, {sT[0]}, {sT[1]}', f's_add_u32 {sT[0]}, {sT[0]}, {BIAS}',
       f'v_lshlrev_b32 {vt[4]}, 1, {vLane}', f'buffer_load_ushort {vXs[q]}, {vt[4]}, {sX}, {sT[0]} offen'])
E([f'v_min_u32 {vt[3]}, 26, {vLane}', f'v_mul_u32_u24 {vt[3]}, 10240, {vt[3]}', ('L', 'Ly_poll')] + spin_guard() + [f's_sleep {opt("ys", 6)}', f's_lshl_b32 {sT[0]}, {sC}, 10', f's_add_u32 {sT[0]}, {sT[0]}, {WS_Y}',
   f'buffer_load_dword {vt[0]}, {vt[3]}, {sWS}, {sT[0]} offen offset:1020 sc1', W('all'), f'v_cmp_ne_u32 vcc, {sTag}, {vt[0]}', 's_cbranch_vccnz Ly_poll'])
for j in range(27): E([f'buffer_load_dwordx4 {vY[4 * j:4 * j + 4]}, {vL16}, {sWS}, {sT[0]} offen sc1', f's_add_u32 {sT[0]}, {sT[0]}, 10240'])
E([W('all'), f'v_xor_b32 {vt[0]}, {sTag}, {vY[1]}'])
for j in range(27):
    for q in (1, 3):
        if j or q == 3: E([f'v_xor_b32 {vt[1]}, {sTag}, {vY[4 * j + q]}', f'v_or_b32 {vt[0]}, {vt[0]}, {vt[1]}'])
E([f'v_cmp_ne_u32 vcc, 0, {vt[0]}', 's_cmp_lg_u64 vcc, 0', 's_cbranch_scc1 Ly_poll'])
for j in range(1, 27): E([f'v_add_f32 {vY[0]}, {vY[0]}, {vY[4 * j]}', f'v_add_f32 {vY[2]}, {vY[2]}, {vY[4 * j + 2]}'])
for k, y, off in ((sKy0, vY[0], 0), (sKy1, vY[2], 256)):
    E([f's_lshr_b32 {sT[0]}, {k}, 16', f's_cmp_ge_u32 {sT[0]}, 0x8000', f's_cselect_b32 {sT[1]}, 0x8000, -1', f's_xor_b32 {sT[0]}, {sT[0]}, {sT[1]}', f's_lshl_b32 {sT[0]}, {sT[0]}, 16',
       f'v_mov_b32 {vt[0]}, {sT[0]}', f'v_mul_f32 {vt[0]}, {f32(-L2E)}, {vt[0]}', f'v_exp_f32 {vt[0]}, {vt[0]}', f'v_add_f32 {vt[0]}, 1.0, {vt[0]}', f'v_rcp_f32 {vt[0]}, {vt[0]}'] +
      bf16r(vt[0], vt[0]) + bf16r(y, y) + [f'v_mul_f32 {y}, {y}, {vt[0]}'] + bf16r(y, y))
for q, (i, y) in enumerate(((sI0, vY[0]), (sI1, vY[2]))):
    x = vXs[q]; z = vY[4 + 2 * q:6 + 2 * q]
    E([f's_mul_i32 {sT[0]}, {sRB}, 96', f's_sub_u32 {sT[0]}, {i}, {sT[0]}', f's_max_i32 {sT[0]}, {sT[0]}, 0', f's_lshl_b32 {sT[0]}, {sT[0]}, 2', f's_add_u32 {sT[0]}, {sT[0]}, {L_M + 128}',
       f'v_mov_b32 {vt[0]}, {sT[0]}', f'ds_read2st64_b32 {vt[0:2]}, {vt[0]} offset0:0 offset1:2', f'v_lshlrev_b32 {x}, 16, {x}', W(lg='all'), f'v_add_f32 {z[0]}, {x}, {vt[0]}'] + bf16r(z[0], z[0]) +
      [f'v_mul_f32 {z[0]}, {z[0]}, {vt[1]}'] + bf16r(z[0], z[0]) + [f'v_add_f32 {z[0]}, {z[0]}, {y}'] + bf16r(z[0], z[0]) +
      [f'v_mul_f32 {y}, {f32(-L2E)}, {z[0]}', f'v_exp_f32 {y}, {y}', f'v_add_f32 {y}, 1.0, {y}', f'v_rcp_f32 {y}, {y}', f'v_mul_f32 {y}, {y}, {z[0]}'] + bf16r(y, y))
E([f's_cmp_lg_u32 {sI0}, -1', f's_cselect_b32 {sT[3]}, 4, 0', f's_cmp_lg_u32 {sI1}, -1', f's_cselect_b32 {sT[0]}, 4, 0', f's_add_u32 {sT[3]}, {sT[3]}, {sT[0]}', f'v_mov_b32 {vt[1]}, {L_UF}'] +
  cnt_wait(sT[3], vt[1], vt[2]) + [f'v_add_u32 {vt[1]}, {L_UPD}, {vL4}', f'ds_read2st64_b32 {vSs}, {vt[1]} offset0:0 offset1:1', W(lg='all')])
for q, (i, y) in enumerate(((sI0, vY[0]), (sI1, vY[2]))):
    E([f'v_fma_f32 {y}, {vSs[q]}, {y}, {vXs[q]}', f'v_cvt_pk_bf16_f32 {y}, {y}, {y}', f's_mul_i32 {sT[0]}, {i}, 1280', f's_lshl_b32 {sT[1]}, {sC}, 7', f's_add_u32 {sT[0]}, {sT[0]}, {sT[1]}',
       f's_cmp_eq_u32 {i}, -1', f's_cbranch_scc1 Lrow{q}', f'buffer_store_short {y}, {vt[4]}, {sOUT}, {sT[0]} offen', ('L', f'Lrow{q}')])
A.label('Lw0_done')
if STAMPW == 0: write_stamps(0, 'loader')
E('s_endpgm')
E(lstubs)

pos_aux = len(A.lines)
A.lines[pos_comp:pos_aux] = A.lines[pos_load:pos_aux] + A.lines[pos_comp:pos_load]
load_state(st_common)
A.label('Laux')
sA = sRB; BIAS = 4096
E([f's_mul_i32 {sA}, {sT[0]}, 9', f's_lshl_b32 {sT[2]}, {sT[2]}, 2', f's_add_u32 {sA}, {sA}, {sT[2]}', f's_add_u32 {sA}, {sA}, {sT[1]}', f's_cmp_ge_u32 {sA}, 32', 's_cbranch_scc1 Lmst'])
st_aux0 = save_state()
AX = 131072
L_WR = AX; L_KEY = AX + 1536; L_KC = AX + 1792; L_P = AX + 2048; L_H = AX + 8192
l3 = vt[1]; l7 = vt[2]
sRg = S.alloc('ring'); sSo = S.alloc('so'); sWm = S.alloc('srdm', 4); sWD_ = S.alloc('srdd', 4); sKb = S.alloc('kb0')
vTw = V.alloc('tw', 4); aGo = V.alloc('ago', 4); aDo = V.alloc('ado', 4); vXa = V.alloc('xsa'); sX = S.alloc('srdx', 4); sNm = S.alloc('nm', 2, 1)
wf = AG.alloc('wf', 80); df = V.alloc('df', 64); xs = V.alloc('xs', 20); a16 = V.alloc('a16', 16)
def item(slot, voff, srd, sbase, soff, nt, tag):
    L = [f's_add_u32 m0, {sRg}, {slot * 4096}', f's_add_u32 {sSo}, {sbase}, {soff}' if sbase is not None else f's_mov_b32 {sSo}, {soff}']
    return L + [(f'buffer_load_dwordx4 {voff[j]}, {srd}, {sSo} offen' + (f' offset:{1024 * j}' if j else '') + f'{nt} lds', tag) for j in range(4)]
def offs4(dst, stride): return [f'v_xor_b32 {dst[1]}, 64, {dst[0]}', f'v_add_u32 {dst[1]}, {8 * stride - 1024}, {dst[1]}', f'v_add_u32 {dst[2]}, {16 * stride - 2048}, {dst[0]}',
                                f'v_add_u32 {dst[3]}, {16 * stride - 2048}, {dst[1]}']
sDb = S.alloc('db')
wsetup = [f'v_and_b32 {vt[4]}, 1, {vG}', f'v_lshlrev_b32 {vt[4]}, 1, {vt[4]}', f'v_xor_b32 {vt[4]}, {vt[4]}, {l7}', f'v_lshlrev_b32 {vt[4]}, 4, {vt[4]}',
          f'v_mul_u32_u24 {vt[5]}, 3456, {l3}', f's_lshl_b32 {sT[2]}, {sA}, 7', f'v_add3_u32 {aGo[0]}, {vt[5]}, {vt[4]}, {sT[2]}'] + offs4(aGo, 3456) + \
         [f's_mul_i32 {sKb}, {sW}, {32 * 3456}', f'v_mul_u32_u24 {vt[5]}, 1280, {l3}', f'v_add_u32 {aDo[0]}, {vt[5]}, {vt[4]}'] + offs4(aDo, 1280) + \
         [f's_mul_i32 {sDb}, {sA}, {64 * 1280}', f's_lshl_b32 {sT[2]}, {sWv}, 7', f's_add_u32 {sDb}, {sDb}, {sT[2]}']
rsetup = tr_parts(vTw[0], vt[5], vt[4], vt[6]) + [f'v_add3_u32 {vTw[0]}, {vTw[0]}, {vt[5]}, {sRg}', f'v_lshl_add_u32 {vTw[0]}, {vt[4]}, 3, {vTw[0]}'] + \
         [f'v_xor_b32 {vTw[t]}, {32 * t}, {vTw[0]}' for t in (1, 2, 3)] + \
         [f's_lshl_b32 {sT[0]}, {sW}, 6', f's_add_u32 {sT[0]}, {sT[0]}, {BIAS}', f'v_lshl_add_u32 {vXa}, {vG}, 4, {sT[0]}']
def W_item(i): return lambda slot: item(slot, aGo, sWm, sKb, i * 128 * 3456, NT['F'], ('w', i))
def D_item(i): return lambda slot: item(slot, aDo, sWD_, sDb, (i % 2) * 32 * 1280 + (i // 2) * 512, NT['F'], ('d', i))
def fr_reads(dst, slot): return [x for t in range(4) for x in trs(dst[4 * t:4 * t + 4], vTw[t], slot * 4096, 'fr')]
sBc = S.alloc('bc')
xaddr = [f's_lshl_b32 {sBc}, s2, 7', f's_add_u32 {sBc}, {sBc}, {WS_BC}']
bcl = f'buffer_load_dwordx4 {a16[0:4]}, off, {sWS}, {sBc} sc1'
stl = f'buffer_load_dwordx2 {a16[4:6]}, {a16[6]}, {sWS}, 0 offen sc1'
axs = [fstamp('ax') for _ in range(3)]
def sel_loads(n):
    return axs[0] + [W('bc')] + axs[1] + [('L', f'Lbc{n}'), f'v_readfirstlane_b32 {sT[0]}, {a16[0]}', f'v_readfirstlane_b32 {sT[2]}, {a16[1]}', f'v_readfirstlane_b32 {sT[1]}, {a16[2]}', f'v_readfirstlane_b32 {sT[3]}, {a16[3]}',
            f's_cmp_eq_u32 {sT[2]}, {sTag}', f's_cselect_b32 {sT[3]}, {sT[3]}, {sT[2]}', f's_cmp_eq_u32 {sT[3]}, {sTag}', f's_cbranch_scc1 Lbc_ok{n}'] + spin_guard() + \
           [f's_sleep {opt("bcs", 8)}', ('R', bcl), 's_waitcnt vmcnt(0)', f's_branch Lbc{n}', ('L', f'Lbc_ok{n}')] + axs[2] + [
            f's_and_b32 {sT[0]}, {sT[0]}, 0x7ff', f's_sub_u32 {sT[0]}, 2047, {sT[0]}', f's_and_b32 {sT[1]}, {sT[1]}, 0x7ff', f's_sub_u32 {sT[1]}, 2047, {sT[1]}',
            f'v_mov_b32 {vt[0]}, {sT[0]}', f'v_mov_b32 {vt[1]}, {sT[1]}', 's_mov_b32 vcc_lo, 0xaaaaaaaa', 's_mov_b32 vcc_hi, 0xaaaaaaaa', f'v_cndmask_b32 {vt[0]}, {vt[0]}, {vt[1]}, vcc',
            f'v_lshlrev_b32 {a16[6]}, 3, {vt[0]}', f'v_add_u32 {a16[6]}, {WS_STAT}, {a16[6]}', f'v_mul_u32_u24 {vt[0]}, 1280, {vt[0]}', f'v_add_u32 {vt[0]}, {vt[0]}, {vXa}'] + \
           [f'v_mov_b32 {xs[i]}, 0x3f803f80' for i in range(20)] + ['s_mov_b32 exec_lo, 0x00030003', 's_mov_b32 exec_hi, 0x00030003'] + \
           [f'buffer_load_dwordx4 {xs[4 * i:4 * i + 4]}, {vt[0]}, {sX}, 0 offen offset:{256 * i}' for i in range(5)] + [stl, 's_mov_b64 exec, -1']
def stream(seq, first, n):
    for i, (tag, dst, issue) in enumerate(seq):
        slot = (first + i) % 4
        E([W(tag)] + fr_reads(dst, slot))
        bca = opt('bca', 1) if n == 0 else opt('bca1', 1)
        if i + 1 + bca + (3 if bca else 0) == len(seq): E((bcl, 'bc'))
        if i + 4 < len(seq): E([W(lg='fr')] + seq[i + 4][2](slot))
        if i + 1 + bca == len(seq): E(sel_loads(n))
E([f'v_lshrrev_b32 {l3}, 3, {vLane}', f'v_and_b32 {l7}, 7, {vLane}', f's_lshl_b32 {sRg}, {sWv}, 14', f's_cmp_eq_u32 {sH}, 0', 's_cbranch_scc0 Laux_u'])
st_aux = save_state()
sWR_ = S.alloc('srdwr', 4); aXo = xs[0:4]
E([f's_lshl_b32 {sT[0]}, {sA}, 6', f's_lshl_b32 {sT[1]}, {sW}, 4', f's_add_u32 {sT[0]}, {sT[0]}, {sT[1]}', f'v_add_u32 {vt[3]}, {sT[0]}, {l3}', f'v_mul_u32_u24 {vt[3]}, 1280, {vt[3]}',
   f'v_xor_b32 {vt[4]}, {l7}, {vG}', f'v_lshl_add_u32 {aXo[0]}, {vt[4]}, 4, {vt[3]}', f'v_add_u32 {aXo[0]}, {BIAS}, {aXo[0]}', f'v_xor_b32 {aXo[1]}, 64, {aXo[0]}',
   f'v_add_u32 {aXo[1]}, {8 * 1280 - 1024}, {aXo[1]}', f'v_subrev_u32 {aXo[2]}, {2048 - 128}, {aXo[0]}', f'v_subrev_u32 {aXo[3]}, {2048 - 128}, {aXo[1]}',
   's_waitcnt lgkmcnt(0)'] + mk_srd(sX, pX, 2048 * 1280, -BIAS) + mk_srd(sWR_, pWR, 1280) +
  [f's_mov_b32 m0, {L_WR}', 's_nop 0', f'buffer_load_dwordx4 {vL16}, {sWR_}, 0 offen lds', 's_mov_b64 exec, 0xffff', f'buffer_load_dwordx4 {vL16}, {sWR_}, 0 offen offset:1024 lds', 's_mov_b64 exec, -1'])
def X_item(i): return lambda slot: item(slot, aXo, sX, None, i * 256, NT['R'], ('x', i))
for i in range(4): E(X_item(i)(i))
vOnes = xs[4:8]; vRa = xs[8]; vXr = xs[10:12]; vDiag = xs[9]; vSt = xs[12:14]
sK1 = S.alloc('k1', 2); sK2 = S.alloc('k2', 2)
E(get_tag() + mk_srd(sWm, pWG, 640 * 3456) + mk_srd(sWD_, pWD, 1728 * 1280) + wsetup + xaddr +
  [f'v_mov_b32 {vOnes[i]}, 0x3f803f80' for i in range(4)] +
  [f'v_lshlrev_b32 {vRa}, 4, {vG}', f'v_add_u32 {vRa}, {L_WR}, {vRa}', f'v_lshrrev_b32 {vt[6]}, 1, {vTt}', f'v_xor_b32 {vt[6]}, {vt[6]}, {vG}', f'v_lshlrev_b32 {vt[6]}, 4, {vt[6]}',
   f'v_lshl_add_u32 {vt[6]}, {vTt}, 7, {vt[6]}', f'v_add_u32 {vXr[0]}, {sRg}, {vt[6]}', f'v_xor_b32 {vXr[1]}, 64, {vXr[0]}',
   f's_mov_b32 {sK1[0]}, 0xaaaaaaaa', f's_mov_b32 {sK1[1]}, 0xaaaaaaaa', f's_mov_b32 {sK2[0]}, 0xcccccccc', f's_mov_b32 {sK2[1]}, 0xcccccccc',
   f'v_lshrrev_b32 {vDiag}, 2, {vTt}', f'v_lshl_add_u32 {vDiag}, {vDiag}, 4, {vTt}', f'v_lshlrev_b32 {vDiag}, 2, {vDiag}',
   f's_lshl_b32 {sT[0]}, {sW}, 4', f'v_add_u32 {vt[6]}, {sT[0]}, {vTt}', f'v_sub_u32 {xs[14]}, 63, {vt[6]}', f'v_lshlrev_b32 {xs[15]}, 2, {vt[6]}', f'v_add_u32 {xs[15]}, {L_KEY}, {xs[15]}',
   f's_lshl_b32 {sT[0]}, {sA}, 9', f's_add_u32 {sT[0]}, {sT[0]}, {WS_STAT}', f'v_lshl_add_u32 {xs[16]}, {vt[6]}, 3, {sT[0]}'] + rsetup + [f'v_mov_b32 {vt[0]}, {L_KC}', f'v_mov_b32 {vt[1]}, 0', f'ds_write_b32 {vt[0]}, {vt[1]}', 's_waitcnt lgkmcnt(0)'] + fin_tag())
rb_ = AG.alloc('rb', 32)
aSum, aSq, aDot, aSw = a16[0:4], a16[4:8], a16[8:12], a16[12:16]
nxt = [lambda slot: X_item(4)(slot) + ['s_barrier']] + [lambda slot: []] * 4
for i in range(5):
    slot = i % 4
    E(W(('x', i)))
    for q in range(4):
        E([f'ds_read_b128 {rb_[8 * q:8 * q + 4]}, {vXr[q % 2]} offset:{slot * 4096 + (q // 2) * 2048}', f'ds_read_b128 {rb_[8 * q + 4:8 * q + 8]}, {vRa} offset:{(4 * i + q) * 64}'])
    E([W(lg='all')] + nxt[i](slot))
    for q in range(4):
        x = rb_[8 * q:8 * q + 4]; r = rb_[8 * q + 4:8 * q + 8]
        E([f'{MFMA} {ac}, {a_}, {bb}, {0 if (i == 0 and q == 0) else ac}' for ac, a_, bb in ((aSq, x, x), (aSum, vOnes, x), (aDot, r, x), (aSw, r, vOnes))])
E(stamp() + stats(aSum[0], aSq, vSt, vt, vDiag, sK1, sK2) +
  [f'v_lshrrev_b32 {vt[4]}, 16, {vt[0]}', f'v_fma_f32 {vt[0]}, {vSt[0]}, {aSw[0]}, {aDot[0]}', f'v_mul_f32 {vt[0]}, {vt[0]}, {vSt[1]}', f'v_cvt_pk_bf16_f32 {vt[0]}, {vt[0]}, {vt[0]}',
   f'v_ashrrev_i32 {vt[1]}, 31, {vt[0]}', f'v_or_b32 {vt[1]}, 0x80000000, {vt[1]}', f'v_xor_b32 {vt[0]}, {vt[0]}, {vt[1]}', f'v_and_b32 {vt[0]}, 0xffff0000, {vt[0]}',
   f'v_max_u32 {vt[0]}, 0x10000, {vt[0]}', f'v_or_b32 {vt[0]}, {vt[0]}, {xs[14]}', f'ds_write_b32 {xs[15]}, {vt[0]}'] + cnt_arrive(L_KC, vt[7], vt[3]) +
  [f'v_or_b32 {vt[4]}, {vt[4]}, {vSt[0]}', f'v_mov_b32 {vt[5]}, {sTag}', 's_mov_b64 exec, 0xffff', f'buffer_store_dwordx2 {vt[4:6]}, {xs[16]}, {sWS}, 0 offen sc1', 's_mov_b64 exec, -1'])
sKy0 = S.alloc('key0'); sKy1 = S.alloc('key1')
vmq = list(E.vm)
E([f's_cmp_lg_u32 {sW}, 0', 's_cbranch_scc1 Lpub_done', 's_setprio 3'] + cnt_wait(4, vt[7], vt[3]) + [f'v_add_u32 {vt[1]}, {L_KEY}, {vL4}', f'ds_read_b32 {vt[2]}, {vt[1]}', W(lg='all'), f'v_mov_b32 {vt[0]}, {vt[2]}'] +
  wave_max_u32(vt[0], sKy0, sT) + [f'v_cmp_eq_u32 vcc, {sKy0}, {vt[2]}', f'v_cndmask_b32 {vt[0]}, {vt[2]}, 0, vcc'] + wave_max_u32(vt[0], sKy1, sT) +
  [f's_and_b32 {sT[0]}, {sKy0}, 0xffff0000', f's_lshr_b32 {sT[1]}, {sKy1}, 16', f's_or_b32 {sT[0]}, {sT[0]}, {sT[1]}', f's_and_b32 {sT[1]}, {sKy0}, 63', f's_and_b32 {sT[2]}, {sKy1}, 63',
   f's_lshl_b32 {sT[2]}, {sT[2]}, 6', f's_or_b32 {sT[1]}, {sT[1]}, {sT[2]}', f's_xor_b32 {sT[1]}, {sT[1]}, 0x8fff', f's_lshl_b32 {sT[2]}, {sA}, 2', f's_lshl_b32 {sT[3]}, {sA}, 1',
   f'v_mov_b32 {vt[0]}, {sT[0]}', f'v_mov_b32 {vt[1]}, {sT[1]}', f'v_mov_b32 {vt[2]}, {sT[2]}', f'v_mov_b32 {vt[3]}, {sT[3]}', 's_mov_b64 exec, 1',
   f'buffer_store_dword {vt[0]}, {vt[2]}, {sDBG}, 0 offen offset:{DBG_VAL} sc1', f'buffer_store_short {vt[1]}, {vt[3]}, {sDBG}, 0 offen offset:{DBG_IDX} sc1', 's_mov_b64 exec, -1'] + cnt_arrive(L_KC, vt[7], vt[3]) + signal() +
  [('L', 'Lpub_done')] + cnt_wait(5, vt[7], vt[3]) + stamp() + [f's_cmp_ge_u32 {sA}, 27', 's_cbranch_scc1 Lhelp_r' if opt('help', 1) else 's_cbranch_scc1 Lend'])
E.vm = vmq
for i in range(4): E(W_item(i)((i + 1) % 4))
stream([(('w', i), wf[16 * i:16 * i + 16], W_item(i)) for i in range(5)] + [(('d', i), df[16 * i:16 * i + 16], D_item(i)) for i in range(2)], 1, 0)
E('s_branch Laux_mm')
aux_stamps = list(sST); aux_S = (dict(S.used), set(S.taken))
load_state(st_aux)
S.used, S.taken = dict(aux_S[0]), set(aux_S[1]); sST[:] = aux_stamps
A.label('Laux_u')
E([f's_cmp_ge_u32 {sA}, 27', 's_cbranch_scc1 Lend'] + wsetup + ['s_waitcnt lgkmcnt(0)'] + mk_srd(sWm, pWU, 640 * 3456))
NB0 = opt('nb0', 4)
sD2 = S.alloc('srdd2', 4)
E(get_tag() + mk_srd(sX, pX, 2048 * 1280, -BIAS) + mk_srd(sWD_, pWD, 1728 * 1280) + mk_srd(sD2, pWD, 1728 * 1280) + [f's_cmp_ge_u32 {sW}, 2', f's_cselect_b32 {sD2[2]}, 0, {sD2[2]}'] + xaddr + rsetup +
  ['s_waitcnt lgkmcnt(0)'] + fin_tag())
def D2_item(i): return lambda slot: item(slot, aDo, sD2, sDb, (i % 2) * 32 * 1280 + 512, NT['F'], ('d', i))
useq = [(('w', i), wf[16 * i:16 * i + 16], W_item(i)) for i in range(5)] + [(('d', i), df[16 * i:16 * i + 16], D_item(i) if i < 2 else D2_item(i)) for i in range(4)]
E('s_barrier')
for i in range(NB0): E(W_item(i)(i))
E([f'v_mov_b32 {vt[7]}, {L_KC}'] + cnt_wait(5, vt[7], vt[3], 4))
for i in range(NB0, 4): E(W_item(i)(i))
stream(useq, 0, 1)
A.label('Laux_mm')
E(stamp() + fstamp('ax') + ['s_waitcnt vmcnt(0)', ('L', 'Lxs_chk'), f'v_readlane_b32 {sT[0]}, {a16[5]}, 0', f'v_readlane_b32 {sT[1]}, {a16[5]}, 1', f'v_readlane_b32 {sNm[0]}, {a16[4]}, 0',
   f'v_readlane_b32 {sNm[1]}, {a16[4]}, 1', f's_cmp_eq_u32 {sT[0]}, {sTag}', f's_cselect_b32 {sT[1]}, {sT[1]}, {sT[0]}', f's_cmp_eq_u32 {sT[1]}, {sTag}', 's_cbranch_scc1 Lxs_ok'] + spin_guard() +
  [stl, 's_waitcnt vmcnt(0)', 's_branch Lxs_chk', ('L', 'Lxs_ok'), 's_waitcnt lgkmcnt(0)'] + stamp() + fstamp('ax'))
E([f'{MFMA} {a16[4 * t:4 * t + 4]}, {wf[16 * i + 4 * t:16 * i + 4 * t + 4]}, {xs[4 * i:4 * i + 4]}, {0 if i == 0 else a16[4 * t:4 * t + 4]}' for i in range(5) for t in range(4)])
E([f's_mul_i32 {sT[0]}, {sWv}, 768', f's_add_u32 {sT[0]}, {sT[0]}, {L_P}', f'v_lshlrev_b32 {vt[0]}, 8, {vTt}', f'v_lshl_add_u32 {vt[0]}, {vG}, 4, {vt[0]}', f'v_add_u32 {vt[0]}, {sT[0]}, {vt[0]}',
   f'v_add_u32 {vt[1]}, {L_P}, {vL4}', f's_lshl_b32 {sT[1]}, {sWv}, 8', f's_add_u32 {sT[1]}, {sT[1]}, {L_H}', f'v_lshl_add_u32 {vt[2]}, {vLane}, 1, {sT[1]}',
   f'v_and_b32 {vt[3]}, 1, {vLane}', f'v_lshlrev_b32 {vt[3]}, 7, {vt[3]}', f'v_lshl_add_u32 {vt[3]}, {vG}, 4, {vt[3]}', f'v_add_u32 {vt[3]}, {sT[1]}, {vt[3]}',
   f's_lshl_b32 {sT[2]}, {sNm[0]}, 16', f's_lshl_b32 {sT[3]}, {sNm[1]}, 16', f'v_rcp_f32 {vt[4]}, {sT[2]}', f'v_rcp_f32 {vt[5]}, {sT[3]}',
   f's_and_b32 {sNm[0]}, {sNm[0]}, 0xffff0000', f's_and_b32 {sNm[1]}, {sNm[1]}, 0xffff0000',
   's_mov_b32 exec_lo, 0x00070007', 's_mov_b32 exec_hi, 0x00070007'] + [f'ds_write_b128 {vt[0]}, {a16[4 * t:4 * t + 4]} offset:{64 * t}' for t in range(4)] +
  ['s_mov_b64 exec, -1', 's_waitcnt lgkmcnt(0)'] + fstamp('ax') + ['s_barrier'] + fstamp('ax'))
sG = [S.alloc(f'gm{i}', 2) for i in range(3)]
pr = [xs[i] for i in range(12)] + [a16[4 + i] for i in range(12)]
E([f'ds_read2st64_b32 {(xs if v < 6 else a16)[2 * v - (0 if v < 6 else 8):2 * v - (0 if v < 6 else 8) + 2]}, {vt[1]} offset0:{2 * v} offset1:{2 * v + 1}' for v in range(12)] +
  [f'v_cmp_eq_u32 {sG[i]}, {i + 1}, {vG}' for i in range(3)] +
  [f's_mul_i32 {sT[1]}, {sA}, 10', f's_add_u32 {sT[1]}, {sT[1]}, {sWv}', f's_lshl_b32 {sT[1]}, {sT[1]}, 10', f's_add_u32 {sT[1]}, {sT[1]}, {WS_Y}', 's_waitcnt lgkmcnt(0)'])
for b_ in (0, 12):
    for q in range(3):
        E([f'v_add_f32 {pr[b_ + q]}, {pr[b_ + q]}, {pr[b_ + 3 + q]}', f'v_add_f32 {pr[b_ + 6 + q]}, {pr[b_ + 6 + q]}, {pr[b_ + 9 + q]}', f'v_add_f32 {pr[b_ + q]}, {pr[b_ + q]}, {pr[b_ + 6 + q]}'])
for b_, d in ((0, a16[0:2]), (12, a16[8:10])):
    for tk in range(2): E([f'v_fmac_f32 {pr[b_ + tk]}, {sNm[tk]}, {pr[b_ + 2]}', f'v_mul_f32 {d[tk]}, {pr[b_ + tk]}, {vt[4 + tk]}'])
hA = xs[0:8]; vOut = xs[8:12]
E(round_pairs(a16[0:2], 2) + round_pairs(a16[8:10], 2) + silu_into(a16[2:4], a16[0:2], 2) + [f'v_mul_f32 {a16[2 + i]}, {a16[2 + i]}, {a16[8 + i]}' for i in range(2)] +
  [f'v_cvt_pk_bf16_f32 {a16[2]}, {a16[2]}, {a16[3]}', f'ds_write_b16 {vt[2]}, {a16[2]}', f'ds_write_b16_d16_hi {vt[2]}, {a16[2]} offset:128'] +
  [f'ds_read_b128 {hA[4 * kk:4 * kk + 4]}, {vt[3]} offset:{64 * kk}' for kk in range(2)] + [f'v_mov_b32 {vOut[1]}, {sTag}', f'v_mov_b32 {vOut[3]}, {sTag}', 's_waitcnt lgkmcnt(0)'] + stamp())
for it in range(2):
    if it: E([f's_sub_u32 {sT[0]}, {sWv}, 4', f's_cmp_ge_u32 {sT[0]}, 2', 's_cbranch_scc1 Laux_end', f's_add_u32 {sT[1]}, {sT[1]}, 4096'])
    E([f'{MFMA} {a16[4 * t:4 * t + 4]}, {hA[4 * kk:4 * kk + 4]}, {df[32 * it + 16 * kk + 4 * t:32 * it + 16 * kk + 4 * t + 4]}, {0 if kk == 0 else a16[4 * t:4 * t + 4]}' for kk in range(2) for t in range(4)])
    for q, r in ((0, 0), (2, 1)):
        E([f'v_cndmask_b32 {vOut[q]}, {a16[r]}, {a16[4 + r]}, {sG[0]}', f'v_cndmask_b32 {vOut[q]}, {vOut[q]}, {a16[8 + r]}, {sG[1]}', f'v_cndmask_b32 {vOut[q]}, {vOut[q]}, {a16[12 + r]}, {sG[2]}'])
    E(f'buffer_store_dwordx4 {vOut}, {vL16}, {sWS}, {sT[1]} offen sc1')
A.label('Laux_end')
write_stamps(opt('asw', 0), 'aux')
E('s_endpgm')
load_state(st_aux0)
A.label('Lmst')
sKy0 = S.alloc('key0'); sKy1 = S.alloc('key1')
E([f's_cmp_lg_u32 {sWv}, 0', 's_cbranch_scc1 Lhelp_i' if opt('help', 1) else 's_cbranch_scc1 Lend', 's_waitcnt lgkmcnt(0)'] + get_tag() + ['s_waitcnt lgkmcnt(0)'] + fin_tag() + signal() + [f's_cmp_lg_u32 {sA}, 32', 's_cbranch_scc1 Lend'])
E([('L', 'Lmst_bc')] + poll_top2(vt, sKy0, sKy1, sT) + [f'v_mov_b32 {vt[4]}, {sKy0}', f'v_mov_b32 {vt[5]}, {sTag}', f'v_mov_b32 {vt[6]}, {sKy1}', f'v_mov_b32 {vt[7]}, {sTag}',
   f'v_lshlrev_b32 {vt[0]}, 7, {vLane}', f's_mov_b32 {sT[0]}, {WS_BC}'])
for i in range(4): E([f'buffer_store_dwordx4 {vt[4:8]}, {vt[0]}, {sWS}, {sT[0]} offen sc1', f's_add_u32 {sT[0]}, {sT[0]}, 8192'])
if 'nomain' in OPTS: E('s_endpgm')
E([f's_mov_b32 {sT[0]}, {WS_SIG}', ('L', 'Lmaster')] + spin_guard() +
  ['s_sleep 16', f'buffer_load_dwordx4 {vt[0:4]}, {vL16}, {sWS}, {sT[0]} offen sc1', W('all')] + [f'v_xor_b32 {vt[i]}, {sTag}, {vt[i]}' for i in range(4)] +
  [f'v_or3_b32 {vt[0]}, {vt[0]}, {vt[1]}, {vt[2]}', f'v_or_b32 {vt[0]}, {vt[0]}, {vt[3]}', f'v_cmp_ne_u32 vcc, 0, {vt[0]}', 's_cbranch_vccnz Lmaster',
   's_mov_b64 exec, 1', f'buffer_store_dword {vt[5]}, {vt[0]}, {sWS}, 0 offen sc1'])
if opt('help', 1):
    S.used, S.taken = dict(aux_S[0]), set(aux_S[1]); sHd = S.alloc('srdh', 4)
    HR, HI = opt('hr', 4), opt('hi', 9)
    sQ = S.alloc('hq'); sQs = S.alloc('hqs')
    E(['s_endpgm', ('L', 'Lhelp_r'), f's_add_u32 {sQ}, {sA}, {3 * HI - 27}', f's_mov_b32 {sQs}, 5', f's_mov_b32 {sT[1]}, {HR}', 's_branch Lhelp',
       ('L', 'Lhelp_i'), f's_cmp_eq_u32 {sA}, 32', 's_cbranch_scc1 Lend', f's_cmp_eq_u32 {sH}, 0', 's_cbranch_scc1 Lend', f's_sub_u32 {sQ}, {sA}, 33', f's_mov_b32 {sQs}, 3', f's_mov_b32 {sT[1]}, {HI}',
       ('L', 'Lhelp'), f's_lshl_b32 {sT[2]}, {sW}, 6', f'v_add_u32 {vt[0]}, {sT[2]}, {vLane}', f'v_mul_u32_u24 {vt[0]}, 1280, {vt[0]}', 's_waitcnt lgkmcnt(0)'] +
      mk_srd(sHd, pWD, 1728 * 1280) + [('L', 'Lhelp2'), f's_mul_i32 {sT[2]}, {sQ}, 9363', f's_lshr_b32 {sT[2]}, {sT[2]}, 16', f's_mul_i32 {sT[3]}, {sT[2]}, 7', f's_sub_u32 {sT[3]}, {sQ}, {sT[3]}',
       f's_mul_i32 {sT[3]}, {sT[3]}, {256 * 1280}', f's_lshl_b32 {sT[2]}, {sT[2]}, 7', f's_sub_u32 {sT[3]}, {sT[3]}, {sT[2]}', f's_add_u32 {sT[3]}, {sT[3]}, {9 * 128}', f'v_add_u32 {vt[2]}, {sT[3]}, {vt[0]}',
       f'buffer_load_dword {vt[1]}, {vt[2]}, {sHd}, 0 offen', f's_add_u32 {sQ}, {sQ}, {sQs}', f's_sub_u32 {sT[1]}, {sT[1]}, 1', f's_cmp_lg_u32 {sT[1]}, 0', 's_cbranch_scc1 Lhelp2'])
A.label('Lend')
A('s_endpgm')
A.raw(f'''.section .rodata,"a"
.p2align 6
.amdhsa_kernel {NAME}_kernel
  .amdhsa_next_free_vgpr 256
  .amdhsa_next_free_sgpr 102
  .amdhsa_accum_offset 128
  .amdhsa_group_segment_fixed_size 0
  .amdhsa_kernarg_size 88
  .amdhsa_user_sgpr_count 2
  .amdhsa_user_sgpr_kernarg_segment_ptr 1
  .amdhsa_system_sgpr_workgroup_id_x 1
  .amdhsa_float_denorm_mode_32 3
.end_amdhsa_kernel''')
txt = A.render()
open(sys.argv[1], 'w').write(txt)
print('lines', txt.count('\n'), 'nops added', A.nops_added, 'vmax', V.maxused, 'amax', AG.maxused, 'smax', S.maxused, file=sys.stderr)
```

```python
import sys, math, struct
from asmlib import Asm, RegAlloc, Reg
NAME = "recurrent_scan__sliding_local_dilated__moe_arch_mod__prompt"
OPTS = set(sys.argv[2:])
STAMPS = 'stamps' in OPTS
def opt(name, default):
    for o in OPTS:
        if o.startswith(name + '='): return type(default)(o[len(name) + 1:])
    return default
DUMP = opt('dump', '')
NT = {k: (' nt' if k in opt('nt', 'F') else '') for k in 'WXOFRS'}
STAMPW = opt('sw', 2)

def f32(x): return '0x%08x' % struct.unpack('<I', struct.pack('<f', x))[0]
L2E = math.log2(math.e)

def tables():
    U = []; SL = []
    for cc in range(5):
        h0 = (16 * cc) // 5
        slot = [((16 * cc + q) // 5) - h0 for q in range(16)]
        s1 = [q for q in range(16) if slot[q] == 1]; s2 = [q for q in range(16) if slot[q] == 2]
        t0 = s1[:4]; e1 = s1[4]; t3 = s2[1:]; e2 = s2[0]
        rest = [q for q in range(16) if q not in t0 and q not in t3]
        t1 = []; t2 = []
        for res in range(4):
            pair = [q for q in rest if q % 4 == res]
            if e1 in pair: a = e1; b = pair[0] if pair[1] == e1 else pair[1]
            elif e2 in pair: b = e2; a = pair[0] if pair[1] == e2 else pair[1]
            else: a, b = pair
            t1.append(a); t2.append(b)
        tl = [sorted(t0, key=lambda q: q % 4), t1, t2, sorted(t3, key=lambda q: q % 4)]
        u = 0; sl = 0
        for t in range(4):
            for g in range(4):
                q = tl[t][g]
                u |= (q // 4) << (2 * (4 * t + g)); sl |= slot[q] << (2 * (4 * t + g))
        U.append(u); SL.append(sl)
    return U, SL
UT, SLT = tables()

SLOT = 39040; VOFF = 16384; XOFF = 24576; ONES_OFF = 38912; NSL = 4; ND = 4; NI = 10 - ND
SCR = 4 * SLOT
L_M = SCR; L_R = SCR + 512; L_CS = SCR + 1024
L_CSV = SCR + 1536
L_CSF = SCR + 1792; L_UF = SCR + 1796; L_INFO = SCR + 1800; L_QF = SCR + 1808; L_C2 = SCR + 1812; L_C3 = SCR + 1816; L_WF = SCR + 1820; L_LD = SCR + 1824; L_DN = SCR + 1856; L_UPD = SCR + 2048; SENT = -2
EXB = 2 * SLOT + XOFF; VXB = 3 * SLOT + XOFF
OWIN = [0, SLOT + XOFF]
OLOC = [0, 8192, XOFF, EXB + 20480, SLOT + XOFF + 16384, XOFF + 8192, XOFF + 16384, SLOT + XOFF, SLOT + XOFF + 8192]
KLOC = [b + 4096 * kk for b in OLOC for kk in range(2)] + [XOFF + 24576, SLOT + XOFF + 24576]
LDS_BYTES = 163840
WS_SX = 0x100000; WS_O = 0x400000; WS_FL = 0x700000; WS_Y = 0x710000; WS_ST = 0x800000; WS_STAT = 0x7d0000; WS_XS = 0x7a0000; WS_XF = 0x7c0000; WS_SIG = 0x7f0000; WS_BC = 0x7e0000; WS_DUMP = 0x1000000
DBG_VAL = 64; DBG_IDX = 192
NSIG = 220 + 27
NEG_INF = '0xff800000'
SCALE_L2E = (20 ** -0.5) * L2E
MFMA = 'v_mfma_f32_16x16x32_bf16'

A = Asm()
V = RegAlloc('v', 1, 128); AG = RegAlloc('a', 0, 128); S = RegAlloc('s', 3, 102)

class Em:
    def __init__(self): self.vm = []; self.lg = []
    def reset(self): self.vm = []; self.lg = []
    def cnt(self, q, tag, mx):
        if tag == 'all': n = 0
        elif tag not in q: return None
        else: n = len(q) - 1 - max(i for i, t in enumerate(q) if t == tag)
        n = min(n, mx)
        del q[:len(q) - n]
        return n
    def __call__(self, it):
        if isinstance(it, list):
            for x in it: self(x)
            return
        if isinstance(it, tuple) and it[0] == 'W':
            parts = []
            if it[1] is not None:
                n = self.cnt(self.vm, it[1], 63)
                if n is not None: parts.append(f'vmcnt({n})')
            if it[2] is not None:
                n = self.cnt(self.lg, it[2], 15)
                if n is not None: parts.append(f'lgkmcnt({n})')
            if parts: A('s_waitcnt ' + ' '.join(parts))
            return
        if isinstance(it, tuple) and it[0] == 'L': A.label(it[1]); return
        if isinstance(it, tuple) and it[0] == 'R': A(it[1]); return
        text, tag = (it, None) if isinstance(it, str) else it
        if text.startswith('ds_'):
            if 'lgthr' in OPTS and len(self.lg) >= 15: A('s_waitcnt lgkmcnt(14)'); del self.lg[:len(self.lg) - 14]
            self.lg.append(tag)
        elif text.startswith('buffer_'):
            if len(self.vm) >= 63: A('s_waitcnt vmcnt(55)'); del self.vm[:len(self.vm) - 55]
            self.vm.append(tag)
        A(text)
E = Em()
def W(vm=None, lg=None): return ('W', vm, lg)

def merge(a, b, na=1, nb=1):
    out = []; i = j = 0
    while i < len(a) or j < len(b):
        out += a[i:i + na]; i += na
        out += b[j:j + nb]; j += nb
    return out
def spread(a, b):
    out = []; j = 0
    for i, x in enumerate(a):
        out.append(x)
        while j < len(b) and j * len(a) < (i + 1) * len(b): out.append(b[j]); j += 1
    return out + b[j:]

sST = []
FINE = opt('fine', '')
def fstamp(grp):
    return stamp(True) if grp == FINE else []
def stamp(force=False):
    if not STAMPS: return []
    if FINE and not force and len(sST) > 0: return []
    r = S.alloc(f'stamp{len(sST)}', 2); sST.append(r)
    return [f's_memtime {r}' if 'clk' in OPTS else f's_memrealtime {r}']
def bf16r(dst, src): return [f'v_cvt_pk_bf16_f32 {dst}, {src}, {src}', f'v_lshlrev_b32 {dst}, 16, {dst}']
def mk_srd(dst, ptr, nbytes, add=0):
    if add > 0: L = [f's_add_u32 {dst[0]}, {ptr[0]}, {add}', f's_addc_u32 {dst[1]}, {ptr[1]}, 0']
    elif add < 0: L = [f's_sub_u32 {dst[0]}, {ptr[0]}, {-add}', f's_subb_u32 {dst[1]}, {ptr[1]}, 0']
    else: L = [f's_mov_b64 {dst[0:2]}, {ptr}']
    return L + [f's_mov_b32 {dst[2]}, {nbytes - add}', f's_mov_b32 {dst[3]}, 0x20000']
def spin_guard(): return [f's_sub_u32 {sSpin}, {sSpin}, 1', 's_cbranch_scc1 Lend']
def stats(sumreg, sq4, st, tmp, vdiag, mk1, mk2):
    return [f'v_cndmask_b32 {tmp[0]}, {sq4[0]}, {sq4[1]}, {mk1}', f'v_cndmask_b32 {tmp[1]}, {sq4[2]}, {sq4[3]}, {mk1}',
            f'v_cndmask_b32 {tmp[0]}, {tmp[0]}, {tmp[1]}, {mk2}', (f'ds_bpermute_b32 {tmp[0]}, {vdiag}, {tmp[0]}', 'bp'),
            f'v_mul_f32 {tmp[1]}, {f32(-1 / 640)}, {sumreg}'] + bf16r(st[0], tmp[1]) + [f'v_mul_f32 {tmp[1]}, {tmp[1]}, {tmp[1]}',
            f'v_mov_b32 {tmp[2]}, {f32(1 / 640)}', W(lg='bp'),
            f'v_fma_f32 {tmp[0]}, {tmp[0]}, {tmp[2]}, -{tmp[1]}', f'v_max_f32 {tmp[0]}, 0, {tmp[0]}'] + bf16r(tmp[0], tmp[0]) + \
           [f'v_add_f32 {tmp[0]}, {f32(1e-5)}, {tmp[0]}'] + bf16r(tmp[0], tmp[0]) + [f'v_sqrt_f32 {tmp[0]}, {tmp[0]}'] + bf16r(tmp[0], tmp[0]) + \
           [f'v_rcp_f32 {st[1]}, {tmp[0]}']
def wave_max_u32(r, sdst, st):
    return [f'v_max_u32_dpp {r}, {r}, {r} row_ror:{sh} row_mask:0xf bank_mask:0xf' for sh in (8, 4, 2, 1)] + \
           [f'v_readlane_b32 {sdst}, {r}, 0', f'v_readlane_b32 {st[0]}, {r}, 16', f'v_readlane_b32 {st[1]}, {r}, 32', f'v_readlane_b32 {st[2]}, {r}, 48',
            f's_max_u32 {sdst}, {sdst}, {st[0]}', f's_max_u32 {st[1]}, {st[1]}, {st[2]}', f's_max_u32 {sdst}, {sdst}, {st[1]}']
def poll_top2(t, sK0, sK1, st):
    L = A.newlabel('Lpt'); Ld = A.newlabel('Lptd')
    return [('L', L)] + spin_guard() + [
        f'buffer_load_dword {t[0]}, {vL4}, {sDBG}, 0 offen offset:{DBG_VAL} sc1',
        f'v_lshrrev_b32 {t[1]}, 1, {vL4}', f'v_and_b32 {t[1]}, 0x3c, {t[1]}', f'v_add_u32 {t[1]}, 128, {t[1]}', W('all'),
        f'ds_bpermute_b32 {t[1]}, {t[1]}, {t[0]}', f'v_and_b32 {t[2]}, 4, {vL4}', f'v_lshlrev_b32 {t[2]}, 2, {t[2]}', W(lg='all'),
        f'v_bfe_u32 {t[1]}, {t[1]}, {t[2]}, 16', f'v_cmp_ne_u32 vcc, 0, {t[0]}', f'v_cmp_ne_u32 {st[0:2]}, 0, {t[1]}',
        f's_and_b32 {st[0]}, {st[0]}, vcc_lo', f's_cmp_eq_u32 {st[0]}, -1', f's_cbranch_scc1 {Ld}', 's_sleep 2', f's_branch {L}', ('L', Ld),
        f'v_lshlrev_b32 {t[2]}, 4, {vL4}', f'v_and_b32 {t[3]}, 63, {t[1]}', f'v_add_u32 {t[3]}, {t[3]}, {t[2]}', f'v_sub_u32 {t[3]}, 2047, {t[3]}',
        f'v_bfe_u32 {t[1]}, {t[1]}, 6, 6', f'v_add_u32 {t[1]}, {t[1]}, {t[2]}', f'v_sub_u32 {t[1]}, 2047, {t[1]}',
        f'v_and_b32 {t[2]}, 0xffff0000, {t[0]}', f'v_or_b32 {t[3]}, {t[3]}, {t[2]}', f'v_lshl_or_b32 {t[1]}, {t[0]}, 16, {t[1]}',
        f'v_cmp_gt_u32 vcc, 128, {vL4}', f'v_cndmask_b32 {t[3]}, 0, {t[3]}, vcc', f'v_cndmask_b32 {t[1]}, 0, {t[1]}, vcc', f'v_mov_b32 {t[0]}, {t[3]}'] + \
        wave_max_u32(t[0], sK0, st) + [f'v_cmp_eq_u32 vcc, {sK0}, {t[3]}', f'v_cndmask_b32 {t[0]}, {t[3]}, {t[1]}, vcc'] + wave_max_u32(t[0], sK1, st)
def round_pairs(x, n):
    L = [f'v_cvt_pk_bf16_f32 {x[i + 1]}, {x[i]}, {x[i + 1]}' for i in range(0, n, 2)]
    for i in range(0, n, 2): L += [f'v_lshlrev_b32 {x[i]}, 16, {x[i + 1]}', f'v_and_b32 {x[i + 1]}, 0xffff0000, {x[i + 1]}']
    return L
def silu_into(g, z, n):
    return [f'v_mul_f32 {g[i]}, {f32(-L2E)}, {z[i]}' for i in range(n)] + [f'v_exp_f32 {g[i]}, {g[i]}' for i in range(n)] + \
           [f'v_add_f32 {g[i]}, 1.0, {g[i]}' for i in range(n)] + [f'v_rcp_f32 {g[i]}, {g[i]}' for i in range(n)] + \
           [f'v_mul_f32 {g[i]}, {g[i]}, {z[i]}' for i in range(n)] + round_pairs(g, n)
def cvt2(dst, acc): return [f'v_cvt_pk_bf16_f32 {dst[0]}, {acc[0]}, {acc[1]}', f'v_cvt_pk_bf16_f32 {dst[1]}, {acc[2]}, {acc[3]}']
def tr_parts(vrow, vphi32, vc, tmp):
    return [f'v_bfe_u32 {tmp}, {vLane}, 2, 2', f'v_and_b32 {vc}, 3, {vLane}', f'v_lshl_add_u32 {vrow}, {vG}, 3, {tmp}', f'v_lshlrev_b32 {vrow}, 7, {vrow}',
            f'v_lshlrev_b32 {vphi32}, 2, {vLane}', f'v_and_b32 {vphi32}, 0x60, {vphi32}']
def save_state(): return (dict(V.used), set(V.taken), dict(S.used), set(S.taken), dict(AG.used), set(AG.taken), list(sST))
def load_state(st):
    V.used, V.taken, S.used, S.taken, AG.used, AG.taken = [x.copy() for x in st[:6]]; sST[:] = st[6]; E.reset()
def write_stamps(who, kind):
    if not STAMPS: return
    E([W('all')] + stamp(True) + ['s_waitcnt lgkmcnt(0)', f's_cmp_lg_u32 {sWv}, {who}', 's_cbranch_scc1 Lend',
       f's_mul_i32 {sT[0]}, s2, 128', f's_add_u32 {sT[0]}, {sT[0]}, {WS_ST}', 's_mov_b64 exec, 1', f'v_mov_b32 {vt[2]}, 0'])
    print(kind, 'stamps', len(sST), file=sys.stderr)
    lk = opt('leak', -1)
    if lk >= 0 and kind == opt('leakk', 'main'):
        Lp = A.newlabel('Lpad')
        E([f's_sub_u32 {sT[1]}, {sST[lk][0]}, {sST[0][0]}', f's_mul_i32 {sT[1]}, {sT[1]}, 5', f's_add_u32 {sT[1]}, {sT[1]}, 3000', ('L', Lp), f's_memrealtime {sT[2:4]}', 's_waitcnt lgkmcnt(0)',
           f's_sub_u32 {sT[2]}, {sT[2]}, {sST[0][0]}', f's_cmp_lt_u32 {sT[2]}, {sT[1]}', f's_cbranch_scc1 {Lp}'])
    for i in range(16):
        j = min(i, len(sST) - 1)
        E([f'v_mov_b32 {vt[0]}, {sST[j][0]}', f'v_mov_b32 {vt[1]}, {sST[j][1]}', f'buffer_store_dwordx2 {vt[0:2]}, {vt[2]}, {sWS}, {sT[0]} offen offset:{8 * i}', 's_nop 1'])
def signal():
    return ['s_mov_b64 exec, 1', f's_lshl_b32 {sT[0]}, s2, 2', f's_add_u32 {sT[0]}, {sT[0]}, {WS_SIG}', f'v_mov_b32 {vt[0]}, {sTag}', f'v_mov_b32 {vt[1]}, {sT[0]}',
            f'buffer_store_dword {vt[0]}, {vt[1]}, {sWS}, 0 offen sc1', 's_mov_b64 exec, -1']

sKA = S.alloc('ka', 16); sKB = S.alloc('kb', 6, 4)
sWS = S.alloc('srdws', 4); sDBG = S.alloc('srddbg', 4)
sWv = S.alloc('wv'); sW = S.alloc('w'); sH = S.alloc('h'); sRB = S.alloc('rb'); sC = S.alloc('c')
sT = S.alloc('t', 4); sTag = S.alloc('tag'); sSpin = S.alloc('spin')
A.raw(f'''; @launch grid=(256,1,1) block=(512,1,1) lds={LDS_BYTES}
.amdgcn_target "amdgcn-amd-amdhsa--gfx950"
.text
.globl {NAME}_kernel
.p2align 8
.type {NAME}_kernel,@function
{NAME}_kernel:''')
vLane = V.alloc('lane'); vG = V.alloc('g'); vTt = V.alloc('t16'); vt = V.alloc('vt', 8); vL4 = V.alloc('lane4'); vL16 = V.alloc('lane16')
pX, pW, pWO, pWR, pWG, pWU, pWD = sKA[0:2], sKA[2:4], sKA[4:6], sKA[8:10], sKA[10:12], sKA[12:14], sKA[14:16]
pOUT, pDBG, pWS = sKB[0:2], sKB[2:4], sKB[4:6]
E([f's_load_dwordx16 {sKA}, s[0:1], 0', f's_load_dwordx4 {sKB[0:4]}, s[0:1], 64', f's_load_dwordx2 {sKB[4:6]}, s[0:1], 80'] + stamp() +
  [f'v_lshrrev_b32 {vt[0]}, 6, v0', f'v_and_b32 {vLane}, 63, v0', 's_cmp_ge_u32 s2, 256', 's_cbranch_scc1 Lend',
   f'v_readfirstlane_b32 {sWv}, {vt[0]}'] + ([] if 'nopf' in OPTS else [
   f's_getpc_b64 {sT[0:2]}', ('L', 'Lpc'), f's_and_b32 {sT[2]}, s2, 0xf8', f'v_add_u32 {vt[1]}, {sT[2]}, {vt[0]}', f'v_and_b32 {vt[2]}, 1, v0', f'v_lshl_add_u32 {vt[1]}, {vt[1]}, 1, {vt[2]}',
   f'v_lshlrev_b32 {vt[1]}, 7, {vt[1]}', f'v_min_u32 {vt[1]}, Lend-Lpc, {vt[1]}', f'v_mov_b32 {vt[3]}, {sT[1]}', f'v_add_co_u32 {vt[2]}, vcc, {sT[0]}, {vt[1]}',
   f'v_addc_co_u32 {vt[3]}, vcc, 0, {vt[3]}, vcc', f'global_load_dword v0, {vt[2:4]}, off']) + [f'v_lshrrev_b32 {vG}, 4, {vLane}', f'v_and_b32 {vTt}, 15, {vLane}',
   f'v_lshlrev_b32 {vL4}, 2, {vLane}', f'v_lshlrev_b32 {vL16}, 4, {vLane}', f's_mov_b32 {sSpin}, 200000',
   f's_and_b32 {sT[0]}, s2, 7', f's_lshr_b32 {sT[1]}, s2, 3', f's_and_b32 {sT[2]}, {sT[0]}, 1', f's_lshr_b32 {sT[0]}, {sT[0]}, 1', f's_add_u32 {sT[3]}, {sT[2]}, 4',
   f's_and_b32 {sW}, {sWv}, 3', f's_lshr_b32 {sH}, {sWv}, 2',
   f's_cmp_lt_u32 {sT[1]}, {sT[3]}', 's_cbranch_scc1 Laux'])
st_common = save_state()
if 'nomain' in OPTS: E('s_endpgm')
def get_tag():
    return mk_srd(sWS, pWS, 0x10000000, opt('wsoff', 0) << 20) + mk_srd(sDBG, pDBG, 256) + [f's_load_dword {sTag}, {sWS[0:2]}, 0']
def fin_tag(): return [f's_add_u32 {sTag}, {sTag}, 0x9e3779b8', f's_or_b32 {sTag}, {sTag}, 1']
if opt('map', 1) == 0:
    E([f's_mul_i32 {sT[0]}, {sT[0]}, 55', f's_mul_i32 {sT[2]}, {sT[2]}, 28', f's_add_u32 {sT[0]}, {sT[0]}, {sT[2]}', f's_add_u32 {sT[0]}, {sT[0]}, {sT[1]}',
       f's_sub_u32 {sT[0]}, {sT[0]}, {sT[3]}', f's_mul_i32 {sRB}, {sT[0]}, 6554', f's_lshr_b32 {sRB}, {sRB}, 16', f's_mul_i32 {sT[1]}, {sRB}, 10', f's_sub_u32 {sC}, {sT[0]}, {sT[1]}'])
else:
    E([f's_lshr_b32 {sC}, {sT[0]}, 1', f's_and_b32 {sT[0]}, {sT[0]}, 1',
       f's_mul_i32 {sT[0]}, {sT[0]}, 55', f's_mul_i32 {sT[2]}, {sT[2]}, 28', f's_add_u32 {sT[0]}, {sT[0]}, {sT[2]}', f's_add_u32 {sT[0]}, {sT[0]}, {sT[1]}',
       f's_sub_u32 {sT[0]}, {sT[0]}, {sT[3]}', f's_mul_i32 {sRB}, {sT[0]}, 13108', f's_lshr_b32 {sRB}, {sRB}, 16', f's_mul_i32 {sT[1]}, {sRB}, 5', f's_sub_u32 {sT[0]}, {sT[0]}, {sT[1]}',
       f's_mul_i32 {sC}, {sC}, 5', f's_add_u32 {sC}, {sC}, {sT[0]}'])
sCC = S.alloc('cc'); sU = S.alloc('U'); sS0 = S.alloc('s0')
TP = [int(x) for x in opt('tp', '1,2,3,4,5').split(',')]
SEQ = []
for p in range(5):
    ev = [(2 * p + 2 * i) % 10 for i in range(5)]
    od = [2 * q + 1 for q in sorted(range(5), key=lambda q: (TP[q], (q - p) % 5)) if q != p]
    SEQ.append(ev[:TP[p]] + [2 * p + 1] + ev[TP[p]:] + od)
if opt('sched', ''):
    gr = opt('sched', '').split('/')
    SEQ = [[int(ch)] for ch in gr[0]]; intro = {int(ch): 0 for ch in gr[0]}
    for st_ in range(1, 10):
        f_ = [int(ch) for ch in gr[st_]] if st_ < len(gr) else []
        for p in f_: k = len(intro); intro[k] = st_; SEQ[p].append(k)
        for p in range(5):
            if p in f_: continue
            cand = sorted((k for k in intro if k not in SEQ[p]), key=lambda k: (intro[k], (k - p) % 10))
            SEQ[p].append(cand[0])
    assert all(sorted(q) == list(range(10)) for q in SEQ), SEQ
    print(SEQ, file=sys.stderr)
SEQT = [sum(k << (4 * i) for i, k in enumerate(q)) for q in SEQ]; INVT = [sum(q.index(k) << (4 * k) for k in range(10)) for q in SEQ]
E([f's_add_u32 {sS0}, {sC}, {sRB}', f's_mul_i32 {sT[0]}, {sS0}, 13108', f's_lshr_b32 {sT[0]}, {sT[0]}, 16', f's_mul_i32 {sT[0]}, {sT[0]}, 5', f's_sub_u32 {sS0}, {sS0}, {sT[0]}'])
def sel_p(dst, tab):
    L = [f's_mov_b32 {dst[0]}, {tab[0] & 0xffffffff:#x}', f's_mov_b32 {dst[1]}, {tab[0] >> 32:#x}']
    for p in range(1, 5): L += [f's_cmp_eq_u32 {sS0}, {p}', f's_cselect_b32 {dst[0]}, {tab[p] & 0xffffffff:#x}, {dst[0]}', f's_cselect_b32 {dst[1]}, {tab[p] >> 32:#x}, {dst[1]}']
    return L
def sel_cc(dst, tab):
    L = [f's_mov_b32 {dst}, {tab[0]:#x}']
    for cc in range(1, 5): L += [f's_cmp_eq_u32 {sCC}, {cc}', f's_cselect_b32 {dst}, {tab[cc]:#x}, {dst}']
    return L
calc_cc = [f's_sub_u32 {sT[0]}, {sC}, 5', f's_cmp_ge_u32 {sC}, 5', f's_cselect_b32 {sCC}, {sT[0]}, {sC}'] + sel_cc(sU, UT)
vOnes = V.alloc('ones', 4); vrow = V.alloc('trrow'); vPhi = V.alloc('phi32'); vWr = V.alloc('wr', 8)
def calc_wr(secoff):
    vc = vt[4]
    L = tr_parts(vrow, vPhi, vc, vt[3]) + [f'v_lshlrev_b32 {vt[6]}, 1, {vc}', f'v_add_u32 {vt[5]}, {secoff}, {vrow}']
    for t in range(4):
        L += [f'v_add_u32 {vt[7]}, {8 * t}, {vt[6]}', f'v_bfe_u32 {vt[7]}, {sU}, {vt[7]}, 2', f'v_lshl_add_u32 {vt[7]}, {vt[7]}, 2, {vc}', f'v_lshlrev_b32 {vt[7]}, 3, {vt[7]}',
              f'v_xad_u32 {vWr[t]}, {vt[7]}, {vPhi}, {vt[5]}']
    return L + [f'v_add_u32 {vWr[4 + t]}, {2 * SLOT}, {vWr[t]}' for t in range(4)]
def trs(dst, areg, off, tag): return [(f'ds_read_b64_tr_b16 {dst[2 * h:2 * h + 2]}, {areg} offset:{off + h * 512}', tag) for h in range(2)]
def cnt_arrive(addr, va, vb): return [f'v_mov_b32 {va}, {addr}', f'v_mov_b32 {vb}, 1', 's_mov_b64 exec, 1', f'ds_add_u32 {va}, {vb}', 's_mov_b64 exec, -1']
def cnt_wait(n, va, vb, slp=0):
    L = A.newlabel('Lcw')
    return [('L', L)] + spin_guard() + ([f's_sleep {slp}'] if slp else []) + [f'ds_read_b32 {vb}, {va}', W(lg='all'), f'v_readfirstlane_b32 {sT[2]}, {vb}', f's_cmp_lt_u32 {sT[2]}, {n}', f's_cbranch_scc1 {L}']
set_ones = [f'v_mov_b32 {vOnes[i]}, 0x3f803f80' for i in range(4)]
E([f's_cmp_lg_u32 {sWv}, 0', 's_cbranch_scc1 Lcomp'])
st_main = save_state()
pos_comp = len(A.lines)
A.label('Lcomp')

sTau = S.alloc('tau'); sOUT = S.alloc('srdout', 4)
acc = V.alloc('acc', 32); B1 = V.alloc('B1', 16); B2 = V.alloc('B2', 16); B3 = V.alloc('B3', 16)
vXb = V.alloc('xb', 8); vPM = V.alloc('pm', 4); vSt = V.alloc('st', 4); vVr = B2[8:12]
vXe = V.alloc('xea'); vEx = V.alloc('exa'); vScB = V.alloc('scb'); vSc = [vSt[3], vScB]
vXr = B2[0:8]; accV = B1
sVx = S.alloc('vx')
E([f's_lshl_b32 {sTau}, {sW}, 1', f's_add_u32 {sTau}, {sTau}, {sH}'] + calc_cc + [f's_lshl_b32 {sT[1]}, {sH}, 13', f's_cmp_eq_u32 {sTau}, 1', f's_cselect_b32 {sT[1]}, 0, {sT[1]}'] + calc_wr(sT[1]))
E([f'v_lshrrev_b32 {vt[6]}, 1, {vTt}', f'v_xor_b32 {vt[5]}, {vt[6]}, {vG}', f'v_lshlrev_b32 {vt[5]}, 4, {vt[5]}', f'v_lshl_add_u32 {vt[5]}, {vTt}, 7, {vt[5]}',
   f's_lshl_b32 {sT[0]}, {sTau}, 11', f's_xor_b32 {sT[2]}, {sT[0]}, 2048', f's_add_u32 {sT[0]}, {sT[0]}, {XOFF - 2048}', f's_add_u32 {sT[2]}, {sT[2]}, {XOFF - 2048}',
   f'v_add_u32 {vXr[0]}, {sT[0]}, {vt[5]}', f'v_add_u32 {vXr[2]}, {sT[2]}, {vt[5]}',
   f's_mul_i32 {sT[3]}, {sW}, 6144', f's_add_u32 {sT[3]}, {sT[3]}, {EXB - 4096}', f'v_add_u32 {vEx}, {sT[3]}, {vL16}',
   f's_lshl_b32 {sVx}, {sTau}, 11', f's_add_u32 {sVx}, {sVx}, {VXB - 2048}',
   's_waitcnt lgkmcnt(0)'] + get_tag() + [f's_cmp_eq_u32 {sTau}, 1', 's_cbranch_scc1 Lhalo'])
vLa = V.alloc('lda'); vLd = vt[4]; vDv = vt[5]; vDa = vt[6]
stubs = []
def ld_read(): return [] if BAR else (f'ds_read_b32 {vLd}, {vLa}', 'ld')
BAR = opt('sync', 'bar') == 'bar'
def ld_check(s, who):
    if BAR: return ['s_barrier']
    return [W(lg='ld'), ('L', f'Lld{who}{s}'), f'v_cmp_ge_u32 vcc, {s}, {vLd}', f's_cbranch_vccz Lld{who}{s}_ok'] + spin_guard() + \
           ([f's_sleep {opt("slp", 1)}'] if opt("slp", 1) else []) + [('R', f'ds_read_b32 {vLd}, {vLa}'), 's_waitcnt lgkmcnt(0)', f's_branch Lld{who}{s}', ('L', f'Lld{who}{s}_ok')]
def dn_write(s): return [] if BAR else [f'v_mov_b32 {vDv}, {s + 2 + opt("skew", 0)}', ['s_mov_b64 exec, 1', f'ds_write_b32 {vDa}, {vDv}', 's_mov_b64 exec, -1']]
sync_setup = [f'v_mov_b32 {vLa}, {L_LD}', f's_lshl_b32 {sT[0]}, {sWv}, 2', f's_add_u32 {sT[0]}, {sT[0]}, {L_DN}', f'v_mov_b32 {vDa}, {sT[0]}']
st_halo = save_state()
sP4 = S.alloc('p4')
E([f'v_xor_b32 {vXr[1]}, 64, {vXr[0]}', f'v_xor_b32 {vXr[3]}, 64, {vXr[2]}'] + [f'v_add_u32 {vXr[4 + j]}, {2 * SLOT}, {vXr[j]}' for j in range(4)] +
  [f's_cmp_eq_u32 {sH}, 0', 's_cselect_b64 vcc, 0, -1', f's_sub_u32 {sT[1]}, {VOFF}, {sT[1]}', f'v_cndmask_b32 {vVr[0]}, {vWr[0]}, {vWr[2]}, vcc', f'v_cndmask_b32 {vVr[1]}, {vWr[1]}, {vWr[3]}, vcc',
   f'v_add_u32 {vVr[0]}, {sT[1]}, {vVr[0]}', f'v_add_u32 {vVr[1]}, {sT[1]}, {vVr[1]}', f'v_add_u32 {vVr[2]}, {2 * SLOT}, {vVr[0]}', f'v_add_u32 {vVr[3]}, {2 * SLOT}, {vVr[1]}',
   f'v_lshrrev_b32 {vt[4]}, 1, {vG}', f'v_xor_b32 {vt[4]}, {vt[4]}, {vt[6]}', f'v_lshlrev_b32 {vt[4]}, 4, {vt[4]}', f'v_lshl_add_u32 {vt[4]}, {vTt}, 7, {vt[4]}',
   f'v_and_b32 {vt[3]}, 1, {vG}', f'v_lshl_add_u32 {vXe}, {vt[3]}, 3, {vt[4]}'] + [f's_lshl_b32 {sP4}, {sS0}, 12' if opt('orot', 1) else f's_mov_b32 {sP4}, 0'] + sel_p(sT[2:4], INVT) + [f's_lshl_b32 {sS0}, {sC}, 2', f's_lshr_b64 {sT[2:4]}, {sT[2:4]}, {sS0}', f's_and_b32 {sS0}, {sT[2]}, 15',
   f's_and_b32 {sT[2]}, {sS0}, 3', f's_mul_i32 {sT[2]}, {sT[2]}, {SLOT}', f's_add_u32 {sT[2]}, {sT[2]}, {sT[0]}', f'v_add_u32 {vt[0]}, {sT[2]}, {vXe}',
   f'v_xor_b32 {vt[1]}, 32, {vt[0]}', f'v_xor_b32 {vt[2]}, 64, {vt[0]}', f'v_xor_b32 {vt[3]}, 0x60, {vt[0]}'] + mk_srd(sOUT, pOUT, 2048 * 1280) + set_ones)
S.free('ka', 'kb')
sSL = S.alloc('SL'); sM = {}
E(sel_cc(sSL, SLT))
for t in (1, 2):
    E([f'v_lshlrev_b32 {vt[6]}, 1, {vG}', f'v_add_u32 {vt[6]}, {8 * t}, {vt[6]}', f'v_bfe_u32 {vt[6]}, {sSL}, {vt[6]}, 2'])
    for sl in (0, 3, t):
        sM[(sl, t)] = S.alloc(f'm{sl}{t}', 2); E(f'v_cmp_eq_u32 {sM[(sl, t)]}, {sl}, {vt[6]}')
S.free('SL', 'U')
def lmask(f): return sum(1 << l for l in range(64) if f(l >> 4, l & 15))
MCA = lmask(lambda g, t: t - 4 * g - (t & 1) >= 0); MCB = lmask(lambda g, t: t - 4 * g - 2 - (t & 1) >= 0)
sK1 = S.alloc('k1', 2); sCA = S.alloc('ca', 2); sCB = S.alloc('cb', 2); sFirst = S.alloc('first')
sOb = S.alloc('ob', 6, 1); sOst = S.alloc('ost'); sFl = S.alloc('fl'); sSx = S.alloc('ssx', 3, 1); sNb = S.alloc('nb', 2, 1); sCs = S.alloc('cscale')
vRka = B3[0:2]; vSa = B3[2]; vCa = B3[3]; vQf = B3[4]
E([f's_mov_b32 {sK1[0]}, 0xaaaaaaaa', f's_mov_b32 {sK1[1]}, 0xaaaaaaaa',
   f's_mov_b32 {sCA[0]}, {MCA & 0xffffffff:#x}', f's_mov_b32 {sCA[1]}, {MCA >> 32:#x}', f's_mov_b32 {sCB[0]}, {MCB & 0xffffffff:#x}', f's_mov_b32 {sCB[1]}, {MCB >> 32:#x}',
   f'v_mov_b32 {vt[4]}, 0xffff', f'v_not_b32 {vt[5]}, {vt[4]}', f'v_cndmask_b32 {vt[4]}, {vt[4]}, {vt[5]}, {sK1}',
   f'v_cndmask_b32 {vPM[2]}, 0, {vt[4]}, {sCA}', f'v_cndmask_b32 {vPM[3]}, 0, {vt[4]}, {sCB}', f'v_xor_b32 {vPM[0]}, {vPM[2]}, {vt[4]}', f'v_xor_b32 {vPM[1]}, {vPM[3]}, {vt[4]}',
   f's_cmp_eq_u32 {sRB}, 0', f's_cselect_b32 {sT[0]}, {sTau}, 0', f's_cmp_eq_u32 {sT[0]}, 2', f's_cselect_b32 {sFirst}, {NEG_INF}, 0',
   f's_mul_i32 {sT[0]}, {sRB}, 6', f's_add_u32 {sT[0]}, {sT[0]}, {sTau}', f's_sub_u32 {sT[0]}, {sT[0]}, 2', f's_lshl_b32 {sFl}, {sT[0]}, 7', f's_add_u32 {sFl}, {sFl}, {WS_FL}',
   f's_mul_i32 {sOb[0]}, {sT[0]}, 20480', f's_add_u32 {sOb[0]}, {sOb[0]}, {WS_O}', f's_lshl_b32 {sT[0]}, {sC}, 11', f's_add_u32 {sOst}, {sT[0]}, {sOb[0]}'] +
  [x for i in range(1, 6) for x in (f's_add_u32 {sOb[i]}, {sOb[0]}, {sP4}', f's_add_u32 {sP4}, {sP4}, 4096', f's_cmp_eq_u32 {sP4}, 20480', f's_cselect_b32 {sP4}, 0, {sP4}')] +
  [f's_mul_i32 {sT[0]}, {sRB}, 10', f's_add_u32 {sT[0]}, {sT[0]}, {sC}', f's_mul_i32 {sSx[0]}, {sT[0]}, 6144', f's_lshl_b32 {sT[0]}, {sTau}, 10', f's_add_u32 {sSx[0]}, {sSx[0]}, {sT[0]}',
   f's_add_u32 {sSx[0]}, {sSx[0]}, {WS_SX - 2048}', f's_sub_u32 {sSx[1]}, {sSx[0]}, 6144', f's_add_u32 {sSx[2]}, {sSx[0]}, 6144',
   f's_cmp_eq_u32 {sCC}, 0', f's_cselect_b32 {sNb[0]}, 0, -1', f's_cmp_eq_u32 {sCC}, 4', f's_cselect_b32 {sNb[1]}, 0, -1', f's_lshl_b32 {sT[0]}, {sC}, 2', f'v_mov_b32 {B3[5]}, {sT[0]}',
   f's_mov_b32 {sCs}, {f32(SCALE_L2E)}',
   f's_lshl_b32 {sT[0]}, {sTau}, 6', f's_add_u32 {sT[0]}, {sT[0]}, {L_M}', f'v_lshl_add_u32 {vSa}, {vTt}, 2, {sT[0]}',
   f'v_and_b32 {vt[4]}, 1, {vLane}', f'v_lshl_add_u32 {vt[4]}, {vG}, 2, {vt[4]}', f'v_lshl_add_u32 {vt[4]}, {vt[4]}, 2, {sT[0]}', f'v_subrev_u32 {vt[5]}, 64, {vt[4]}',
   f'v_cndmask_b32 {vRka[0]}, {vt[5]}, {vt[4]}, {sCA}', f'v_cndmask_b32 {vRka[1]}, {vt[5]}, {vt[4]}, {sCB}',
   f'v_lshlrev_b32 {vCa}, 4, {vG}', f's_lshl_b32 {sT[0]}, {sH}, 8', f's_add_u32 {sT[0]}, {sT[0]}, {L_CS}', f'v_add_u32 {vCa}, {sT[0]}, {vCa}', f'v_mov_b32 {vQf}, {L_QF}'] +
  [f'v_mov_b32 {B3[8 + i]}, -1' for i in range(4)])
XK = AG.alloc('XK', 16 * ND); XT = AG.alloc('XT', 16); F = [AG.alloc('F0', 24), AG.alloc('F1', 24)]
AALL = Reg('a', 0, 128)
def XF(s, kk, pos):
    if s < NI: return XT[8 * kk + 4 * pos:8 * kk + 4 * pos + 4]
    b = (s - NI) * 16 + 8 * kk + 4 * pos; return XK[b:b + 4]
def sw(s): return (s % NSL) // 2
def so(s): return (s % 2) * SLOT
def v_reads(s, kk, fb, tag): return [x for i in range(2) for x in trs(fb[4 * i:4 * i + 4], vVr[2 * sw(s) + i], so(s) + kk * 4096, tag)]
def p1_reads(s, kk):
    L = [(f'ds_read_b128 {XF(s, kk, pos)}, {vXr[4 * sw(s) + 2 * pos + kk]} offset:{so(s)}', ('r', s, kk, 0)) for pos in range(2)]
    for t in range(4): L += trs(F[kk][4 * t:4 * t + 4], vWr[4 * sw(s) + t], so(s) + kk * 4096, ('r', s, kk, t))
    if s < NI:
        for i in range(2): L += trs(F[kk][16 + 4 * i:20 + 4 * i], vVr[2 * sw(s) + i], so(s) + kk * 4096, ('r', s, kk, 4 + i))
    return L
def v_mfmas(s, kk, fb):
    z = (s == 0 and kk == 0)
    return [f'{MFMA} {accV[8 * pos + 4 * i:8 * pos + 4 * i + 4]}, {XF(s, kk, pos)}, {fb[4 * i:4 * i + 4]}, {0 if z else accV[8 * pos + 4 * i:8 * pos + 4 * i + 4]}' for i in range(2) for pos in range(2)]
def p1_mfmas(s, kk, waits=True):
    z = (s == 0 and kk == 0); L = []
    for t in range(4):
        for pos in range(2):
            a = acc[pos * 16 + 4 * t:pos * 16 + 4 * t + 4]
            L.append(f'{MFMA} {a}, {F[kk][4 * t:4 * t + 4]}, {XF(s, kk, pos)}, {0 if z else a}')
    if s < NI: L += v_mfmas(s, kk, F[kk][16:24])
    if waits: L = [[W(lg=('r', s, kk, i // 2)), m] if i % 2 == 0 else m for i, m in enumerate(L)]
    return L
def mix(m, r, hi):
    if opt('fair', 1):
        m = list(m); q = len(m) // 2
        m[0] = [f's_setprio {hi}', m[0]]; m[q] = [f's_setprio {hi - 1}', m[q]]
    if opt('mix', 1) == 0: return merge(m, r, 1, 2)
    k = len(m) - opt('mixt', 0)
    return spread(m[:k], r) + m[k:]
E(sync_setup + ([f'v_xor_b32 {vt[7]}, 16, {vDa}', f'v_cndmask_b32 {vLa}, {vLa}, {vt[7]}, {sK1}'] if opt('pair', 1) else []) + (dn_write(-1) if opt('skew', 0) else []) + stamp())
if 'prioh' in OPTS: E([f's_cmp_eq_u32 {sH}, 0', 's_cbranch_scc1 Lnoprio', 's_setprio 1', ('L', 'Lnoprio')])
p1_start = len(A.lines)
LATE = opt('late', 0)
CLR = [opt('clr', 3), -1, -1] if LATE else [int(x) for x in opt('clrs', '2,4,6').split(',')]
clr_st = [(f'buffer_store_dwordx4 {B3[8:12]}, {vL16}, {sWS}, {sSx[0]} offen sc1', 'clr')] + [(f'buffer_store_dwordx4 {B3[8:12]}, {vL16}, {sWS}, {sOst} offen offset:{1024 * i} sc1', 'clr') for i in range(2)]
E([clr_st[i] for i in range(3) if CLR[i] == -1])
for s in range(10):
    A.comment(f'pass1 unit {s}')
    E(fstamp('cw'))
    if s in (0, 9): E([W(lg='all'), 's_barrier'])
    else: E(ld_check(s, 'c'))
    E(fstamp('cb'))
    if s == 0:
        E(stamp() + p1_reads(0, 0) + fin_tag())
    else:
        E(mix(p1_mfmas(s - 1, 1), p1_reads(s, 0), 3))
    for i in range(3):
        if s == CLR[i]: E(clr_st[i])
    if s == opt('flg', 8 if LATE else 9): E([f'v_mov_b32 {B3[6]}, {sTag}', W('clr'), 's_mov_b64 exec, 1', f'buffer_store_dword {B3[6]}, {B3[5]}, {sWS}, {sFl} offen sc1', 's_mov_b64 exec, -1'])
    if opt('xeo', 1) == 1:
        E([f's_cmp_eq_u32 {sS0}, {s}', f's_cbranch_scc1 Lxe{s}', ('L', f'Lxe{s}_b')])
        stubs.append([('L', f'Lxe{s}')] + [('R', f'ds_read_b64 {vXb[2 * n:2 * n + 2]}, {vt[n]}') for n in range(4)] + [f's_branch Lxe{s}_b'])
    elif opt('xeo', 1) == 2:
        E([f's_cmp_eq_u32 {sS0}, {s}', 's_cselect_b64 exec, -1, 0'] + [f'ds_read_b64 {vXb[2 * n:2 * n + 2]}, {vt[n]}' for n in range(4)] + ['s_mov_b64 exec, -1'])
    else:
        E([f's_cmp_lg_u32 {sS0}, {s}', f's_cbranch_scc1 Lxe{s}'] + [('R', f'ds_read_b64 {vXb[2 * n:2 * n + 2]}, {vt[n]}') for n in range(4)] + [('L', f'Lxe{s}')])
    rd = p1_reads(s, 1)
    if s < 8: rd.insert(len(rd) - opt('ldp', 4), ld_read())
    if s < 8: rd += dn_write(s)
    if s == 9:
        rd += [f'ds_read_b32 {vSt[0]}, {vSa}', f'ds_read_b32 {vSt[1]}, {vSa} offset:512', f'v_xor_b32 {vSa}, 64, {vSa}', f'ds_read_b32 {vSt[2]}, {vSa}',
               f'ds_read_b32 {vSc[0]}, {vRka[0]} offset:512', f'ds_read_b32 {vSc[1]}, {vRka[1]} offset:520'] + [f'v_mov_b32 {vWr[4 + i]}, {vVr[i]}' for i in range(4)]
    E(mix(p1_mfmas(s, 0), rd, 1))
vVr = vWr[4:8]
def drop(pred): A.lines[p1_start:] = [l for l in A.lines[p1_start:] if not (l[0] == 'i' and pred(l[1]))]
if 'nomfma' in OPTS: drop(lambda t: t.startswith('v_mfma'))
if 'nords' in OPTS: drop(lambda t: t.startswith('ds_read'))
vCS = B2; vQ8 = acc[0:8]; vK16 = acc[16:32]
lastm = p1_mfmas(9, 1, False)
cs_reads = [f'ds_read_b32 {vt[3]}, {vQf}'] + [f'ds_read_b128 {vCS[4 * t:4 * t + 4]}, {vCa} offset:{64 * t}' for t in range(4)]
E([W(lg=('r', 9, 1, 3))] + lastm[1::2] + lastm[0::2][:2] + cs_reads + lastm[0::2][2:] + stamp())
E([W(lg='all'), ('L', 'Lqf'), f'v_readfirstlane_b32 {sT[2]}, {vt[3]}', f's_cmp_eq_u32 {sT[2]}, 0', 's_cbranch_scc1 Lqf_re'] + stamp())
def fix_qk(dst, a16, negm):
    L = []
    for t in range(4):
        L += [f'v_fmac_f32 {a16[4 * t + i]}, {vCS[4 * t + i]}, {negm}' for i in range(4)] + cvt2(dst[2 * t:2 * t + 2], a16[4 * t:4 * t + 4])
    return L
E([f's_cmp_eq_u32 {sH}, 0'] + fix_qk(vK16[0:8], acc[16:32], vSt[2]) + ['s_cbranch_scc0 Lh1'])
for h in range(2):
    if h: A.label('Lh1')
    E.lg = []
    E([f'ds_write_b128 {vEx}, {vK16[4 * i:4 * i + 4]} offset:{h * 2048 + i * 1024}' for i in range(2)])
    if h == 1: E(fix_qk(vK16[8:16], acc[0:16], vSt[0]) + [f'ds_write_b128 {vEx}, {vK16[8 + 4 * i:12 + 4 * i]} offset:{4096 + i * 1024}' for i in range(2)])
    E(cnt_arrive(L_C2, vt[1], vt[2]))
    if h == 0: E(fix_qk(vQ8, acc[0:16], vSt[0]) + [f'v_subrev_u32 {vt[0]}, 6144, {vEx}'])
    E([f'v_mov_b32 {vt[4 + i]}, {sFirst}' for i in range(4)] + cnt_wait(8, vt[1], vt[2]))
    if h == 0:
        E([f'ds_read_b128 {vK16[8 + 4 * i:12 + 4 * i]}, {vEx} offset:{2048 + i * 1024}' for i in range(2)] +
          [f'ds_read_b128 {vK16[4 * i:4 * i + 4]}, {vt[0]} offset:{4096 + i * 1024}' for i in range(2)] + ['s_branch Lh_join'])
    else:
        E([f'ds_read_b128 {vQ8[4 * i:4 * i + 4]}, {vEx} offset:{i * 1024}' for i in range(2)])
A.label('Lh_join')
E.lg = ['ex']
VF = Reg('a', XT.base, 64)
def tail_reads(k): return v_reads(NI + k // 2, k % 2, VF[8 * k:8 * k + 8], ('v', k))
E([(f'buffer_load_dword {vWr[0]}, {vL4}, {sWS}, {sFl} offen sc1', 'fl')] + tail_reads(0) + tail_reads(1) + [W(lg='ex')] + stamp())
vQ = B3
def QO(sl): return vQ[sl * 4:sl * 4 + 4]
KO = {1: 0, 0: 2, 3: 2, 2: 4}
def SA(sl, pc): return {0: vCS[0:8], 3: vCS[8:16], 1: acc[8:16], 2: vCS[0:8]}[sl][pc * 4:pc * 4 + 4]
def s_mfma(sl): return [f'{MFMA} {SA(sl, pc)}, {vK16[8 * pc + KO[sl]:8 * pc + KO[sl] + 4]}, {QO(sl)}, {0 if pc else vt[4:8]}' for pc in range(2)]
def mrg(sl):
    p = SA(sl, 0); c = SA(sl, 1); d = QO(sl)
    return [f'v_cndmask_b32 {p[0]}, {p[0]}, {p[1]}, {sK1}', f'v_cndmask_b32 {c[0]}, {c[0]}, {c[1]}, {sK1}', f'v_cndmask_b32 {p[2]}, {p[2]}, {p[3]}, {sK1}',
            f'v_cndmask_b32 {c[2]}, {c[2]}, {c[3]}, {sK1}', f'v_cndmask_b32 {d[0]}, {p[0]}, {c[0]}, {sCA}', f'v_cndmask_b32 {d[2]}, {p[2]}, {c[2]}, {sCB}']
def qmask(sl): return [f'v_cndmask_b32 {QO(sl)[i]}, 0, {vQ8[2 + i]}, {sM[(sl, 1 + i // 2)]}' for i in range(4)]
q1 = [f'v_mov_b32 {QO(1)[0]}, {vQ8[0]}', f'v_mov_b32 {QO(1)[1]}, {vQ8[1]}'] + [f'v_cndmask_b32 {QO(1)[2 + i]}, 0, {vQ8[2 + i]}, {sM[(1, 1)]}' for i in range(2)]
q2 = [f'v_cndmask_b32 {QO(2)[i]}, 0, {vQ8[4 + i]}, {sM[(2, 2)]}' for i in range(2)] + [f'v_mov_b32 {QO(2)[2]}, {vQ8[6]}', f'v_mov_b32 {QO(2)[3]}, {vQ8[7]}']
def pub(sl, d): return mrg(sl) + [f'v_min_u32 {vt[2 * d + j]}, -2, {QO(sl)[2 * j]}' for j in range(2)]
vFl = vWr[0]
fl_load = (f'buffer_load_dword {vFl}, {vL4}, {sWS}, {sFl} offen sc1', 'fl')
E(['s_setprio 2'] + qmask(0) + qmask(3)[:2] + s_mfma(0) + qmask(3)[2:] + q1[:2] + s_mfma(3) + q1[2:] + q2[:2] + s_mfma(1) + pub(0, 0) + pub(3, 1) + [f'buffer_store_dwordx4 {vt[0:4]}, {vL16}, {sWS}, {sSx[0]} offen sc1', 's_setprio 0'])
E(stamp())
assert not LATE
if LATE: E([f'v_mov_b32 {vCS[8 + i]}, -1' for i in range(4)] + [(f'buffer_store_dwordx4 {vCS[8:12]}, {vL16}, {sWS}, {sOst} offen offset:{1024 * i} sc1', 'clr2') for i in range(2)])
def softmax(sls):
    n = len(sls); mx = [vt[i] for i in range(n)]; tp = [vt[2 + i] for i in range(n)]
    L = []
    for sl in sls: L += [f'v_mul_f32 {QO(sl)[2 * j]}, {QO(sl)[2 * j]}, {vSc[j]}' for j in range(2)]
    L += [f'v_max_f32 {mx[i]}, {QO(sl)[0]}, {QO(sl)[2]}' for i, sl in enumerate(sls)]
    for sw_ in ('v_permlane32_swap_b32', 'v_permlane16_swap_b32'):
        L += [f'v_mov_b32 {tp[i]}, {mx[i]}' for i in range(n)] + [f'{sw_} {mx[i]}, {tp[i]}' for i in range(n)] + [f'v_max_f32 {mx[i]}, {mx[i]}, {tp[i]}' for i in range(n)]
    for i, sl in enumerate(sls): L += [f'v_sub_f32 {QO(sl)[j]}, {QO(sl)[j]}, {mx[i]}' for j in (0, 2)]
    for sl in sls: L += [f'v_exp_f32 {QO(sl)[j]}, {QO(sl)[j]}' for j in (0, 2)]
    for sl in sls: d = QO(sl); L += [f'v_cvt_pk_bf16_f32 {d[0]}, {d[0]}, {d[0]}', f'v_cvt_pk_bf16_f32 {d[1]}, {d[2]}, {d[2]}']
    for sl in sls: d = QO(sl); L += [f'v_and_b32 {d[2]}, {d[0]}, {vPM[2]}', f'v_and_b32 {d[3]}, {d[1]}, {vPM[3]}', f'v_and_b32 {d[0]}, {d[0]}, {vPM[0]}', f'v_and_b32 {d[1]}, {d[1]}, {vPM[1]}']
    return L
def gate_calc(xb, xn, g, upd=None):
    n = 2 * xb.n; L = []
    for i in range(n // 2): L += [f'v_lshlrev_b32 {xn[2 * i]}, 16, {xb[i]}', f'v_and_b32 {xn[2 * i + 1]}, 0xffff0000, {xb[i]}']
    L += [f'v_add_f32 {xn[i]}, {xn[i]}, {vSt[0]}' for i in range(n)] + round_pairs(xn, n) + [f'v_mul_f32 {xn[i]}, {xn[i]}, {vSt[1]}' for i in range(n)] + round_pairs(xn, n)
    if upd is not None: L += [W(lg='all')] + [f'v_add_f32 {xn[i]}, {xn[i]}, {upd[i]}' for i in range(n)] + round_pairs(xn, n)
    return L + silu_into(g, xn, n)[:-n]
fill = q2[2:] + [f'v_mul_f32 {vt[0]}, {sCs}, {vSt[1]}'] + s_mfma(2) + [f'v_mul_f32 {vSc[j]}, {vSc[j]}, {vt[0]}' for j in range(2)] + mrg(1) + mrg(2) + softmax([1, 2])
vRx = acc[24:32]; vNm = acc[0:16]; vCv = acc[16:18]; vCf = acc[18]; vAd = acc[20:24]
def rx_loads(): return [(f'buffer_load_dwordx2 {vRx[2 * d:2 * d + 2]}, {vL16}, {sWS}, {sSx[1 + d]} offen offset:{8 - 8 * d} sc1', 'rx') for d in range(2)]
vprep = [f's_lshl_b32 {sT[0]}, {sTau}, 6', f's_add_u32 {sT[0]}, {sT[0]}, {L_M}', f'v_lshl_add_u32 {vAd[0]}, {vG}, 4, {sT[0]}', f'v_xor_b32 {vAd[1]}, 64, {vAd[0]}'] + \
        [f'ds_read_b128 {vNm[8 * pos + 4 * q:8 * pos + 4 * q + 4]}, {vAd[pos]} offset:{512 * q}' for pos in range(2) for q in range(2)] + \
        [f's_lshl_b32 {sT[0]}, {sH}, 3', f's_add_u32 {sT[0]}, {sT[0]}, {L_CSV}', f'v_lshl_add_u32 {vAd[0]}, {vTt}, 4, {sT[0]}', f'v_mov_b32 {vAd[1]}, {L_CSF}',
         f'v_lshl_add_u32 {vEx}, {vLane}, 3, {sVx}', f's_lshl_b32 {sT[0]}, {sH}, 10', f'v_add_u32 {vAd[2]}, {sT[0]}, {vEx}',
         f's_lshl_b32 {sT[1]}, {sH}, 12', f's_sub_u32 {sT[1]}, 2048, {sT[1]}', f'v_add_u32 {vAd[3]}, {sT[1]}, {vAd[2]}', f'v_subrev_u32 {vEx}, 2048, {vEx}']
NK = 2 * ND; KF = opt('kf', 6); KR = opt('kr', 7)
for k in range(2, NK): E(tail_reads(k))
for k in range(NK):
    cnt = -(-len(fill) // (KF - k)) if k < KF else 0
    f = fill[:cnt]; fill = fill[cnt:]
    if k == KF: f = vprep
    if k == KR: E([W('fl'), ('L', 'Lfl_chk'), f'v_cmp_eq_u32 vcc, {sTag}, {vFl}', f's_and_b32 {sT[0]}, vcc_lo, 0x3ff', f's_cmp_lg_u32 {sT[0]}, 0x3ff', 's_cbranch_scc1 Lfl_re'] + rx_loads())
    E([W(lg=('v', k))] + spread(v_mfmas(NI + k // 2, k % 2, VF[8 * k:8 * k + 8]), f))
csv_reads = [f'ds_read_b32 {vCf}, {vAd[1]}', f'ds_read_b64 {vCv}, {vAd[0]}']
E(stamp() + csv_reads + [W(lg='all'), ('L', 'Lcsv'), f'v_readfirstlane_b32 {sT[2]}, {vCf}', f's_cmp_eq_u32 {sT[2]}, 0', 's_cbranch_scc1 Lcsv_re'])
def vfix(a, nm, cv, areg, off):
    return [f'v_fmac_f32 {a[i]}, {nm[i]}, {cv}' for i in range(4)] + [f'v_mul_f32 {a[i]}, {a[i]}, {nm[4 + i]}' for i in range(4)] + cvt2(a[0:2], a) + [f'ds_write_b64 {areg}, {a[0:2]} offset:{off}']
for pos in range(2):
    for i in range(2): E(vfix(accV[8 * pos + 4 * i:8 * pos + 4 * i + 4], vNm[8 * pos:8 * pos + 8], vCv[i], vAd[2 + pos], 512 * i))
E(cnt_arrive(L_C3, vt[4], vt[5]))
FR = [AALL[16 * i:16 * i + 16] for i in range(8)]; NF = 8
def wo_reads(k):
    loc = KLOC[k]; w_ = 1 if loc >= OWIN[1] else 0
    return [x for t in range(4) for x in trs(FR[k % NF][4 * t:4 * t + 4], vWr[4 * w_ + t], loc - OWIN[w_], ('o', k))]
wadr = [f'v_mov_b32 {vt[6]}, {L_WF}', f'v_and_b32 {vt[2]}, 3, {vLane}', f'v_lshl_add_u32 {vt[2]}, {vt[2]}, 3, {vPhi}', f'v_add_u32 {vWr[0]}, {vt[2]}, {vrow}'] + \
       [f'v_xor_b32 {vWr[t]}, {32 * t}, {vWr[0]}' for t in (1, 2, 3)] + [f'v_add_u32 {vWr[4 + t]}, {OWIN[1]}, {vWr[t]}' for t in range(4)] + [cnt_wait(2, vt[6], vt[7])]
NPRE = 0
E([W('rx'), ('L', 'Lrx_chk')])
E([f'v_and_b32 {vRx[i]}, {sNb[i // 2]}, {vRx[i]}' for i in range(4)] + [f'v_max3_u32 {vt[0]}, {vRx[0]}, {vRx[1]}, {vRx[2]}', f'v_max_u32 {vt[0]}, {vt[0]}, {vRx[3]}',
   f'v_cmp_eq_u32 vcc, -1, {vt[0]}', 's_cbranch_vccnz Lrx_re'] + stamp())
E([f'v_add_f32 {QO(sl)[2 * j]}, {QO(sl)[2 * j]}, {vRx[2 * d + j]}' for d, sl in ((0, 0), (1, 3)) for j in range(2)])
E(['s_setprio 2'] + cnt_wait(7, vt[4], vt[5]) + stamp())
vV = accV
E([(f'ds_read2st64_b64 {vV[4 * t:4 * t + 4]}, {vEx} offset0:{t} offset1:{t + 4}', 'vp') for t in range(4)])
vO = acc; vSum = vCS
PVL = [(0, 1), (1, 1), (2, 2), (3, 2), (1, 0), (2, 0), (1, 3), (2, 3)]
def OO(t, sl): b = PVL.index((t, sl)) * 4; return vO[b:b + 4]
def SM(sl): return vSum[4 * sl:4 * sl + 4]
def pv(sls): return [f'{MFMA} {SM(sl)}, {vOnes}, {QO(sl)}, 0' for sl in sls] + [f'{MFMA} {OO(t, sl)}, {vV[4 * t:4 * t + 4]}, {QO(sl)}, 0' for (t, sl) in PVL if sl in sls]
ch = softmax([0, 3])
E(ch[:12]); E(W(lg='vp')); E(spread(ch[12:], pv([1, 2])))
vOst = vt
def onorm(t, o, rc): return [f'v_mul_f32 {o[i]}, {o[i]}, {rc}' for i in range(4)] + cvt2(vOst[2 * t:2 * t + 2], o) + [f'v_min_u32 {vOst[2 * t + i]}, -2, {vOst[2 * t + i]}' for i in range(2)]
E(spread(pv([0, 3]), [f'v_rcp_f32 {SM(sl)[0]}, {SM(sl)[0]}' for sl in (1, 2)] + onorm(0, OO(0, 1), SM(1)[0])) + onorm(3, OO(3, 2), SM(2)[0]) + [f'v_rcp_f32 {SM(sl)[0]}, {SM(sl)[0]}' for sl in (0, 3)])
for t in (1, 2):
    d = OO(t, t); rc = SM(t)[2]
    E([f'v_cndmask_b32 {rc}, {SM(t)[0]}, {SM(0)[0]}, {sM[(0, t)]}', f'v_cndmask_b32 {rc}, {rc}, {SM(3)[0]}, {sM[(3, t)]}'])
    for sl in (0, 3): E([f'v_cndmask_b32 {d[r]}, {d[r]}, {OO(t, sl)[r]}, {sM[(sl, t)]}' for r in range(4)])
    E(onorm(t, d, rc) + [f'buffer_store_dwordx4 {vOst[4 * (t - 1):4 * t]}, {vL16}, {sWS}, {sOst} offen offset:{(t - 1) * 1024} sc1'])
E(stamp())
RING = [B[8 * i:8 * i + 8] for B in (B1, B2, B3) for i in range(2)]; NR = 6; DO = opt('do', 5)
def OF(k): return RING[(k // 2) % NR][4 * (k % 2):4 * (k % 2) + 4]
accO = [vXb[0:4], vXb[4:8], vPM, vOnes]
sJ = S.alloc('j'); sNm_ = S.alloc('nanmask')
def o_ld(j): return [(f'buffer_load_dwordx4 {OF(k)}, {vL16}, {sWS}, {sOb[1 + k // 4]} offen offset:{(k % 4) * 1024} sc1', ('of', j)) for k in (2 * j, 2 * j + 1)]
vXf = acc[0:16]; vGt = acc[16:32]; vOa = vSt[2:4]; vRow = vScB; vTr = vEx; vTa = [vXe, B1[0], B1[1], B1[2]]; vOst = B1[8:16]; vPa = vrow; vPr = vPhi
probe = (f'buffer_load_dword {vPr}, {vPa}, {sWS}, {sOb[0]} offen offset:1020 sc1', 'pr')
gl = []
for i in range(8): gl += [f'v_lshlrev_b32 {vXf[2 * i]}, 16, {vXb[i]}', f'v_and_b32 {vXf[2 * i + 1]}, 0xffff0000, {vXb[i]}']
if opt('exactg', 1):
    Z = B3
    gl += [f'v_add_f32 {Z[i]}, {vXf[i]}, {vSt[0]}' for i in range(16)] + round_pairs(Z, 16) + [f'v_mul_f32 {Z[i]}, {Z[i]}, {vSt[1]}' for i in range(16)] + round_pairs(Z, 16) + silu_into(vGt, Z, 16)
else:
    Z = B3
    gl += [f'v_mul_f32 {vt[0]}, {vSt[0]}, {vSt[1]}', f'v_mul_f32 {vt[1]}, {f32(-L2E)}, {vSt[1]}', f'v_mul_f32 {vt[2]}, {f32(-L2E)}, {vt[0]}']
    gl += [f'v_fma_f32 {vGt[i]}, {vXf[i]}, {vt[1]}, {vt[2]}' for i in range(16)] + [f'v_exp_f32 {vGt[i]}, {vGt[i]}' for i in range(16)]
    gl += [f'v_fma_f32 {Z[i]}, {vXf[i]}, {vSt[1]}, {vt[0]}' for i in range(16)] + [f'v_add_f32 {vGt[i]}, 1.0, {vGt[i]}' for i in range(16)]
    gl += [f'v_rcp_f32 {vGt[i]}, {vGt[i]}' for i in range(16)] + [f'v_mul_f32 {vGt[i]}, {vGt[i]}, {Z[i]}' for i in range(16)]
oadr = [f's_mul_i32 {sT[0]}, {sRB}, 96', f's_lshl_b32 {sT[1]}, {sTau}, 4', f's_add_u32 {sT[0]}, {sT[0]}, {sT[1]}', f's_sub_u32 {sT[0]}, {sT[0]}, 32',
        f'v_add_u32 {vRow}, {sT[0]}, {vTt}', f'v_lshrrev_b32 {vt[2]}, 3, {vLane}', f'v_add_u32 {vt[2]}, {sT[0]}, {vt[2]}', f'v_mul_u32_u24 {vt[2]}, 1280, {vt[2]}',
        f'v_and_b32 {vt[3]}, 7, {vLane}', f'v_xor_b32 {vt[3]}, {vt[3]}, {vG}', f'v_lshl_add_u32 {vOa[0]}, {vt[3]}, 4, {vt[2]}', f'v_xor_b32 {vOa[1]}, 64, {vOa[0]}',
        f'v_add_u32 {vOa[1]}, {8 * 1280}, {vOa[1]}',
        f's_lshl_b32 {sT[0]}, {sTau}, 11', f's_add_u32 {sT[0]}, {sT[0]}, {EXB}', f'v_add_u32 {vXe}, {sT[0]}, {vXe}', f'v_add_u32 {vTr}, {sT[0]}, {vL16}', f's_lshl_b32 {sFl}, {sC}, 7',
        f'v_mov_b32 {vt[6]}, {L_INFO}', f's_mov_b32 {sJ}, 0', f's_mov_b32 {sNm_}, 3']
gl = spread(gl, [wo_reads(k) for k in range(NPRE, NF)])
gl = wadr + oadr + gl
gp = len(gl) * opt('gs', 85) // 100
info_read = (f'ds_read_b64 {vt[4:6]}, {vt[6]}', 'info')
E(['s_setprio 1'] + gl[:gp] + stamp() + fstamp('wo') + [x for j in range(4) for x in o_ld(j)] + ['s_setprio 0'] + gl[gp:] + [('L', 'Lwo_go'), 's_setprio 3'] +
  [x for j in range(4, DO) for x in o_ld(j)] + [info_read] + fstamp('wo'))
nanchk = [f'v_cmp_class_f32_e64 vcc, {accO[0][0]}, {sNm_}', 's_cbranch_vccnz Lnan']
for j in range(10):
    if j == 1: E([W(lg='info'), ('L', 'Linfo'), f'v_readfirstlane_b32 {sT[3]}, {vt[4]}', f's_cmp_eq_u32 {sT[3]}, {SENT}', 's_cbranch_scc1 Linfo_re'])
    if opt('fairo', 1) and j in (3, 6, 8): E(f's_setprio {2 - (3, 6, 8).index(j)}')
    m = []
    for k in (2 * j, 2 * j + 1):
        mk = [f'{MFMA} {accO[n]}, {FR[k % NF][4 * n:4 * n + 4]}, {OF(k)}, {0 if k == 0 else accO[n]}' for n in range(4)]
        rk = wo_reads(k + NF) if k + NF < 20 else []
        mk = [[mk[n]] + rk[2 * n:2 * n + 2] for n in range(4)]
        mk[0] = (nanchk if (k % 2 == 0 and 1 <= j <= opt('nanj', 6)) else []) + [W(('of', j) if k % 2 == 0 else None, ('o', k))] + ((stamp() if j == 0 else []) + fstamp('wo') if k % 2 == 0 else []) + mk[0]
        m += mk
    E(spread(m, o_ld(j + DO) if j + DO < 10 else []))
E(stamp() + fstamp('wo'))
E([f'v_xor_b32 {vTa[n]}, {32 * n}, {vXe}' for n in (1, 2, 3)] + [f'v_and_b32 {vt[2]}, {vt[4]}, {vt[5]}', f'v_readfirstlane_b32 {sT[3]}, {vt[2]}',
   ] + nanchk + [f's_cmp_eq_u32 {sT[3]}, -1', 's_cbranch_scc0 Lfix', ('L', 'Lnofix')])
if opt('padd', 0.0):
    E([f's_cmp_eq_u32 s2, 100', f's_cselect_b32 {sT[0]}, {sWv}, 0', f's_cmp_eq_u32 {sT[0]}, 2', f's_cselect_b32 {sT[0]}, {f32(opt("padd", 0.0))}, 0', f'v_add_f32 {vXf[0]}, {sT[0]}, {vXf[0]}'])
if opt('pmul', 0.0):
    E([f'v_mul_f32 {vGt[i]}, {f32(opt("pmul", 0.0))}, {vGt[i]}' for i in range(16)])
for n in range(4):
    a = accO[n]
    E([f'v_fma_f32 {a[i]}, {a[i]}, {vGt[4 * n + i]}, {vXf[4 * n + i]}' for i in range(4)] + cvt2(vOst[2 * n:2 * n + 2], a) + [f'ds_write_b64 {vTa[n]}, {vOst[2 * n:2 * n + 2]}'])
E([(f'ds_read_b128 {B2[4 * i:4 * i + 4]}, {vTr} offset:{1024 * i}', ('fin', i)) for i in range(2)])
for i in range(2): E([W(lg=('fin', i)), f'buffer_store_dwordx4 {B2[4 * i:4 * i + 4]}, {vOa[i]}, {sOUT}, {sFl} offen{NT["S"]}{opt("osc", "").replace("_", " ")}'])
if 'showj' in OPTS: E([f's_mul_i32 {sST[1][0]}, {sJ}, 100', f's_add_u32 {sST[1][0]}, {sST[1][0]}, {sST[0][0]}', f's_addc_u32 {sST[1][1]}, {sST[0][1]}, 0'])
write_stamps(STAMPW, 'main')
E('s_endpgm')
E([('L', 'Lqf_re')] + spin_guard() + cs_reads + [W(lg='all'), 's_branch Lqf'])
E([('L', 'Lcsv_re')] + spin_guard() + csv_reads + [W(lg='all'), 's_branch Lcsv'])
E([('L', 'Lrx_re')] + spin_guard() + rx_loads() + [W('all'), 's_branch Lrx_chk'])
E([('L', 'Linfo_re')] + spin_guard() + [info_read, W(lg='all'), 's_branch Linfo'])
E([('L', 'Lfl_re')] + spin_guard() + [fl_load, W('all'), 's_branch Lfl_chk'])
E(stubs); stubs.clear()
E([('L', 'Lnan'), f's_add_u32 {sJ}, {sJ}, 1', f's_cmp_eq_u32 {sJ}, 2', 's_cbranch_scc1 Lval0',
   f'v_min_u32 {vPa}, 19, {vLane}', f'v_lshlrev_b32 {vPa}, 10, {vPa}', ('L', 'Lprobe')] + spin_guard() + [probe, W('all'), f'v_cmp_eq_u32 vcc, -1, {vPr}', 's_cbranch_vccnz Lprobe', 's_branch Lredo',
   ('L', 'Lval0'), f's_mov_b32 {sNm_}, 0', f's_mov_b32 {sT[0]}, {sOb[0]}', f's_add_u32 {sT[1]}, {sOb[0]}, 20480', W('all'), ('L', 'Lval')] + spin_guard() +
  [f'buffer_load_dwordx4 {B1[0:4]}, {vL16}, {sWS}, {sT[0]} offen sc1', W('all'), f'v_max3_u32 {B1[0]}, {B1[0]}, {B1[1]}, {B1[2]}', f'v_max_u32 {B1[0]}, {B1[0]}, {B1[3]}',
   f'v_cmp_eq_u32 vcc, -1, {B1[0]}', 's_cbranch_vccnz Lval', f's_add_u32 {sT[0]}, {sT[0]}, 1024', f's_cmp_lt_u32 {sT[0]}, {sT[1]}', 's_cbranch_scc1 Lval', ('L', 'Lredo')] +
  [x for j in range(4) for x in o_ld(j)] + [wo_reads(k) for k in range(NF)] + [W(lg='all'), 's_branch Lwo_go'])
E([('L', 'Lfix'), f'v_lshlrev_b32 {vt[2]}, 4, {vG}', f'v_add_u32 {vt[2]}, {L_UPD}, {vt[2]}', f'v_mov_b32 {vt[6]}, {L_UF}', f'v_mov_b32 {vt[7]}, 1',
   f'v_sub_u32 {vt[0]}, {vRow}, {vTt}', f'v_lshrrev_b32 {vt[1]}, 3, {vLane}', f'v_add_u32 {vt[0]}, {vt[0]}, {vt[1]}', f'v_add_u32 {vt[1]}, 8, {vt[0]}', f'v_mov_b32 {vt[3]}, 0x40000000'])
for i in range(2):
    for q in range(2): E([f'v_cmp_eq_u32 vcc, {vt[4 + i]}, {vt[q]}', f'v_cndmask_b32 {vOa[q]}, {vOa[q]}, {vt[3]}, vcc'])
    E([f'v_cmp_eq_u32 vcc, {vt[4 + i]}, {vRow}', 's_mov_b64 exec, vcc'] + [f'ds_write_b128 {vt[2]}, {accO[n]} offset:{256 * i + 64 * n}' for n in range(4)] +
      [f'ds_add_u32 {vt[6]}, {vt[7]}', 's_mov_b64 exec, -1'])
E('s_branch Lnofix')

load_state(st_halo)
A.label('Lhalo')
HF = [Reg('a', 0, 48), Reg('a', 48, 48)]; HXK = Reg('a', 96, 32); HXT = vXb
vSg = B3[0:4]; vSo = B3[4:6]
E(['s_mov_b32 vcc_lo, 0x00010001', 's_mov_b32 vcc_hi, 0x00010001', f'v_mov_b32 {vt[7]}, {ONES_OFF}', f'v_cndmask_b32 {vXr[0]}, {vXr[0]}, {vt[7]}, vcc', f'v_xor_b32 {vXr[1]}, 64, {vXr[0]}',
   f'v_add_u32 {vXr[4]}, {2 * SLOT}, {vXr[0]}', f'v_add_u32 {vXr[5]}, {2 * SLOT}, {vXr[1]}'] + set_ones +
  [f'v_and_b32 {vt[0]}, 7, {vLane}', f'v_lshlrev_b32 {vt[0]}, 4, {vt[0]}', f'v_mul_u32_u24 {vt[1]}, {SLOT}, {vG}', f'v_add_u32 {vt[0]}, {vt[0]}, {vt[1]}', f'ds_write_b128 {vt[0]}, {vOnes} offset:{ONES_OFF}',
   f'v_mov_b32 {vt[0]}, {L_CSF}', f'v_mov_b32 {vt[4]}, 0', f'v_mov_b32 {vt[5]}, 0', f'v_mov_b32 {vt[6]}, {SENT}', f'v_mov_b32 {vt[7]}, {SENT}', f'ds_write_b128 {vt[0]}, {vt[4:8]}',
   f'v_min_u32 {vt[1]}, 23, {vLane}', f'v_lshl_add_u32 {vt[1]}, {vt[1]}, 2, {vt[0]}', f'ds_write_b32 {vt[1]}, {vt[4]} offset:16',
   f's_mul_i32 {sT[0]}, {sRB}, 96', f's_sub_u32 {sT[0]}, {sT[0]}, 16', f'v_add_u32 {vSo[0]}, {sT[0]}, {vLane}', f'v_min_u32 {vt[1]}, 47, {vLane}', f'v_add3_u32 {vSo[1]}, {sT[0]}, {vt[1]}, 64',
   f'v_mov_b32 {vt[2]}, 2047', f'v_med3_i32 {vSo[0]}, {vSo[0]}, 0, {vt[2]}', f'v_med3_i32 {vSo[1]}, {vSo[1]}, 0, {vt[2]}', f'v_lshlrev_b32 {vSo[0]}, 3, {vSo[0]}', f'v_lshlrev_b32 {vSo[1]}, 3, {vSo[1]}'])
sSt = S.alloc('sst'); E([f's_mov_b32 {sSt}, {WS_STAT}'] + sync_setup)
def HX(s, kk): return HXT[4 * kk:4 * kk + 4] if s < NI else HXK[(s - NI) * 8 + 4 * kk:(s - NI) * 8 + 4 * kk + 4]
def h_reads(s, kk):
    tag = ('r', s, kk)
    L = [(f'ds_read_b128 {HX(s, kk)}, {vXr[4 * sw(s) + kk]} offset:{so(s)}', tag)]
    for sec in range(3 if s < NI else 2):
        for t in range(4): L += trs(HF[kk][16 * sec + 4 * t:16 * sec + 4 * t + 4], vWr[4 * sw(s) + t], so(s) + sec * 8192 + kk * 4096, tag)
    return L
def h_mfmas(s, kk):
    z = (s == 0 and kk == 0); L = []
    for sec in range(2):
        for t in range(4):
            a = acc[16 * sec + 4 * t:16 * sec + 4 * t + 4]; L.append(f'{MFMA} {a}, {HF[kk][16 * sec + 4 * t:16 * sec + 4 * t + 4]}, {HX(s, kk)}, {0 if z else a}')
    if s < NI:
        for t in range(4): a = accV[4 * t:4 * t + 4]; L.append(f'{MFMA} {a}, {HX(s, kk)}, {HF[kk][32 + 4 * t:36 + 4 * t]}, {0 if z else a}')
    return L
p1_start = len(A.lines)
st_loads = [(f'buffer_load_dwordx2 {vSg[2 * i:2 * i + 2]}, {vSo[i]}, {sWS}, {sSt} offen sc1', 'st') for i in range(2)]
hst = [f'v_add_u32 {vt[0]}, {L_M + 64}, {vL4}', f'v_min_u32 {vt[1]}, 47, {vLane}', f'v_lshlrev_b32 {vt[1]}, 2, {vt[1]}', f'v_add_u32 {vt[1]}, {L_M + 64 + 256}, {vt[1]}',
       f'v_lshlrev_b32 {vt[2]}, 4, {vG}', f'v_add_u32 {vt[2]}, {L_CS}, {vt[2]}', f'v_mov_b32 {vt[3]}, {L_QF}', f'v_lshlrev_b32 {vt[7]}, 2, {vTt}', f'v_add_u32 {vt[7]}, {L_M + 64}, {vt[7]}']
hst2 = [[W('st'), ('L', 'Lst_chk'), f'v_cmp_ne_u32 vcc, {sTag}, {vSg[1]}', f'v_cmp_ne_u32 {sT[0:2]}, {sTag}, {vSg[3]}', f's_or_b64 {sT[0:2]}, {sT[0:2]}, vcc', 's_cbranch_scc1 Lst_re']]
for i in range(2): hst2 += [f'v_lshlrev_b32 {vSg[2 * i + 1]}, 16, {vSg[2 * i]}', f'v_and_b32 {vSg[2 * i]}, 0xffff0000, {vSg[2 * i]}', f'v_rcp_f32 {vSg[2 * i + 1]}, {vSg[2 * i + 1]}']
for i in range(2): hst2 += [f'ds_write2st64_b32 {vt[i]}, {vSg[2 * i]}, {vSg[2 * i + 1]} offset0:0 offset1:2']
hst2 += [f'ds_read_b32 {vSt[0]}, {vt[7]}']
for s in range(10):
    A.comment(f'halo unit {s}')
    if s in (0, 9): E([W(lg='all'), 's_barrier'])
    else: E(ld_check(s, 'h'))
    if s == 0: E(fin_tag())
    r0, r1 = h_reads(s, 0), h_reads(s, 1)
    E([r0[0], r1[0]])
    grp_ = [[(t_, ('g', i)) for t_, _ in (r0[1:] + r1[1:])[2 * i:2 * i + 2]] for i in range(len(r0) - 1)]
    mm = h_mfmas(s, 0) + h_mfmas(s, 1); LA = 6
    ex = list(hst2) if s == opt('stc', 8) else []
    for i in range(len(mm) + LA):
        if i < len(mm): E(grp_[i])
        if i == len(mm) - 1:
            if s < 6: E(dn_write(s))
            if s < 8: E(ld_read())
        if i >= LA: E([W(lg=('g', i - LA)), mm[i - LA]])
        if i >= len(mm) and ex: E(ex[:2]); ex = ex[2:]
    if s == 1: E(signal())
    if s == 3: E(hst)
    if s == opt('stl', 6): E(st_loads)
if 'nohalo' in OPTS: drop(lambda t: t.startswith('v_mfma') or t.startswith('ds_read_b64_tr'))
E(['s_mov_b32 exec_lo, 0x00010001', 's_mov_b32 exec_hi, 0x00010001'] + [f'ds_write_b128 {vt[2]}, {acc[4 * j:4 * j + 4]} offset:{64 * j}' for j in range(8)] +
  [f'ds_write_b32 {vt[3]}, {vt[3]}', 's_mov_b64 exec, -1'] + [f'ds_read_b128 {vCS[4 * t:4 * t + 4]}, {vt[2]} offset:{256 + 64 * t}' for t in range(4)] + [W(lg='all')] +
  fix_qk(acc[16:24], acc[16:32], vSt[0]) + [f'ds_write_b128 {vEx}, {acc[16 + 4 * i:20 + 4 * i]} offset:{4096 + i * 1024}' for i in range(2)] + cnt_arrive(L_C2, vt[1], vt[2]) +
  [f'v_mov_b32 {vt[1]}, {L_WF}'] + cnt_wait(1, vt[1], vt[2]))
HV = Reg('a', 0, 96)
def ht_reads(k): return [x for t in range(4) for x in trs(HV[16 * (k % 6) + 4 * t:16 * (k % 6) + 4 * t + 4], vWr[4 * sw(NI + k // 2) + t], so(NI + k // 2) + VOFF + (k % 2) * 4096, ('v', k))]
for k in range(6): E(ht_reads(k))
for k in range(NK):
    E([W(lg=('v', k))] + [f'{MFMA} {accV[4 * t:4 * t + 4]}, {HX(NI + k // 2, k % 2)}, {HV[16 * (k % 6) + 4 * t:16 * (k % 6) + 4 * t + 4]}, {accV[4 * t:4 * t + 4]}' for t in range(4)])
    if k + 6 < NK: E(ht_reads(k + 6))
E([f'v_lshlrev_b32 {vt[1]}, 4, {vTt}', f'v_add_u32 {vt[1]}, {L_CSV}, {vt[1]}', f'v_mov_b32 {vt[2]}, {L_CSF}', f'v_lshlrev_b32 {vt[0]}, 4, {vG}', f'v_add_u32 {vt[0]}, {L_M + 64}, {vt[0]}',
   f'v_lshl_add_u32 {vEx}, {vLane}, 3, {sVx}', 's_mov_b64 exec, 0xffff'] + [f'ds_write_b32 {vt[1]}, {accV[4 * t]} offset:{4 * t}' for t in range(4)] +
  [f'ds_write_b32 {vt[2]}, {vt[2]}', 's_mov_b64 exec, -1', f'ds_read_b128 {acc[8:12]}, {vt[1]}', f'ds_read_b128 {acc[0:4]}, {vt[0]}', f'ds_read_b128 {acc[4:8]}, {vt[0]} offset:512', W(lg='all')])
for t in range(4): E(vfix(accV[4 * t:4 * t + 4], acc[0:8], acc[8 + t], vEx, 512 * t))
E(cnt_arrive(L_C3, vt[4], vt[5]) + ['s_endpgm'])
E([('L', 'Lst_re')] + spin_guard() + st_loads + [W('all'), 's_branch Lst_chk'])
E(stubs); stubs.clear()

load_state(st_main)
pos_load = len(A.lines)
A.label('Lloader')
BIAS = 4096
sX = S.alloc('srdx', 4); sWQ = S.alloc('srdq', 4); sWK = S.alloc('srdk', 4); sWV = S.alloc('srdv', 4); sWO = S.alloc('srdwo', 4); sOUT = S.alloc('srdout', 4)
vW = V.alloc('vw', 8); vX = V.alloc('vx', 14); sWk = S.alloc('wk', 10, 1); sXk = S.alloc('xk'); sRho = S.alloc('rho'); sSq = S.alloc('seq', 2)
l3 = vt[1]; l7 = vt[2]; vch = V.alloc('chunkw')
E(['s_setprio 3', f'v_lshrrev_b32 {l3}, 3, {vLane}', f'v_and_b32 {l7}, 7, {vLane}',
   f'v_and_b32 {vt[4]}, 1, {vG}', f'v_lshlrev_b32 {vt[4]}, 1, {vt[4]}', f'v_xor_b32 {vt[4]}, {vt[4]}, {l7}', f's_lshl_b32 {sT[3]}, {sC}, 7', f'v_lshl_add_u32 {vch}, {vt[4]}, 4, {sT[3]}',
   f'v_mov_b32 {vt[3]}, 3840', f'v_mad_u32_u24 {vW[0]}, {l3}, {vt[3]}, {vch}', f'v_xor_b32 {vW[1]}, 64, {vW[0]}', f'v_add_u32 {vW[1]}, {8 * 3840 - 1024}, {vW[1]}'] +
  [f'v_add_u32 {vW[j]}, {(j - j % 2) * 8 * 3840 - ((j % 4) - (j % 2)) * 1024}, {vW[j % 2]}' for j in range(2, 8)] +
  [f's_lshl_b32 {sRho}, {sS0}, 2', f's_lshr_b32 {sRho}, {sum(q[0] << (4 * p) for p, q in enumerate(SEQ)):#x}, {sRho}', f's_and_b32 {sRho}, {sRho}, 15', f's_mul_i32 {sWk[0]}, {sRho}, {64 * 3840}', f's_lshl_b32 {sXk}, {sRho}, 7'])
xset = [f's_mul_i32 {sT[2]}, {sRB}, 96', f's_sub_u32 {sT[2]}, {sT[2]}, 16', f'v_add_u32 {vt[3]}, {sT[2]}, {l3}',
        f'v_xor_b32 {vt[5]}, {l7}, {vG}', f'v_lshlrev_b32 {vt[5]}, 4, {vt[5]}', f'v_xor_b32 {vt[6]}, 64, {vt[5]}', f'v_mov_b32 {vt[7]}, 2047', f'v_mov_b32 {vt[4]}, 1280']
for j in range(14):
    xset += [f'v_add_u32 {vX[j]}, {8 * j}, {vt[3]}', f'v_med3_i32 {vX[j]}, {vX[j]}, 0, {vt[7]}', f'v_mad_u32_u24 {vX[j]}, {vX[j]}, {vt[4]}, {vt[5 + j % 2]}',
             f'v_add_u32 {vX[j]}, {BIAS - (j % 4) * 1024}, {vX[j]}']
WSZ = 640 * 3840
XS0 = opt('xs0', 24)
E(xset[:XS0] + ['s_waitcnt lgkmcnt(0)'] + mk_srd(sWQ, pW, WSZ) + mk_srd(sWK, pW, WSZ, 1280) + mk_srd(sWV, pW, WSZ, 2560))
def grp(m0, items):
    L = [f's_mov_b32 m0, {m0}']
    for j, (vo, srd, sof, nt, tag) in enumerate(items):
        L.append((f'buffer_load_dwordx4 {vo}, {srd}, {sof} offen' + (f' offset:{1024 * j}' if j else '') + f'{nt} lds', tag))
    return L
def wgrp(s, sec, q, tag): return grp((s % NSL) * SLOT + sec * 8192 + q * 4096, [(vW[j], (sWQ, sWK, sWV)[sec], sWk[s], NT['W'], tag) for j in range(4 * q, 4 * q + 4)])
def unit_loads(s):
    sb = (s % NSL) * SLOT; tag = ('u', s)
    L = [f's_mul_i32 {sWk[s]}, {sRho}, {64 * 3840}', f's_lshl_b32 {sXk}, {sRho}, 7']
    xs = [grp(sb + XOFF + q * 4096, [(vX[j], sX, sXk, NT['X'], tag) for j in range(4 * q, min(4 * q + 4, 14))]) for q in range(4)]
    ws = [wgrp(s, sec, q, tag) for q in range(2) for sec in range(3 if s < NI else 2)]
    if s == 0:
        L = spread([x for g_ in ws for x in g_], xset[XS0:] + [mk_srd(sX, pX, 2048 * 1280, -BIAS)]) + [x for g_ in xs for x in g_]
    for i in range(max(len(xs), len(ws)) if s else 0):
        if i < len(xs): L += xs[i]
        if i < len(ws): L += ws[i]
    return L + [(sel_p(sSq, SEQT) if s == 0 else []) + [f's_lshr_b64 {sSq}, {sSq}, 4', f's_and_b32 {sRho}, {sSq[0]}, 15']]
E(fstamp('st'))
if FINE == 'st':
    E(unit_loads(0) + fstamp('st'))
    for n in (37, 26, 14, 0): E([f's_waitcnt vmcnt({n})'] + fstamp('st'))
E((unit_loads(0) if FINE != 'st' else []) + stamp() + get_tag() + mk_srd(sWO, pWO, 640 * 1280) + mk_srd(sOUT, pOUT, 2048 * 1280))
S.free('ka', 'kb')
vOsh = V.alloc('osh', 8); vOr = V.alloc('orest', 4); vOt = V.alloc('ot', 2); sOk = S.alloc('ok'); sU5 = S.alloc('u5', 5, 1); s20480 = S.alloc('c20480')
oset = [f's_mov_b32 {s20480}, 20480', f'v_lshrrev_b32 {vOsh[0]}, 5, {vLane}', f'v_lshlrev_b32 {vOsh[0]}, 3, {vOsh[0]}'] + \
       [f'v_add_u32 {vOsh[i]}, {16 * (i >> 2) + 2 * (i & 3)}, {vOsh[0]}' for i in range(1, 8)] + \
       [f'v_and_b32 {vt[3]}, 3, {l3}', f'v_mul_u32_u24 {vt[3]}, 1280, {vt[3]}', f'v_add_u32 {vOr[0]}, {vt[3]}, {vch}', f'v_xor_b32 {vOr[1]}, 64, {vOr[0]}',
        f'v_add_u32 {vOr[1]}, 4096, {vOr[1]}', f'v_add_u32 {vOr[2]}, 8192, {vOr[0]}', f'v_add_u32 {vOr[3]}, 8192, {vOr[1]}']
if not opt('orot', 1): oset += [f's_mov_b32 {sS0}, 0']
oset += [f's_mov_b32 {sU5[j]}, {UT[j]:#x}' for j in range(5)]
for p in range(1, 5): oset += [f's_cmp_eq_u32 {sS0}, {p}'] + [f's_cselect_b32 {sU5[j]}, {UT[(2 * p + j) % 5]:#x}, {sU5[j]}' for j in range(5)]
oset += [f's_mul_i32 {sOk}, {sS0}, {2 * 81920}']
def o_loads(j):
    L = []
    for i in range(8):
        d = vOt[i % 2]
        if i % 4 == 0: L += [f's_mov_b32 m0, {KLOC[2 * j + i // 4]}']
        L += [f'v_bfe_u32 {d}, {sU5[j % 5]}, {vOsh[i]}, 2', f'v_mad_u32_u24 {d}, {d}, {s20480}, {vOr[i % 4]}',
              (f'buffer_load_dwordx4 {d}, {sWO}, {sOk} offen' + (f' offset:{1024 * (i % 4)}' if i % 4 else '') + f'{NT["O"]} lds', ('o', j))]
    return L + [f's_add_u32 {sOk}, {sOk}, 81920', f's_cmp_eq_u32 {sOk}, 819200', f's_cselect_b32 {sOk}, 0, {sOk}']
vLa = V.alloc('lda'); vDa = V.alloc('dna'); vPv = V.alloc('pv'); vDn = V.alloc('dn')
E([f'v_mov_b32 {vLa}, {L_LD}', f'v_and_b32 {vDa}, 7, {vLane}', f'v_max_u32 {vDa}, 1, {vDa}', f'v_lshlrev_b32 {vDa}, 2, {vDa}', f'v_add_u32 {vDa}, {L_DN}, {vDa}'])
def publish(u):
    if u in (0, 9) or BAR: return [W(('u', u), 'all')] + (stamp() if u == 0 else []) + fstamp('ld') + ['s_barrier'] + (fin_tag() if u == 0 else [])
    return [f'v_mov_b32 {vPv}, {u + 1}', W(('u', u)), 's_mov_b64 exec, 1', f'ds_write_b32 {vLa}, {vPv}', 's_mov_b64 exec, -1'] + fstamp('ld')
DD = opt('dd', 28)
lstubs = []
for u in range(1, 11):
    A.comment(f'loader unit {u}')
    if u < 10: L = unit_loads(u)
    else: L = [x for q in range(NI, 10) for x in wgrp(q, 2, 0, 'v') + wgrp(q, 2, 1, 'v')]
    if 4 <= u <= 9 and not BAR:
        E([W(lg='dn'), ('L', f'Ldn{u}'), f'v_cmp_gt_u32 vcc, {u - 2 + opt("skew", 0)}, {vDn}', f's_cbranch_vccz Ldn{u}_ok', f'v_mov_b32 {vPv}, {u}', 's_waitcnt vmcnt(0)',
           's_mov_b64 exec, 1', ('R', f'ds_write_b32 {vLa}, {vPv}'), 's_mov_b64 exec, -1', 's_sleep 1'] + spin_guard() + [('R', f'ds_read_b32 {vDn}, {vDa}'), 's_waitcnt lgkmcnt(0)', f's_branch Ldn{u}', ('L', f'Ldn{u}_ok')])
    n = 0
    for x in L:
        E(x)
        if isinstance(x, tuple):
            n += 1
            if n == (DD if not BAR else (opt('d9', 12) if u == 10 else sum(isinstance(y, tuple) for y in L))):
                E(publish(u - 1))
                if 3 <= u <= 8 and not BAR: E((f'ds_read_b32 {vDn}, {vDa}', 'dn'))
E(oset + stamp())
S.free('srdq', 'srdk')
sKy0 = S.alloc('key0'); sKy1 = S.alloc('key1'); sI0 = S.alloc('i0'); sI1 = S.alloc('i1')
vBc = V.alloc('bc', 4); vBa = V.alloc('bca')
bc_load = f'buffer_load_dwordx4 {vBc}, {vBa}, {sWS}, 0 offen sc1'
E(o_loads(0) + o_loads(1) + [W('v')] + cnt_arrive(L_WF, vt[1], vt[2]) + cnt_arrive(L_C2, vt[1], vt[2]) + stamp() + o_loads(2) + o_loads(3) + o_loads(4) + [W('all')] + cnt_arrive(L_WF, vt[3], vt[2]) + cnt_wait(8, vt[1], vt[2]) +
  [f's_lshl_b32 {sT[0]}, s2, 7', f's_add_u32 {sT[0]}, {sT[0]}, {WS_BC}', f'v_mov_b32 {vBa}, {sT[0]}', bc_load])
if opt('wodelay', 1): E([f'v_mov_b32 {vt[1]}, {L_C3}'] + cnt_wait(7, vt[1], vt[2]))
for j in range(5, 10): E(o_loads(j))
E([W('all'), ('L', 'Lbc'), f'v_readfirstlane_b32 {sKy0}, {vBc[0]}', f'v_readfirstlane_b32 {sT[0]}, {vBc[1]}',
   f'v_readfirstlane_b32 {sKy1}, {vBc[2]}', f'v_readfirstlane_b32 {sT[1]}, {vBc[3]}', f's_cmp_eq_u32 {sT[0]}, {sTag}', f's_cselect_b32 {sT[1]}, {sT[1]}, {sT[0]}', f's_cmp_eq_u32 {sT[1]}, {sTag}',
   's_cbranch_scc1 Lbc_ok'] + spin_guard() + [bc_load, W('all'), 's_branch Lbc', ('L', 'Lbc_ok'), f's_mul_i32 {sT[0]}, {sRB}, 96'])
for k, i in ((sKy0, sI0), (sKy1, sI1)):
    E([f's_and_b32 {i}, {k}, 0x7ff', f's_sub_u32 {i}, 2047, {i}', f's_sub_u32 {sT[1]}, {i}, {sT[0]}', f's_cmp_lt_u32 {sT[1]}, 96', f's_cselect_b32 {i}, {i}, -1'])
E([f'v_mov_b32 {vt[0]}, {sI0}', f'v_mov_b32 {vt[1]}, {sI1}', f'v_mov_b32 {vt[2]}, {L_INFO}'] + stamp() +
  [f'ds_write_b64 {vt[2]}, {vt[0:2]}', f's_and_b32 {sT[1]}, {sI0}, {sI1}', f's_cmp_eq_u32 {sT[1]}, -1', 's_cbranch_scc1 Lw0_done'])
vY = Reg('v', 16, 108); vXs = Reg('v', 124, 2); vSs = Reg('v', 126, 2)
for q, i in enumerate((sI0, sI1)):
    E([f's_max_i32 {sT[0]}, {i}, 0', f's_mul_i32 {sT[0]}, {sT[0]}, 1280', f's_lshl_b32 {sT[1]}, {sC}, 7', f's_add_u32 {sT[0]}, {sT[0]}, {sT[1]}', f's_add_u32 {sT[0]}, {sT[0]}, {BIAS}',
       f'v_lshlrev_b32 {vt[4]}, 1, {vLane}', f'buffer_load_ushort {vXs[q]}, {vt[4]}, {sX}, {sT[0]} offen'])
E([f'v_min_u32 {vt[3]}, 26, {vLane}', f'v_mul_u32_u24 {vt[3]}, 10240, {vt[3]}', ('L', 'Ly_poll')] + spin_guard() + [f's_sleep {opt("ys", 6)}', f's_lshl_b32 {sT[0]}, {sC}, 10', f's_add_u32 {sT[0]}, {sT[0]}, {WS_Y}',
   f'buffer_load_dword {vt[0]}, {vt[3]}, {sWS}, {sT[0]} offen offset:1020 sc1', W('all'), f'v_cmp_ne_u32 vcc, {sTag}, {vt[0]}', 's_cbranch_vccnz Ly_poll'])
for j in range(27): E([f'buffer_load_dwordx4 {vY[4 * j:4 * j + 4]}, {vL16}, {sWS}, {sT[0]} offen sc1', f's_add_u32 {sT[0]}, {sT[0]}, 10240'])
E([W('all'), f'v_xor_b32 {vt[0]}, {sTag}, {vY[1]}'])
for j in range(27):
    for q in (1, 3):
        if j or q == 3: E([f'v_xor_b32 {vt[1]}, {sTag}, {vY[4 * j + q]}', f'v_or_b32 {vt[0]}, {vt[0]}, {vt[1]}'])
E([f'v_cmp_ne_u32 vcc, 0, {vt[0]}', 's_cmp_lg_u64 vcc, 0', 's_cbranch_scc1 Ly_poll'])
for j in range(1, 27): E([f'v_add_f32 {vY[0]}, {vY[0]}, {vY[4 * j]}', f'v_add_f32 {vY[2]}, {vY[2]}, {vY[4 * j + 2]}'])
for k, y, off in ((sKy0, vY[0], 0), (sKy1, vY[2], 256)):
    E([f's_lshr_b32 {sT[0]}, {k}, 16', f's_cmp_ge_u32 {sT[0]}, 0x8000', f's_cselect_b32 {sT[1]}, 0x8000, -1', f's_xor_b32 {sT[0]}, {sT[0]}, {sT[1]}', f's_lshl_b32 {sT[0]}, {sT[0]}, 16',
       f'v_mov_b32 {vt[0]}, {sT[0]}', f'v_mul_f32 {vt[0]}, {f32(-L2E)}, {vt[0]}', f'v_exp_f32 {vt[0]}, {vt[0]}', f'v_add_f32 {vt[0]}, 1.0, {vt[0]}', f'v_rcp_f32 {vt[0]}, {vt[0]}'] +
      bf16r(vt[0], vt[0]) + bf16r(y, y) + [f'v_mul_f32 {y}, {y}, {vt[0]}'] + bf16r(y, y))
for q, (i, y) in enumerate(((sI0, vY[0]), (sI1, vY[2]))):
    x = vXs[q]; z = vY[4 + 2 * q:6 + 2 * q]
    E([f's_mul_i32 {sT[0]}, {sRB}, 96', f's_sub_u32 {sT[0]}, {i}, {sT[0]}', f's_max_i32 {sT[0]}, {sT[0]}, 0', f's_lshl_b32 {sT[0]}, {sT[0]}, 2', f's_add_u32 {sT[0]}, {sT[0]}, {L_M + 128}',
       f'v_mov_b32 {vt[0]}, {sT[0]}', f'ds_read2st64_b32 {vt[0:2]}, {vt[0]} offset0:0 offset1:2', f'v_lshlrev_b32 {x}, 16, {x}', W(lg='all'), f'v_add_f32 {z[0]}, {x}, {vt[0]}'] + bf16r(z[0], z[0]) +
      [f'v_mul_f32 {z[0]}, {z[0]}, {vt[1]}'] + bf16r(z[0], z[0]) + [f'v_add_f32 {z[0]}, {z[0]}, {y}'] + bf16r(z[0], z[0]) +
      [f'v_mul_f32 {y}, {f32(-L2E)}, {z[0]}', f'v_exp_f32 {y}, {y}', f'v_add_f32 {y}, 1.0, {y}', f'v_rcp_f32 {y}, {y}', f'v_mul_f32 {y}, {y}, {z[0]}'] + bf16r(y, y))
E([f's_cmp_lg_u32 {sI0}, -1', f's_cselect_b32 {sT[3]}, 4, 0', f's_cmp_lg_u32 {sI1}, -1', f's_cselect_b32 {sT[0]}, 4, 0', f's_add_u32 {sT[3]}, {sT[3]}, {sT[0]}', f'v_mov_b32 {vt[1]}, {L_UF}'] +
  cnt_wait(sT[3], vt[1], vt[2]) + [f'v_add_u32 {vt[1]}, {L_UPD}, {vL4}', f'ds_read2st64_b32 {vSs}, {vt[1]} offset0:0 offset1:1', W(lg='all')])
for q, (i, y) in enumerate(((sI0, vY[0]), (sI1, vY[2]))):
    E([f'v_fma_f32 {y}, {vSs[q]}, {y}, {vXs[q]}', f'v_cvt_pk_bf16_f32 {y}, {y}, {y}', f's_mul_i32 {sT[0]}, {i}, 1280', f's_lshl_b32 {sT[1]}, {sC}, 7', f's_add_u32 {sT[0]}, {sT[0]}, {sT[1]}',
       f's_cmp_eq_u32 {i}, -1', f's_cbranch_scc1 Lrow{q}', f'buffer_store_short {y}, {vt[4]}, {sOUT}, {sT[0]} offen', ('L', f'Lrow{q}')])
A.label('Lw0_done')
if STAMPW == 0: write_stamps(0, 'loader')
E('s_endpgm')
E(lstubs)

pos_aux = len(A.lines)
A.lines[pos_comp:pos_aux] = A.lines[pos_load:pos_aux] + A.lines[pos_comp:pos_load]
load_state(st_common)
A.label('Laux')
sA = sRB; BIAS = 4096
E([f's_mul_i32 {sA}, {sT[0]}, 9', f's_lshl_b32 {sT[2]}, {sT[2]}, 2', f's_add_u32 {sA}, {sA}, {sT[2]}', f's_add_u32 {sA}, {sA}, {sT[1]}', f's_cmp_ge_u32 {sA}, 32', 's_cbranch_scc1 Lmst'])
st_aux0 = save_state()
AX = 131072
L_WR = AX; L_KEY = AX + 1536; L_KC = AX + 1792; L_P = AX + 2048; L_H = AX + 8192
l3 = vt[1]; l7 = vt[2]
sRg = S.alloc('ring'); sSo = S.alloc('so'); sWm = S.alloc('srdm', 4); sWD_ = S.alloc('srdd', 4); sKb = S.alloc('kb0')
vTw = V.alloc('tw', 4); aGo = V.alloc('ago', 4); aDo = V.alloc('ado', 4); vXa = V.alloc('xsa'); sX = S.alloc('srdx', 4); sNm = S.alloc('nm', 2, 1)
wf = AG.alloc('wf', 80); df = V.alloc('df', 64); xs = V.alloc('xs', 20); a16 = V.alloc('a16', 16)
def item(slot, voff, srd, sbase, soff, nt, tag):
    L = [f's_add_u32 m0, {sRg}, {slot * 4096}', f's_add_u32 {sSo}, {sbase}, {soff}' if sbase is not None else f's_mov_b32 {sSo}, {soff}']
    return L + [(f'buffer_load_dwordx4 {voff[j]}, {srd}, {sSo} offen' + (f' offset:{1024 * j}' if j else '') + f'{nt} lds', tag) for j in range(4)]
def offs4(dst, stride): return [f'v_xor_b32 {dst[1]}, 64, {dst[0]}', f'v_add_u32 {dst[1]}, {8 * stride - 1024}, {dst[1]}', f'v_add_u32 {dst[2]}, {16 * stride - 2048}, {dst[0]}',
                                f'v_add_u32 {dst[3]}, {16 * stride - 2048}, {dst[1]}']
sDb = S.alloc('db')
wsetup = [f'v_and_b32 {vt[4]}, 1, {vG}', f'v_lshlrev_b32 {vt[4]}, 1, {vt[4]}', f'v_xor_b32 {vt[4]}, {vt[4]}, {l7}', f'v_lshlrev_b32 {vt[4]}, 4, {vt[4]}',
          f'v_mul_u32_u24 {vt[5]}, 3456, {l3}', f's_lshl_b32 {sT[2]}, {sA}, 7', f'v_add3_u32 {aGo[0]}, {vt[5]}, {vt[4]}, {sT[2]}'] + offs4(aGo, 3456) + \
         [f's_mul_i32 {sKb}, {sW}, {32 * 3456}', f'v_mul_u32_u24 {vt[5]}, 1280, {l3}', f'v_add_u32 {aDo[0]}, {vt[5]}, {vt[4]}'] + offs4(aDo, 1280) + \
         [f's_mul_i32 {sDb}, {sA}, {64 * 1280}', f's_lshl_b32 {sT[2]}, {sWv}, 7', f's_add_u32 {sDb}, {sDb}, {sT[2]}']
rsetup = tr_parts(vTw[0], vt[5], vt[4], vt[6]) + [f'v_add3_u32 {vTw[0]}, {vTw[0]}, {vt[5]}, {sRg}', f'v_lshl_add_u32 {vTw[0]}, {vt[4]}, 3, {vTw[0]}'] + \
         [f'v_xor_b32 {vTw[t]}, {32 * t}, {vTw[0]}' for t in (1, 2, 3)] + \
         [f's_lshl_b32 {sT[0]}, {sW}, 6', f's_add_u32 {sT[0]}, {sT[0]}, {BIAS}', f'v_lshl_add_u32 {vXa}, {vG}, 4, {sT[0]}']
def W_item(i): return lambda slot: item(slot, aGo, sWm, sKb, i * 128 * 3456, NT['F'], ('w', i))
def D_item(i): return lambda slot: item(slot, aDo, sWD_, sDb, (i % 2) * 32 * 1280 + (i // 2) * 512, NT['F'], ('d', i))
def fr_reads(dst, slot): return [x for t in range(4) for x in trs(dst[4 * t:4 * t + 4], vTw[t], slot * 4096, 'fr')]
sBc = S.alloc('bc')
xaddr = [f's_lshl_b32 {sBc}, s2, 7', f's_add_u32 {sBc}, {sBc}, {WS_BC}']
bcl = f'buffer_load_dwordx4 {a16[0:4]}, off, {sWS}, {sBc} sc1'
stl = f'buffer_load_dwordx2 {a16[4:6]}, {a16[6]}, {sWS}, 0 offen sc1'
axs = [fstamp('ax') for _ in range(3)]
def sel_loads(n):
    return axs[0] + [W('bc')] + axs[1] + [('L', f'Lbc{n}'), f'v_readfirstlane_b32 {sT[0]}, {a16[0]}', f'v_readfirstlane_b32 {sT[2]}, {a16[1]}', f'v_readfirstlane_b32 {sT[1]}, {a16[2]}', f'v_readfirstlane_b32 {sT[3]}, {a16[3]}',
            f's_cmp_eq_u32 {sT[2]}, {sTag}', f's_cselect_b32 {sT[3]}, {sT[3]}, {sT[2]}', f's_cmp_eq_u32 {sT[3]}, {sTag}', f's_cbranch_scc1 Lbc_ok{n}'] + spin_guard() + \
           [f's_sleep {opt("bcs", 8)}', ('R', bcl), 's_waitcnt vmcnt(0)', f's_branch Lbc{n}', ('L', f'Lbc_ok{n}')] + axs[2] + [
            f's_and_b32 {sT[0]}, {sT[0]}, 0x7ff', f's_sub_u32 {sT[0]}, 2047, {sT[0]}', f's_and_b32 {sT[1]}, {sT[1]}, 0x7ff', f's_sub_u32 {sT[1]}, 2047, {sT[1]}',
            f'v_mov_b32 {vt[0]}, {sT[0]}', f'v_mov_b32 {vt[1]}, {sT[1]}', 's_mov_b32 vcc_lo, 0xaaaaaaaa', 's_mov_b32 vcc_hi, 0xaaaaaaaa', f'v_cndmask_b32 {vt[0]}, {vt[0]}, {vt[1]}, vcc',
            f'v_lshlrev_b32 {a16[6]}, 3, {vt[0]}', f'v_add_u32 {a16[6]}, {WS_STAT}, {a16[6]}', f'v_mul_u32_u24 {vt[0]}, 1280, {vt[0]}', f'v_add_u32 {vt[0]}, {vt[0]}, {vXa}'] + \
           [f'v_mov_b32 {xs[i]}, 0x3f803f80' for i in range(20)] + ['s_mov_b32 exec_lo, 0x00030003', 's_mov_b32 exec_hi, 0x00030003'] + \
           [f'buffer_load_dwordx4 {xs[4 * i:4 * i + 4]}, {vt[0]}, {sX}, 0 offen offset:{256 * i}' for i in range(5)] + [stl, 's_mov_b64 exec, -1']
def stream(seq, first, n):
    for i, (tag, dst, issue) in enumerate(seq):
        slot = (first + i) % 4
        E([W(tag)] + fr_reads(dst, slot))
        bca = opt('bca', 1) if n == 0 else opt('bca1', 1)
        if i + 1 + bca + (3 if bca else 0) == len(seq): E((bcl, 'bc'))
        if i + 4 < len(seq): E([W(lg='fr')] + seq[i + 4][2](slot))
        if i + 1 + bca == len(seq): E(sel_loads(n))
E([f'v_lshrrev_b32 {l3}, 3, {vLane}', f'v_and_b32 {l7}, 7, {vLane}', f's_lshl_b32 {sRg}, {sWv}, 14', f's_cmp_eq_u32 {sH}, 0', 's_cbranch_scc0 Laux_u'])
st_aux = save_state()
sWR_ = S.alloc('srdwr', 4); aXo = xs[0:4]
E([f's_lshl_b32 {sT[0]}, {sA}, 6', f's_lshl_b32 {sT[1]}, {sW}, 4', f's_add_u32 {sT[0]}, {sT[0]}, {sT[1]}', f'v_add_u32 {vt[3]}, {sT[0]}, {l3}', f'v_mul_u32_u24 {vt[3]}, 1280, {vt[3]}',
   f'v_xor_b32 {vt[4]}, {l7}, {vG}', f'v_lshl_add_u32 {aXo[0]}, {vt[4]}, 4, {vt[3]}', f'v_add_u32 {aXo[0]}, {BIAS}, {aXo[0]}', f'v_xor_b32 {aXo[1]}, 64, {aXo[0]}',
   f'v_add_u32 {aXo[1]}, {8 * 1280 - 1024}, {aXo[1]}', f'v_subrev_u32 {aXo[2]}, {2048 - 128}, {aXo[0]}', f'v_subrev_u32 {aXo[3]}, {2048 - 128}, {aXo[1]}',
   's_waitcnt lgkmcnt(0)'] + mk_srd(sX, pX, 2048 * 1280, -BIAS) + mk_srd(sWR_, pWR, 1280) +
  [f's_mov_b32 m0, {L_WR}', 's_nop 0', f'buffer_load_dwordx4 {vL16}, {sWR_}, 0 offen lds', 's_mov_b64 exec, 0xffff', f'buffer_load_dwordx4 {vL16}, {sWR_}, 0 offen offset:1024 lds', 's_mov_b64 exec, -1'])
def X_item(i): return lambda slot: item(slot, aXo, sX, None, i * 256, NT['R'], ('x', i))
for i in range(4): E(X_item(i)(i))
vOnes = xs[4:8]; vRa = xs[8]; vXr = xs[10:12]; vDiag = xs[9]; vSt = xs[12:14]
sK1 = S.alloc('k1', 2); sK2 = S.alloc('k2', 2)
E(get_tag() + mk_srd(sWm, pWG, 640 * 3456) + mk_srd(sWD_, pWD, 1728 * 1280) + wsetup + xaddr +
  [f'v_mov_b32 {vOnes[i]}, 0x3f803f80' for i in range(4)] +
  [f'v_lshlrev_b32 {vRa}, 4, {vG}', f'v_add_u32 {vRa}, {L_WR}, {vRa}', f'v_lshrrev_b32 {vt[6]}, 1, {vTt}', f'v_xor_b32 {vt[6]}, {vt[6]}, {vG}', f'v_lshlrev_b32 {vt[6]}, 4, {vt[6]}',
   f'v_lshl_add_u32 {vt[6]}, {vTt}, 7, {vt[6]}', f'v_add_u32 {vXr[0]}, {sRg}, {vt[6]}', f'v_xor_b32 {vXr[1]}, 64, {vXr[0]}',
   f's_mov_b32 {sK1[0]}, 0xaaaaaaaa', f's_mov_b32 {sK1[1]}, 0xaaaaaaaa', f's_mov_b32 {sK2[0]}, 0xcccccccc', f's_mov_b32 {sK2[1]}, 0xcccccccc',
   f'v_lshrrev_b32 {vDiag}, 2, {vTt}', f'v_lshl_add_u32 {vDiag}, {vDiag}, 4, {vTt}', f'v_lshlrev_b32 {vDiag}, 2, {vDiag}',
   f's_lshl_b32 {sT[0]}, {sW}, 4', f'v_add_u32 {vt[6]}, {sT[0]}, {vTt}', f'v_sub_u32 {xs[14]}, 63, {vt[6]}', f'v_lshlrev_b32 {xs[15]}, 2, {vt[6]}', f'v_add_u32 {xs[15]}, {L_KEY}, {xs[15]}',
   f's_lshl_b32 {sT[0]}, {sA}, 9', f's_add_u32 {sT[0]}, {sT[0]}, {WS_STAT}', f'v_lshl_add_u32 {xs[16]}, {vt[6]}, 3, {sT[0]}'] + rsetup + [f'v_mov_b32 {vt[0]}, {L_KC}', f'v_mov_b32 {vt[1]}, 0', f'ds_write_b32 {vt[0]}, {vt[1]}', 's_waitcnt lgkmcnt(0)'] + fin_tag())
rb_ = AG.alloc('rb', 32)
aSum, aSq, aDot, aSw = a16[0:4], a16[4:8], a16[8:12], a16[12:16]
nxt = [lambda slot: X_item(4)(slot) + ['s_barrier']] + [lambda slot: []] * 4
for i in range(5):
    slot = i % 4
    E(W(('x', i)))
    for q in range(4):
        E([f'ds_read_b128 {rb_[8 * q:8 * q + 4]}, {vXr[q % 2]} offset:{slot * 4096 + (q // 2) * 2048}', f'ds_read_b128 {rb_[8 * q + 4:8 * q + 8]}, {vRa} offset:{(4 * i + q) * 64}'])
    E([W(lg='all')] + nxt[i](slot))
    for q in range(4):
        x = rb_[8 * q:8 * q + 4]; r = rb_[8 * q + 4:8 * q + 8]
        E([f'{MFMA} {ac}, {a_}, {bb}, {0 if (i == 0 and q == 0) else ac}' for ac, a_, bb in ((aSq, x, x), (aSum, vOnes, x), (aDot, r, x), (aSw, r, vOnes))])
E(stamp() + stats(aSum[0], aSq, vSt, vt, vDiag, sK1, sK2) +
  [f'v_lshrrev_b32 {vt[4]}, 16, {vt[0]}', f'v_fma_f32 {vt[0]}, {vSt[0]}, {aSw[0]}, {aDot[0]}', f'v_mul_f32 {vt[0]}, {vt[0]}, {vSt[1]}', f'v_cvt_pk_bf16_f32 {vt[0]}, {vt[0]}, {vt[0]}',
   f'v_ashrrev_i32 {vt[1]}, 31, {vt[0]}', f'v_or_b32 {vt[1]}, 0x80000000, {vt[1]}', f'v_xor_b32 {vt[0]}, {vt[0]}, {vt[1]}', f'v_and_b32 {vt[0]}, 0xffff0000, {vt[0]}',
   f'v_max_u32 {vt[0]}, 0x10000, {vt[0]}', f'v_or_b32 {vt[0]}, {vt[0]}, {xs[14]}', f'ds_write_b32 {xs[15]}, {vt[0]}'] + cnt_arrive(L_KC, vt[7], vt[3]) +
  [f'v_or_b32 {vt[4]}, {vt[4]}, {vSt[0]}', f'v_mov_b32 {vt[5]}, {sTag}', 's_mov_b64 exec, 0xffff', f'buffer_store_dwordx2 {vt[4:6]}, {xs[16]}, {sWS}, 0 offen sc1', 's_mov_b64 exec, -1'])
sKy0 = S.alloc('key0'); sKy1 = S.alloc('key1')
vmq = list(E.vm)
E([f's_cmp_lg_u32 {sW}, 0', 's_cbranch_scc1 Lpub_done', 's_setprio 3'] + cnt_wait(4, vt[7], vt[3]) + [f'v_add_u32 {vt[1]}, {L_KEY}, {vL4}', f'ds_read_b32 {vt[2]}, {vt[1]}', W(lg='all'), f'v_mov_b32 {vt[0]}, {vt[2]}'] +
  wave_max_u32(vt[0], sKy0, sT) + [f'v_cmp_eq_u32 vcc, {sKy0}, {vt[2]}', f'v_cndmask_b32 {vt[0]}, {vt[2]}, 0, vcc'] + wave_max_u32(vt[0], sKy1, sT) +
  [f's_and_b32 {sT[0]}, {sKy0}, 0xffff0000', f's_lshr_b32 {sT[1]}, {sKy1}, 16', f's_or_b32 {sT[0]}, {sT[0]}, {sT[1]}', f's_and_b32 {sT[1]}, {sKy0}, 63', f's_and_b32 {sT[2]}, {sKy1}, 63',
   f's_lshl_b32 {sT[2]}, {sT[2]}, 6', f's_or_b32 {sT[1]}, {sT[1]}, {sT[2]}', f's_xor_b32 {sT[1]}, {sT[1]}, 0x8fff', f's_lshl_b32 {sT[2]}, {sA}, 2', f's_lshl_b32 {sT[3]}, {sA}, 1',
   f'v_mov_b32 {vt[0]}, {sT[0]}', f'v_mov_b32 {vt[1]}, {sT[1]}', f'v_mov_b32 {vt[2]}, {sT[2]}', f'v_mov_b32 {vt[3]}, {sT[3]}', 's_mov_b64 exec, 1',
   f'buffer_store_dword {vt[0]}, {vt[2]}, {sDBG}, 0 offen offset:{DBG_VAL} sc1', f'buffer_store_short {vt[1]}, {vt[3]}, {sDBG}, 0 offen offset:{DBG_IDX} sc1', 's_mov_b64 exec, -1'] + cnt_arrive(L_KC, vt[7], vt[3]) + signal() +
  [('L', 'Lpub_done')] + cnt_wait(5, vt[7], vt[3]) + stamp() + [f's_cmp_ge_u32 {sA}, 27', 's_cbranch_scc1 Lhelp_r' if opt('help', 1) else 's_cbranch_scc1 Lend'])
E.vm = vmq
for i in range(4): E(W_item(i)((i + 1) % 4))
stream([(('w', i), wf[16 * i:16 * i + 16], W_item(i)) for i in range(5)] + [(('d', i), df[16 * i:16 * i + 16], D_item(i)) for i in range(2)], 1, 0)
E('s_branch Laux_mm')
aux_stamps = list(sST); aux_S = (dict(S.used), set(S.taken))
load_state(st_aux)
S.used, S.taken = dict(aux_S[0]), set(aux_S[1]); sST[:] = aux_stamps
A.label('Laux_u')
E([f's_cmp_ge_u32 {sA}, 27', 's_cbranch_scc1 Lend'] + wsetup + ['s_waitcnt lgkmcnt(0)'] + mk_srd(sWm, pWU, 640 * 3456))
NB0 = opt('nb0', 4)
sD2 = S.alloc('srdd2', 4)
E(get_tag() + mk_srd(sX, pX, 2048 * 1280, -BIAS) + mk_srd(sWD_, pWD, 1728 * 1280) + mk_srd(sD2, pWD, 1728 * 1280) + [f's_cmp_ge_u32 {sW}, 2', f's_cselect_b32 {sD2[2]}, 0, {sD2[2]}'] + xaddr + rsetup +
  ['s_waitcnt lgkmcnt(0)'] + fin_tag())
def D2_item(i): return lambda slot: item(slot, aDo, sD2, sDb, (i % 2) * 32 * 1280 + 512, NT['F'], ('d', i))
useq = [(('w', i), wf[16 * i:16 * i + 16], W_item(i)) for i in range(5)] + [(('d', i), df[16 * i:16 * i + 16], D_item(i) if i < 2 else D2_item(i)) for i in range(4)]
E('s_barrier')
for i in range(NB0): E(W_item(i)(i))
E([f'v_mov_b32 {vt[7]}, {L_KC}'] + cnt_wait(5, vt[7], vt[3], 4))
for i in range(NB0, 4): E(W_item(i)(i))
stream(useq, 0, 1)
A.label('Laux_mm')
E(stamp() + fstamp('ax') + ['s_waitcnt vmcnt(0)', ('L', 'Lxs_chk'), f'v_readlane_b32 {sT[0]}, {a16[5]}, 0', f'v_readlane_b32 {sT[1]}, {a16[5]}, 1', f'v_readlane_b32 {sNm[0]}, {a16[4]}, 0',
   f'v_readlane_b32 {sNm[1]}, {a16[4]}, 1', f's_cmp_eq_u32 {sT[0]}, {sTag}', f's_cselect_b32 {sT[1]}, {sT[1]}, {sT[0]}', f's_cmp_eq_u32 {sT[1]}, {sTag}', 's_cbranch_scc1 Lxs_ok'] + spin_guard() +
  [stl, 's_waitcnt vmcnt(0)', 's_branch Lxs_chk', ('L', 'Lxs_ok'), 's_waitcnt lgkmcnt(0)'] + stamp() + fstamp('ax'))
E([f'{MFMA} {a16[4 * t:4 * t + 4]}, {wf[16 * i + 4 * t:16 * i + 4 * t + 4]}, {xs[4 * i:4 * i + 4]}, {0 if i == 0 else a16[4 * t:4 * t + 4]}' for i in range(5) for t in range(4)])
E([f's_mul_i32 {sT[0]}, {sWv}, 768', f's_add_u32 {sT[0]}, {sT[0]}, {L_P}', f'v_lshlrev_b32 {vt[0]}, 8, {vTt}', f'v_lshl_add_u32 {vt[0]}, {vG}, 4, {vt[0]}', f'v_add_u32 {vt[0]}, {sT[0]}, {vt[0]}',
   f'v_add_u32 {vt[1]}, {L_P}, {vL4}', f's_lshl_b32 {sT[1]}, {sWv}, 8', f's_add_u32 {sT[1]}, {sT[1]}, {L_H}', f'v_lshl_add_u32 {vt[2]}, {vLane}, 1, {sT[1]}',
   f'v_and_b32 {vt[3]}, 1, {vLane}', f'v_lshlrev_b32 {vt[3]}, 7, {vt[3]}', f'v_lshl_add_u32 {vt[3]}, {vG}, 4, {vt[3]}', f'v_add_u32 {vt[3]}, {sT[1]}, {vt[3]}',
   f's_lshl_b32 {sT[2]}, {sNm[0]}, 16', f's_lshl_b32 {sT[3]}, {sNm[1]}, 16', f'v_rcp_f32 {vt[4]}, {sT[2]}', f'v_rcp_f32 {vt[5]}, {sT[3]}',
   f's_and_b32 {sNm[0]}, {sNm[0]}, 0xffff0000', f's_and_b32 {sNm[1]}, {sNm[1]}, 0xffff0000',
   's_mov_b32 exec_lo, 0x00070007', 's_mov_b32 exec_hi, 0x00070007'] + [f'ds_write_b128 {vt[0]}, {a16[4 * t:4 * t + 4]} offset:{64 * t}' for t in range(4)] +
  ['s_mov_b64 exec, -1', 's_waitcnt lgkmcnt(0)'] + fstamp('ax') + ['s_barrier'] + fstamp('ax'))
sG = [S.alloc(f'gm{i}', 2) for i in range(3)]
pr = [xs[i] for i in range(12)] + [a16[4 + i] for i in range(12)]
E([f'ds_read2st64_b32 {(xs if v < 6 else a16)[2 * v - (0 if v < 6 else 8):2 * v - (0 if v < 6 else 8) + 2]}, {vt[1]} offset0:{2 * v} offset1:{2 * v + 1}' for v in range(12)] +
  [f'v_cmp_eq_u32 {sG[i]}, {i + 1}, {vG}' for i in range(3)] +
  [f's_mul_i32 {sT[1]}, {sA}, 10', f's_add_u32 {sT[1]}, {sT[1]}, {sWv}', f's_lshl_b32 {sT[1]}, {sT[1]}, 10', f's_add_u32 {sT[1]}, {sT[1]}, {WS_Y}', 's_waitcnt lgkmcnt(0)'])
for b_ in (0, 12):
    for q in range(3):
        E([f'v_add_f32 {pr[b_ + q]}, {pr[b_ + q]}, {pr[b_ + 3 + q]}', f'v_add_f32 {pr[b_ + 6 + q]}, {pr[b_ + 6 + q]}, {pr[b_ + 9 + q]}', f'v_add_f32 {pr[b_ + q]}, {pr[b_ + q]}, {pr[b_ + 6 + q]}'])
for b_, d in ((0, a16[0:2]), (12, a16[8:10])):
    for tk in range(2): E([f'v_fmac_f32 {pr[b_ + tk]}, {sNm[tk]}, {pr[b_ + 2]}', f'v_mul_f32 {d[tk]}, {pr[b_ + tk]}, {vt[4 + tk]}'])
hA = xs[0:8]; vOut = xs[8:12]
E(round_pairs(a16[0:2], 2) + round_pairs(a16[8:10], 2) + silu_into(a16[2:4], a16[0:2], 2) + [f'v_mul_f32 {a16[2 + i]}, {a16[2 + i]}, {a16[8 + i]}' for i in range(2)] +
  [f'v_cvt_pk_bf16_f32 {a16[2]}, {a16[2]}, {a16[3]}', f'ds_write_b16 {vt[2]}, {a16[2]}', f'ds_write_b16_d16_hi {vt[2]}, {a16[2]} offset:128'] +
  [f'ds_read_b128 {hA[4 * kk:4 * kk + 4]}, {vt[3]} offset:{64 * kk}' for kk in range(2)] + [f'v_mov_b32 {vOut[1]}, {sTag}', f'v_mov_b32 {vOut[3]}, {sTag}', 's_waitcnt lgkmcnt(0)'] + stamp())
for it in range(2):
    if it: E([f's_sub_u32 {sT[0]}, {sWv}, 4', f's_cmp_ge_u32 {sT[0]}, 2', 's_cbranch_scc1 Laux_end', f's_add_u32 {sT[1]}, {sT[1]}, 4096'])
    E([f'{MFMA} {a16[4 * t:4 * t + 4]}, {hA[4 * kk:4 * kk + 4]}, {df[32 * it + 16 * kk + 4 * t:32 * it + 16 * kk + 4 * t + 4]}, {0 if kk == 0 else a16[4 * t:4 * t + 4]}' for kk in range(2) for t in range(4)])
    for q, r in ((0, 0), (2, 1)):
        E([f'v_cndmask_b32 {vOut[q]}, {a16[r]}, {a16[4 + r]}, {sG[0]}', f'v_cndmask_b32 {vOut[q]}, {vOut[q]}, {a16[8 + r]}, {sG[1]}', f'v_cndmask_b32 {vOut[q]}, {vOut[q]}, {a16[12 + r]}, {sG[2]}'])
    E(f'buffer_store_dwordx4 {vOut}, {vL16}, {sWS}, {sT[1]} offen sc1')
A.label('Laux_end')
write_stamps(opt('asw', 0), 'aux')
E('s_endpgm')
load_state(st_aux0)
A.label('Lmst')
sKy0 = S.alloc('key0'); sKy1 = S.alloc('key1')
E([f's_cmp_lg_u32 {sWv}, 0', 's_cbranch_scc1 Lhelp_i' if opt('help', 1) else 's_cbranch_scc1 Lend', 's_waitcnt lgkmcnt(0)'] + get_tag() + ['s_waitcnt lgkmcnt(0)'] + fin_tag() + signal() + [f's_cmp_lg_u32 {sA}, 32', 's_cbranch_scc1 Lend'])
E([('L', 'Lmst_bc')] + poll_top2(vt, sKy0, sKy1, sT) + [f'v_mov_b32 {vt[4]}, {sKy0}', f'v_mov_b32 {vt[5]}, {sTag}', f'v_mov_b32 {vt[6]}, {sKy1}', f'v_mov_b32 {vt[7]}, {sTag}',
   f'v_lshlrev_b32 {vt[0]}, 7, {vLane}', f's_mov_b32 {sT[0]}, {WS_BC}'])
for i in range(4): E([f'buffer_store_dwordx4 {vt[4:8]}, {vt[0]}, {sWS}, {sT[0]} offen sc1', f's_add_u32 {sT[0]}, {sT[0]}, 8192'])
if 'nomain' in OPTS: E('s_endpgm')
E([f's_mov_b32 {sT[0]}, {WS_SIG}', ('L', 'Lmaster')] + spin_guard() +
  ['s_sleep 16', f'buffer_load_dwordx4 {vt[0:4]}, {vL16}, {sWS}, {sT[0]} offen sc1', W('all')] + [f'v_xor_b32 {vt[i]}, {sTag}, {vt[i]}' for i in range(4)] +
  [f'v_or3_b32 {vt[0]}, {vt[0]}, {vt[1]}, {vt[2]}', f'v_or_b32 {vt[0]}, {vt[0]}, {vt[3]}', f'v_cmp_ne_u32 vcc, 0, {vt[0]}', 's_cbranch_vccnz Lmaster',
   's_mov_b64 exec, 1', f'buffer_store_dword {vt[5]}, {vt[0]}, {sWS}, 0 offen sc1'])
if opt('help', 1):
    S.used, S.taken = dict(aux_S[0]), set(aux_S[1]); sHd = S.alloc('srdh', 4)
    HR, HI = opt('hr', 4), opt('hi', 9)
    sQ = S.alloc('hq'); sQs = S.alloc('hqs')
    E(['s_endpgm', ('L', 'Lhelp_r'), f's_add_u32 {sQ}, {sA}, {3 * HI - 27}', f's_mov_b32 {sQs}, 5', f's_mov_b32 {sT[1]}, {HR}', 's_branch Lhelp',
       ('L', 'Lhelp_i'), f's_cmp_eq_u32 {sA}, 32', 's_cbranch_scc1 Lend', f's_cmp_eq_u32 {sH}, 0', 's_cbranch_scc1 Lend', f's_sub_u32 {sQ}, {sA}, 33', f's_mov_b32 {sQs}, 3', f's_mov_b32 {sT[1]}, {HI}',
       ('L', 'Lhelp'), f's_lshl_b32 {sT[2]}, {sW}, 6', f'v_add_u32 {vt[0]}, {sT[2]}, {vLane}', f'v_mul_u32_u24 {vt[0]}, 1280, {vt[0]}', 's_waitcnt lgkmcnt(0)'] +
      mk_srd(sHd, pWD, 1728 * 1280) + [('L', 'Lhelp2'), f's_mul_i32 {sT[2]}, {sQ}, 9363', f's_lshr_b32 {sT[2]}, {sT[2]}, 16', f's_mul_i32 {sT[3]}, {sT[2]}, 7', f's_sub_u32 {sT[3]}, {sQ}, {sT[3]}',
       f's_mul_i32 {sT[3]}, {sT[3]}, {256 * 1280}', f's_lshl_b32 {sT[2]}, {sT[2]}, 7', f's_sub_u32 {sT[3]}, {sT[3]}, {sT[2]}', f's_add_u32 {sT[3]}, {sT[3]}, {9 * 128}', f'v_add_u32 {vt[2]}, {sT[3]}, {vt[0]}',
       f'buffer_load_dword {vt[1]}, {vt[2]}, {sHd}, 0 offen', f's_add_u32 {sQ}, {sQ}, {sQs}', f's_sub_u32 {sT[1]}, {sT[1]}, 1', f's_cmp_lg_u32 {sT[1]}, 0', 's_cbranch_scc1 Lhelp2'])
A.label('Lend')
A('s_endpgm')
A.raw(f'''.section .rodata,"a"
.p2align 6
.amdhsa_kernel {NAME}_kernel
  .amdhsa_next_free_vgpr 256
  .amdhsa_next_free_sgpr 102
  .amdhsa_accum_offset 128
  .amdhsa_group_segment_fixed_size 0
  .amdhsa_kernarg_size 88
  .amdhsa_user_sgpr_count 2
  .amdhsa_user_sgpr_kernarg_segment_ptr 1
  .amdhsa_system_sgpr_workgroup_id_x 1
  .amdhsa_float_denorm_mode_32 3
.end_amdhsa_kernel''')
txt = A.render()
open(sys.argv[1], 'w').write(txt)
print('lines', txt.count('\n'), 'nops added', A.nops_added, 'vmax', V.maxused, 'amax', AG.maxused, 'smax', S.maxused, file=sys.stderr)
```

```python
import sys, math, struct
from asmlib import Asm, RegAlloc, Reg
NAME = "recurrent_scan__sliding_local_dilated__moe_arch_mod__prompt"
OPTS = set(sys.argv[2:])
STAMPS = 'stamps' in OPTS
def opt(name, default):
    for o in OPTS:
        if o.startswith(name + '='): return type(default)(o[len(name) + 1:])
    return default
DUMP = opt('dump', '')
NT = {k: (' nt' if k in opt('nt', 'F') else '') for k in 'WXOFRS'}
STAMPW = opt('sw', 2)

def f32(x): return '0x%08x' % struct.unpack('<I', struct.pack('<f', x))[0]
L2E = math.log2(math.e)

def tables():
    U = []; SL = []
    for cc in range(5):
        h0 = (16 * cc) // 5
        slot = [((16 * cc + q) // 5) - h0 for q in range(16)]
        s1 = [q for q in range(16) if slot[q] == 1]; s2 = [q for q in range(16) if slot[q] == 2]
        t0 = s1[:4]; e1 = s1[4]; t3 = s2[1:]; e2 = s2[0]
        rest = [q for q in range(16) if q not in t0 and q not in t3]
        t1 = []; t2 = []
        for res in range(4):
            pair = [q for q in rest if q % 4 == res]
            if e1 in pair: a = e1; b = pair[0] if pair[1] == e1 else pair[1]
            elif e2 in pair: b = e2; a = pair[0] if pair[1] == e2 else pair[1]
            else: a, b = pair
            t1.append(a); t2.append(b)
        tl = [sorted(t0, key=lambda q: q % 4), t1, t2, sorted(t3, key=lambda q: q % 4)]
        u = 0; sl = 0
        for t in range(4):
            for g in range(4):
                q = tl[t][g]
                u |= (q // 4) << (2 * (4 * t + g)); sl |= slot[q] << (2 * (4 * t + g))
        U.append(u); SL.append(sl)
    return U, SL
UT, SLT = tables()

SLOT = 39040; VOFF = 16384; XOFF = 24576; ONES_OFF = 38912; NSL = 4; ND = 4; NI = 10 - ND
SCR = 4 * SLOT
L_M = SCR; L_R = SCR + 512; L_CS = SCR + 1024
L_CSV = SCR + 1536
L_CSF = SCR + 1792; L_UF = SCR + 1796; L_INFO = SCR + 1800; L_QF = SCR + 1808; L_C2 = SCR + 1812; L_C3 = SCR + 1816; L_WF = SCR + 1820; L_LD = SCR + 1824; L_DN = SCR + 1856; L_UPD = SCR + 2048; SENT = -2
EXB = 2 * SLOT + XOFF; VXB = 3 * SLOT + XOFF
OWIN = [0, SLOT + XOFF]
OLOC = [0, 8192, XOFF, EXB + 20480, SLOT + XOFF + 16384, XOFF + 8192, XOFF + 16384, SLOT + XOFF, SLOT + XOFF + 8192]
KLOC = [b + 4096 * kk for b in OLOC for kk in range(2)] + [XOFF + 24576, SLOT + XOFF + 24576]
LDS_BYTES = 163840
WS_SX = 0x100000; WS_O = 0x400000; WS_FL = 0x700000; WS_Y = 0x710000; WS_ST = 0x800000; WS_STAT = 0x7d0000; WS_CD = 0x7c0000; WS_SIG = 0x7f0000; WS_BC = 0x7e0000; WS_DUMP = 0x1000000
DBG_VAL = 64; DBG_IDX = 192
NSIG = 220 + 27
NEG_INF = '0xff800000'
SCALE_L2E = (20 ** -0.5) * L2E
MFMA = 'v_mfma_f32_16x16x32_bf16'

A = Asm()
V = RegAlloc('v', 1, 128); AG = RegAlloc('a', 0, 128); S = RegAlloc('s', 3, 102)

class Em:
    def __init__(self): self.vm = []; self.lg = []
    def reset(self): self.vm = []; self.lg = []
    def cnt(self, q, tag, mx):
        if tag == 'all': n = 0
        elif tag not in q: return None
        else: n = len(q) - 1 - max(i for i, t in enumerate(q) if t == tag)
        n = min(n, mx)
        del q[:len(q) - n]
        return n
    def __call__(self, it):
        if isinstance(it, list):
            for x in it: self(x)
            return
        if isinstance(it, tuple) and it[0] == 'W':
            parts = []
            if it[1] is not None:
                n = self.cnt(self.vm, it[1], 63)
                if n is not None: parts.append(f'vmcnt({n})')
            if it[2] is not None:
                n = self.cnt(self.lg, it[2], 15)
                if n is not None: parts.append(f'lgkmcnt({n})')
            if parts: A('s_waitcnt ' + ' '.join(parts))
            return
        if isinstance(it, tuple) and it[0] == 'L': A.label(it[1]); return
        if isinstance(it, tuple) and it[0] == 'R': A(it[1]); return
        text, tag = (it, None) if isinstance(it, str) else it
        if text.startswith('ds_'):
            if 'lgthr' in OPTS and len(self.lg) >= 15: A('s_waitcnt lgkmcnt(14)'); del self.lg[:len(self.lg) - 14]
            self.lg.append(tag)
        elif text.startswith('buffer_'):
            if len(self.vm) >= 63: A('s_waitcnt vmcnt(55)'); del self.vm[:len(self.vm) - 55]
            self.vm.append(tag)
        A(text)
E = Em()
def W(vm=None, lg=None): return ('W', vm, lg)

def merge(a, b, na=1, nb=1):
    out = []; i = j = 0
    while i < len(a) or j < len(b):
        out += a[i:i + na]; i += na
        out += b[j:j + nb]; j += nb
    return out
def spread(a, b):
    out = []; j = 0
    for i, x in enumerate(a):
        out.append(x)
        while j < len(b) and j * len(a) < (i + 1) * len(b): out.append(b[j]); j += 1
    return out + b[j:]

sST = []
FINE = opt('fine', '')
def fstamp(grp):
    return stamp(True) if grp == FINE else []
def stamp(force=False):
    if not STAMPS: return []
    if FINE and not force and len(sST) > 0: return []
    r = S.alloc(f'stamp{len(sST)}', 2); sST.append(r)
    return [f's_memtime {r}' if 'clk' in OPTS else f's_memrealtime {r}']
def bf16r(dst, src): return [f'v_cvt_pk_bf16_f32 {dst}, {src}, {src}', f'v_lshlrev_b32 {dst}, 16, {dst}']
def mk_srd(dst, ptr, nbytes, add=0):
    if 'noffn' in OPTS and nbytes in (640 * 3456, 1728 * 1280): nbytes = 0
    if add > 0: L = [f's_add_u32 {dst[0]}, {ptr[0]}, {add}', f's_addc_u32 {dst[1]}, {ptr[1]}, 0']
    elif add < 0: L = [f's_sub_u32 {dst[0]}, {ptr[0]}, {-add}', f's_subb_u32 {dst[1]}, {ptr[1]}, 0']
    else: L = [f's_mov_b64 {dst[0:2]}, {ptr}']
    return L + [f's_mov_b32 {dst[2]}, {nbytes - add}', f's_mov_b32 {dst[3]}, 0x20000']
SITES = []
def spin_guard():
    if 'diag' in OPTS:
        import inspect
        fr = inspect.stack(); SITES.append(' <- '.join(str(f.lineno) for f in fr[1:3]))
        return [f's_sub_u32 {sSpin}, {sSpin}, 1', f's_cbranch_scc1 Lfail{len(SITES)}']
    return [f's_sub_u32 {sSpin}, {sSpin}, 1', 's_cbranch_scc1 Lend']
def stats(sumreg, sq4, st, tmp, vdiag, mk1, mk2):
    return [f'v_cndmask_b32 {tmp[0]}, {sq4[0]}, {sq4[1]}, {mk1}', f'v_cndmask_b32 {tmp[1]}, {sq4[2]}, {sq4[3]}, {mk1}',
            f'v_cndmask_b32 {tmp[0]}, {tmp[0]}, {tmp[1]}, {mk2}', (f'ds_bpermute_b32 {tmp[0]}, {vdiag}, {tmp[0]}', 'bp'),
            f'v_mul_f32 {tmp[1]}, {f32(-1 / 640)}, {sumreg}'] + bf16r(st[0], tmp[1]) + [f'v_mul_f32 {tmp[1]}, {tmp[1]}, {tmp[1]}',
            f'v_mov_b32 {tmp[2]}, {f32(1 / 640)}', W(lg='bp'),
            f'v_fma_f32 {tmp[0]}, {tmp[0]}, {tmp[2]}, -{tmp[1]}', f'v_max_f32 {tmp[0]}, 0, {tmp[0]}'] + bf16r(tmp[0], tmp[0]) + \
           [f'v_add_f32 {tmp[0]}, {f32(1e-5)}, {tmp[0]}'] + bf16r(tmp[0], tmp[0]) + [f'v_sqrt_f32 {tmp[0]}, {tmp[0]}'] + bf16r(tmp[0], tmp[0]) + \
           [f'v_rcp_f32 {st[1]}, {tmp[0]}']
def wave_max_u32(r, sdst, st):
    return [f'v_max_u32_dpp {r}, {r}, {r} row_ror:{sh} row_mask:0xf bank_mask:0xf' for sh in (8, 4, 2, 1)] + \
           [f'v_readlane_b32 {sdst}, {r}, 0', f'v_readlane_b32 {st[0]}, {r}, 16', f'v_readlane_b32 {st[1]}, {r}, 32', f'v_readlane_b32 {st[2]}, {r}, 48',
            f's_max_u32 {sdst}, {sdst}, {st[0]}', f's_max_u32 {st[1]}, {st[1]}, {st[2]}', f's_max_u32 {sdst}, {sdst}, {st[1]}']
def poll_top2(t, sK0, sK1, st, slp=2):
    L = A.newlabel('Lpt')
    return [f'v_and_b32 {t[0]}, 31, {vLane}', f'v_lshlrev_b32 {t[0]}, 7, {t[0]}', f'v_add_u32 {t[0]}, {WS_CD}, {t[0]}', ('L', L)] + spin_guard() + [f's_sleep {slp}',
        ('R', f'buffer_load_dwordx4 {t[4:8]}, {t[0]}, {sWS}, 0 offen sc1'), 's_waitcnt vmcnt(0)', f'v_cmp_ne_u32 vcc, {sTag}, {t[5]}', f'v_cmp_ne_u32 {st[0:2]}, {sTag}, {t[7]}',
        f's_or_b64 {st[0:2]}, {st[0:2]}, vcc', f's_cbranch_scc1 {L}', f'v_mov_b32 {t[0]}, {t[4]}'] + \
        wave_max_u32(t[0], sK0, st) + [f'v_cmp_eq_u32 vcc, {sK0}, {t[4]}', f'v_cndmask_b32 {t[0]}, {t[4]}, {t[6]}, vcc'] + wave_max_u32(t[0], sK1, st)
def round_pairs(x, n):
    L = [f'v_cvt_pk_bf16_f32 {x[i + 1]}, {x[i]}, {x[i + 1]}' for i in range(0, n, 2)]
    for i in range(0, n, 2): L += [f'v_lshlrev_b32 {x[i]}, 16, {x[i + 1]}', f'v_and_b32 {x[i + 1]}, 0xffff0000, {x[i + 1]}']
    return L
def silu_into(g, z, n):
    return [f'v_mul_f32 {g[i]}, {f32(-L2E)}, {z[i]}' for i in range(n)] + [f'v_exp_f32 {g[i]}, {g[i]}' for i in range(n)] + \
           [f'v_add_f32 {g[i]}, 1.0, {g[i]}' for i in range(n)] + [f'v_rcp_f32 {g[i]}, {g[i]}' for i in range(n)] + \
           [f'v_mul_f32 {g[i]}, {g[i]}, {z[i]}' for i in range(n)] + round_pairs(g, n)
def cvt2(dst, acc): return [f'v_cvt_pk_bf16_f32 {dst[0]}, {acc[0]}, {acc[1]}', f'v_cvt_pk_bf16_f32 {dst[1]}, {acc[2]}, {acc[3]}']
def tr_parts(vrow, vphi32, vc, tmp):
    return [f'v_bfe_u32 {tmp}, {vLane}, 2, 2', f'v_and_b32 {vc}, 3, {vLane}', f'v_lshl_add_u32 {vrow}, {vG}, 3, {tmp}', f'v_lshlrev_b32 {vrow}, 7, {vrow}',
            f'v_lshlrev_b32 {vphi32}, 2, {vLane}', f'v_and_b32 {vphi32}, 0x60, {vphi32}']
def save_state(): return (dict(V.used), set(V.taken), dict(S.used), set(S.taken), dict(AG.used), set(AG.taken), list(sST))
def load_state(st):
    V.used, V.taken, S.used, S.taken, AG.used, AG.taken = [x.copy() for x in st[:6]]; sST[:] = st[6]; E.reset()
def write_stamps(who, kind):
    if not STAMPS: return
    E([W('all')] + stamp(True) + ['s_waitcnt lgkmcnt(0)', f's_cmp_lg_u32 {sWv}, {who}', 's_cbranch_scc1 Lend',
       f's_mul_i32 {sT[0]}, s2, 128', f's_add_u32 {sT[0]}, {sT[0]}, {WS_ST}', 's_mov_b64 exec, 1', f'v_mov_b32 {vt[2]}, 0'])
    print(kind, 'stamps', len(sST), file=sys.stderr)
    lk = opt('leak', -1)
    if lk >= 0 and kind == opt('leakk', 'main'):
        Lp = A.newlabel('Lpad')
        E([f's_sub_u32 {sT[1]}, {sST[lk][0]}, {sST[0][0]}', f's_mul_i32 {sT[1]}, {sT[1]}, 5', f's_add_u32 {sT[1]}, {sT[1]}, 3000', ('L', Lp), f's_memrealtime {sT[2:4]}', 's_waitcnt lgkmcnt(0)',
           f's_sub_u32 {sT[2]}, {sT[2]}, {sST[0][0]}', f's_cmp_lt_u32 {sT[2]}, {sT[1]}', f's_cbranch_scc1 {Lp}'])
    for i in range(16):
        j = min(i, len(sST) - 1)
        E([f'v_mov_b32 {vt[0]}, {sST[j][0]}', f'v_mov_b32 {vt[1]}, {sST[j][1]}', f'buffer_store_dwordx2 {vt[0:2]}, {vt[2]}, {sWS}, {sT[0]} offen offset:{8 * i}', 's_nop 1'])
def signal():
    return ['s_mov_b64 exec, 1', f's_lshl_b32 {sT[0]}, s2, 2', f's_add_u32 {sT[0]}, {sT[0]}, {WS_SIG}', f'v_mov_b32 {vt[0]}, {sTag}', f'v_mov_b32 {vt[1]}, {sT[0]}',
            f'buffer_store_dword {vt[0]}, {vt[1]}, {sWS}, 0 offen sc1', 's_mov_b64 exec, -1']

sKA = S.alloc('ka', 16); sKB = S.alloc('kb', 6, 4)
sWS = S.alloc('srdws', 4)
sWv = S.alloc('wv'); sW = S.alloc('w'); sH = S.alloc('h'); sRB = S.alloc('rb'); sC = S.alloc('c')
sT = S.alloc('t', 4); sTag = S.alloc('tag'); sSpin = S.alloc('spin')
A.raw(f'''; @launch grid=(256,1,1) block=(512,1,1) lds={LDS_BYTES}
.amdgcn_target "amdgcn-amd-amdhsa--gfx950"
.text
.globl {NAME}_kernel
.p2align 8
.type {NAME}_kernel,@function
{NAME}_kernel:''')
vLane = V.alloc('lane'); vG = V.alloc('g'); vTt = V.alloc('t16'); vt = V.alloc('vt', 8); vL4 = V.alloc('lane4'); vL16 = V.alloc('lane16')
pX, pW, pWO, pWR, pWG, pWU, pWD = sKA[0:2], sKA[2:4], sKA[4:6], sKA[8:10], sKA[10:12], sKA[12:14], sKA[14:16]
pOUT, pDBG, pWS = sKB[0:2], sKB[2:4], sKB[4:6]
if opt('pf0', 0):
    E(stamp() + [f's_getpc_b64 {sT[0:2]}', f'v_and_b32 {vt[4]}, 15, v0', f'v_mov_b32 {vt[5]}, 0', f'v_lshlrev_b32 {vt[4]}, 7, {vt[4]}', f's_load_dwordx16 {sKA}, s[0:1], 0',
       f'v_lshl_add_u64 {vt[4:6]}, {vt[4:6]}, 0, {sT[0:2]}', f'global_load_dword a127, {vt[4:6]}, off'])
E(([] if opt('pf0', 0) else [f's_load_dwordx16 {sKA}, s[0:1], 0']) + [f's_load_dwordx4 {sKB[0:4]}, s[0:1], 64', f's_load_dwordx2 {sKB[4:6]}, s[0:1], 80'] + ([] if opt('pf0', 0) else stamp()) +
  [f'v_lshrrev_b32 {vt[0]}, 6, v0', f'v_and_b32 {vLane}, 63, v0', 's_cmp_ge_u32 s2, 256', 's_cbranch_scc1 Lend',
   f'v_readfirstlane_b32 {sWv}, {vt[0]}'] + ([] if 'nopf' in OPTS else [
   f's_getpc_b64 {sT[0:2]}', ('L', 'Lpc'), f's_and_b32 {sT[2]}, s2, 0xf8', f'v_add_u32 {vt[1]}, {sT[2]}, {vt[0]}', f'v_and_b32 {vt[2]}, 1, v0', f'v_lshl_add_u32 {vt[1]}, {vt[1]}, 1, {vt[2]}',
   f'v_lshlrev_b32 {vt[1]}, 7, {vt[1]}', f'v_min_u32 {vt[1]}, Lend-Lpc, {vt[1]}', f'v_mov_b32 {vt[3]}, {sT[1]}', f'v_add_co_u32 {vt[2]}, vcc, {sT[0]}, {vt[1]}',
   f'v_addc_co_u32 {vt[3]}, vcc, 0, {vt[3]}, vcc', f'global_load_dword v0, {vt[2:4]}, off']) + [f'v_lshrrev_b32 {vG}, 4, {vLane}', f'v_and_b32 {vTt}, 15, {vLane}',
   f'v_lshlrev_b32 {vL4}, 2, {vLane}', f'v_lshlrev_b32 {vL16}, 4, {vLane}', f's_mov_b32 {sSpin}, {opt("spin", 2000000)}',
   f's_and_b32 {sT[0]}, s2, 7', f's_lshr_b32 {sT[1]}, s2, 3', f's_and_b32 {sT[2]}, {sT[0]}, 1', f's_lshr_b32 {sT[0]}, {sT[0]}, 1', f's_add_u32 {sT[3]}, {sT[2]}, 4',
   f's_and_b32 {sW}, {sWv}, 3', f's_lshr_b32 {sH}, {sWv}, 2',
   f's_cmp_lt_u32 {sT[1]}, {sT[3]}', 's_cbranch_scc1 Laux'])
st_common = save_state()
if 'nomain' in OPTS: E('s_endpgm')
def get_tag():
    return mk_srd(sWS, pWS, 0x10000000, opt('wsoff', 0) << 20) + [f's_load_dword {sTag}, {sWS[0:2]}, 0']
def fin_tag(): return [f's_add_u32 {sTag}, {sTag}, 0x9e3779b8', f's_or_b32 {sTag}, {sTag}, 1']
if opt('map', 1) == 0:
    E([f's_mul_i32 {sT[0]}, {sT[0]}, 55', f's_mul_i32 {sT[2]}, {sT[2]}, 28', f's_add_u32 {sT[0]}, {sT[0]}, {sT[2]}', f's_add_u32 {sT[0]}, {sT[0]}, {sT[1]}',
       f's_sub_u32 {sT[0]}, {sT[0]}, {sT[3]}', f's_mul_i32 {sRB}, {sT[0]}, 6554', f's_lshr_b32 {sRB}, {sRB}, 16', f's_mul_i32 {sT[1]}, {sRB}, 10', f's_sub_u32 {sC}, {sT[0]}, {sT[1]}'])
else:
    E([f's_lshr_b32 {sC}, {sT[0]}, 1', f's_and_b32 {sT[0]}, {sT[0]}, 1',
       f's_mul_i32 {sT[0]}, {sT[0]}, 55', f's_mul_i32 {sT[2]}, {sT[2]}, 28', f's_add_u32 {sT[0]}, {sT[0]}, {sT[2]}', f's_add_u32 {sT[0]}, {sT[0]}, {sT[1]}',
       f's_sub_u32 {sT[0]}, {sT[0]}, {sT[3]}', f's_mul_i32 {sRB}, {sT[0]}, 13108', f's_lshr_b32 {sRB}, {sRB}, 16', f's_mul_i32 {sT[1]}, {sRB}, 5', f's_sub_u32 {sT[0]}, {sT[0]}, {sT[1]}',
       f's_mul_i32 {sC}, {sC}, 5', f's_add_u32 {sC}, {sC}, {sT[0]}'])
sCC = S.alloc('cc'); sU = S.alloc('U'); sS0 = S.alloc('s0')
TP = [int(x) for x in opt('tp', '1,2,3,4,5').split(',')]
SEQ = []
for p in range(5):
    ev = [(2 * p + 2 * i) % 10 for i in range(5)]
    od = [2 * q + 1 for q in sorted(range(5), key=lambda q: (TP[q], (q - p) % 5)) if q != p]
    SEQ.append(ev[:TP[p]] + [2 * p + 1] + ev[TP[p]:] + od)
if opt('sched', '00112//013/24/01'):
    gr = opt('sched', '00112//013/24/01').split('/')
    SEQ = [[int(ch)] for ch in gr[0]]; intro = {int(ch): 0 for ch in gr[0]}
    for st_ in range(1, 10):
        f_ = [int(ch) for ch in gr[st_]] if st_ < len(gr) else []
        for p in f_: k = len(intro); intro[k] = st_; SEQ[p].append(k)
        for p in range(5):
            if p in f_: continue
            cand = sorted((k for k in intro if k not in SEQ[p]), key=lambda k: (intro[k], (k - p) % 10))
            SEQ[p].append(cand[0])
    assert all(sorted(q) == list(range(10)) for q in SEQ), SEQ
    print(SEQ, file=sys.stderr)
SEQT = [sum(k << (4 * i) for i, k in enumerate(q)) for q in SEQ]; INVT = [sum(q.index(k) << (4 * k) for k in range(10)) for q in SEQ]
E([f's_add_u32 {sS0}, {sC}, {sRB}', f's_mul_i32 {sT[0]}, {sS0}, 13108', f's_lshr_b32 {sT[0]}, {sT[0]}, 16', f's_mul_i32 {sT[0]}, {sT[0]}, 5', f's_sub_u32 {sS0}, {sS0}, {sT[0]}'])
sPar = S.alloc('par')
RADD = int(opt('radd', '30858530'), 16)
E([f's_and_b32 {sPar}, s2, 7', f's_lshl_b32 {sPar}, {sPar}, 2', f's_lshr_b32 {sPar}, {RADD:#x}, {sPar}', f's_and_b32 {sPar}, {sPar}, 15'] if RADD else [])
def addmod(r): return [f's_add_u32 {r}, {r}, {sPar}', f's_sub_u32 {sT[2]}, {r}, 10', f's_cmp_ge_u32 {r}, 10', f's_cselect_b32 {r}, {sT[2]}, {r}'] if RADD else []
def sel_p(dst, tab):
    L = [f's_mov_b32 {dst[0]}, {tab[0] & 0xffffffff:#x}', f's_mov_b32 {dst[1]}, {tab[0] >> 32:#x}']
    for p in range(1, 5): L += [f's_cmp_eq_u32 {sS0}, {p}', f's_cselect_b32 {dst[0]}, {tab[p] & 0xffffffff:#x}, {dst[0]}', f's_cselect_b32 {dst[1]}, {tab[p] >> 32:#x}, {dst[1]}']
    return L
def sel_cc(dst, tab):
    L = [f's_mov_b32 {dst}, {tab[0]:#x}']
    for cc in range(1, 5): L += [f's_cmp_eq_u32 {sCC}, {cc}', f's_cselect_b32 {dst}, {tab[cc]:#x}, {dst}']
    return L
calc_cc = [f's_sub_u32 {sT[0]}, {sC}, 5', f's_cmp_ge_u32 {sC}, 5', f's_cselect_b32 {sCC}, {sT[0]}, {sC}'] + sel_cc(sU, UT)
vOnes = V.alloc('ones', 4); vrow = V.alloc('trrow'); vPhi = V.alloc('phi32'); vWr = V.alloc('wr', 8)
def calc_wr(secoff):
    vc = vt[4]
    L = tr_parts(vrow, vPhi, vc, vt[3]) + [f'v_lshlrev_b32 {vt[6]}, 1, {vc}', f'v_add_u32 {vt[5]}, {secoff}, {vrow}']
    for t in range(4):
        L += [f'v_add_u32 {vt[7]}, {8 * t}, {vt[6]}', f'v_bfe_u32 {vt[7]}, {sU}, {vt[7]}, 2', f'v_lshl_add_u32 {vt[7]}, {vt[7]}, 2, {vc}', f'v_lshlrev_b32 {vt[7]}, 3, {vt[7]}',
              f'v_xad_u32 {vWr[t]}, {vt[7]}, {vPhi}, {vt[5]}']
    return L + [f'v_add_u32 {vWr[4 + t]}, {2 * SLOT}, {vWr[t]}' for t in range(4)]
def trs(dst, areg, off, tag): return [(f'ds_read_b64_tr_b16 {dst[2 * h:2 * h + 2]}, {areg} offset:{off + h * 512}', tag) for h in range(2)]
def cnt_arrive(addr, va, vb): return [f'v_mov_b32 {va}, {addr}', f'v_mov_b32 {vb}, 1', 's_mov_b64 exec, 1', f'ds_add_u32 {va}, {vb}', 's_mov_b64 exec, -1']
def cnt_wait(n, va, vb, slp=0, reads=()):
    L = A.newlabel('Lcw')
    return [('L', L)] + spin_guard() + ([f's_sleep {slp}'] if slp else []) + [(f'ds_read_b32 {vb}, {va}', 'cw')] + list(reads) + [W(lg='cw'), f'v_readfirstlane_b32 {sT[2]}, {vb}', f's_cmp_lt_u32 {sT[2]}, {n}', f's_cbranch_scc1 {L}']
set_ones = [f'v_mov_b32 {vOnes[i]}, 0x3f803f80' for i in range(4)]
E([f's_cmp_lg_u32 {sWv}, 0', 's_cbranch_scc1 Lcomp'])
st_main = save_state()
pos_comp = len(A.lines)
A.label('Lcomp')

sTau = S.alloc('tau'); sOUT = S.alloc('srdout', 4)
acc = V.alloc('acc', 32); B1 = V.alloc('B1', 16); B2 = V.alloc('B2', 16); B3 = V.alloc('B3', 16)
vXb = V.alloc('xb', 8); vPM = V.alloc('pm', 4); vSt = V.alloc('st', 4); vVr = B2[8:12]
vXe = V.alloc('xea'); vEx = V.alloc('exa'); vScB = V.alloc('scb'); vSc = [vSt[3], vScB]
vXr = B2[0:8]; accV = B1
sVx = S.alloc('vx')
E([f's_lshl_b32 {sTau}, {sW}, 1', f's_add_u32 {sTau}, {sTau}, {sH}'] + calc_cc + [f's_lshl_b32 {sT[1]}, {sH}, 13', f's_cmp_eq_u32 {sTau}, 1', f's_cselect_b32 {sT[1]}, 0, {sT[1]}'] + calc_wr(sT[1]))
E([f'v_lshrrev_b32 {vt[6]}, 1, {vTt}', f'v_xor_b32 {vt[5]}, {vt[6]}, {vG}', f'v_lshlrev_b32 {vt[5]}, 4, {vt[5]}', f'v_lshl_add_u32 {vt[5]}, {vTt}, 7, {vt[5]}',
   f's_lshl_b32 {sT[0]}, {sTau}, 11', f's_xor_b32 {sT[2]}, {sT[0]}, 2048', f's_add_u32 {sT[0]}, {sT[0]}, {XOFF - 2048}', f's_add_u32 {sT[2]}, {sT[2]}, {XOFF - 2048}',
   f'v_add_u32 {vXr[0]}, {sT[0]}, {vt[5]}', f'v_add_u32 {vXr[2]}, {sT[2]}, {vt[5]}',
   f's_mul_i32 {sT[3]}, {sW}, 6144', f's_add_u32 {sT[3]}, {sT[3]}, {EXB - 4096}', f'v_add_u32 {vEx}, {sT[3]}, {vL16}',
   f's_lshl_b32 {sVx}, {sTau}, 11', f's_add_u32 {sVx}, {sVx}, {VXB - 2048}',
   's_waitcnt lgkmcnt(0)'] + get_tag() + [f's_cmp_eq_u32 {sTau}, 1', 's_cbranch_scc1 Lhalo'])
vLa = V.alloc('lda'); vLd = vt[4]; vDv = vt[5]; vDa = vt[6]
stubs = []
def ld_read(): return [] if BAR else (f'ds_read_b32 {vLd}, {vLa}', 'ld')
BAR = opt('sync', 'bar') == 'bar'
def ld_check(s, who):
    if BAR: return ([W(lg='all')] if 'drain' in OPTS else []) + ['s_barrier']
    return [W(lg='ld'), ('L', f'Lld{who}{s}'), f'v_cmp_ge_u32 vcc, {s}, {vLd}', f's_cbranch_vccz Lld{who}{s}_ok'] + spin_guard() + \
           ([f's_sleep {opt("slp", 1)}'] if opt("slp", 1) else []) + [('R', f'ds_read_b32 {vLd}, {vLa}'), 's_waitcnt lgkmcnt(0)', f's_branch Lld{who}{s}', ('L', f'Lld{who}{s}_ok')]
def dn_write(s): return [] if BAR else [f'v_mov_b32 {vDv}, {s + 2 + opt("skew", 0)}', ['s_mov_b64 exec, 1', f'ds_write_b32 {vDa}, {vDv}', 's_mov_b64 exec, -1']]
sync_setup = [f'v_mov_b32 {vLa}, {L_LD}', f's_lshl_b32 {sT[0]}, {sWv}, 2', f's_add_u32 {sT[0]}, {sT[0]}, {L_DN}', f'v_mov_b32 {vDa}, {sT[0]}']
st_halo = save_state()
sP4 = S.alloc('p4')
E([f'v_xor_b32 {vXr[1]}, 64, {vXr[0]}', f'v_xor_b32 {vXr[3]}, 64, {vXr[2]}'] + [f'v_add_u32 {vXr[4 + j]}, {2 * SLOT}, {vXr[j]}' for j in range(4)] +
  [f's_cmp_eq_u32 {sH}, 0', 's_cselect_b64 vcc, 0, -1', f's_sub_u32 {sT[1]}, {VOFF}, {sT[1]}', f'v_cndmask_b32 {vVr[0]}, {vWr[0]}, {vWr[2]}, vcc', f'v_cndmask_b32 {vVr[1]}, {vWr[1]}, {vWr[3]}, vcc',
   f'v_add_u32 {vVr[0]}, {sT[1]}, {vVr[0]}', f'v_add_u32 {vVr[1]}, {sT[1]}, {vVr[1]}', f'v_add_u32 {vVr[2]}, {2 * SLOT}, {vVr[0]}', f'v_add_u32 {vVr[3]}, {2 * SLOT}, {vVr[1]}',
   f'v_lshrrev_b32 {vt[4]}, 1, {vG}', f'v_xor_b32 {vt[4]}, {vt[4]}, {vt[6]}', f'v_lshlrev_b32 {vt[4]}, 4, {vt[4]}', f'v_lshl_add_u32 {vt[4]}, {vTt}, 7, {vt[4]}',
   f'v_and_b32 {vt[3]}, 1, {vG}', f'v_lshl_add_u32 {vXe}, {vt[3]}, 3, {vt[4]}'] + ([f's_cmp_ge_u32 {sC}, 5', f's_cselect_b32 {sP4}, {opt("orot", 1) << 12}, 0'] if opt('orot', 1) >= 2 else [f's_lshl_b32 {sP4}, {sS0}, 12' if opt('orot', 1) else f's_mov_b32 {sP4}, 0']) + sel_p(sT[2:4], INVT) + ([f's_sub_u32 {sS0}, {sC}, {sPar}', f's_cselect_b32 {sPar}, 10, 0', f's_add_u32 {sS0}, {sS0}, {sPar}'] if RADD else [f's_mov_b32 {sS0}, {sC}']) + [f's_lshl_b32 {sS0}, {sS0}, 2', f's_lshr_b64 {sT[2:4]}, {sT[2:4]}, {sS0}', f's_and_b32 {sS0}, {sT[2]}, 15',
   f's_and_b32 {sT[2]}, {sS0}, 3', f's_mul_i32 {sT[2]}, {sT[2]}, {SLOT}', f's_add_u32 {sT[2]}, {sT[2]}, {sT[0]}', f'v_add_u32 {vt[0]}, {sT[2]}, {vXe}',
   f'v_xor_b32 {vt[1]}, 32, {vt[0]}', f'v_xor_b32 {vt[2]}, 64, {vt[0]}', f'v_xor_b32 {vt[3]}, 0x60, {vt[0]}'] + mk_srd(sOUT, pOUT, 2048 * 1280) + set_ones)
S.free('ka', 'kb')
sSL = S.alloc('SL'); sM = {}
E(sel_cc(sSL, SLT))
for t in (1, 2):
    E([f'v_lshlrev_b32 {vt[6]}, 1, {vG}', f'v_add_u32 {vt[6]}, {8 * t}, {vt[6]}', f'v_bfe_u32 {vt[6]}, {sSL}, {vt[6]}, 2'])
    for sl in (0, 3, t):
        sM[(sl, t)] = S.alloc(f'm{sl}{t}', 2); E(f'v_cmp_eq_u32 {sM[(sl, t)]}, {sl}, {vt[6]}')
S.free('SL', 'U')
def lmask(f): return sum(1 << l for l in range(64) if f(l >> 4, l & 15))
MCA = lmask(lambda g, t: t - 4 * g - (t & 1) >= 0); MCB = lmask(lambda g, t: t - 4 * g - 2 - (t & 1) >= 0)
sK1 = S.alloc('k1', 2); sCA = S.alloc('ca', 2); sCB = S.alloc('cb', 2); sFirst = S.alloc('first')
OWN = opt('own', 0); sOb = S.alloc('ob', 10 if OWN else 6, 1); sOst = S.alloc('ost'); sFl = S.alloc('fl'); sSx = S.alloc('ssx', 3, 1); sNb = S.alloc('nb', 2, 1); sCs = S.alloc('cscale')
vRka = B3[0:2]; vSa = B3[2]; vCa = B3[3]; vQf = B3[4]
E([f's_mov_b32 {sK1[0]}, 0xaaaaaaaa', f's_mov_b32 {sK1[1]}, 0xaaaaaaaa',
   f's_mov_b32 {sCA[0]}, {MCA & 0xffffffff:#x}', f's_mov_b32 {sCA[1]}, {MCA >> 32:#x}', f's_mov_b32 {sCB[0]}, {MCB & 0xffffffff:#x}', f's_mov_b32 {sCB[1]}, {MCB >> 32:#x}',
   f'v_mov_b32 {vt[4]}, 0xffff', f'v_not_b32 {vt[5]}, {vt[4]}', f'v_cndmask_b32 {vt[4]}, {vt[4]}, {vt[5]}, {sK1}',
   f'v_cndmask_b32 {vPM[2]}, 0, {vt[4]}, {sCA}', f'v_cndmask_b32 {vPM[3]}, 0, {vt[4]}, {sCB}', f'v_xor_b32 {vPM[0]}, {vPM[2]}, {vt[4]}', f'v_xor_b32 {vPM[1]}, {vPM[3]}, {vt[4]}',
   f's_cmp_eq_u32 {sRB}, 0', f's_cselect_b32 {sT[0]}, {sTau}, 0', f's_cmp_eq_u32 {sT[0]}, 2', f's_cselect_b32 {sFirst}, {NEG_INF}, 0',
   f's_mul_i32 {sT[0]}, {sRB}, 6', f's_add_u32 {sT[0]}, {sT[0]}, {sTau}', f's_sub_u32 {sT[0]}, {sT[0]}, 2', f's_lshl_b32 {sFl}, {sT[0]}, 7', f's_add_u32 {sFl}, {sFl}, {WS_FL}',
   f's_mul_i32 {sOb[0]}, {sT[0]}, 20480', f's_add_u32 {sOb[0]}, {sOb[0]}, {WS_O}', f's_lshl_b32 {sT[0]}, {sC}, 11', f's_add_u32 {sOst}, {sT[0]}, {sOb[0]}'] +
  ([f's_lshl_b32 {sP4}, {sC}, 11'] + [x for i in range(1, 10) for x in (f's_add_u32 {sP4}, {sP4}, 2048', f's_cmp_eq_u32 {sP4}, 20480', f's_cselect_b32 {sP4}, 0, {sP4}', f's_add_u32 {sOb[i]}, {sOb[0]}, {sP4}')] if OWN else
   [x for i in range(1, 6) for x in (f's_add_u32 {sOb[i]}, {sOb[0]}, {sP4}', f's_add_u32 {sP4}, {sP4}, 4096', f's_cmp_eq_u32 {sP4}, 20480', f's_cselect_b32 {sP4}, 0, {sP4}')]) +
  [f's_mul_i32 {sT[0]}, {sRB}, 10', f's_add_u32 {sT[0]}, {sT[0]}, {sC}', f's_mul_i32 {sSx[0]}, {sT[0]}, 6144', f's_lshl_b32 {sT[0]}, {sTau}, 10', f's_add_u32 {sSx[0]}, {sSx[0]}, {sT[0]}',
   f's_add_u32 {sSx[0]}, {sSx[0]}, {WS_SX - 2048}', f's_sub_u32 {sSx[1]}, {sSx[0]}, 6144', f's_add_u32 {sSx[2]}, {sSx[0]}, 6144',
   f's_cmp_eq_u32 {sCC}, 0', f's_cselect_b32 {sNb[0]}, 0, -1', f's_cmp_eq_u32 {sCC}, 4', f's_cselect_b32 {sNb[1]}, 0, -1', f's_lshl_b32 {sT[0]}, {sC}, 2', f'v_mov_b32 {B3[5]}, {sT[0]}',
   f's_mov_b32 {sCs}, {f32(SCALE_L2E)}',
   f's_lshl_b32 {sT[0]}, {sTau}, 6', f's_add_u32 {sT[0]}, {sT[0]}, {L_M}', f'v_lshl_add_u32 {vSa}, {vTt}, 2, {sT[0]}',
   f'v_and_b32 {vt[4]}, 1, {vLane}', f'v_lshl_add_u32 {vt[4]}, {vG}, 2, {vt[4]}', f'v_lshl_add_u32 {vt[4]}, {vt[4]}, 2, {sT[0]}', f'v_subrev_u32 {vt[5]}, 64, {vt[4]}',
   f'v_cndmask_b32 {vRka[0]}, {vt[5]}, {vt[4]}, {sCA}', f'v_cndmask_b32 {vRka[1]}, {vt[5]}, {vt[4]}, {sCB}',
   f'v_lshlrev_b32 {vCa}, 4, {vG}', f's_lshl_b32 {sT[0]}, {sH}, 8', f's_add_u32 {sT[0]}, {sT[0]}, {L_CS}', f'v_add_u32 {vCa}, {sT[0]}, {vCa}', f'v_mov_b32 {vQf}, {L_QF}'] +
  [f'v_mov_b32 {B3[8 + i]}, -1' for i in range(4)])
XK = AG.alloc('XK', 16 * ND); XT = AG.alloc('XT', 16); F = [AG.alloc('F0', 24), AG.alloc('F1', 24)]
AALL = Reg('a', 0, 128)
def XF(s, kk, pos):
    if s < NI: return XT[8 * kk + 4 * pos:8 * kk + 4 * pos + 4]
    b = (s - NI) * 16 + 8 * kk + 4 * pos; return XK[b:b + 4]
def sw(s): return (s % NSL) // 2
def so(s): return (s % 2) * SLOT
def v_reads(s, kk, fb, tag): return [x for i in range(2) for x in trs(fb[4 * i:4 * i + 4], vVr[2 * sw(s) + i], so(s) + kk * 4096, tag)]
def p1_reads(s, kk):
    L = [(f'ds_read_b128 {XF(s, kk, pos)}, {vXr[4 * sw(s) + 2 * pos + kk]} offset:{so(s)}', ('r', s, kk, 0)) for pos in range(2)]
    for t in range(4): L += trs(F[kk][4 * t:4 * t + 4], vWr[4 * sw(s) + t], so(s) + kk * 4096, ('r', s, kk, t))
    if s < NI:
        for i in range(2): L += trs(F[kk][16 + 4 * i:20 + 4 * i], vVr[2 * sw(s) + i], so(s) + kk * 4096, ('r', s, kk, 4 + i))
    return L
def v_mfmas(s, kk, fb):
    z = (s == 0 and kk == 0)
    return [f'{MFMA} {accV[8 * pos + 4 * i:8 * pos + 4 * i + 4]}, {XF(s, kk, pos)}, {fb[4 * i:4 * i + 4]}, {0 if z else accV[8 * pos + 4 * i:8 * pos + 4 * i + 4]}' for i in range(2) for pos in range(2)]
def p1_mfmas(s, kk, waits=True):
    z = (s == 0 and kk == 0); L = []
    for t in range(4):
        for pos in range(2):
            a = acc[pos * 16 + 4 * t:pos * 16 + 4 * t + 4]
            L.append(f'{MFMA} {a}, {F[kk][4 * t:4 * t + 4]}, {XF(s, kk, pos)}, {0 if z else a}')
    if s < NI: L += v_mfmas(s, kk, F[kk][16:24])
    if waits: L = [[W(lg=('r', s, kk, i // 2)), m] if i % 2 == 0 else m for i, m in enumerate(L)]
    return L
def mix(m, r, hi):
    if opt('fair', 1):
        m = list(m); q = len(m) // 2
        m[0] = [f's_setprio {hi}', m[0]]; m[q] = [f's_setprio {hi - 1}', m[q]]
    if opt('mix', 1) == 0: return merge(m, r, 1, 2)
    k = len(m) - opt('mixt', 0)
    return spread(m[:k], r) + m[k:]
E(sync_setup + ([f'v_xor_b32 {vt[7]}, 16, {vDa}', f'v_cndmask_b32 {vLa}, {vLa}, {vt[7]}, {sK1}'] if opt('pair', 1) else []) + (dn_write(-1) if opt('skew', 0) else []) + stamp())
if 'prioh' in OPTS: E([f's_cmp_eq_u32 {sH}, 0', 's_cbranch_scc1 Lnoprio', 's_setprio 1', ('L', 'Lnoprio')])
p1_start = len(A.lines)
LATE = opt('late', 0)
CLR = [opt('clr', 3), LATE, LATE] if LATE else [int(x) for x in opt('clrs', '2,4,6').split(',')]
clr_st = [(f'buffer_store_dwordx4 {B3[8:12]}, {vL16}, {sWS}, {sSx[0]} offen sc1', 'clr')] + [(f'buffer_store_dwordx4 {B3[8:12]}, {vL16}, {sWS}, {sOst} offen offset:{1024 * i} sc1', 'clr2' if LATE else 'clr') for i in range(2)]
E([clr_st[i] for i in range(3) if CLR[i] == -1])
for s in range(10):
    A.comment(f'pass1 unit {s}')
    E(fstamp('cw'))
    if s in (0, 9): E((['s_waitcnt vmcnt(0)'] if s == 0 else []) + [W(lg='all'), 's_barrier'])
    else: E(ld_check(s, 'c'))
    E(fstamp('cb'))
    if s == 0:
        E(stamp() + p1_reads(0, 0) + fin_tag())
    else:
        E(mix(p1_mfmas(s - 1, 1), p1_reads(s, 0), 3))
    for i in range(3):
        if s == CLR[i]: E(clr_st[i])
    if s == opt('flg', 7 if LATE else 9): E([f'v_mov_b32 {B3[6]}, {sTag}', W('clr'), 's_mov_b64 exec, 1', f'buffer_store_dword {B3[6]}, {B3[5]}, {sWS}, {sFl} offen sc1', 's_mov_b64 exec, -1'])
    if opt('xeo', 1) == 1:
        E([f's_cmp_eq_u32 {sS0}, {s}', f's_cbranch_scc1 Lxe{s}', ('L', f'Lxe{s}_b')])
        stubs.append([('L', f'Lxe{s}')] + [('R', f'ds_read_b64 {vXb[2 * n:2 * n + 2]}, {vt[n]}') for n in range(4)] + [f's_branch Lxe{s}_b'])
    elif opt('xeo', 1) == 2:
        E([f's_cmp_eq_u32 {sS0}, {s}', 's_cselect_b64 exec, -1, 0'] + [f'ds_read_b64 {vXb[2 * n:2 * n + 2]}, {vt[n]}' for n in range(4)] + ['s_mov_b64 exec, -1'])
    else:
        E([f's_cmp_lg_u32 {sS0}, {s}', f's_cbranch_scc1 Lxe{s}'] + [('R', f'ds_read_b64 {vXb[2 * n:2 * n + 2]}, {vt[n]}') for n in range(4)] + [('L', f'Lxe{s}')])
    rd = p1_reads(s, 1)
    if s < 8: rd.insert(len(rd) - opt('ldp', 4), ld_read())
    if s < 8: rd += dn_write(s)
    if s == 9:
        rd += [f'ds_read_b32 {vSt[0]}, {vSa}', f'ds_read_b32 {vSt[1]}, {vSa} offset:512', f'v_xor_b32 {vSa}, 64, {vSa}', f'ds_read_b32 {vSt[2]}, {vSa}',
               f'ds_read_b32 {vSc[0]}, {vRka[0]} offset:512', f'ds_read_b32 {vSc[1]}, {vRka[1]} offset:520'] + [f'v_mov_b32 {vWr[4 + i]}, {vVr[i]}' for i in range(4)]
    E(mix(p1_mfmas(s, 0), rd, 1))
vVr = vWr[4:8]
def drop(pred): A.lines[p1_start:] = [l for l in A.lines[p1_start:] if not (l[0] == 'i' and pred(l[1]))]
if 'nomfma' in OPTS: drop(lambda t: t.startswith('v_mfma'))
if 'nords' in OPTS: drop(lambda t: t.startswith('ds_read'))
vCS = B2; vQ8 = acc[0:8]; vK16 = acc[16:32]
lastm = p1_mfmas(9, 1, False)
cs_reads = [f'ds_read_b32 {vt[3]}, {vQf}'] + [f'ds_read_b128 {vCS[4 * t:4 * t + 4]}, {vCa} offset:{64 * t}' for t in range(4)]
E([W(lg=('r', 9, 1, 3))] + lastm[1::2] + lastm[0::2][:2] + cs_reads + lastm[0::2][2:] + stamp() + fstamp('c2'))
E([W(lg='all'), ('L', 'Lqf'), f'v_readfirstlane_b32 {sT[2]}, {vt[3]}', f's_cmp_eq_u32 {sT[2]}, 0', 's_cbranch_scc1 Lqf_re'] + stamp())
def fix_qk(dst, a16, negm):
    L = []
    for t in range(4):
        L += [f'v_fmac_f32 {a16[4 * t + i]}, {vCS[4 * t + i]}, {negm}' for i in range(4)] + cvt2(dst[2 * t:2 * t + 2], a16[4 * t:4 * t + 4])
    return L
E(fstamp('c2') + [f's_cmp_eq_u32 {sH}, 0'] + fix_qk(vK16[0:8], acc[16:32], vSt[2]) + fstamp('c2') + ['s_cbranch_scc1 Lh1'])
c2s = [fstamp('c2') for _ in range(3)]
VF = Reg('a', XT.base, 64)
def tail_reads(k): return v_reads(NI + k // 2, k % 2, VF[8 * k:8 * k + 8], ('v', k))
KE = opt('ke', 0); VSEP = opt('vsep', 0); NC2 = 7 if VSEP else 8
for h in (1, 0):
    if h == 0: pos_h0 = len(A.lines); A.label('Lh1')
    E.lg = []
    if h == 1: E('s_setprio 3')
    E([f'ds_write_b128 {vEx}, {vK16[4 * i:4 * i + 4]} offset:{h * 2048 + i * 1024}' for i in range(2)])
    if h == 1: E(fix_qk(vK16[8:16], acc[0:16], vSt[0]) + [f'ds_write_b128 {vEx}, {vK16[8 + 4 * i:12 + 4 * i]} offset:{4096 + i * 1024}' for i in range(2)])
    E(cnt_arrive(L_C2, vt[1], vt[2]) + c2s[0])
    if KE: E([f'v_mov_b32 {vt[4]}, {L_WF}'] + cnt_wait(1, vt[4], vt[5], 0, [x for k in range(KE) for x in tail_reads(k)]))
    em = [x for k in range(KE) for x in [W(lg=('v', k))] + v_mfmas(NI + k // 2, k % 2, VF[8 * k:8 * k + 8])]
    if h == 0: E(spread(fix_qk(vQ8, acc[0:16], vSt[0]) + [f'v_subrev_u32 {vt[0]}, 6144, {vEx}'], em))
    else: E(em)
    if h == 0:
        rds = [f'ds_read_b128 {vK16[8 + 4 * i:12 + 4 * i]}, {vEx} offset:{2048 + i * 1024}' for i in range(2)] + \
              [f'ds_read_b128 {vK16[4 * i:4 * i + 4]}, {vt[0]} offset:{4096 + i * 1024}' for i in range(2)]
    else:
        rds = [f'ds_read_b128 {vQ8[4 * i:4 * i + 4]}, {vEx} offset:{i * 1024}' for i in range(2)]
    SPEC = opt('spec', 0)
    E([f'v_mov_b32 {vt[4 + i]}, {sFirst}' for i in range(4)] + c2s[1] + cnt_wait(NC2, vt[1], vt[2], opt('c2s', 0) if h == 0 else 0, rds if SPEC else []) + c2s[2] + ([] if SPEC else rds) + (['s_branch Lh_join'] if h == 0 else []))
h0_lines = A.lines[pos_h0:]; del A.lines[pos_h0:]
A.label('Lh_join')
E.lg = ['ex']
E([(f'buffer_load_dword {vWr[0]}, {vL4}, {sWS}, {sFl} offen sc1', 'fl')] + ([] if VSEP else tail_reads(KE) + tail_reads(KE + 1)) + [W(lg='ex')] + stamp() + fstamp('c2'))
vQ = B3
def QO(sl): return vQ[sl * 4:sl * 4 + 4]
KO = {1: 0, 0: 2, 3: 2, 2: 4}
def SA(sl, pc): return {0: vCS[0:8], 3: vCS[8:16], 1: acc[8:16], 2: vCS[0:8]}[sl][pc * 4:pc * 4 + 4]
def s_mfma(sl): return [f'{MFMA} {SA(sl, pc)}, {vK16[8 * pc + KO[sl]:8 * pc + KO[sl] + 4]}, {QO(sl)}, {0 if pc else vt[4:8]}' for pc in range(2)]
def mrg(sl):
    p = SA(sl, 0); c = SA(sl, 1); d = QO(sl)
    return [f'v_cndmask_b32 {p[0]}, {p[0]}, {p[1]}, {sK1}', f'v_cndmask_b32 {c[0]}, {c[0]}, {c[1]}, {sK1}', f'v_cndmask_b32 {p[2]}, {p[2]}, {p[3]}, {sK1}',
            f'v_cndmask_b32 {c[2]}, {c[2]}, {c[3]}, {sK1}', f'v_cndmask_b32 {d[0]}, {p[0]}, {c[0]}, {sCA}', f'v_cndmask_b32 {d[2]}, {p[2]}, {c[2]}, {sCB}']
def qmask(sl): return [f'v_cndmask_b32 {QO(sl)[i]}, 0, {vQ8[2 + i]}, {sM[(sl, 1 + i // 2)]}' for i in range(4)]
q1 = [f'v_mov_b32 {QO(1)[0]}, {vQ8[0]}', f'v_mov_b32 {QO(1)[1]}, {vQ8[1]}'] + [f'v_cndmask_b32 {QO(1)[2 + i]}, 0, {vQ8[2 + i]}, {sM[(1, 1)]}' for i in range(2)]
q2 = [f'v_cndmask_b32 {QO(2)[i]}, 0, {vQ8[4 + i]}, {sM[(2, 2)]}' for i in range(2)] + [f'v_mov_b32 {QO(2)[2]}, {vQ8[6]}', f'v_mov_b32 {QO(2)[3]}, {vQ8[7]}']
def pub(sl, d): return mrg(sl) + [f'v_min_u32 {vt[2 * d + j]}, -2, {QO(sl)[2 * j]}' for j in range(2)]
vFl = vWr[0]
fl_load = (f'buffer_load_dword {vFl}, {vL4}, {sWS}, {sFl} offen sc1', 'fl')
E(['s_setprio 3'] + qmask(0) + qmask(3)[:2] + s_mfma(0) + qmask(3)[2:] + q1[:2] + s_mfma(3) + q1[2:] + q2[:2] + s_mfma(1) + pub(0, 0) + pub(3, 1) + [f'buffer_store_dwordx4 {vt[0:4]}, {vL16}, {sWS}, {sSx[0]} offen sc1', 's_setprio 2' if opt('fairt', 1) else 's_setprio 0'])
E(stamp())
if LATE: E([f's_lshl_b32 {sT[0]}, {sC}, 2', f'v_mov_b32 {vCS[8]}, {sT[0]}', f'v_mov_b32 {vCS[9]}, {sTag}', W('clr2'), 's_mov_b64 exec, 1',
            f'buffer_store_dword {vCS[9]}, {vCS[8]}, {sWS}, {sFl} offen offset:64 sc1', 's_mov_b64 exec, -1'])
def loc_store(text):
    if 'hackloc' not in OPTS: return [text + ' sc1']
    L1 = A.newlabel('Lls'); L2 = A.newlabel('Lls')
    return [f's_bitcmp1_b32 {sum(1 << r for r in (2, 5, 8, 13, 16, 19)):#x}, {sRB}', f's_cbranch_scc1 {L1}', text, f's_branch {L2}', ('L', L1), ('R', text + ' sc1'), ('L', L2)]
def softmax(sls):
    n = len(sls); mx = [vt[i] for i in range(n)]; tp = [vt[2 + i] for i in range(n)]
    L = []
    for sl in sls: L += [f'v_mul_f32 {QO(sl)[2 * j]}, {QO(sl)[2 * j]}, {vSc[j]}' for j in range(2)]
    L += [f'v_max_f32 {mx[i]}, {QO(sl)[0]}, {QO(sl)[2]}' for i, sl in enumerate(sls)]
    for sw_ in ('v_permlane32_swap_b32', 'v_permlane16_swap_b32'):
        L += [f'v_mov_b32 {tp[i]}, {mx[i]}' for i in range(n)] + [f'{sw_} {mx[i]}, {tp[i]}' for i in range(n)] + [f'v_max_f32 {mx[i]}, {mx[i]}, {tp[i]}' for i in range(n)]
    for i, sl in enumerate(sls): L += [f'v_sub_f32 {QO(sl)[j]}, {QO(sl)[j]}, {mx[i]}' for j in (0, 2)]
    for sl in sls: L += [f'v_exp_f32 {QO(sl)[j]}, {QO(sl)[j]}' for j in (0, 2)]
    for sl in sls: d = QO(sl); L += [f'v_cvt_pk_bf16_f32 {d[0]}, {d[0]}, {d[0]}', f'v_cvt_pk_bf16_f32 {d[1]}, {d[2]}, {d[2]}']
    for sl in sls: d = QO(sl); L += [f'v_and_b32 {d[2]}, {d[0]}, {vPM[2]}', f'v_and_b32 {d[3]}, {d[1]}, {vPM[3]}', f'v_and_b32 {d[0]}, {d[0]}, {vPM[0]}', f'v_and_b32 {d[1]}, {d[1]}, {vPM[1]}']
    return L
def gate_calc(xb, xn, g, upd=None):
    n = 2 * xb.n; L = []
    for i in range(n // 2): L += [f'v_lshlrev_b32 {xn[2 * i]}, 16, {xb[i]}', f'v_and_b32 {xn[2 * i + 1]}, 0xffff0000, {xb[i]}']
    L += [f'v_add_f32 {xn[i]}, {xn[i]}, {vSt[0]}' for i in range(n)] + round_pairs(xn, n) + [f'v_mul_f32 {xn[i]}, {xn[i]}, {vSt[1]}' for i in range(n)] + round_pairs(xn, n)
    if upd is not None: L += [W(lg='all')] + [f'v_add_f32 {xn[i]}, {xn[i]}, {upd[i]}' for i in range(n)] + round_pairs(xn, n)
    return L + silu_into(g, xn, n)[:-n]
fill = q2[2:] + [f'v_mul_f32 {vt[0]}, {sCs}, {vSt[1]}'] + s_mfma(2) + [f'v_mul_f32 {vSc[j]}, {vSc[j]}, {vt[0]}' for j in range(2)] + mrg(1) + mrg(2) + softmax([1, 2])
vRx = acc[24:32]; vNm = acc[0:16]; vCv = acc[16:18]; vCf = acc[18]; vAd = acc[20:24]
def rx_loads(): return [(f'buffer_load_dwordx2 {vRx[2 * d:2 * d + 2]}, {vL16}, {sWS}, {sSx[1 + d]} offen offset:{8 - 8 * d} sc1', 'rx') for d in range(2)]
vprep = [f's_lshl_b32 {sT[0]}, {sTau}, 6', f's_add_u32 {sT[0]}, {sT[0]}, {L_M}', f'v_lshl_add_u32 {vAd[0]}, {vG}, 4, {sT[0]}', f'v_xor_b32 {vAd[1]}, 64, {vAd[0]}'] + \
        [f'ds_read_b128 {vNm[8 * pos + 4 * q:8 * pos + 4 * q + 4]}, {vAd[pos]} offset:{512 * q}' for pos in range(2) for q in range(2)] + \
        [f's_lshl_b32 {sT[0]}, {sH}, 3', f's_add_u32 {sT[0]}, {sT[0]}, {L_CSV}', f'v_lshl_add_u32 {vAd[0]}, {vTt}, 4, {sT[0]}', f'v_mov_b32 {vAd[1]}, {L_CSF}',
         f'v_lshl_add_u32 {vEx}, {vLane}, 3, {sVx}', f's_lshl_b32 {sT[0]}, {sH}, 10', f'v_add_u32 {vAd[2]}, {sT[0]}, {vEx}',
         f's_lshl_b32 {sT[1]}, {sH}, 12', f's_sub_u32 {sT[1]}, 2048, {sT[1]}', f'v_add_u32 {vAd[3]}, {sT[1]}, {vAd[2]}', f'v_subrev_u32 {vEx}, 2048, {vEx}']
NK = 2 * ND; KF = opt('kf', 5); KR = opt('kr', 7)
if VSEP: E([f'v_mov_b32 {vCS[12]}, {L_WF}'] + cnt_wait(1, vCS[12], vCS[13], 0, tail_reads(KE) + tail_reads(KE + 1)))
for k in range(KE + 2, NK): E(tail_reads(k))
for k in range(KE, NK):
    cnt = -(-len(fill) // (KF - k)) if k < KF else 0
    f = fill[:cnt]; fill = fill[cnt:]
    if k == KF: f = vprep
    if opt('fairt', 1) and k in (3, 6): E(f's_setprio {1 - (3, 6).index(k)}')
    if k == KR: E([W('fl'), ('L', 'Lfl_chk'), f'v_cmp_eq_u32 vcc, {sTag}, {vFl}', f's_and_b32 {sT[0]}, vcc_lo, 0x3ff', f's_cmp_lg_u32 {sT[0]}, 0x3ff', 's_cbranch_scc1 Lfl_re'] + rx_loads())
    E([W(lg=('v', k))] + spread(v_mfmas(NI + k // 2, k % 2, VF[8 * k:8 * k + 8]), f))
csv_reads = [f'ds_read_b32 {vCf}, {vAd[1]}', f'ds_read_b64 {vCv}, {vAd[0]}']
E(stamp() + csv_reads + [W(lg='all'), ('L', 'Lcsv'), f'v_readfirstlane_b32 {sT[2]}, {vCf}', f's_cmp_eq_u32 {sT[2]}, 0', 's_cbranch_scc1 Lcsv_re'])
def vfix(a, nm, cv, areg, off):
    return [f'v_fmac_f32 {a[i]}, {nm[i]}, {cv}' for i in range(4)] + [f'v_mul_f32 {a[i]}, {a[i]}, {nm[4 + i]}' for i in range(4)] + cvt2(a[0:2], a) + [f'ds_write_b64 {areg}, {a[0:2]} offset:{off}']
for pos in range(2):
    for i in range(2): E(vfix(accV[8 * pos + 4 * i:8 * pos + 4 * i + 4], vNm[8 * pos:8 * pos + 8], vCv[i], vAd[2 + pos], 512 * i))
E(cnt_arrive(L_C3, vt[4], vt[5]))
FR = [AALL[16 * i:16 * i + 16] for i in range(8)]; NF = 8
def wo_reads(k):
    loc = KLOC[k]; w_ = 1 if loc >= OWIN[1] else 0
    return [x for t in range(4) for x in trs(FR[k % NF][4 * t:4 * t + 4], vWr[4 * w_ + t], loc - OWIN[w_], ('o', k))]
wadr = [f'v_mov_b32 {vt[6]}, {L_WF}', f'v_and_b32 {vt[2]}, 3, {vLane}', f'v_lshl_add_u32 {vt[2]}, {vt[2]}, 3, {vPhi}', f'v_add_u32 {vWr[0]}, {vt[2]}, {vrow}'] + \
       [f'v_xor_b32 {vWr[t]}, {32 * t}, {vWr[0]}' for t in (1, 2, 3)] + [f'v_add_u32 {vWr[4 + t]}, {OWIN[1]}, {vWr[t]}' for t in range(4)] + [cnt_wait(2, vt[6], vt[7])]
NPRE = 0
E([W('rx'), ('L', 'Lrx_chk')])
E([f'v_and_b32 {vRx[i]}, {sNb[i // 2]}, {vRx[i]}' for i in range(4)] + [f'v_max3_u32 {vt[0]}, {vRx[0]}, {vRx[1]}, {vRx[2]}', f'v_max_u32 {vt[0]}, {vt[0]}, {vRx[3]}',
   f'v_cmp_eq_u32 vcc, -1, {vt[0]}', 's_cbranch_vccnz Lrx_re'] + stamp())
E([f'v_add_f32 {QO(sl)[2 * j]}, {QO(sl)[2 * j]}, {vRx[2 * d + j]}' for d, sl in ((0, 0), (1, 3)) for j in range(2)])
vV = accV
rds = [(f'ds_read2st64_b64 {vV[4 * t:4 * t + 4]}, {vEx} offset0:{t} offset1:{t + 4}', 'vp') for t in range(4)]
E(cnt_wait(7, vt[4], vt[5], opt('c3s', 0), rds if SPEC else []) + ['s_setprio 2'] + stamp() + ([] if SPEC else rds))
vO = acc; vSum = vCS
PVL = [(0, 1), (1, 1), (2, 2), (3, 2), (1, 0), (2, 0), (1, 3), (2, 3)]
def OO(t, sl): b = PVL.index((t, sl)) * 4; return vO[b:b + 4]
def SM(sl): return vSum[4 * sl:4 * sl + 4]
def pv(sls): return [f'{MFMA} {SM(sl)}, {vOnes}, {QO(sl)}, 0' for sl in sls] + [f'{MFMA} {OO(t, sl)}, {vV[4 * t:4 * t + 4]}, {QO(sl)}, 0' for (t, sl) in PVL if sl in sls]
ch = softmax([0, 3])
E(ch[:12]); E(W(lg='vp')); E(spread(ch[12:], pv([1, 2])))
vOst = vt
def onorm(t, o, rc): return [f'v_mul_f32 {o[i]}, {o[i]}, {rc}' for i in range(4)] + cvt2(vOst[2 * t:2 * t + 2], o) + [f'v_min_u32 {vOst[2 * t + i]}, -2, {vOst[2 * t + i]}' for i in range(2)]
E(spread(pv([0, 3]), [f'v_rcp_f32 {SM(sl)[0]}, {SM(sl)[0]}' for sl in (1, 2)] + onorm(0, OO(0, 1), SM(1)[0])) + onorm(3, OO(3, 2), SM(2)[0]) + [f'v_rcp_f32 {SM(sl)[0]}, {SM(sl)[0]}' for sl in (0, 3)])
for t in (1, 2):
    d = OO(t, t); rc = SM(t)[2]
    E([f'v_cndmask_b32 {rc}, {SM(t)[0]}, {SM(0)[0]}, {sM[(0, t)]}', f'v_cndmask_b32 {rc}, {rc}, {SM(3)[0]}, {sM[(3, t)]}'])
    for sl in (0, 3): E([f'v_cndmask_b32 {d[r]}, {d[r]}, {OO(t, sl)[r]}, {sM[(sl, t)]}' for r in range(4)])
    E(onorm(t, d, rc) + loc_store(f'buffer_store_dwordx4 {vOst[4 * (t - 1):4 * t]}, {vL16}, {sWS}, {sOst} offen offset:{(t - 1) * 1024}'))
E(stamp())
RING = [B[8 * i:8 * i + 8] for B in (B1, B2, B3) for i in range(2)]; NR = 6; DO = opt('do', 4)
def OF(k): return RING[(k // 2) % NR][4 * (k % 2):4 * (k % 2) + 4]
accO = [vXb[0:4], vXb[4:8], vPM, vOnes]
sJ = S.alloc('j'); sNm_ = S.alloc('nanmask'); sHf = S.alloc('hf')
def o_ld(j):
    if OWN: return [] if j == 0 else [(f'buffer_load_dwordx4 {OF(k)}, {vL16}, {sWS}, {sOb[j]} offen offset:{(k % 2) * 1024} sc1', ('of', j)) for k in (2 * j, 2 * j + 1)]
    return [(f'buffer_load_dwordx4 {OF(k)}, {vL16}, {sWS}, {sOb[1 + k // 4]} offen offset:{(k % 4) * 1024} sc1', ('of', j)) for k in (2 * j, 2 * j + 1)]
if OWN: E([f'v_mov_b32 {RING[0][i]}, {vt[i]}' for i in range(8)])
vXf = acc[0:16]; vGt = acc[16:32]; vOa = vSt[2:4]; vRow = vScB; vTr = vEx; vTa = [vXe, B1[0], B1[1], B1[2]]; vOst = B1[8:16]; vPa = vrow; vPr = vPhi
probe = (f'buffer_load_dword {vPr}, {vPa}, {sWS}, {sOb[0]} offen offset:1020 sc1', 'pr')
gl = []
for i in range(8): gl += [f'v_lshlrev_b32 {vXf[2 * i]}, 16, {vXb[i]}', f'v_and_b32 {vXf[2 * i + 1]}, 0xffff0000, {vXb[i]}']
if opt('exactg', 0):
    Z = B3
    gl += [f'v_add_f32 {Z[i]}, {vXf[i]}, {vSt[0]}' for i in range(16)] + round_pairs(Z, 16) + [f'v_mul_f32 {Z[i]}, {Z[i]}, {vSt[1]}' for i in range(16)] + round_pairs(Z, 16) + silu_into(vGt, Z, 16)
else:
    Z = B3
    gl += [f'v_mul_f32 {vt[0]}, {vSt[0]}, {vSt[1]}', f'v_mul_f32 {vt[1]}, {f32(-L2E)}, {vSt[1]}', f'v_mul_f32 {vt[2]}, {f32(-L2E)}, {vt[0]}']
    gl += [f'v_fma_f32 {vGt[i]}, {vXf[i]}, {vt[1]}, {vt[2]}' for i in range(16)] + [f'v_exp_f32 {vGt[i]}, {vGt[i]}' for i in range(16)]
    gl += [f'v_fma_f32 {Z[i]}, {vXf[i]}, {vSt[1]}, {vt[0]}' for i in range(16)] + [f'v_add_f32 {vGt[i]}, 1.0, {vGt[i]}' for i in range(16)]
    gl += [f'v_rcp_f32 {vGt[i]}, {vGt[i]}' for i in range(16)] + [f'v_mul_f32 {vGt[i]}, {vGt[i]}, {Z[i]}' for i in range(16)]
oadr = [f's_mul_i32 {sT[0]}, {sRB}, 96', f's_lshl_b32 {sT[1]}, {sTau}, 4', f's_add_u32 {sT[0]}, {sT[0]}, {sT[1]}', f's_sub_u32 {sT[0]}, {sT[0]}, 32',
        f'v_add_u32 {vRow}, {sT[0]}, {vTt}', f'v_lshrrev_b32 {vt[2]}, 3, {vLane}', f'v_add_u32 {vt[2]}, {sT[0]}, {vt[2]}', f'v_mul_u32_u24 {vt[2]}, 1280, {vt[2]}',
        f'v_and_b32 {vt[3]}, 7, {vLane}', f'v_xor_b32 {vt[3]}, {vt[3]}, {vG}', f'v_lshl_add_u32 {vOa[0]}, {vt[3]}, 4, {vt[2]}', f'v_xor_b32 {vOa[1]}, 64, {vOa[0]}',
        f'v_add_u32 {vOa[1]}, {8 * 1280}, {vOa[1]}',
        f's_lshl_b32 {sT[0]}, {sTau}, 11', f's_add_u32 {sT[0]}, {sT[0]}, {EXB}', f'v_add_u32 {vXe}, {sT[0]}, {vXe}', f'v_add_u32 {vTr}, {sT[0]}, {vL16}', f's_lshl_b32 {sFl}, {sC}, 7',
        f'v_mov_b32 {vt[6]}, {L_INFO}', f's_mov_b32 {sJ}, 0', f's_mov_b32 {sNm_}, 3']
gl = spread(gl, [wo_reads(k) for k in range(NPRE, NF)])
gl = wadr + oadr + gl
gp = len(gl) * opt('gs', 100) // 100
info_read = (f'ds_read_b64 {vt[4:6]}, {vt[6]}', 'info')
HINT = opt('hint', 0)
hint_ld = f'buffer_load_dword {B2[8]}, {vL4}, {sWS}, {sHf} offen offset:64 sc1'
if LATE:
    hp = 0
    E(f's_mov_b32 {sHf}, {sFl}')
    gl = gl[:hp] + [(hint_ld, 'h')] + gl[hp:gp] + [[W('h'), ('L', 'Lhint'), f'v_cmp_eq_u32 vcc, {sTag}, {B2[8]}', 's_and_b32 vcc_lo, vcc_lo, 0x3ff', 's_cmp_lg_u32 vcc_lo, 0x3ff', 's_cbranch_scc1 Lhint_re']] + gl[gp:]
    gp += 2
    stubs.append([('L', 'Lhint_re')] + spin_guard() + [f's_sleep {opt("hs", 2)}', ('R', hint_ld), 's_waitcnt vmcnt(0)', 's_branch Lhint'])
E(['s_setprio 1'] + gl[:gp] + stamp() + fstamp('wo') + [x for j in range(opt('d0', 4)) for x in o_ld(j)] + ['s_setprio 0'] + gl[gp:] + [('L', 'Lwo_go'), 's_setprio 3'] +
  [x for j in range(opt('d0', 4), DO) for x in o_ld(j)] + [info_read] + fstamp('wo'))
nanchk = [f'v_cmp_class_f32_e64 vcc, {accO[0][0]}, {sNm_}', 's_cbranch_vccnz Lnan']
rowchk = [f'v_cmp_eq_u32 {sT[0:2]}, {vt[4]}, {vRow}', f'v_cmp_eq_u32 {sT[2:4]}, {vt[5]}, {vRow}', f's_or_b64 vcc, {sT[0:2]}, {sT[2:4]}']
CHK = opt('chk', 1)
def pchk(j):
    a_, b_ = OF(2 * j), OF(2 * j + 1)
    return [f'v_max3_u32 {vt[0]}, {a_[0]}, {a_[1]}, {a_[2]}', f'v_max3_u32 {vt[1]}, {b_[0]}, {b_[1]}, {b_[2]}', f'v_max3_u32 {vt[0]}, {vt[0]}, {a_[3]}, {b_[3]}',
            f'v_max_u32 {vt[0]}, {vt[0]}, {vt[1]}', f'v_cmp_eq_u32 vcc, -1, {vt[0]}']
def chk(j):
    stubs.append([('L', f'Lre_{j}'), f's_mov_b32 {sJ}, 1'] + spin_guard() + [f's_sleep {opt("rs", 2)}'] + [('R', x[0]) for x in o_ld(j)] + ['s_waitcnt vmcnt(0)'] + pchk(j) +
                 [f's_cbranch_vccnz Lre_{j}'] + [('R', x[0]) for q in range(j + 1, min(j + DO, 10)) for x in o_ld(q)] + [f's_branch Lck_{j}'])
    return [W(('of', j))] + pchk(j) + [[f's_cbranch_vccnz Lre_{j}', ('L', f'Lck_{j}')]]
if CHK: nanchk = []; E([] if OWN else chk(0))
assert CHK or not OWN
for j in range(10):
    if j == 1: E([W(lg='info'), ('L', 'Linfo'), f'v_readfirstlane_b32 {sT[3]}, {vt[4]}', f's_cmp_eq_u32 {sT[3]}, {SENT}', 's_cbranch_scc1 Linfo_re'])
    if j == opt('fixj', 10): E(rowchk + ['s_cbranch_scc1 Lfix_e', ('L', 'Lfix_eb')])
    if opt('fairo', 1) and j in (3, 6, 8): E(f's_setprio {2 - (3, 6, 8).index(j)}')
    m = []
    for k in (2 * j, 2 * j + 1):
        mk = [f'{MFMA} {accO[n]}, {FR[k % NF][4 * n:4 * n + 4]}, {OF(k)}, {0 if k == 0 else accO[n]}' for n in range(4)]
        rk = wo_reads(k + NF) if k + NF < 20 else []
        mk = [[mk[n]] + rk[2 * n:2 * n + 2] for n in range(4)]
        mk[0] = (nanchk if (k % 2 == 0 and 1 <= j <= opt('nanj', 6)) else []) + [W(('of', j) if k % 2 == 0 else None, ('o', k))] + ((stamp() if j == 0 else []) + fstamp('wo') if k % 2 == 0 else []) + mk[0]
        m += mk
    if CHK:
        CP = opt('cp', 4)
        E(spread(m[:CP], o_ld(j + DO) if j + DO < 10 else []) + spread(m[CP:], chk(j + 1) if j < 9 else []))
    else: E(spread(m, o_ld(j + DO) if j + DO < 10 else []))
E(stamp() + fstamp('wo'))
E([f'v_xor_b32 {vTa[n]}, {32 * n}, {vXe}' for n in (1, 2, 3)] + nanchk + [f'v_cmp_eq_u32 {sT[0:2]}, {vt[4]}, {vRow}', f'v_cmp_eq_u32 {sT[2:4]}, {vt[5]}, {vRow}', f's_or_b64 vcc, {sT[0:2]}, {sT[2:4]}',
   's_cbranch_scc1 Lfix' if 'nofix' not in OPTS else 's_nop 0', ('L', 'Lnofix')])
if opt('padd', 0.0):
    E([f's_cmp_eq_u32 s2, 100', f's_cselect_b32 {sT[0]}, {sWv}, 0', f's_cmp_eq_u32 {sT[0]}, 2', f's_cselect_b32 {sT[0]}, {f32(opt("padd", 0.0))}, 0', f'v_add_f32 {vXf[0]}, {sT[0]}, {vXf[0]}'])
if opt('pmul', 0.0):
    E([f'v_mul_f32 {vGt[i]}, {f32(opt("pmul", 0.0))}, {vGt[i]}' for i in range(16)])
for n in range(4):
    a = accO[n]
    E([f'v_fma_f32 {a[i]}, {a[i]}, {vGt[4 * n + i]}, {vXf[4 * n + i]}' for i in range(4)] + cvt2(vOst[2 * n:2 * n + 2], a) + [f'ds_write_b64 {vTa[n]}, {vOst[2 * n:2 * n + 2]}'])
E([(f'ds_read_b128 {B2[4 * i:4 * i + 4]}, {vTr} offset:{1024 * i}', ('fin', i)) for i in range(2)])
for i in range(2): E([W(lg=('fin', i)), f'buffer_store_dwordx4 {B2[4 * i:4 * i + 4]}, {vOa[i]}, {sOUT}, {sFl} offen{NT["S"]}{opt("osc", "").replace("_", " ")}'])
if 'showj' in OPTS: E([f's_mul_i32 {sST[1][0]}, {sJ}, 100', f's_add_u32 {sST[1][0]}, {sST[1][0]}, {sST[0][0]}', f's_addc_u32 {sST[1][1]}, {sST[0][1]}, 0'])
write_stamps(STAMPW, 'main')
E('s_endpgm')
A.lines += h0_lines
E([('L', 'Lqf_re')] + spin_guard() + cs_reads + [W(lg='all'), 's_branch Lqf'])
E([('L', 'Lcsv_re')] + spin_guard() + csv_reads + [W(lg='all'), 's_branch Lcsv'])
E([('L', 'Lrx_re')] + spin_guard() + rx_loads() + [W('all'), 's_branch Lrx_chk'])
E([('L', 'Linfo_re')] + spin_guard() + [info_read, W(lg='all'), 's_branch Linfo'])
E([('L', 'Lfl_re')] + spin_guard() + [fl_load, W('all'), 's_branch Lfl_chk'])
E(stubs); stubs.clear()
if not CHK: E([('L', 'Lnan'), f's_add_u32 {sJ}, {sJ}, 1', f's_cmp_eq_u32 {sJ}, 2', 's_cbranch_scc1 Lval0',
   f'v_min_u32 {vPa}, 19, {vLane}', f'v_lshlrev_b32 {vPa}, 10, {vPa}', ('L', 'Lprobe')] + spin_guard() + [probe, W('all'), f'v_cmp_eq_u32 vcc, -1, {vPr}', 's_cbranch_vccnz Lprobe', 's_branch Lredo',
   ('L', 'Lval0'), f's_mov_b32 {sNm_}, 0', f's_mov_b32 {sT[0]}, {sOb[0]}', f's_add_u32 {sT[1]}, {sOb[0]}, 20480', W('all'), ('L', 'Lval')] + spin_guard() +
  [f'buffer_load_dwordx4 {B1[0:4]}, {vL16}, {sWS}, {sT[0]} offen sc1', W('all'), f'v_max3_u32 {B1[0]}, {B1[0]}, {B1[1]}, {B1[2]}', f'v_max_u32 {B1[0]}, {B1[0]}, {B1[3]}',
   f'v_cmp_eq_u32 vcc, -1, {B1[0]}', 's_cbranch_vccnz Lval', f's_add_u32 {sT[0]}, {sT[0]}, 1024', f's_cmp_lt_u32 {sT[0]}, {sT[1]}', 's_cbranch_scc1 Lval', ('L', 'Lredo')] +
  [x for j in range(4) for x in o_ld(j)] + [wo_reads(k) for k in range(NF)] + [W(lg='all'), 's_branch Lwo_go'])
E([('L', 'Lfix'), f's_mov_b64 vcc, {sT[2:4]}', f'v_lshlrev_b32 {vt[2]}, 4, {vG}', f'v_add_u32 {vt[2]}, {L_UPD}, {vt[2]}', f'v_mov_b32 {vt[6]}, {L_UF}'] + cnt_wait(1, vt[6], vt[7]))
for i, mk_ in enumerate((sT[0:2], 'vcc')):
    E([f's_mov_b64 exec, {mk_}'] + [f'ds_read_b128 {vGt[4 * n:4 * n + 4]}, {vt[2]} offset:{256 * i + 64 * n}' for n in range(4)])
E(['s_mov_b64 exec, -1', W(lg='all'), 's_branch Lnofix'])
if opt('fixj', 10) < 10:
    E([('L', 'Lfix_e'), f's_mov_b64 vcc, {sT[2:4]}', f'v_lshlrev_b32 {vt[2]}, 4, {vG}', f'v_add_u32 {vt[2]}, {L_UPD}, {vt[2]}', f'v_mov_b32 {vt[6]}, {L_UF}', f'ds_read_b32 {vt[7]}, {vt[6]}',
       W(lg='all'), f'v_readfirstlane_b32 {sT[2]}, {vt[7]}', f's_cmp_eq_u32 {sT[2]}, 0', 's_cbranch_scc1 Lfix_eb'])
    for i, mk_ in enumerate((sT[0:2], 'vcc')):
        E([f's_mov_b64 exec, {mk_}'] + [f'ds_read_b128 {vGt[4 * n:4 * n + 4]}, {vt[2]} offset:{256 * i + 64 * n}' for n in range(4)])
    E(['s_mov_b64 exec, -1', f'v_mov_b32 {vt[4]}, -1', f'v_mov_b32 {vt[5]}, -1', W(lg='all'), 's_branch Lfix_eb'])

load_state(st_halo)
A.label('Lhalo')
HF = [Reg('a', 0, 48), Reg('a', 48, 48)]; HXK = Reg('a', 96, 32); HXT = vXb
vSg = B3[0:4]; vSo = B3[4:6]
E(['s_mov_b32 vcc_lo, 0x00010001', 's_mov_b32 vcc_hi, 0x00010001', f'v_mov_b32 {vt[7]}, {ONES_OFF}', f'v_cndmask_b32 {vXr[0]}, {vXr[0]}, {vt[7]}, vcc', f'v_xor_b32 {vXr[1]}, 64, {vXr[0]}',
   f'v_add_u32 {vXr[4]}, {2 * SLOT}, {vXr[0]}', f'v_add_u32 {vXr[5]}, {2 * SLOT}, {vXr[1]}'] + set_ones +
  [f'v_and_b32 {vt[0]}, 7, {vLane}', f'v_lshlrev_b32 {vt[0]}, 4, {vt[0]}', f'v_mul_u32_u24 {vt[1]}, {SLOT}, {vG}', f'v_add_u32 {vt[0]}, {vt[0]}, {vt[1]}', f'ds_write_b128 {vt[0]}, {vOnes} offset:{ONES_OFF}',
   f'v_mov_b32 {vt[0]}, {L_CSF}', f'v_mov_b32 {vt[4]}, 0', f'v_mov_b32 {vt[5]}, 0', f'v_mov_b32 {vt[6]}, {SENT}', f'v_mov_b32 {vt[7]}, {SENT}', f'ds_write_b128 {vt[0]}, {vt[4:8]}',
   f'v_min_u32 {vt[1]}, 23, {vLane}', f'v_lshl_add_u32 {vt[1]}, {vt[1]}, 2, {vt[0]}', f'ds_write_b32 {vt[1]}, {vt[4]} offset:16',
   f's_mul_i32 {sT[0]}, {sRB}, 96', f's_sub_u32 {sT[0]}, {sT[0]}, 16', f'v_add_u32 {vSo[0]}, {sT[0]}, {vLane}', f'v_min_u32 {vt[1]}, 47, {vLane}', f'v_add3_u32 {vSo[1]}, {sT[0]}, {vt[1]}, 64',
   f'v_mov_b32 {vt[2]}, 2047', f'v_med3_i32 {vSo[0]}, {vSo[0]}, 0, {vt[2]}', f'v_med3_i32 {vSo[1]}, {vSo[1]}, 0, {vt[2]}', f'v_lshlrev_b32 {vSo[0]}, 3, {vSo[0]}', f'v_lshlrev_b32 {vSo[1]}, 3, {vSo[1]}'])
sSt = S.alloc('sst'); E([f's_mov_b32 {sSt}, {WS_STAT}'] + sync_setup)
vQ1 = vPM
E(['s_mov_b32 vcc_lo, 0x00010001', 's_mov_b32 vcc_hi, 0x00010001'] + [f'v_cndmask_b32 {vQ1[i]}, 0, {vOnes[i]}, vcc' for i in range(4)])
def HX(s, kk): return HXT[4 * kk:4 * kk + 4] if s < NI else HXK[(s - NI) * 8 + 4 * kk:(s - NI) * 8 + 4 * kk + 4]
def h_reads(s, kk):
    tag = ('r', s, kk)
    L = [(f'ds_read_b128 {HX(s, kk)}, {vXr[4 * sw(s) + kk]} offset:{so(s)}', tag)]
    for sec in range(3 if s < NI else 2):
        for t in range(4): L += trs(HF[kk][16 * sec + 4 * t:16 * sec + 4 * t + 4], vWr[4 * sw(s) + t], so(s) + sec * 8192 + kk * 4096, tag)
    return L
def h_mfmas(s, kk):
    z = (s == 0 and kk == 0); L = []
    for sec in range(2):
        for t in range(4):
            a = acc[16 * sec + 4 * t:16 * sec + 4 * t + 4]; L.append(f'{MFMA} {a}, {HF[kk][16 * sec + 4 * t:16 * sec + 4 * t + 4]}, {vQ1 if (sec == 0 and opt("lowp", 1)) else HX(s, kk)}, {0 if z else a}')
    if s < NI:
        for t in range(4): a = accV[4 * t:4 * t + 4]; L.append(f'{MFMA} {a}, {HX(s, kk)}, {HF[kk][32 + 4 * t:36 + 4 * t]}, {0 if z else a}')
    return L
p1_start = len(A.lines)
st_loads = [(f'buffer_load_dwordx2 {vSg[2 * i:2 * i + 2]}, {vSo[i]}, {sWS}, {sSt} offen sc1', 'st') for i in range(2)]
hst = [f'v_add_u32 {vt[0]}, {L_M + 64}, {vL4}', f'v_min_u32 {vt[1]}, 47, {vLane}', f'v_lshlrev_b32 {vt[1]}, 2, {vt[1]}', f'v_add_u32 {vt[1]}, {L_M + 64 + 256}, {vt[1]}',
       f'v_lshlrev_b32 {vt[2]}, 4, {vG}', f'v_add_u32 {vt[2]}, {L_CS}, {vt[2]}', f'v_mov_b32 {vt[3]}, {L_QF}', f'v_lshlrev_b32 {vt[7]}, 2, {vTt}', f'v_add_u32 {vt[7]}, {L_M + 64}, {vt[7]}']
hst2 = [[W('st'), ('L', 'Lst_chk'), f'v_cmp_ne_u32 vcc, {sTag}, {vSg[1]}', f'v_cmp_ne_u32 {sT[0:2]}, {sTag}, {vSg[3]}', f's_or_b64 {sT[0:2]}, {sT[0:2]}, vcc', 's_cbranch_scc1 Lst_re']]
for i in range(2): hst2 += [f'v_lshlrev_b32 {vSg[2 * i + 1]}, 16, {vSg[2 * i]}', f'v_and_b32 {vSg[2 * i]}, 0xffff0000, {vSg[2 * i]}', f'v_rcp_f32 {vSg[2 * i + 1]}, {vSg[2 * i + 1]}']
for i in range(2): hst2 += [f'ds_write2st64_b32 {vt[i]}, {vSg[2 * i]}, {vSg[2 * i + 1]} offset0:0 offset1:2']
hst2 += [f'ds_read_b32 {vSt[0]}, {vt[7]}']
for s in range(10):
    A.comment(f'halo unit {s}')
    if s in (0, 9): E((['s_waitcnt vmcnt(0)'] if s == 0 else []) + [W(lg='all'), 's_barrier'])
    else: E(ld_check(s, 'h'))
    if s == 0: E(fin_tag())
    r0, r1 = h_reads(s, 0), h_reads(s, 1)
    E([r0[0], r1[0]])
    grp_ = [[(t_, ('g', i)) for t_, _ in (r0[1:] + r1[1:])[2 * i:2 * i + 2]] for i in range(len(r0) - 1)]
    mm = h_mfmas(s, 0) + h_mfmas(s, 1); LA = 6
    ex = list(hst2) if s == opt('stc', 8) else []
    for i in range(len(mm) + LA):
        if i < len(mm): E(grp_[i])
        if i == len(mm) - 1:
            if s < 6: E(dn_write(s))
            if s < 8: E(ld_read())
        if i >= LA: E([W(lg=('g', i - LA)), mm[i - LA]])
        if i >= len(mm) and ex: E(ex[:2]); ex = ex[2:]
    if s == 1: E(signal())
    if s == 3: E(hst)
    if s == opt('stl', 7): E(st_loads)
if 'nohalo' in OPTS: drop(lambda t: t.startswith('v_mfma') or t.startswith('ds_read_b64_tr'))
E(['s_mov_b32 exec_lo, 0x00010001', 's_mov_b32 exec_hi, 0x00010001'] + [f'ds_write_b128 {vt[2]}, {acc[4 * j:4 * j + 4]} offset:{64 * j}' for j in range(8)] +
  [f'ds_write_b32 {vt[3]}, {vt[3]}', 's_mov_b64 exec, -1'] + [f'ds_read_b128 {vCS[4 * t:4 * t + 4]}, {vt[2]} offset:{256 + 64 * t}' for t in range(4)] + [W(lg='all')] +
  fix_qk(acc[16:24], acc[16:32], vSt[0]) + [f'ds_write_b128 {vEx}, {acc[16 + 4 * i:20 + 4 * i]} offset:{4096 + i * 1024}' for i in range(2)] + cnt_arrive(L_C2, vt[1], vt[2]) +
  [f'v_mov_b32 {vt[1]}, {L_WF}'] + cnt_wait(1, vt[1], vt[2]))
HV = Reg('a', 0, 96)
def ht_reads(k): return [x for t in range(4) for x in trs(HV[16 * (k % 6) + 4 * t:16 * (k % 6) + 4 * t + 4], vWr[4 * sw(NI + k // 2) + t], so(NI + k // 2) + VOFF + (k % 2) * 4096, ('v', k))]
for k in range(6): E(ht_reads(k))
for k in range(NK):
    E([W(lg=('v', k))] + [f'{MFMA} {accV[4 * t:4 * t + 4]}, {HX(NI + k // 2, k % 2)}, {HV[16 * (k % 6) + 4 * t:16 * (k % 6) + 4 * t + 4]}, {accV[4 * t:4 * t + 4]}' for t in range(4)])
    if k + 6 < NK: E(ht_reads(k + 6))
E([f'v_lshlrev_b32 {vt[1]}, 4, {vTt}', f'v_add_u32 {vt[1]}, {L_CSV}, {vt[1]}', f'v_mov_b32 {vt[2]}, {L_CSF}', f'v_lshlrev_b32 {vt[0]}, 4, {vG}', f'v_add_u32 {vt[0]}, {L_M + 64}, {vt[0]}',
   f'v_lshl_add_u32 {vEx}, {vLane}, 3, {sVx}', 's_mov_b64 exec, 0xffff'] + [f'ds_write_b32 {vt[1]}, {accV[4 * t]} offset:{4 * t}' for t in range(4)] +
  [f'ds_write_b32 {vt[2]}, {vt[2]}', 's_mov_b64 exec, -1', f'ds_read_b128 {acc[8:12]}, {vt[1]}', f'ds_read_b128 {acc[0:4]}, {vt[0]}', f'ds_read_b128 {acc[4:8]}, {vt[0]} offset:512', W(lg='all')])
for t in range(4): E(vfix(accV[4 * t:4 * t + 4], acc[0:8], acc[8 + t], vEx, 512 * t))
E(cnt_arrive(L_C3, vt[4], vt[5]) + ['s_branch Lagent' if opt('agent', 1) else 's_endpgm'])
E([('L', 'Lst_re')] + spin_guard() + st_loads + [W('all'), 's_branch Lst_chk'])
E(stubs); stubs.clear()

load_state(st_main)
pos_load = len(A.lines)
A.label('Lloader')
BIAS = 4096
sX = S.alloc('srdx', 4); sWQ = S.alloc('srdq', 4); sWK = S.alloc('srdk', 4); sWV = S.alloc('srdv', 4); sWO = S.alloc('srdwo', 4); sOUT = S.alloc('srdout', 4)
vW = V.alloc('vw', 8); vX = V.alloc('vx', 14); sWk = S.alloc('wk', 10, 1); sXk = S.alloc('xk'); sRho = S.alloc('rho'); sSq = S.alloc('seq', 2)
l3 = vt[1]; l7 = vt[2]; vch = V.alloc('chunkw')
E(['s_setprio 3', f'v_lshrrev_b32 {l3}, 3, {vLane}', f'v_and_b32 {l7}, 7, {vLane}',
   f'v_and_b32 {vt[4]}, 1, {vG}', f'v_lshlrev_b32 {vt[4]}, 1, {vt[4]}', f'v_xor_b32 {vt[4]}, {vt[4]}, {l7}', f's_lshl_b32 {sT[3]}, {sC}, 7', f'v_lshl_add_u32 {vch}, {vt[4]}, 4, {sT[3]}',
   f'v_mov_b32 {vt[3]}, 3840', f'v_mad_u32_u24 {vW[0]}, {l3}, {vt[3]}, {vch}', f'v_xor_b32 {vW[1]}, 64, {vW[0]}', f'v_add_u32 {vW[1]}, {8 * 3840 - 1024}, {vW[1]}'] +
  [f'v_add_u32 {vW[j]}, {(j - j % 2) * 8 * 3840 - ((j % 4) - (j % 2)) * 1024}, {vW[j % 2]}' for j in range(2, 8)] +
  [f's_lshl_b32 {sRho}, {sS0}, 2', f's_lshr_b32 {sRho}, {sum(q[0] << (4 * p) for p, q in enumerate(SEQ)):#x}, {sRho}', f's_and_b32 {sRho}, {sRho}, 15'] + addmod(sRho) + [f's_mul_i32 {sWk[0]}, {sRho}, {64 * 3840}', f's_lshl_b32 {sXk}, {sRho}, 7'])
xset = [f's_mul_i32 {sT[2]}, {sRB}, 96', f's_sub_u32 {sT[2]}, {sT[2]}, 16', f'v_add_u32 {vt[3]}, {sT[2]}, {l3}',
        f'v_xor_b32 {vt[5]}, {l7}, {vG}', f'v_lshlrev_b32 {vt[5]}, 4, {vt[5]}', f'v_xor_b32 {vt[6]}, 64, {vt[5]}', f'v_mov_b32 {vt[7]}, {2047 if not opt("lowp", 1) else 2052}', f'v_mov_b32 {vt[4]}, 1280']
for j in range(14):
    xset += [f'v_add_u32 {vX[j]}, {8 * j}, {vt[3]}', f'v_med3_i32 {vX[j]}, {vX[j]}, 0, {vt[7]}', f'v_mad_u32_u24 {vX[j]}, {vX[j]}, {vt[4]}, {vt[5 + j % 2]}',
             f'v_add_u32 {vX[j]}, {BIAS - (j % 4) * 1024}, {vX[j]}']
WSZ = 640 * 3840
XS0 = opt('xs0', 0)
E(xset[:XS0] + ['s_waitcnt lgkmcnt(0)'] + mk_srd(sWQ, pW, WSZ) + mk_srd(sWK, pW, WSZ, 1280) + mk_srd(sWV, pW, WSZ, 2560))
def grp(m0, items):
    L = [f's_mov_b32 m0, {m0}']
    for j, (vo, srd, sof, nt, tag) in enumerate(items):
        L.append((f'buffer_load_dwordx4 {vo}, {srd}, {sof} offen' + (f' offset:{1024 * j}' if j else '') + f'{nt} lds', tag))
    return L
def wgrp(s, sec, q, tag): return grp((s % NSL) * SLOT + sec * 8192 + q * 4096, [(vW[j], (sWQ, sWK, sWV)[sec], sWk[s], NT['W'], tag) for j in range(4 * q, 4 * q + 4)])
def unit_loads(s):
    sb = (s % NSL) * SLOT; tag = ('u', s)
    L = [f's_mul_i32 {sWk[s]}, {sRho}, {64 * 3840}', f's_lshl_b32 {sXk}, {sRho}, 7']
    xs = [grp(sb + XOFF + q * 4096, [(vX[j], sX, sXk, NT['X'], tag) for j in range(4 * q, min(4 * q + 4, 14))]) for q in range(4)]
    ws = [wgrp(s, sec, q, tag) for q in range(2) for sec in range(3 if s < NI else 2)]
    if s == 0:
        L = spread([x for g_ in ws for x in g_], xset[XS0:] + [mk_srd(sX, pX, 2048 * 1280, -BIAS)]) + [x for g_ in xs for x in g_]
    for i in range(max(len(xs), len(ws)) if s else 0):
        if i < len(xs): L += xs[i]
        if i < len(ws): L += ws[i]
    return L + [(sel_p(sSq, SEQT) if s == 0 else []) + [f's_lshr_b64 {sSq}, {sSq}, 4', f's_and_b32 {sRho}, {sSq[0]}, 15'] + addmod(sRho)]
E(fstamp('st'))
if FINE == 'st':
    E(unit_loads(0) + fstamp('st'))
    for n in (37, 26, 14, 0): E([f's_waitcnt vmcnt({n})'] + fstamp('st'))
E((unit_loads(0) if FINE != 'st' else []) + stamp() + get_tag() + mk_srd(sWO, pWO, 640 * 1280))
S.free('ka', 'kb')
vOsh = V.alloc('osh', 8); vOr = V.alloc('orest', 4); vOt = V.alloc('ot', 2); sOk = S.alloc('ok'); sU5 = S.alloc('u5', 5, 1); s20480 = S.alloc('c20480')
oset = [f's_mov_b32 {s20480}, 20480', f'v_lshrrev_b32 {vOsh[0]}, 5, {vLane}', f'v_lshlrev_b32 {vOsh[0]}, 3, {vOsh[0]}'] + \
       [f'v_add_u32 {vOsh[i]}, {16 * (i >> 2) + 2 * (i & 3)}, {vOsh[0]}' for i in range(1, 8)] + \
       [f'v_and_b32 {vt[3]}, 3, {l3}', f'v_mul_u32_u24 {vt[3]}, 1280, {vt[3]}', f'v_add_u32 {vOr[0]}, {vt[3]}, {vch}', f'v_xor_b32 {vOr[1]}, 64, {vOr[0]}',
        f'v_add_u32 {vOr[1]}, 4096, {vOr[1]}', f'v_add_u32 {vOr[2]}, 8192, {vOr[0]}', f'v_add_u32 {vOr[3]}, 8192, {vOr[1]}']
if not opt('orot', 1): oset += [f's_mov_b32 {sS0}, 0']
if opt('orot', 1) >= 2: oset += [f's_cmp_ge_u32 {sC}, 5', f's_cselect_b32 {sS0}, {opt("orot", 1)}, 0']
oset += [f's_mov_b32 {sU5[j]}, {UT[j]:#x}' for j in range(5)]
if OWN: oset += [f's_sub_u32 {sS0}, {sC}, 5', f's_cmp_ge_u32 {sC}, 5', f's_cselect_b32 {sS0}, {sS0}, {sC}']
for p in range(1, 5): oset += [f's_cmp_eq_u32 {sS0}, {p}'] + [f's_cselect_b32 {sU5[j]}, {UT[((1 if OWN else 2) * p + j) % 5]:#x}, {sU5[j]}' for j in range(5)]
oset += [f's_mul_i32 {sOk}, {sC}, 81920' if OWN else f's_mul_i32 {sOk}, {sS0}, {2 * 81920}']
def o_loads(j):
    L = []
    for i in range(8):
        d = vOt[i % 2]
        if i % 4 == 0: L += [f's_mov_b32 m0, {KLOC[2 * j + i // 4]}']
        L += [f'v_bfe_u32 {d}, {sU5[j % 5]}, {vOsh[i]}, 2', f'v_mad_u32_u24 {d}, {d}, {s20480}, {vOr[i % 4]}',
              (f'buffer_load_dwordx4 {d}, {sWO}, {sOk} offen' + (f' offset:{1024 * (i % 4)}' if i % 4 else '') + f'{NT["O"]} lds', ('o', j))]
    return L + [f's_add_u32 {sOk}, {sOk}, 81920', f's_cmp_eq_u32 {sOk}, 819200', f's_cselect_b32 {sOk}, 0, {sOk}']
vLa = V.alloc('lda'); vDa = V.alloc('dna'); vPv = V.alloc('pv'); vDn = V.alloc('dn')
E([f'v_mov_b32 {vLa}, {L_LD}', f'v_and_b32 {vDa}, 7, {vLane}', f'v_max_u32 {vDa}, 1, {vDa}', f'v_lshlrev_b32 {vDa}, 2, {vDa}', f'v_add_u32 {vDa}, {L_DN}, {vDa}'])
def publish(u):
    if u in (0, 9) or BAR: return [W(('u', u), 'all')] + (stamp() if u == 0 else []) + fstamp('ld') + ['s_barrier'] + (fin_tag() if u == 0 else [])
    return [f'v_mov_b32 {vPv}, {u + 1}', W(('u', u)), 's_mov_b64 exec, 1', f'ds_write_b32 {vLa}, {vPv}', 's_mov_b64 exec, -1'] + fstamp('ld')
DD = opt('dd', 28)
lstubs = []
if opt('bo', '') and BAR:
    BO = [int(x) for x in opt('bo', '').split(',')]; BO += [BO[-1]] * (10 - len(BO)); BO[9] = min(BO[9], opt('d9', 12)); BO[8] = min(BO[8], 30 + BO[9] - 1)
    ends = []; n = 0; flat = []
    for u in range(1, 11):
        ends.append(n)
        L = unit_loads(u) if u < 10 else [x for q in range(NI, 10) for x in wgrp(q, 2, 0, 'v') + wgrp(q, 2, 1, 'v')]
        flat += L; n += sum(isinstance(y, tuple) for y in L)
    pos = [ends[u] + BO[u] for u in range(10)]
    lim = 2 if 'drain' in OPTS else 1
    pos = [min(pos[u], ends[u + lim]) if u + lim < 9 else pos[u] for u in range(10)]
    assert pos == sorted(pos), pos
    n = 0
    for x in flat:
        E(x)
        if isinstance(x, tuple):
            n += 1
            for u in range(10):
                if pos[u] == n: E(publish(u))
else:
    for u in range(1, 11):
        A.comment(f'loader unit {u}')
        if u < 10: L = unit_loads(u)
        else: L = [x for q in range(NI, 10) for x in wgrp(q, 2, 0, 'v') + wgrp(q, 2, 1, 'v')]
        if 4 <= u <= 9 and not BAR:
            E([W(lg='dn'), ('L', f'Ldn{u}'), f'v_cmp_gt_u32 vcc, {u - 2 + opt("skew", 0)}, {vDn}', f's_cbranch_vccz Ldn{u}_ok', f'v_mov_b32 {vPv}, {u}', 's_waitcnt vmcnt(0)',
               's_mov_b64 exec, 1', ('R', f'ds_write_b32 {vLa}, {vPv}'), 's_mov_b64 exec, -1', 's_sleep 1'] + spin_guard() + [('R', f'ds_read_b32 {vDn}, {vDa}'), 's_waitcnt lgkmcnt(0)', f's_branch Ldn{u}', ('L', f'Ldn{u}_ok')])
        n = 0
        for x in L:
            E(x)
            if isinstance(x, tuple):
                n += 1
                if n == (DD if not BAR else (opt('d9', 12) if u == 10 else sum(isinstance(y, tuple) for y in L))):
                    E(publish(u - 1))
                    if 3 <= u <= 8 and not BAR: E((f'ds_read_b32 {vDn}, {vDa}', 'dn'))

E(oset + stamp())
S.free('srdq', 'srdk')
sKy0 = S.alloc('key0'); sKy1 = S.alloc('key1'); sI0 = S.alloc('i0'); sI1 = S.alloc('i1')
vBc = V.alloc('bc', 4); vBa = V.alloc('bca')
bc_load = f'buffer_load_dwordx4 {vBc}, {vBa}, {sWS}, 0 offen sc1'
E(o_loads(0) + o_loads(1) + [W('v')] + cnt_arrive(L_WF, vt[1], vt[2]) + ([f'v_mov_b32 {vt[1]}, {L_C2}'] if VSEP else cnt_arrive(L_C2, vt[1], vt[2])) + stamp() + o_loads(2) + o_loads(3) + o_loads(4) + [W('all')] + cnt_arrive(L_WF, vt[3], vt[2]) + cnt_wait(NC2, vt[1], vt[2]) +
  [f's_lshl_b32 {sT[0]}, {sRB}, 7', f's_add_u32 {sT[0]}, {sT[0]}, {WS_BC}', f'v_mov_b32 {vBa}, {sT[0]}', bc_load])
if opt('wodelay', 1): E([f'v_mov_b32 {vt[1]}, {L_C3}'] + cnt_wait(7, vt[1], vt[2]))
for j in range(5, 10): E(o_loads(j))
E([W('all'), ('L', 'Lbc'), f'v_readfirstlane_b32 {sKy0}, {vBc[0]}', f'v_readfirstlane_b32 {sT[0]}, {vBc[1]}',
   f'v_readfirstlane_b32 {sKy1}, {vBc[2]}', f'v_readfirstlane_b32 {sT[1]}, {vBc[3]}', f's_cmp_eq_u32 {sT[0]}, {sTag}', f's_cselect_b32 {sT[1]}, {sT[1]}, {sT[0]}', f's_cmp_eq_u32 {sT[1]}, {sTag}',
   's_cbranch_scc1 Lbc_ok', ('L', 'Lbc_re')] + spin_guard() + [bc_load, W('all'), 's_branch Lbc', ('L', 'Lbc_ok'), f's_mul_i32 {sT[0]}, {sRB}, 96'])
for k, i in ((sKy0, sI0), (sKy1, sI1)):
    E([f's_and_b32 {i}, {k}, 0x7ff', f's_sub_u32 {i}, 2047, {i}', f's_sub_u32 {sT[1]}, {i}, {sT[0]}', f's_cmp_lt_u32 {sT[1]}, 96', f's_cselect_b32 {i}, {i}, -1'])
E([f'v_mov_b32 {vt[0]}, {sI0}', f'v_mov_b32 {vt[1]}, {sI1}', f'v_mov_b32 {vt[2]}, {L_INFO}'] + stamp() +
  ([f's_cmp_lg_u32 {sWv}, 0', 's_cbranch_scc1 Lag2', f'ds_write_b64 {vt[2]}, {vt[0:2]}', 's_branch Lw0_done', ('L', 'Lag2')] if opt('agent', 1) else [f'ds_write_b64 {vt[2]}, {vt[0:2]}']) +
  [f's_and_b32 {sT[1]}, {sI0}, {sI1}', f's_cmp_eq_u32 {sT[1]}, -1', 's_cbranch_scc1 Lw0_done'] + (['s_branch Lw0_done'] if 'nogather' in OPTS else []))
vY = Reg('v', 16, 108); vXs = Reg('v', 124, 2); vSs = Reg('v', 126, 2)
for q, i in enumerate((sI0, sI1)):
    E([f's_max_i32 {sT[0]}, {i}, 0', f's_mul_i32 {sT[0]}, {sT[0]}, 1280', f's_lshl_b32 {sT[1]}, {sC}, 7', f's_add_u32 {sT[0]}, {sT[0]}, {sT[1]}', f's_add_u32 {sT[0]}, {sT[0]}, {BIAS}',
       f'v_lshlrev_b32 {vt[4]}, 1, {vLane}', f'buffer_load_ushort {vXs[q]}, {vt[4]}, {sX}, {sT[0]} offen'])
E([f'v_min_u32 {vt[3]}, 26, {vLane}', f'v_mul_u32_u24 {vt[3]}, 10240, {vt[3]}', ('L', 'Ly_poll')] + spin_guard() + [f's_sleep {opt("ys", 4)}', f's_lshl_b32 {sT[0]}, {sC}, 10', f's_add_u32 {sT[0]}, {sT[0]}, {WS_Y}',
   f'buffer_load_dword {vt[0]}, {vt[3]}, {sWS}, {sT[0]} offen offset:1020 sc1', W('all'), f'v_cmp_ne_u32 vcc, {sTag}, {vt[0]}', 's_cbranch_vccnz Ly_poll'])
for j in range(27): E([f'buffer_load_dwordx4 {vY[4 * j:4 * j + 4]}, {vL16}, {sWS}, {sT[0]} offen sc1', f's_add_u32 {sT[0]}, {sT[0]}, 10240'])
E([W('all'), f'v_xor_b32 {vt[0]}, {sTag}, {vY[1]}'])
for j in range(27):
    for q in (1, 3):
        if j or q == 3: E([f'v_xor_b32 {vt[1]}, {sTag}, {vY[4 * j + q]}', f'v_or_b32 {vt[0]}, {vt[0]}, {vt[1]}'])
E([f'v_cmp_ne_u32 vcc, 0, {vt[0]}', 's_cmp_lg_u64 vcc, 0', 's_cbranch_scc1 Ly_poll'])
for j in range(1, 27): E([f'v_add_f32 {vY[0]}, {vY[0]}, {vY[4 * j]}', f'v_add_f32 {vY[2]}, {vY[2]}, {vY[4 * j + 2]}'])
for k, y, off in ((sKy0, vY[0], 0), (sKy1, vY[2], 256)):
    E([f's_lshr_b32 {sT[0]}, {k}, 16', f's_cmp_ge_u32 {sT[0]}, 0x8000', f's_cselect_b32 {sT[1]}, 0x8000, -1', f's_xor_b32 {sT[0]}, {sT[0]}, {sT[1]}', f's_lshl_b32 {sT[0]}, {sT[0]}, 16',
       f'v_mov_b32 {vt[0]}, {sT[0]}', f'v_mul_f32 {vt[0]}, {f32(-L2E)}, {vt[0]}', f'v_exp_f32 {vt[0]}, {vt[0]}', f'v_add_f32 {vt[0]}, 1.0, {vt[0]}', f'v_rcp_f32 {vt[0]}, {vt[0]}'] +
      bf16r(vt[0], vt[0]) + bf16r(y, y) + [f'v_mul_f32 {y}, {y}, {vt[0]}'] + bf16r(y, y))
for q, (i, y) in enumerate(((sI0, vY[0]), (sI1, vY[2]))):
    x = vXs[q]; z = vY[4 + 2 * q:6 + 2 * q]
    E([f's_mul_i32 {sT[0]}, {sRB}, 96', f's_sub_u32 {sT[0]}, {i}, {sT[0]}', f's_max_i32 {sT[0]}, {sT[0]}, 0', f's_lshl_b32 {sT[0]}, {sT[0]}, 2', f's_add_u32 {sT[0]}, {sT[0]}, {L_M + 128}',
       f'v_mov_b32 {vt[0]}, {sT[0]}', f'ds_read2st64_b32 {vt[0:2]}, {vt[0]} offset0:0 offset1:2', f'v_lshlrev_b32 {x}, 16, {x}', W(lg='all'), f'v_add_f32 {z[0]}, {x}, {vt[0]}'] + bf16r(z[0], z[0]) +
      [f'v_mul_f32 {z[0]}, {z[0]}, {vt[1]}'] + bf16r(z[0], z[0]) + [f'v_add_f32 {z[0]}, {z[0]}, {y}'] + bf16r(z[0], z[0]) +
      [f'v_mul_f32 {y}, {f32(-L2E)}, {z[0]}', f'v_exp_f32 {y}, {y}', f'v_add_f32 {y}, 1.0, {y}', f'v_rcp_f32 {y}, {y}', f'v_mul_f32 {y}, {y}, {z[0]}'] + bf16r(y, y))
E([f'v_add_u32 {vt[1]}, {L_UPD}, {vL4}', f'ds_write2st64_b32 {vt[1]}, {vY[0]}, {vY[2]} offset0:0 offset1:1'] + cnt_arrive(L_UF, vt[2], vt[3]))
A.label('Lw0_done')
if STAMPW == 0: write_stamps(0, 'loader')
E('s_endpgm')
E(lstubs)
if opt('agent', 1):
    E([('L', 'Lagent')] + mk_srd(sX, pX, 2048 * 1280, -BIAS) + [f's_lshl_b32 {sT[0]}, {sRB}, 7', f's_add_u32 {sT[0]}, {sT[0]}, {WS_BC}', f'v_mov_b32 {vBa}, {sT[0]}', 's_branch Lbc_re'])

pos_aux = len(A.lines)
A.lines[pos_comp:pos_aux] = A.lines[pos_load:pos_aux] + A.lines[pos_comp:pos_load]
load_state(st_common)
A.label('Laux')
sA = sRB; BIAS = 4096
sR = sC
if opt('amap', 1):
    E([f's_lshl_b32 {sA}, {sT[1]}, 3', f's_lshl_b32 {sT[3]}, {sT[2]}, 2', f's_add_u32 {sA}, {sA}, {sT[0]}', f's_cmp_lt_u32 {sT[1]}, 4', f's_cselect_b32 {sT[3]}, {sT[3]}, 0', f's_add_u32 {sA}, {sA}, {sT[3]}',
       f's_and_b32 {sR}, s2, 3', f's_lshl_b32 {sR}, {sR}, 3', f's_and_b32 {sT[3]}, s2, 4', f's_add_u32 {sR}, {sR}, {sT[3]}', f's_add_u32 {sR}, {sR}, {sT[1]}', f's_cmp_ge_u32 {sA}, 32', 's_cbranch_scc1 Lmst'])
else:
    E([f's_mul_i32 {sA}, {sT[0]}, 9', f's_lshl_b32 {sT[2]}, {sT[2]}, 2', f's_add_u32 {sA}, {sA}, {sT[2]}', f's_add_u32 {sA}, {sA}, {sT[1]}', f's_mov_b32 {sR}, {sA}', f's_cmp_ge_u32 {sA}, 32', 's_cbranch_scc1 Lmst'])
st_aux0 = save_state()
AX = 131072
L_WR = AX; L_KEY = AX + 1536; L_KC = AX + 1792; L_P = AX + 2048; L_H = AX + 8192; L_XH = AX + 10240
l3 = vt[1]; l7 = vt[2]
sRg = S.alloc('ring'); sSo = S.alloc('so'); sWm = S.alloc('srdm', 4); sWD_ = S.alloc('srdd', 4); sKb = S.alloc('kb0')
vTw = V.alloc('tw', 4); aGo = V.alloc('ago', 4); aDo = V.alloc('ado', 4); vXa = V.alloc('xsa'); sX = S.alloc('srdx', 4); sNm = S.alloc('nm', 2, 1)
wf = AG.alloc('wf', 80); df = V.alloc('df', 64); xs = V.alloc('xs', 20); a16 = V.alloc('a16', 16)
def item(slot, voff, srd, sbase, soff, nt, tag):
    L = [f's_add_u32 m0, {sRg}, {slot * 4096}', f's_add_u32 {sSo}, {sbase}, {soff}' if sbase is not None else f's_mov_b32 {sSo}, {soff}']
    return L + [(f'buffer_load_dwordx4 {voff[j]}, {srd}, {sSo} offen' + (f' offset:{1024 * j}' if j else '') + f'{nt} lds', tag) for j in range(4)]
def offs4(dst, stride): return [f'v_xor_b32 {dst[1]}, 64, {dst[0]}', f'v_add_u32 {dst[1]}, {8 * stride - 1024}, {dst[1]}', f'v_add_u32 {dst[2]}, {16 * stride - 2048}, {dst[0]}',
                                f'v_add_u32 {dst[3]}, {16 * stride - 2048}, {dst[1]}']
sDb = S.alloc('db')
wsetup = [f'v_and_b32 {vt[4]}, 1, {vG}', f'v_lshlrev_b32 {vt[4]}, 1, {vt[4]}', f'v_xor_b32 {vt[4]}, {vt[4]}, {l7}', f'v_lshlrev_b32 {vt[4]}, 4, {vt[4]}',
          f'v_mul_u32_u24 {vt[5]}, 3456, {l3}', f's_lshl_b32 {sT[2]}, {sA}, 7', f'v_add3_u32 {aGo[0]}, {vt[5]}, {vt[4]}, {sT[2]}'] + offs4(aGo, 3456) + \
         [f's_mul_i32 {sKb}, {sW}, {32 * 3456}', f'v_mul_u32_u24 {vt[5]}, 1280, {l3}', f'v_add_u32 {aDo[0]}, {vt[5]}, {vt[4]}'] + offs4(aDo, 1280) + \
         [f's_mul_i32 {sDb}, {sA}, {64 * 1280}', f's_lshl_b32 {sT[2]}, {sWv}, 7', f's_add_u32 {sDb}, {sDb}, {sT[2]}']
rsetup = tr_parts(vTw[0], vt[5], vt[4], vt[6]) + [f'v_add3_u32 {vTw[0]}, {vTw[0]}, {vt[5]}, {sRg}', f'v_lshl_add_u32 {vTw[0]}, {vt[4]}, 3, {vTw[0]}'] + \
         [f'v_xor_b32 {vTw[t]}, {32 * t}, {vTw[0]}' for t in (1, 2, 3)] + \
         [f's_lshl_b32 {sT[0]}, {sW}, 6', f's_add_u32 {sT[0]}, {sT[0]}, {L_XH}', f'v_lshl_add_u32 {vXa}, {vG}, 4, {sT[0]}', f'v_min_u32 {vt[4]}, 2, {vTt}', f'v_mul_u32_u24 {vt[4]}, 1536, {vt[4]}',
          f'v_add_u32 {vXa}, {vXa}, {vt[4]}']
def W_item(i): return lambda slot: item(slot, aGo, sWm, sKb, i * 128 * 3456, NT['F'], ('w', i))
def D_item(i): return lambda slot: item(slot, aDo, sWD_, sDb, (i % 2) * 32 * 1280 + (i // 2) * 512, NT['F'], ('d', i))
def fr_reads(dst, slot): return [x for t in range(4) for x in trs(dst[4 * t:4 * t + 4], vTw[t], slot * 4096, 'fr')]
xaddr = []
stl = f'buffer_load_dwordx2 {a16[4:6]}, {a16[6]}, {sWS}, 0 offen sc1'
def fetch_x():
    return [f'v_mov_b32 {xs[i]}, 0x3f803f80' for i in range(4)] + [f'v_add_u32 {vt[0]}, {L_XH + 3072}, {vL16}', f'ds_write_b128 {vt[0]}, {xs[0:4]}', f'ds_write_b128 {vt[0]}, {xs[0:4]} offset:1024',
            ] + fstamp('fx') + poll_top2(a16[8:16], sNm[0], sNm[1], sT) + fstamp('fx') + [
            f's_and_b32 {sT[0]}, {sNm[0]}, 0x7ff', f's_sub_u32 {sT[0]}, 2047, {sT[0]}', f's_and_b32 {sT[1]}, {sNm[1]}, 0x7ff', f's_sub_u32 {sT[1]}, 2047, {sT[1]}',
            f's_mul_i32 {sT[2]}, {sT[0]}, 1280', f's_mul_i32 {sT[3]}, {sT[1]}, 1280', f's_mov_b32 m0, {L_XH}', f'v_mov_b32 {vt[0]}, {sT[0]}',
            ('R', f'buffer_load_dwordx4 {vL16}, {sX}, {sT[2]} offen lds'), f's_mov_b32 m0, {L_XH + 1536}', f'v_mov_b32 {vt[1]}, {sT[1]}',
            ('R', f'buffer_load_dwordx4 {vL16}, {sX}, {sT[3]} offen lds'), 's_mov_b64 exec, 0xffff',
            ('R', f'buffer_load_dwordx4 {vL16}, {sX}, {sT[3]} offen offset:1024 lds'), f's_mov_b32 m0, {L_XH}', 's_mov_b32 vcc_lo, 0xaaaaaaaa',
            ('R', f'buffer_load_dwordx4 {vL16}, {sX}, {sT[2]} offen offset:1024 lds'), 's_mov_b64 exec, 3',
            f'v_cndmask_b32 {vt[0]}, {vt[0]}, {vt[1]}, vcc', f'v_lshlrev_b32 {a16[6]}, 3, {vt[0]}', f'v_add_u32 {a16[6]}, {WS_STAT}, {a16[6]}', f'v_add_u32 {vt[5]}, {L_KC + 8}, {vL4}',
            ('L', 'Lxs_chk')] + spin_guard() + [('R', stl), 's_waitcnt vmcnt(0)', f'v_cmp_ne_u32 vcc, {sTag}, {a16[5]}', 's_cbranch_vccnz Lxs_chk',
            f'ds_write_b32 {vt[5]}, {a16[4]}', 's_mov_b64 exec, -1'] + cnt_arrive(L_KC + 4, vt[6], vt[3]) + fstamp('fx')
DP = opt('dp', 4)
def stream(D, n):
    items = [W_item(i) for i in range(5)] + D
    tags = [('w', i) for i in range(5)] + [('d', i) for i in range(len(D))]
    if n == 0:
        for i in range(DP): E(items[i](i))
        for i in range(5):
            E(W(tags[i]))
            if DP < 4 and i + DP < 7: E([W(lg='fr')] + items[i + DP]((i + DP) % 4))
            E(fr_reads(wf[16 * i:16 * i + 16], i % 4))
            if DP == 4 and i + DP < 7: E([W(lg='fr')] + items[i + DP]((i + DP) % 4))
            if i + DP == 4: E(cnt_arrive(L_KC, vt[7], vt[3]))
    else:
        for i in range(5):
            E([W(tags[i])] + fr_reads(wf[16 * i:16 * i + 16], i % 4))
            if i == 0: E([W(lg='fr')] + items[4](0))
        E([f's_cmp_lg_u32 {sWv}, 7', 's_cbranch_scc1 Lnofx'] + fetch_x() + [('L', 'Lnofx')] + cnt_wait(9, vt[7], vt[3], 2))
        D1 = opt('dp1', 4)
        for i in range(5, 9):
            if i - D1 >= 5: E(W(tags[i - D1]))
            E(items[i](i % 4))
E([f'v_lshrrev_b32 {l3}, 3, {vLane}', f'v_and_b32 {l7}, 7, {vLane}', f's_lshl_b32 {sRg}, {sWv}, 14', f's_cmp_eq_u32 {sH}, 0', 's_cbranch_scc0 Laux_u'])
st_aux = save_state()
sWR_ = S.alloc('srdwr', 4); aXo = xs[0:4]
E([f's_lshl_b32 {sT[0]}, {sR}, 6', f's_lshl_b32 {sT[1]}, {sW}, 4', f's_add_u32 {sT[0]}, {sT[0]}, {sT[1]}', f'v_add_u32 {vt[3]}, {sT[0]}, {l3}', f'v_mul_u32_u24 {vt[3]}, 1280, {vt[3]}',
   f'v_xor_b32 {vt[4]}, {l7}, {vG}', f'v_lshl_add_u32 {aXo[0]}, {vt[4]}, 4, {vt[3]}', f'v_add_u32 {aXo[0]}, {BIAS}, {aXo[0]}', f'v_xor_b32 {aXo[1]}, 64, {aXo[0]}',
   f'v_add_u32 {aXo[1]}, {8 * 1280 - 1024}, {aXo[1]}', f'v_subrev_u32 {aXo[2]}, {2048 - 128}, {aXo[0]}', f'v_subrev_u32 {aXo[3]}, {2048 - 128}, {aXo[1]}',
   's_waitcnt lgkmcnt(0)'] + mk_srd(sX, pX, 2048 * 1280, -BIAS) + mk_srd(sWR_, pWR, 1280) +
  [f's_mov_b32 m0, {L_WR}', 's_nop 0', f'buffer_load_dwordx4 {vL16}, {sWR_}, 0 offen lds', 's_mov_b64 exec, 0xffff', f'buffer_load_dwordx4 {vL16}, {sWR_}, 0 offen offset:1024 lds', 's_mov_b64 exec, -1'])
def X_item(i): return lambda slot: item(slot, aXo, sX, None, i * 256, NT['R'], ('x', i))
for i in range(4): E(X_item(i)(i))
vOnes = xs[4:8]; vRa = xs[8]; vXr = xs[10:12]; vDiag = xs[9]; vSt = xs[12:14]
sK1 = S.alloc('k1', 2); sK2 = S.alloc('k2', 2)
E(get_tag() + mk_srd(sWm, pWG, 640 * 3456) + mk_srd(sWD_, pWD, 1728 * 1280) + wsetup + xaddr +
  [f'v_mov_b32 {vOnes[i]}, 0x3f803f80' for i in range(4)] +
  [f'v_lshlrev_b32 {vRa}, 4, {vG}', f'v_add_u32 {vRa}, {L_WR}, {vRa}', f'v_lshrrev_b32 {vt[6]}, 1, {vTt}', f'v_xor_b32 {vt[6]}, {vt[6]}, {vG}', f'v_lshlrev_b32 {vt[6]}, 4, {vt[6]}',
   f'v_lshl_add_u32 {vt[6]}, {vTt}, 7, {vt[6]}', f'v_add_u32 {vXr[0]}, {sRg}, {vt[6]}', f'v_xor_b32 {vXr[1]}, 64, {vXr[0]}',
   f's_mov_b32 {sK1[0]}, 0xaaaaaaaa', f's_mov_b32 {sK1[1]}, 0xaaaaaaaa', f's_mov_b32 {sK2[0]}, 0xcccccccc', f's_mov_b32 {sK2[1]}, 0xcccccccc',
   f'v_lshrrev_b32 {vDiag}, 2, {vTt}', f'v_lshl_add_u32 {vDiag}, {vDiag}, 4, {vTt}', f'v_lshlrev_b32 {vDiag}, 2, {vDiag}',
   f's_lshl_b32 {sT[0]}, {sW}, 4', f'v_add_u32 {vt[6]}, {sT[0]}, {vTt}', f's_lshl_b32 {sT[1]}, {sR}, 6', f's_sub_u32 {sT[1]}, 2047, {sT[1]}', f'v_sub_u32 {xs[14]}, {sT[1]}, {vt[6]}', f'v_lshlrev_b32 {xs[15]}, 2, {vt[6]}', f'v_add_u32 {xs[15]}, {L_KEY}, {xs[15]}',
   f's_lshl_b32 {sT[0]}, {sR}, 9', f's_add_u32 {sT[0]}, {sT[0]}, {WS_STAT}', f'v_lshl_add_u32 {xs[16]}, {vt[6]}, 3, {sT[0]}'] + rsetup + [f'v_add_u32 {vt[0]}, {L_KC}, {vL4}', f'v_mov_b32 {vt[1]}, 0', f'ds_write_b32 {vt[0]}, {vt[1]}', 's_waitcnt lgkmcnt(0)'] + fin_tag())
rb_ = AG.alloc('rb', 32)
aSum, aSq, aDot, aSw = a16[0:4], a16[4:8], a16[8:12], a16[12:16]
nxt = [lambda slot: X_item(4)(slot) + ['s_barrier']] + [lambda slot: []] * 4
for i in range(5):
    slot = i % 4
    E(W(('x', i)))
    for q in range(4):
        E([f'ds_read_b128 {rb_[8 * q:8 * q + 4]}, {vXr[q % 2]} offset:{slot * 4096 + (q // 2) * 2048}', f'ds_read_b128 {rb_[8 * q + 4:8 * q + 8]}, {vRa} offset:{(4 * i + q) * 64}'])
    E([W(lg='all')] + nxt[i](slot))
    for q in range(4):
        x = rb_[8 * q:8 * q + 4]; r = rb_[8 * q + 4:8 * q + 8]
        E([f'{MFMA} {ac}, {a_}, {bb}, {0 if (i == 0 and q == 0) else ac}' for ac, a_, bb in ((aSq, x, x), (aSum, vOnes, x), (aDot, r, x), (aSw, r, vOnes))])
E(stamp() + stats(aSum[0], aSq, vSt, vt, vDiag, sK1, sK2) +
  [f'v_lshrrev_b32 {vt[4]}, 16, {vt[0]}', f'v_fma_f32 {vt[0]}, {vSt[0]}, {aSw[0]}, {aDot[0]}', f'v_mul_f32 {vt[0]}, {vt[0]}, {vSt[1]}', f'v_cvt_pk_bf16_f32 {vt[0]}, {vt[0]}, {vt[0]}',
   f'v_ashrrev_i32 {vt[1]}, 31, {vt[0]}', f'v_or_b32 {vt[1]}, 0x80000000, {vt[1]}', f'v_xor_b32 {vt[0]}, {vt[0]}, {vt[1]}', f'v_and_b32 {vt[0]}, 0xffff0000, {vt[0]}',
   f'v_or_b32 {vt[0]}, {vt[0]}, {xs[14]}', f'ds_write_b32 {xs[15]}, {vt[0]}'] + cnt_arrive(L_KC, vt[7], vt[3]) +
  [f'v_or_b32 {vt[4]}, {vt[4]}, {vSt[0]}', f'v_mov_b32 {vt[5]}, {sTag}', 's_mov_b64 exec, 0xffff', f'buffer_store_dwordx2 {vt[4:6]}, {xs[16]}, {sWS}, 0 offen sc1', 's_mov_b64 exec, -1'])
sKy0 = S.alloc('key0'); sKy1 = S.alloc('key1')
vmq = list(E.vm)
E([f's_cmp_lg_u32 {sW}, 0', 's_cbranch_scc1 Lpub_done', 's_setprio 3'] + cnt_wait(4, vt[7], vt[3]) + [f'v_add_u32 {vt[1]}, {L_KEY}, {vL4}', f'ds_read_b32 {vt[2]}, {vt[1]}', W(lg='all'), f'v_mov_b32 {vt[0]}, {vt[2]}'] +
  wave_max_u32(vt[0], sKy0, sT) + [f'v_cmp_eq_u32 vcc, {sKy0}, {vt[2]}', f'v_cndmask_b32 {vt[0]}, {vt[2]}, 0, vcc'] + wave_max_u32(vt[0], sKy1, sT) +
  [f'v_mov_b32 {a16[0]}, {sKy0}', f'v_mov_b32 {a16[1]}, {sTag}', f'v_mov_b32 {a16[2]}, {sKy1}', f'v_mov_b32 {a16[3]}, {sTag}', f's_lshl_b32 {sT[0]}, {sA}, 7', f's_add_u32 {sT[0]}, {sT[0]}, {WS_CD}',
   's_mov_b64 exec, 0xff', f'buffer_store_dwordx4 {a16[0:4]}, {vL16}, {sWS}, {sT[0]} offen sc1', 's_mov_b64 exec, -1'] + cnt_arrive(L_KC, vt[7], vt[3]) + signal() + ['s_setprio 0'] +
  [('L', 'Lpub_done')] + cnt_wait(5, vt[7], vt[3]) + stamp() + [f's_cmp_ge_u32 {sA}, 27', 's_cbranch_scc1 Lhelp_r' if opt('help', 1) else 's_cbranch_scc1 Lend'])
E.vm = vmq
stream([D_item(0), D_item(1)], 0)
E('s_branch Laux_mm')
aux_stamps = list(sST); aux_S = (dict(S.used), set(S.taken))
load_state(st_aux)
S.used, S.taken = dict(aux_S[0]), set(aux_S[1]); sST[:] = aux_stamps
A.label('Laux_u')
E([f's_cmp_ge_u32 {sA}, 27', 's_cbranch_scc1 Lend'] + wsetup + ['s_waitcnt lgkmcnt(0)'] + mk_srd(sWm, pWU, 640 * 3456))
NB0 = opt('nb0', 4)
sD2 = S.alloc('srdd2', 4)
E(get_tag() + mk_srd(sX, pX, 2048 * 1280) + mk_srd(sWD_, pWD, 1728 * 1280) + mk_srd(sD2, pWD, 1728 * 1280) + [f's_cmp_ge_u32 {sW}, 2', f's_cselect_b32 {sD2[2]}, 0, {sD2[2]}'] + xaddr + rsetup +
  ['s_waitcnt lgkmcnt(0)'] + fin_tag())
def D2_item(i): return lambda slot: item(slot, aDo, sD2, sDb, (i % 2) * 32 * 1280 + 512, NT['F'], ('d', i))
E([f's_cmp_lg_u32 {sWv}, 7', 's_cbranch_scc1 Lnop7', 's_setprio 3', ('L', 'Lnop7'), 's_barrier'])
for i in range(NB0): E(W_item(i)(i))
E([f'v_mov_b32 {vt[7]}, {L_KC}'] + cnt_wait(5, vt[7], vt[3], 4))
for i in range(NB0, 4): E(W_item(i)(i))
stream([D_item(0), D_item(1), D2_item(2), D2_item(3)], 1)
A.label('Laux_mm')
E(stamp() + [f'v_mov_b32 {vt[6]}, {L_KC + 4}'] + cnt_wait(1, vt[6], vt[3], 1) + [f'ds_read_b128 {xs[4 * i:4 * i + 4]}, {vXa} offset:{256 * i}' for i in range(5)] +
  [f'ds_read_b64 {a16[4:6]}, {vt[6]} offset:4', 's_waitcnt lgkmcnt(0)', f'v_readfirstlane_b32 {sNm[0]}, {a16[4]}', f'v_readfirstlane_b32 {sNm[1]}, {a16[5]}'] + stamp())
E([f'{MFMA} {a16[4 * t:4 * t + 4]}, {wf[16 * i + 4 * t:16 * i + 4 * t + 4]}, {xs[4 * i:4 * i + 4]}, {0 if i == 0 else a16[4 * t:4 * t + 4]}' for i in range(5) for t in range(4)])
E([f's_mul_i32 {sT[0]}, {sWv}, 768', f's_add_u32 {sT[0]}, {sT[0]}, {L_P}', f'v_lshlrev_b32 {vt[0]}, 8, {vTt}', f'v_lshl_add_u32 {vt[0]}, {vG}, 4, {vt[0]}', f'v_add_u32 {vt[0]}, {sT[0]}, {vt[0]}',
   f'v_add_u32 {vt[1]}, {L_P}, {vL4}', f's_lshl_b32 {sT[1]}, {sWv}, 8', f's_add_u32 {sT[1]}, {sT[1]}, {L_H}', f'v_lshl_add_u32 {vt[2]}, {vLane}, 1, {sT[1]}',
   f'v_and_b32 {vt[3]}, 1, {vLane}', f'v_lshlrev_b32 {vt[3]}, 7, {vt[3]}', f'v_lshl_add_u32 {vt[3]}, {vG}, 4, {vt[3]}', f'v_add_u32 {vt[3]}, {sT[1]}, {vt[3]}',
   f's_lshl_b32 {sT[2]}, {sNm[0]}, 16', f's_lshl_b32 {sT[3]}, {sNm[1]}, 16', f'v_rcp_f32 {vt[4]}, {sT[2]}', f'v_rcp_f32 {vt[5]}, {sT[3]}',
   f's_and_b32 {sNm[0]}, {sNm[0]}, 0xffff0000', f's_and_b32 {sNm[1]}, {sNm[1]}, 0xffff0000',
   's_mov_b32 exec_lo, 0x00070007', 's_mov_b32 exec_hi, 0x00070007'] + [f'ds_write_b128 {vt[0]}, {a16[4 * t:4 * t + 4]} offset:{64 * t}' for t in range(4)] +
  ['s_mov_b64 exec, -1', 's_waitcnt lgkmcnt(0)'] + fstamp('ax') + ['s_barrier'] + fstamp('ax'))
sG = [S.alloc(f'gm{i}', 2) for i in range(3)]
pr = [xs[i] for i in range(12)] + [a16[4 + i] for i in range(12)]
E([f'ds_read2st64_b32 {(xs if v < 6 else a16)[2 * v - (0 if v < 6 else 8):2 * v - (0 if v < 6 else 8) + 2]}, {vt[1]} offset0:{2 * v} offset1:{2 * v + 1}' for v in range(12)] +
  [f'v_cmp_eq_u32 {sG[i]}, {i + 1}, {vG}' for i in range(3)] +
  [f's_mul_i32 {sT[1]}, {sA}, 10', f's_add_u32 {sT[1]}, {sT[1]}, {sWv}', f's_lshl_b32 {sT[1]}, {sT[1]}, 10', f's_add_u32 {sT[1]}, {sT[1]}, {WS_Y}', 's_waitcnt lgkmcnt(0)'])
for b_ in (0, 12):
    for q in range(3):
        E([f'v_add_f32 {pr[b_ + q]}, {pr[b_ + q]}, {pr[b_ + 3 + q]}', f'v_add_f32 {pr[b_ + 6 + q]}, {pr[b_ + 6 + q]}, {pr[b_ + 9 + q]}', f'v_add_f32 {pr[b_ + q]}, {pr[b_ + q]}, {pr[b_ + 6 + q]}'])
for b_, d in ((0, a16[0:2]), (12, a16[8:10])):
    for tk in range(2): E([f'v_fmac_f32 {pr[b_ + tk]}, {sNm[tk]}, {pr[b_ + 2]}', f'v_mul_f32 {d[tk]}, {pr[b_ + tk]}, {vt[4 + tk]}'])
hA = xs[0:8]; vOut = xs[8:12]
E(round_pairs(a16[0:2], 2) + round_pairs(a16[8:10], 2) + silu_into(a16[2:4], a16[0:2], 2) + [f'v_mul_f32 {a16[2 + i]}, {a16[2 + i]}, {a16[8 + i]}' for i in range(2)] +
  [f'v_cvt_pk_bf16_f32 {a16[2]}, {a16[2]}, {a16[3]}', f'ds_write_b16 {vt[2]}, {a16[2]}', f'ds_write_b16_d16_hi {vt[2]}, {a16[2]} offset:128'] +
  [f'ds_read_b128 {hA[4 * kk:4 * kk + 4]}, {vt[3]} offset:{64 * kk}' for kk in range(2)] + [f'v_mov_b32 {vOut[1]}, {sTag}', f'v_mov_b32 {vOut[3]}, {sTag}'] + stamp() + fstamp('ax') + ['s_waitcnt vmcnt(0)'] + fstamp('ax'))
for it in range(2):
    if it: E([f's_sub_u32 {sT[0]}, {sWv}, 4', f's_cmp_ge_u32 {sT[0]}, 2', 's_cbranch_scc1 Laux_end', f's_add_u32 {sT[1]}, {sT[1]}, 4096'])
    E(fr_reads(df[32 * it:32 * it + 16], (2 * it + 1) % 4) + fr_reads(df[32 * it + 16:32 * it + 32], (2 * it + 2) % 4) + ['s_waitcnt lgkmcnt(0)'])
    E([f'{MFMA} {a16[4 * t:4 * t + 4]}, {hA[4 * kk:4 * kk + 4]}, {df[32 * it + 16 * kk + 4 * t:32 * it + 16 * kk + 4 * t + 4]}, {0 if kk == 0 else a16[4 * t:4 * t + 4]}' for kk in range(2) for t in range(4)])
    for q, r in ((0, 0), (2, 1)):
        E([f'v_cndmask_b32 {vOut[q]}, {a16[r]}, {a16[4 + r]}, {sG[0]}', f'v_cndmask_b32 {vOut[q]}, {vOut[q]}, {a16[8 + r]}, {sG[1]}', f'v_cndmask_b32 {vOut[q]}, {vOut[q]}, {a16[12 + r]}, {sG[2]}'])
    E(f'buffer_store_dwordx4 {vOut}, {vL16}, {sWS}, {sT[1]} offen sc1')
A.label('Laux_end')
write_stamps(opt('asw', 0), 'aux')
E('s_endpgm')
load_state(st_aux0)
A.label('Lmst')
sKy0 = S.alloc('key0'); sKy1 = S.alloc('key1')
E([f's_cmp_lg_u32 {sWv}, 0', 's_cbranch_scc1 Lhelp_i' if opt('help', 1) else 's_cbranch_scc1 Lend', 's_waitcnt lgkmcnt(0)'] + get_tag() + ['s_waitcnt lgkmcnt(0)'] + fin_tag() + signal() + [f's_cmp_lg_u32 {sA}, 32', 's_cbranch_scc1 Lend'])
E([('L', 'Lmst_bc')] + stamp(True) + poll_top2(vt, sKy0, sKy1, sT, 8) + stamp(True) + [f'v_mov_b32 {vt[4]}, {sKy0}', f'v_mov_b32 {vt[5]}, {sTag}', f'v_mov_b32 {vt[6]}, {sKy1}', f'v_mov_b32 {vt[7]}, {sTag}',
   f's_mov_b32 {sT[0]}, {WS_BC}'])
for i in range(3): E(f'buffer_store_dwordx4 {vt[4:8]}, {vL16}, {sWS}, {sT[0]} offen offset:{1024 * i} sc1')
if STAMPS:
    E(stamp(True)); write_stamps(0, 'master'); E('s_mov_b64 exec, -1')
if 'nomain' in OPTS: E('s_endpgm')
E([f's_mov_b32 {sT[0]}, {WS_SIG}', ('L', 'Lmaster')] + spin_guard() +
  ['s_sleep 16', f'buffer_load_dwordx4 {vt[0:4]}, {vL16}, {sWS}, {sT[0]} offen sc1', W('all')] + [f'v_xor_b32 {vt[i]}, {sTag}, {vt[i]}' for i in range(4)] +
  [f'v_or3_b32 {vt[0]}, {vt[0]}, {vt[1]}, {vt[2]}', f'v_or_b32 {vt[0]}, {vt[0]}, {vt[3]}', f'v_cmp_ne_u32 vcc, 0, {vt[0]}', 's_cbranch_vccnz Lmaster',
   's_mov_b64 exec, 1', f'buffer_store_dword {vt[5]}, {vt[0]}, {sWS}, 0 offen sc1'])
if opt('help', 1):
    S.used, S.taken = dict(aux_S[0]), set(aux_S[1]); sHd = S.alloc('srdh', 4)
    HR, HI = opt('hr', 4), opt('hi', 9)
    sQ = S.alloc('hq'); sQs = S.alloc('hqs')
    E(['s_endpgm', ('L', 'Lhelp_r'), f's_add_u32 {sQ}, {sA}, {3 * HI - 27}', f's_mov_b32 {sQs}, 5', f's_mov_b32 {sT[1]}, {HR}', 's_branch Lhelp',
       ('L', 'Lhelp_i'), f's_cmp_eq_u32 {sA}, 32', 's_cbranch_scc1 Lend', f's_cmp_eq_u32 {sH}, 0', 's_cbranch_scc1 Lend', f's_sub_u32 {sQ}, {sA}, 33', f's_mov_b32 {sQs}, 3', f's_mov_b32 {sT[1]}, {HI}',
       ('L', 'Lhelp'), f's_lshl_b32 {sT[2]}, {sW}, 6', f'v_add_u32 {vt[0]}, {sT[2]}, {vLane}', f'v_mul_u32_u24 {vt[0]}, 1280, {vt[0]}', 's_waitcnt lgkmcnt(0)'] +
      mk_srd(sHd, pWD, 1728 * 1280) + [('L', 'Lhelp2'), f's_mul_i32 {sT[2]}, {sQ}, 9363', f's_lshr_b32 {sT[2]}, {sT[2]}, 16', f's_mul_i32 {sT[3]}, {sT[2]}, 7', f's_sub_u32 {sT[3]}, {sQ}, {sT[3]}',
       f's_mul_i32 {sT[3]}, {sT[3]}, {256 * 1280}', f's_lshl_b32 {sT[2]}, {sT[2]}, 7', f's_sub_u32 {sT[3]}, {sT[3]}, {sT[2]}', f's_add_u32 {sT[3]}, {sT[3]}, {9 * 128}', f'v_add_u32 {vt[2]}, {sT[3]}, {vt[0]}',
       f'buffer_load_dword {vt[1]}, {vt[2]}, {sHd}, 0 offen', f's_add_u32 {sQ}, {sQ}, {sQs}', f's_sub_u32 {sT[1]}, {sT[1]}, 1', f's_cmp_lg_u32 {sT[1]}, 0', 's_cbranch_scc1 Lhelp2'])
if 'diag' in OPTS:
    E('s_endpgm')
    for i, w_ in enumerate(SITES):
        print('site', i + 1, w_, file=sys.stderr)
        E([('L', f'Lfail{i + 1}'), f's_mov_b32 {sT[0]}, {0x51000 + i + 1}', 's_branch Lfail'])
    E([('L', 'Lfail'), 's_mov_b64 exec, 1', f's_lshl_b32 {sT[1]}, s2, 5', f's_lshl_b32 {sT[2]}, {sWv}, 2', f's_add_u32 {sT[1]}, {sT[1]}, {sT[2]}', f's_add_u32 {sT[1]}, {sT[1]}, 0x6f0000',
       f'v_mov_b32 {vt[0]}, {sT[0]}', f'v_mov_b32 {vt[1]}, {sT[1]}', f'buffer_store_dword {vt[0]}, {vt[1]}, {sWS}, 0 offen'])
A.label('Lend')
A('s_endpgm')
A.raw(f'''.section .rodata,"a"
.p2align 6
.amdhsa_kernel {NAME}_kernel
  .amdhsa_next_free_vgpr 256
  .amdhsa_next_free_sgpr 102
  .amdhsa_accum_offset 128
  .amdhsa_group_segment_fixed_size 0
  .amdhsa_kernarg_size 88
  .amdhsa_user_sgpr_count 2
  .amdhsa_user_sgpr_kernarg_segment_ptr 1
  .amdhsa_system_sgpr_workgroup_id_x 1
  .amdhsa_float_denorm_mode_32 3
.end_amdhsa_kernel''')
txt = A.render()
open(sys.argv[1], 'w').write(txt)
print('lines', txt.count('\n'), 'nops added', A.nops_added, 'vmax', V.maxused, 'amax', AG.maxused, 'smax', S.maxused, file=sys.stderr)
```
